```python
import torch

def _softmax(x, axis=-1):
    return torch.softmax(x, dim=axis)
def _gelu(x):
    return torch.nn.functional.gelu(x, approximate="tanh")
def _silu(x):
    return torch.nn.functional.silu(x)
def _sigmoid(x):
    return torch.sigmoid(x)
def _layernorm(x, axis=-1, eps=1e-5):
    m = x.mean(dim=axis, keepdim=True)
    v = x.var(dim=axis, keepdim=True, unbiased=False)
    return (x - m) / torch.sqrt(v + eps)
def _scatter_add(tgt, idx, src, axis=0):
    return tgt.clone().index_add_(axis, idx, src)
def _segment_sum(src, seg, n):
    out = torch.zeros((n,) + src.shape[1:], dtype=src.dtype)
    return out.index_add_(0, seg, src)
def _pad(x, pw):
    flat = tuple(v for pair in reversed(pw) for v in pair)
    return torch.nn.functional.pad(x, flat)

kernel_name = 'gated_mix__ssm_conv_s4__ssm_conv_h3__prompt'

def setup_inputs():

    _w = (lambda a: (lambda t: t.to(torch.bfloat16) if t.is_floating_point() else t)(torch.as_tensor(a)))
    def _A_setup():
        B, L, D, N = 1, 2048, 512, 128
        A_re = -(lambda _x: torch.exp(torch.as_tensor(_x)))((lambda *s: torch.randn(*s, dtype=torch.bfloat16) * 6.4)(D, N))
        A_im = torch.pi * (lambda *s: torch.randn(*s, dtype=torch.bfloat16) * 0.05)(D, N)
        B_re = (lambda *s: torch.randn(*s, dtype=torch.bfloat16) * 0.1)(D, N)
        B_im = (lambda *s: torch.randn(*s, dtype=torch.bfloat16) * 0.1)(D, N)
        C_re = (lambda *s: torch.randn(*s, dtype=torch.bfloat16) * 0.1)(D, N)
        C_im = (lambda *s: torch.randn(*s, dtype=torch.bfloat16) * 0.1)(D, N)
        log_dt = (lambda *s: torch.randn(*s, dtype=torch.bfloat16) * 0.05)(D) * 0.5 - 4.0
        Dskip = (lambda *s: torch.randn(*s, dtype=torch.bfloat16) * 0.05)(D)
        return {
            "u": _w((lambda *s: torch.randn(*s, dtype=torch.bfloat16) * 0.05)(B, L, D)),
            "A_re": _w(A_re),
            "A_im": _w(A_im),
            "B_re": _w(B_re),
            "B_im": _w(B_im),
            "C_re": _w(C_re),
            "C_im": _w(C_im),
            "log_dt": _w(log_dt),
            "Dskip": _w(Dskip),
        }
    _A_in = _A_setup()

    def _B_setup():
        B, S, D = 1, 2048, 512
        ks = 4
        return {
            "q": _w((lambda *s: torch.randn(*s, dtype=torch.bfloat16) * 0.05)(B, S, D)),
            "k": _w((lambda *s: torch.randn(*s, dtype=torch.bfloat16) * 0.4)(B, S, D)),
            "v": _w((lambda *s: torch.randn(*s, dtype=torch.bfloat16) * 0.4)(B, S, D)),
            "shift_k": _w((lambda *s: torch.randn(*s, dtype=torch.bfloat16) * 0.4)(D, ks) * 0.5),
            "ssm_k": _w((lambda *s: torch.randn(*s, dtype=torch.bfloat16) * 0.4)(D, S) * (1.0 / S ** 0.5)),
            "ssm_D": _w((lambda *s: torch.randn(*s, dtype=torch.bfloat16) * 0.4)(D)),
        }
    _B_in = _B_setup()

    return {
        "A_u": _A_in["u"],
        "A_A_re": _A_in["A_re"],
        "A_A_im": _A_in["A_im"],
        "A_B_re": _A_in["B_re"],
        "A_B_im": _A_in["B_im"],
        "A_C_re": _A_in["C_re"],
        "A_C_im": _A_in["C_im"],
        "A_log_dt": _A_in["log_dt"],
        "A_Dskip": _A_in["Dskip"],
        "B_q": _B_in["q"],
        "B_k": _B_in["k"],
        "B_v": _B_in["v"],
        "B_shift_k": _B_in["shift_k"],
        "B_ssm_k": _B_in["ssm_k"],
        "B_ssm_D": _B_in["ssm_D"],
        "gate_w": _w((lambda *s: torch.randn(*s, dtype=torch.bfloat16) * 0.05)(512) * 16.0),
    }

def reference(A_u, A_A_re, A_A_im, A_B_re, A_B_im, A_C_re, A_C_im, A_log_dt, A_Dskip, B_q, B_k, B_v, B_shift_k, B_ssm_k, B_ssm_D, gate_w):
    def _A_ref(u, A_re, A_im, B_re, B_im, C_re, C_im, log_dt, Dskip):
        Bsz, L, D = u.shape
        dt = torch.exp(log_dt)[:, None]
        A = A_re + 1j * A_im
        Bc = B_re + 1j * B_im
        Cc = C_re + 1j * C_im
        logdA = dt * A
        dB = dt * Bc
        l = (lambda x, dt: x.to(dt))(torch.arange(L), A_re.dtype)
        P = torch.exp(logdA[:, :, None] * l[None, None, :])
        K = torch.einsum("dn,dnl,dn->dl", Cc, P, dB).real
        L2 = 2 * L
        Kp = _pad(K, ((0, 0), (0, L)))
        up = (lambda x, *d: x.permute(*d))(u, 0, 2, 1)
        up = _pad(up, ((0, 0), (0, 0), (0, L)))
        Kf = (lambda x, axes=(-2,-1): torch.fft.rfft2(x.float(), dim=axes))(Kp[:, None, :], axes=(-2, -1))
        Uf = (lambda x, axes=(-2,-1): torch.fft.rfft2(x.float(), dim=axes))(up[:, :, None, :], axes=(-2, -1))
        Yf = Uf * Kf[None, :, :, :]
        y = (lambda x, s, axes=(-2,-1): torch.fft.irfft2(x, s=s, dim=axes).to(torch.bfloat16))(Yf, (1, L2), axes=(-2, -1))[:, :, 0, :L]
        y = (lambda x, *d: x.permute(*d))(y, 0, 2, 1) + u * Dskip[None, None, :]
        return y

    def _B_ref(q, k, v, shift_k, ssm_k, ssm_D):
        B, S, D = q.shape
        ks = shift_k.shape[-1]
        k_pad = _pad(k, ((0, 0), (ks - 1, 0), (0, 0)))
        k_shift = torch.zeros_like(k)
        for t in range(ks):
            k_shift = k_shift + k_pad[:, t:t + S, :] * shift_k[:, ks - 1 - t][None, None, :]
        kv = k_shift * v
        L = 2 * S
        kv_pad = _pad(kv, ((0, 0), (0, S), (0, 0)))
        kf_pad = _pad(ssm_k, ((0, 0), (0, S)))
        kv_f = (lambda x, axes=(-2,-1): torch.fft.rfft2(x.float(), dim=axes))(kv_pad[:, None, :, :], axes=(1, 2))
        kf_f = (lambda x, axes=(-2,-1): torch.fft.rfft2(x.float(), dim=axes))(kf_pad[:, None, :], axes=(1, 2))
        kf_f = (lambda x, *d: x.permute(*d))(kf_f, 1, 2, 0)
        y_f = kv_f * kf_f[None, :, :, :]
        y = (lambda x, s, axes=(-2,-1): torch.fft.irfft2(x, s=s, dim=axes).to(torch.bfloat16))(y_f, (1, L), axes=(1, 2))[:, 0, :S, :]
        y = y + kv * ssm_D[None, None, :]
        return q * y

    x = A_u
    g = _sigmoid((x * gate_w).sum(-1, keepdims=True))
    a = _A_ref(x, A_A_re, A_A_im, A_B_re, A_B_im, A_C_re, A_C_im, A_log_dt, A_Dskip)
    b = _B_ref(x, B_k, B_v, B_shift_k, B_ssm_k, B_ssm_D)
    return g * a + (1 - g) * b
```

```python
import sys

NAME = "gated_mix__ssm_conv_s4__ssm_conv_h3__prompt"
HEADER = open("cdna_kernels/%s.s.ref" % NAME).read().split("; Override launch")[0]

out = []
def E(s=""):
    out.append("    " + s if s and not s.endswith(":") else s)
def L(s):
    out.append(s + ":")
def C(s):
    out.append("    ; " + s)

WS_Z = 0
WS_K = 4 << 20
WS_G = 8 << 20
WS_SIZE = (8 << 20) + 8192

def srd(sd, sp, nbytes):
    E(f"s_mov_b32 s{sd}, s{sp}")
    E(f"s_and_b32 s{sd+1}, s{sp+1}, 0xffff")
    E(f"s_mov_b32 s{sd+2}, {hex(nbytes)}")
    E(f"s_mov_b32 s{sd+3}, 0x00020000")

def kd(name, vgpr, sgpr):
    acc = (vgpr + 3) // 4 * 4
    return f""".amdhsa_kernel {name}
  .amdhsa_next_free_vgpr {vgpr}
  .amdhsa_next_free_sgpr {sgpr}
  .amdhsa_accum_offset {acc}
  .amdhsa_group_segment_fixed_size 0
  .amdhsa_kernarg_size 152
  .amdhsa_user_sgpr_count 2
  .amdhsa_user_sgpr_kernarg_segment_ptr 1
  .amdhsa_system_sgpr_workgroup_id_x 1
  .amdhsa_float_denorm_mode_32 3
.end_amdhsa_kernel"""

K1_KT = 0
K1_P = 24576
K1_T = 28672
K1_LDS = 28672 + 8 * 2304

def gen_k1():
    name = "prep_kernel"
    out.append(f".globl {name}\n.p2align 8\n.type {name},@function")
    L(name)
    E("s_cmp_ge_u32 s2, 256")
    E("s_cbranch_scc1 K1_end")
    E("v_lshrrev_b32 v1, 6, v0")
    E("s_load_dwordx2 s[40:41], s[0:1], 144")
    E("v_readfirstlane_b32 s3, v1")
    E("v_and_b32 v1, 63, v0")
    E("s_cmp_ge_u32 s3, 8")
    E("s_cbranch_scc1 K1_tile")
    C("K generation waves")
    E("s_load_dwordx8 s[4:11], s[0:1], 8")
    E("s_load_dwordx4 s[12:15], s[0:1], 40")
    E("s_load_dwordx2 s[16:17], s[0:1], 56")
    E("s_and_b32 s18, s2, 7")
    E("s_lshl_b32 s18, s18, 5")
    E("s_lshr_b32 s19, s2, 3")
    E("s_add_u32 s18, s18, s19")
    E("s_lshr_b32 s19, s3, 2")
    E("s_and_b32 s20, s3, 3")
    E("v_mul_u32_u24 v2, 48, v0")
    E("v_mov_b32 v4, 0")
    E("v_mov_b32 v5, 0")
    E("v_mov_b32 v6, 0")
    E("v_mov_b32 v7, 0")
    E("ds_write_b128 v2, v[4:7]")
    E("ds_write_b128 v2, v[4:7] offset:16")
    E("ds_write_b128 v2, v[4:7] offset:32")
    E("s_lshl_b32 s21, s18, 1")
    E("s_add_u32 s21, s21, s19")
    E("s_lshl_b32 s22, s21, 8")
    E("s_lshl_b32 s23, s20, 6")
    E("s_add_u32 s22, s22, s23")
    E("v_and_b32 v2, 31, v1")
    E("v_lshlrev_b32 v3, 1, v2")
    E("v_add_u32 v3, s22, v3")
    E("s_waitcnt lgkmcnt(0)")
    E("s_lshl_b32 s23, s18, 2")
    E("s_load_dword s24, s[16:17], s23")
    for i, sp in enumerate([4, 6, 8, 10, 12, 14]):
        srd(44 + 4 * i, sp, 131072)
    for i in range(6):
        E(f"buffer_load_ushort v{8+i}, v3, s[{44+4*i}:{47+4*i}], 0 offen")
    srd(68, 40, WS_SIZE)
    E("s_barrier")
    E("v_and_b32 v20, 15, v1")
    E("v_lshrrev_b32 v21, 4, v1")
    E("v_lshrrev_b32 v22, 3, v20")
    E("v_and_b32 v23, 7, v20")
    E("v_lshl_add_u32 v22, v22, 7, v23")
    E("v_cvt_f32_u32 v24, v22")
    E("s_mov_b32 s26, 0x02040200")
    E("s_mov_b32 s27, 0x06000400")
    E("s_mov_b32 s28, 0x01800100")
    E("s_mov_b32 s29, 0x0a000800")
    E("s_mov_b32 s30, 0x00020002")
    E("s_mov_b32 s31, 0x00800080")
    E("v_lshrrev_b32 v22, 2, v20")
    E("v_lshlrev_b32 v22, 4, v22")
    E("v_and_b32 v23, 3, v20")
    E("v_lshrrev_b64 v[28:29], v22, s[26:27]")
    E("v_and_b32 v28, 0xffff, v28")
    E("v_lshl_add_u32 v28, v23, 7, v28")
    E("v_cvt_f32_u32 v25, v28")
    E("v_lshrrev_b64 v[28:29], v22, s[28:29]")
    E("v_and_b32 v28, 0xffff, v28")
    E("v_lshrrev_b64 v[30:31], v22, s[30:31]")
    E("v_and_b32 v30, 0xffff, v30")
    E("v_mad_u32_u24 v28, v23, v30, v28")
    E("v_cvt_f32_u32 v26, v28")
    E("v_lshlrev_b32 v22, 3, v20")
    E("v_cvt_f32_u32 v27, v22")
    E("s_mul_i32 s25, s19, 12288")
    E("v_lshlrev_b32 v32, 5, v20")
    E("v_add_u32 v32, s25, v32")
    E("v_lshrrev_b32 v22, 1, v21")
    E("v_and_b32 v23, 1, v21")
    E("v_lshlrev_b32 v22, 9, v22")
    E("v_lshl_add_u32 v22, v23, 4, v22")
    E("v_add_u32 v33, v32, v22")
    E("v_lshlrev_b32 v22, 4, v21")
    E("v_lshrrev_b64 v[28:29], v22, s[26:27]")
    E("v_and_b32 v28, 0xffff, v28")
    E("v_lshl_add_u32 v34, v28, 2, v32")
    E("v_lshrrev_b64 v[28:29], v22, s[28:29]")
    E("v_and_b32 v28, 0xffff, v28")
    E("v_lshl_add_u32 v35, v28, 2, v32")
    E("v_lshrrev_b64 v[30:31], v22, s[30:31]")
    E("v_and_b32 v30, 0xffff, v30")
    E("v_lshlrev_b32 v30, 2, v30")
    E("v_add_u32 v36, v35, v30")
    E("v_add_u32 v37, v36, v30")
    E("v_add_u32 v38, v37, v30")
    E("s_waitcnt lgkmcnt(0)")
    E("s_lshl_b32 s25, s24, 16")
    E("s_and_b32 s24, s24, 0xffff0000")
    E("s_cmp_eq_u32 s19, 0")
    E("s_cselect_b32 s24, s25, s24")
    E("v_mov_b32 v40, 0x3fb8aa3b")
    E("v_mul_f32 v41, s24, v40")
    E("v_exp_f32 v41, v41")
    E("s_nop 0")
    E("v_cvt_pk_bf16_f32 v41, v41, v41")
    E("v_lshlrev_b32 v41, 16, v41")
    E("s_waitcnt vmcnt(0)")
    for i in range(6):
        E(f"v_lshlrev_b32 v{8+i}, 16, v{8+i}")
    E("v_mul_f32 v8, v41, v8")
    E("v_mul_f32 v9, v41, v9")
    E("v_mul_f32 v10, v41, v10")
    E("v_mul_f32 v11, v41, v11")
    E("v_mul_f32 v44, v40, v8")
    E("v_mul_f32 v45, 0.15915494, v9")
    E("v_mul_f32 v46, v12, v10")
    E("v_fma_f32 v46, -v13, v11, v46")
    E("v_mul_f32 v47, v12, v11")
    E("v_fma_f32 v47, v13, v10, v47")
    E("s_lshl_b32 s25, s3, 9")
    E(f"s_add_u32 s25, s25, {K1_P}")
    E("v_lshl_add_u32 v42, v2, 4, s25")
    E("ds_write_b128 v42, v[44:47]")
    E("v_lshl_add_u32 v43, v21, 5, s25")
    for r in range(48, 60):
        E(f"v_mov_b32 v{r}, 0")
    E("s_waitcnt lgkmcnt(0)")
    E("ds_read_b128 v[60:63], v43")
    E("ds_read_b128 v[64:67], v43 offset:16")
    E("s_mov_b32 s25, 0")
    E("s_mov_b32 s32, 0xffff0000")
    L("K1_loop")
    E("s_waitcnt lgkmcnt(0)")
    for r in range(8):
        E(f"v_mov_b32 v{68+r}, v{60+r}")
    E("v_add_u32 v43, 128, v43")
    E("ds_read_b128 v[60:63], v43")
    E("ds_read_b128 v[64:67], v43 offset:16")
    for nn in range(2):
        zr, zi, cbr, cbi = 68 + 4 * nn, 69 + 4 * nn, 70 + 4 * nn, 71 + 4 * nn
        for k in range(4):
            R = 24 + k
            t = 96 + 4 * k
            E(f"v_mul_f32 v{t}, v{zr}, v{R}")
            E(f"v_mul_f32 v{t+1}, v{zi}, v{R}")
        for k in range(4):
            t = 96 + 4 * k
            E(f"v_exp_f32 v{t}, v{t}")
            E(f"v_fract_f32 v{t+1}, v{t+1}")
        for k in range(4):
            t = 96 + 4 * k
            E(f"v_cos_f32 v{t+2}, v{t+1}")
            E(f"v_sin_f32 v{t+3}, v{t+1}")
        E("s_nop 0")
        for k in range(4):
            t = 96 + 4 * k
            E(f"v_mul_f32 v{t+2}, v{t}, v{t+2}")
            E(f"v_mul_f32 v{t+3}, v{t}, v{t+3}")
        t = 96 + 12
        E(f"v_mul_f32 v{t}, v{cbr}, v{t+2}")
        E(f"v_mul_f32 v{t+1}, v{cbr}, v{t+3}")
        E(f"v_fma_f32 v{t}, -v{cbi}, v{t+3}, v{t}")
        E(f"v_fma_f32 v{t+3}, -v{cbi}, v{t+2}, -v{t+1}")
        E(f"v_mov_b32 v{t+2}, v{t}")
        for k in range(4):
            t = 96 + 4 * k
            hi = (80 + 2 * k + nn) if k < 3 else (92 + nn)
            lo = (86 + 2 * k + nn) if k < 3 else (94 + nn)
            E(f"v_cvt_pk_bf16_f32 v{hi}, v{t+2}, v{t+3}")
            E(f"v_lshlrev_b32 v{t}, 16, v{hi}")
            E(f"v_and_b32 v{t+1}, s32, v{hi}")
            E(f"v_sub_f32 v{t}, v{t+2}, v{t}")
            E(f"v_sub_f32 v{t+1}, v{t+3}, v{t+1}")
            E(f"v_cvt_pk_bf16_f32 v{lo}, v{t}, v{t+1}")
    E("s_add_u32 s25, s25, 1")
    E("s_cmp_lt_u32 s25, 4")
    for k in range(3):
        a = 48 + 4 * k
        E(f"v_mfma_f32_16x16x16_bf16 v[{a}:{a+3}], v[{80+2*k}:{81+2*k}], v[92:93], v[{a}:{a+3}]")
        E(f"v_mfma_f32_16x16x16_bf16 v[{a}:{a+3}], v[{80+2*k}:{81+2*k}], v[94:95], v[{a}:{a+3}]")
        E(f"v_mfma_f32_16x16x16_bf16 v[{a}:{a+3}], v[{86+2*k}:{87+2*k}], v[92:93], v[{a}:{a+3}]")
    E("s_cbranch_scc1 K1_loop")
    E("s_waitcnt lgkmcnt(0)")
    E("v_and_b32 v60, 255, v0")
    E("v_lshlrev_b32 v60, 3, v60")
    E("v_lshrrev_b32 v61, 8, v0")
    E("v_mul_u32_u24 v61, 12288, v61")
    for e in range(0, 8, 2):
        E(f"v_add_u32 v62, {e}, v60")
        E(f"v_add_u32 v63, {e+1}, v60")
        E("v_cvt_f32_u32 v62, v62")
        E("v_cvt_f32_u32 v63, v63")
        E("v_cvt_pk_bf16_f32 v62, v62, v63")
        E("v_and_b32 v63, s32, v62")
        E("v_lshlrev_b32 v62, 16, v62")
        E("v_cvt_u32_f32 v62, v62")
        E("v_cvt_u32_f32 v63, v63")
        E(f"v_lshl_add_u32 v{64+e}, v62, 2, v61")
        E(f"v_lshl_add_u32 v{65+e}, v63, 2, v61")
    for e in range(4):
        E(f"ds_add_f32 v33, v{48+e} offset:{4*e}")
    for e in range(4):
        E(f"ds_add_f32 v34, v{52+e} offset:{512*e}")
    for e in range(4):
        E(f"ds_add_f32 v{35+e}, v{56+e}")
    E("s_lshl_b32 s25, s18, 14")
    E(f"s_add_u32 s25, s25, {WS_K}")
    E("v_lshrrev_b32 v61, 8, v0")
    E("v_lshlrev_b32 v61, 13, v61")
    E("v_lshl_add_u32 v61, v60, 1, v61")
    E("s_waitcnt lgkmcnt(0)")
    E("s_barrier")
    for e in range(8):
        E(f"ds_read_b32 v{72+e}, v{64+e}")
    for e in range(0, 8, 2):
        E(f"s_waitcnt lgkmcnt({6-e})")
        E(f"v_cvt_pk_bf16_f32 v{80+e//2}, v{72+e}, v{73+e}")
        E(f"v_lshlrev_b32 v62, 16, v{80+e//2}")
        E(f"v_and_b32 v63, s32, v{80+e//2}")
        E(f"v_sub_f32 v62, v{72+e}, v62")
        E(f"v_sub_f32 v63, v{73+e}, v63")
        E(f"v_cvt_pk_bf16_f32 v{84+e//2}, v62, v63")
    E("buffer_store_dwordx4 v[80:83], v61, s[68:71], s25 offen")
    E("s_add_u32 s25, s25, 4096")
    E("buffer_store_dwordx4 v[84:87], v61, s[68:71], s25 offen")
    E("s_endpgm")
    L("K1_tile")
    C("tile transpose + gate waves")
    E("s_load_dwordx2 s[4:5], s[0:1], 0")
    E("s_load_dwordx4 s[8:11], s[0:1], 80")
    E("s_load_dwordx2 s[12:13], s[0:1], 96")
    E("s_load_dwordx2 s[14:15], s[0:1], 120")
    E("s_sub_u32 s3, s3, 8")
    E("s_and_b32 s18, s2, 7")
    E("s_lshl_b32 s18, s18, 2")
    E("s_bfe_u32 s19, s2, 0x20003")
    E("s_add_u32 s18, s18, s19")
    E("s_lshr_b32 s19, s2, 5")
    E("s_and_b32 s20, s3, 3")
    E("s_lshr_b32 s21, s3, 2")
    E("s_lshl_b32 s22, s18, 6")
    E("s_add_u32 s22, s22, s20")
    E("s_lshl_b32 s23, s21, 5")
    E("s_add_u32 s22, s22, s23")
    E("s_lshl_b32 s22, s22, 10")
    E("s_lshl_b32 s23, s19, 7")
    E("s_add_u32 s22, s22, s23")
    E("v_lshrrev_b32 v2, 3, v1")
    E("v_and_b32 v3, 7, v1")
    E("v_lshlrev_b32 v4, 12, v2")
    E("v_lshl_add_u32 v4, v3, 4, v4")
    E("v_add_u32 v4, s22, v4")
    E("v_subrev_u32 v5, 1024, v4")
    E("v_subrev_u32 v6, 2048, v4")
    E("v_subrev_u32 v7, 3072, v4")
    E("s_lshl_b32 s23, s19, 9")
    E("v_lshl_add_u32 v8, v3, 6, s23")
    E("s_lshl_b32 s23, s18, 6")
    E("s_lshl_b32 s24, s19, 3")
    E("s_add_u32 s23, s23, s24")
    E("s_add_u32 s23, s23, s3")
    E("s_lshl_b32 s24, s23, 10")
    E("v_lshlrev_b32 v9, 4, v1")
    E("s_waitcnt lgkmcnt(0)")
    srd(44, 4, 2 << 20)
    srd(48, 8, 2 << 20)
    srd(52, 10, 2 << 20)
    srd(56, 12, 4096)
    srd(60, 14, 1024)
    srd(68, 40, WS_SIZE)
    E("buffer_load_dwordx4 v[12:15], v4, s[48:51], 0 offen")
    E("buffer_load_dwordx4 v[16:19], v5, s[48:51], 0 offen")
    E("buffer_load_dwordx4 v[20:23], v6, s[48:51], 0 offen")
    E("buffer_load_dwordx4 v[24:27], v7, s[48:51], 0 offen")
    E("buffer_load_dwordx4 v[28:31], v4, s[52:55], 0 offen")
    for i in range(4):
        E(f"buffer_load_dwordx4 v[{40+4*i}:{43+4*i}], v8, s[56:59], 0 offen offset:{16*i}")
    E("buffer_load_dwordx4 v[32:35], v4, s[44:47], 0 offen")
    E("buffer_load_dwordx4 v[56:59], v9, s[44:47], s24 offen")
    E("buffer_load_dwordx4 v[60:63], v9, s[60:63], 0 offen")
    E("s_barrier")
    E("s_mov_b32 s32, 0xffff0000")
    E("s_mul_i32 s25, s3, 2304")
    E(f"s_add_u32 s25, s25, {K1_T}")
    E("v_mul_u32_u24 v10, 144, v2")
    E("v_lshl_add_u32 v10, v3, 4, v10")
    E("v_add_u32 v10, s25, v10")
    E("v_lshrrev_b32 v64, 4, v1")
    E("v_and_b32 v65, 1, v64")
    E("v_lshrrev_b32 v64, 1, v64")
    E("v_bfe_u32 v66, v1, 2, 2")
    E("v_and_b32 v67, 3, v1")
    E("v_mul_u32_u24 v11, 1152, v65")
    E("v_mul_u32_u24 v66, 144, v66")
    E("v_add_u32 v11, v11, v66")
    E("v_lshl_add_u32 v11, v64, 5, v11")
    E("v_lshl_add_u32 v11, v67, 3, v11")
    E("v_add_u32 v11, s25, v11")
    E("v_and_b32 v66, 15, v1")
    E("v_lshl_add_u32 v66, v64, 4, v66")
    E("v_lshrrev_b32 v67, 1, v66")
    E("v_and_b32 v66, 1, v66")
    E("v_lshlrev_b32 v67, 14, v67")
    E("v_lshl_add_u32 v67, v66, 4, v67")
    E("v_lshl_add_u32 v67, v65, 5, v67")
    E("s_lshl_b32 s26, s19, 19")
    E("s_lshl_b32 s27, s18, 9")
    E("s_add_u32 s26, s26, s27")
    E("s_lshl_b32 s27, s20, 7")
    E("s_add_u32 s26, s26, s27")
    E("s_lshl_b32 s27, s21, 6")
    E("s_add_u32 s26, s26, s27")
    E("s_add_u32 s27, s26, 0x40000")
    E("s_waitcnt vmcnt(3)")
    for i in range(4):
        c0, c1 = 2 * i, 2 * i + 1
        taps = [(24 + i, 41, True), (20 + i, 41, False), (16 + i, 40, True), (12 + i, 40, False)]
        for ti, (kr, sb, hi) in enumerate(taps):
            E(f"v_lshlrev_b32 v70, 16, v{kr}")
            E(f"v_and_b32 v71, s32, v{kr}")
            if hi:
                E(f"v_and_b32 v72, s32, v{sb+2*c0}")
                E(f"v_and_b32 v73, s32, v{sb+2*c1}")
            else:
                E(f"v_lshlrev_b32 v72, 16, v{sb+2*c0}")
                E(f"v_lshlrev_b32 v73, 16, v{sb+2*c1}")
            E("v_mul_f32 v70, v70, v72")
            E("v_mul_f32 v71, v71, v73")
            E("v_cvt_pk_bf16_f32 v70, v70, v71")
            if ti == 0:
                E("v_lshlrev_b32 v74, 16, v70")
                E("v_and_b32 v75, s32, v70")
            else:
                E("v_and_b32 v71, s32, v70")
                E("v_lshlrev_b32 v70, 16, v70")
                E("v_add_f32 v74, v74, v70")
                E("v_add_f32 v75, v75, v71")
                E("v_cvt_pk_bf16_f32 v74, v74, v75")
                E("v_and_b32 v75, s32, v74")
                E("v_lshlrev_b32 v74, 16, v74")
        E(f"v_lshlrev_b32 v70, 16, v{28+i}")
        E(f"v_and_b32 v71, s32, v{28+i}")
        E("v_mul_f32 v74, v74, v70")
        E("v_mul_f32 v75, v75, v71")
        E(f"v_cvt_pk_bf16_f32 v{36+i}, v74, v75")
    E("ds_write_b128 v10, v[36:39] offset:1152")
    E("s_waitcnt vmcnt(2)")
    E("ds_write_b128 v10, v[32:35]")
    E("s_waitcnt lgkmcnt(0)")
    E("ds_read_b64_tr_b16 v[76:77], v11")
    E("ds_read_b64_tr_b16 v[78:79], v11 offset:576")
    E("ds_read_b64_tr_b16 v[80:81], v11 offset:64")
    E("ds_read_b64_tr_b16 v[82:83], v11 offset:640")
    E("s_waitcnt lgkmcnt(2)")
    E("buffer_store_dwordx4 v[76:79], v67, s[68:71], s26 offen")
    E("s_waitcnt lgkmcnt(0)")
    E("buffer_store_dwordx4 v[80:83], v67, s[68:71], s27 offen")
    E("s_waitcnt vmcnt(2)")
    for i in range(4):
        E(f"v_lshlrev_b32 v70, 16, v{56+i}")
        E(f"v_and_b32 v71, s32, v{56+i}")
        E(f"v_lshlrev_b32 v72, 16, v{60+i}")
        E(f"v_and_b32 v73, s32, v{60+i}")
        E("v_mul_f32 v70, v70, v72")
        E("v_mul_f32 v71, v71, v73")
        E("v_cvt_pk_bf16_f32 v70, v70, v71")
        E("v_and_b32 v71, s32, v70")
        E("v_lshlrev_b32 v70, 16, v70")
        if i == 0:
            E("v_add_f32 v74, v70, v71")
        else:
            E("v_add_f32 v74, v74, v70")
            E("v_add_f32 v74, v74, v71")
    for dpp in ["row_shr:1", "row_shr:2", "row_shr:4", "row_shr:8"]:
        E("s_nop 1")
        E(f"v_add_f32_dpp v74, v74, v74 {dpp} row_mask:0xf bank_mask:0xf bound_ctrl:0")
    E("s_nop 1")
    E("v_add_f32_dpp v74, v74, v74 row_bcast:15 row_mask:0xa bank_mask:0xf")
    E("s_nop 1")
    E("v_add_f32_dpp v74, v74, v74 row_bcast:31 row_mask:0xc bank_mask:0xf")
    E("s_nop 1")
    E("v_cvt_pk_bf16_f32 v74, v74, v74")
    E("v_lshlrev_b32 v74, 16, v74")
    E("v_mul_f32 v74, 0xbfb8aa3b, v74")
    E("v_exp_f32 v74, v74")
    E("s_nop 0")
    E("v_add_f32 v74, 1.0, v74")
    E("v_rcp_f32 v74, v74")
    E("s_nop 0")
    E("v_cvt_pk_bf16_f32 v74, v74, v74")
    E("v_lshlrev_b32 v74, 16, v74")
    E("v_sub_f32 v75, 1.0, v74")
    E("v_cvt_pk_bf16_f32 v74, v74, v75")
    E("s_lshl_b32 s23, s23, 2")
    E(f"s_add_u32 s23, s23, {WS_G}")
    E("v_mov_b32 v75, 0")
    E("v_cmp_eq_u32 vcc, 63, v1")
    E("s_and_saveexec_b64 s[28:29], vcc")
    E("buffer_store_dword v74, v75, s[68:71], s23 offen")
    L("K1_end")
    E("s_endpgm")
    return kd(name, 112, 80)

ZROW = 1152
ZBASE = 0
XBASE = 16 * ZROW
XROW = 4128
MAINB = XBASE + 6 * XROW
CARB = MAINB + 4 * 8192
CARS = 9216
K2_LDS = CARB + 4 * CARS

def gen_k2():
    name = "conv_kernel"
    out.append(f".globl {name}\n.p2align 8\n.type {name},@function")
    L(name)
    E("s_cmp_ge_u32 s2, 256")
    E("s_cbranch_scc1 K2_end")
    E("v_lshrrev_b32 v1, 6, v0")
    E("s_load_dwordx2 s[4:5], s[0:1], 144")
    E("s_load_dwordx2 s[6:7], s[0:1], 104")
    E("s_load_dwordx2 s[8:9], s[0:1], 128")
    E("s_load_dwordx2 s[10:11], s[0:1], 64")
    E("s_load_dwordx2 s[12:13], s[0:1], 112")
    E("v_readfirstlane_b32 s3, v1")
    E("v_and_b32 v1, 63, v0")
    E("s_and_b32 s18, s2, 7")
    E("s_lshl_b32 s18, s18, 5")
    E("s_lshr_b32 s19, s2, 3")
    E("s_add_u32 s18, s18, s19")
    E("s_lshr_b32 s19, s3, 2")
    E("s_and_b32 s20, s3, 3")
    E("v_lshrrev_b32 v2, 1, v1")
    E("v_and_b32 v3, 1, v1")
    E("v_lshlrev_b32 v2, 9, v2")
    E("v_lshl_add_u32 v2, v3, 6, v2")
    E("v_lshlrev_b32 v3, 4, v1")
    E("s_lshl_b32 s21, s18, 14")
    E("s_lshr_b32 s22, s3, 2")
    E("s_lshl_b32 s22, s22, 5")
    E("s_add_u32 s22, s22, s21")
    E("s_bfe_u32 s23, s3, 0x10001")
    E("s_lshl_b32 s23, s23, 4")
    E("s_add_u32 s22, s22, s23")
    E("s_and_b32 s23, s3, 1")
    E("s_lshl_b32 s23, s23, 8")
    E("s_add_u32 s22, s22, s23")
    E("s_waitcnt lgkmcnt(0)")
    srd(44, 4, WS_SIZE)
    srd(48, 6, 2 << 20)
    srd(52, 8, 2 << 20)
    E("s_lshl_b32 s23, s18, 2")
    E("s_load_dword s14, s[10:11], s23")
    E("s_load_dword s15, s[12:13], s23")
    E(f"s_mul_i32 s24, s3, {2*ZROW}")
    E(f"s_add_u32 s24, s24, {ZBASE + 128}")
    E("s_mov_b32 m0, s24")
    E("s_add_u32 s25, s22, 128")
    E("buffer_load_dwordx4 v2, s[44:47], s22 offen lds")
    E(f"s_add_u32 s24, s24, {ZROW}")
    E("s_mov_b32 m0, s24")
    E("s_nop 0")
    E("buffer_load_dwordx4 v2, s[44:47], s25 offen lds")
    E("s_lshl_b32 s24, s3, 11")
    E("s_add_u32 s24, s24, s21")
    E(f"s_add_u32 s24, s24, {WS_K}")
    E("s_lshr_b32 s25, s3, 2")
    E("s_bfe_u32 s26, s3, 0x10001")
    E("s_lshl_b32 s26, s26, 1")
    E("s_add_u32 s25, s25, s26")
    E(f"s_mul_i32 s25, s25, {XROW}")
    E("s_and_b32 s26, s3, 1")
    E("s_lshl_b32 s26, s26, 11")
    E("s_add_u32 s25, s25, s26")
    E(f"s_add_u32 s25, s25, {XBASE + 32}")
    E("s_mov_b32 m0, s25")
    E("s_nop 0")
    E("buffer_load_dwordx4 v3, s[44:47], s24 offen lds")
    E("buffer_load_dwordx4 v3, s[44:47], s24 offen offset:1024 lds")
    E("s_lshl_b32 s24, s18, 13")
    E("s_lshl_b32 s26, s3, 10")
    E("s_add_u32 s24, s24, s26")
    E("s_lshr_b32 s25, s3, 2")
    E(f"s_mul_i32 s25, s25, {XROW}")
    E("s_and_b32 s26, s3, 3")
    E("s_lshl_b32 s26, s26, 10")
    E("s_add_u32 s25, s25, s26")
    E(f"s_add_u32 s25, s25, {XBASE + 4*XROW + 32}")
    E("s_mov_b32 m0, s25")
    E("s_nop 0")
    E("buffer_load_dwordx4 v3, s[48:51], s24 offen lds")
    E("s_sub_u32 s27, 7, s20")
    E("s_cmp_eq_u32 s19, 0")
    E("s_cselect_b32 s28, s20, s27")
    E("v_and_b32 v4, 15, v1")
    E("v_lshrrev_b32 v5, 4, v1")
    E("v_lshlrev_b32 v6, 2, v4")
    E("v_add_u32 v6, v6, v5")
    E("s_lshl_b32 s29, s28, 6")
    E("v_add_u32 v6, s29, v6")
    E("v_lshlrev_b32 v7, 4, v6")
    E(f"s_mov_b32 s29, {WS_G}")
    E("buffer_load_dwordx4 v[8:11], v7, s[44:47], s29 offen")
    E("v_mov_b32 v12, 0")
    E("v_mov_b32 v13, 0")
    E("v_mov_b32 v14, 0")
    E("v_mov_b32 v15, 0")
    E("s_cmp_ge_u32 s3, 2")
    E("s_cbranch_scc1 K2_nozero")
    E("v_lshrrev_b32 v16, 3, v0")
    E(f"v_mul_u32_u24 v16, {ZROW}, v16")
    E("v_and_b32 v17, 7, v0")
    E("v_lshl_add_u32 v16, v17, 4, v16")
    E("ds_write_b128 v16, v[12:15]")
    E("v_lshrrev_b32 v16, 1, v0")
    E(f"v_mul_u32_u24 v16, {XROW}, v16")
    E("v_and_b32 v17, 1, v0")
    E("v_lshl_add_u32 v16, v17, 4, v16")
    E(f"v_add_u32 v16, {XBASE}, v16")
    E("v_subrev_u32 v17, 12, v0")
    E(f"v_mul_u32_u24 v17, {CARS}, v17")
    E(f"v_add_u32 v17, {CARB}, v17")
    E("v_cmp_gt_u32 vcc, 12, v0")
    E("s_nop 1")
    E("v_cndmask_b32 v16, v17, v16, vcc")
    E("v_cmp_gt_u32 vcc, 16, v0")
    E("s_and_saveexec_b64 s[30:31], vcc")
    E("ds_write_b128 v16, v[12:15]")
    E("s_mov_b64 exec, s[30:31]")
    L("K2_nozero")
    E(f"s_mul_i32 s29, s19, {4*ZROW}")
    E(f"s_add_u32 s29, s29, {ZBASE + 8}")
    E("v_lshlrev_b32 v16, 3, v4")
    E("v_lshl_add_u32 v16, v5, 4, v16")
    E("v_add_u32 v16, s29, v16")
    E("v_and_b32 v17, 3, v1")
    E("v_bfe_u32 v18, v1, 2, 2")
    E("v_sub_u32 v17, v17, v18")
    E("v_lshlrev_b32 v17, 3, v17")
    E("v_lshlrev_b32 v18, 6, v5")
    E("v_sub_u32 v17, v17, v18")
    E(f"s_mul_i32 s29, s19, {XROW}")
    E("s_lshl_b32 s30, s27, 9")
    E("s_add_u32 s30, s30, s29")
    E(f"s_add_u32 s30, s30, {XBASE + 224 + 256}")
    E("v_add_u32 v18, s30, v17")
    E("s_lshl_b32 s30, s20, 9")
    E("s_add_u32 s30, s30, s29")
    E(f"s_add_u32 s30, s30, {XBASE + 224 + 256}")
    E("v_add_u32 v19, s30, v17")
    for r in range(32, 96):
        E(f"v_mov_b32 v{r}, 0")
    def acc(X, p, T):
        a = 32 + X * 32 + p * 8 + T * 4
        return f"v[{a}:{a+3}]"
    def Bf(s, p):
        return 96 + 32 * s + 4 * p
    def Af(s, T, hl):
        return 112 + 32 * s + 4 * (2 * T + hl)
    vB, vAb, vAa = 20, 21, 22
    def rdB(s, p, arr):
        b = Bf(s, p)
        off = (arr * 8 + p) * ZROW
        return [f"ds_read_b64 v[{b}:{b+1}], v{vB} offset:{off}",
                f"ds_read_b64 v[{b+2}:{b+3}], v{vB} offset:{off+8}"]
    def rdA(s, T, hl, arr3):
        a = Af(s, T, hl)
        va = vAb if T == 0 else vAa
        off = arr3 * 2 * XROW
        return [f"ds_read_b64_tr_b16 v[{a}:{a+1}], v{va} offset:{off+32}",
                f"ds_read_b64_tr_b16 v[{a+2}:{a+3}], v{va} offset:{off}"]
    def loads(s, X, both):
        r = []
        if X == 0:
            r += rdA(s, 0, 0, 0) + rdA(s, 0, 1, 1)
            r += rdB(s, 0, 0)
            if both:
                r += rdA(s, 1, 0, 0) + rdA(s, 1, 1, 1)
            for p in range(1, 4):
                r += rdB(s, p, 0)
        else:
            r += rdA(s, 0, 0, 2)
            r += rdB(s, 0, 1)
            if both:
                r += rdA(s, 1, 0, 2)
            for p in range(1, 4):
                r += rdB(s, p, 1)
        return r
    def mfmas(s, X, both):
        r = []
        for p in range(4):
            b = Bf(s, p)
            for T in range(2 if both else 1):
                for hl in range(2 if X == 0 else 1):
                    a = Af(s, T, hl)
                    r.append(f"v_mfma_f32_16x16x32_bf16 {acc(X,p,T)}, v[{a}:{a+3}], v[{b}:{b+3}], {acc(X,p,T)}")
        return r
    def advance():
        E(f"v_add_u32 v{vB}, 64, v{vB}")
        E(f"v_subrev_u32 v{vAb}, 256, v{vAb}")
        E(f"v_subrev_u32 v{vAa}, 256, v{vAa}")
    def half_iter(s, X, both):
        advance()
        E("s_waitcnt lgkmcnt(0)")
        m = mfmas(s, X, both)
        ld = loads(1 - s, X, both)
        per = (len(ld) + len(m) // 2 - 1) // (len(m) // 2)
        li = 0
        for k, ins in enumerate(m):
            E(ins)
            for _ in range(per):
                if li < len(ld):
                    E(ld[li]); li += 1
        assert li == len(ld)
    E("s_waitcnt vmcnt(0) lgkmcnt(0)")
    E("s_barrier")
    for X in range(2):
        E(f"v_mov_b32 v{vB}, v16")
        E(f"v_mov_b32 v{vAb}, v18")
        E(f"v_mov_b32 v{vAa}, v19")
        for ins in loads(0, X, True):
            E(ins)
        E("s_add_u32 s29, s20, 1")
        L(f"K2_loop2_{X}")
        half_iter(0, X, True)
        half_iter(1, X, True)
        E("s_sub_u32 s29, s29, 1")
        E("s_cmp_lg_u32 s29, 0")
        E(f"s_cbranch_scc1 K2_loop2_{X}")
        E("s_lshl_b32 s29, s20, 1")
        E("s_sub_u32 s29, 7, s29")
        L(f"K2_loop1_{X}")
        half_iter(0, X, False)
        half_iter(1, X, False)
        E("s_sub_u32 s29, s29, 1")
        E("s_cmp_lg_u32 s29, 0")
        E(f"s_cbranch_scc1 K2_loop1_{X}")
        E("s_waitcnt lgkmcnt(0)")
    E("v_lshlrev_b32 v23, 1, v6")
    for r in range(96, 112):
        E(f"v_mov_b32 v{r}, 0")
    for row in range(16):
        E(f"ds_read_u16_d16_hi v{96+row}, v23 offset:{ZBASE + row*ZROW + 128}")
    E("v_add_u32 v24, 16, v1")
    E("v_add_u32 v25, 1, v4")
    E("v_cmp_eq_u32 vcc, 63, v1")
    E("s_nop 1")
    E("v_cndmask_b32 v25, v25, 64, vcc")
    E("v_cmp_gt_u32 vcc, 48, v1")
    E("s_nop 1")
    E("v_cndmask_b32 v24, v25, v24, vcc")
    E("v_lshlrev_b32 v24, 4, v24")
    E("v_lshlrev_b32 v25, 4, v1")
    E("s_lshl_b32 s29, s19, 13")
    E(f"s_add_u32 s29, s29, {MAINB}")
    E(f"s_mul_i32 s30, s19, {CARS}")
    E(f"s_add_u32 s30, s30, {CARB}")
    E("s_lshl_b32 s31, s27, 10")
    E("s_lshl_b32 s33, s20, 10")
    E("s_add_u32 s34, s29, s31")
    E("v_add_u32 v26, s34, v25")
    E("s_add_u32 s34, s29, s33")
    E("v_add_u32 v27, s34, v25")
    E("s_add_u32 s34, s30, s31")
    E("v_add_u32 v28, s34, v24")
    E("s_add_u32 s34, s30, s33")
    E("v_add_u32 v29, s34, v24")
    for X in range(2):
        for T in range(2):
            a = lambda p, e: 32 + X * 32 + p * 8 + T * 4 + e
            E(f"v_add_f32 v{a(0,1)}, v{a(0,1)}, v{a(1,0)}")
            E(f"v_add_f32 v{a(0,2)}, v{a(0,2)}, v{a(1,1)}")
            E(f"v_add_f32 v{a(0,3)}, v{a(0,3)}, v{a(1,2)}")
            E(f"v_add_f32 v{a(0,2)}, v{a(0,2)}, v{a(2,0)}")
            E(f"v_add_f32 v{a(0,3)}, v{a(0,3)}, v{a(2,1)}")
            E(f"v_add_f32 v{a(0,3)}, v{a(0,3)}, v{a(3,0)}")
            E(f"v_add_f32 v{a(1,0)}, v{a(1,3)}, v{a(2,2)}")
            E(f"v_add_f32 v{a(1,0)}, v{a(1,0)}, v{a(3,1)}")
            E(f"v_add_f32 v{a(1,1)}, v{a(2,3)}, v{a(3,2)}")
            E(f"v_mov_b32 v{a(1,2)}, v{a(3,3)}")
            E(f"v_mov_b32 v{a(1,3)}, 0")
            E(f"ds_write_b128 v{26+T}, v[{a(0,0)}:{a(0,3)}] offset:{X*16384}")
            E(f"ds_write_b128 v{28+T}, v[{a(1,0)}:{a(1,3)}] offset:{X*2*CARS}")
    E("s_lshl_b32 s29, s28, 10")
    E(f"s_add_u32 s30, s29, {MAINB}")
    E("v_add_u32 v26, s30, v25")
    E(f"s_add_u32 s30, s29, {CARB}")
    E("v_add_u32 v28, s30, v25")
    E("v_lshlrev_b32 v27, 12, v6")
    E("s_lshl_b32 s29, s18, 2")
    E("s_mov_b32 s32, 0xffff0000")
    E("s_lshl_b32 s34, s14, 16")
    E("s_and_b32 s35, s14, s32")
    E("s_lshl_b32 s36, s15, 16")
    E("s_and_b32 s37, s15, s32")
    E("s_waitcnt lgkmcnt(0)")
    E("s_barrier")
    for X in range(2):
        for c in range(2):
            b = 32 + 8 * (X * 2 + c)
            E(f"ds_read_b128 v[{b}:{b+3}], v26 offset:{(X*2+c)*8192}")
            E(f"ds_read_b128 v[{b+4}:{b+7}], v28 offset:{(X*2+c)*CARS}")
    E("s_waitcnt lgkmcnt(0)")
    def rnd(a, b):
        E(f"v_cvt_pk_bf16_f32 v{a}, v{a}, v{b}")
        E(f"v_and_b32 v{b}, s32, v{a}")
        E(f"v_lshlrev_b32 v{a}, 16, v{a}")
    for e in range(4):
        yA0, yA1, yB0, yB1 = 32 + e, 40 + e, 48 + e, 56 + e
        u0, u1, k0, k1 = 96 + e, 100 + e, 104 + e, 108 + e
        t = 64
        E(f"v_add_f32 v{yA0}, v{yA0}, v{yA0+4}")
        E(f"v_add_f32 v{yA1}, v{yA1}, v{yA1+4}")
        E(f"v_add_f32 v{yB0}, v{yB0}, v{yB0+4}")
        E(f"v_add_f32 v{yB1}, v{yB1}, v{yB1+4}")
        rnd(yA0, yA1)
        rnd(yB0, yB1)
        E(f"v_mul_f32 v{t}, s34, v{u0}")
        E(f"v_mul_f32 v{t+1}, s35, v{u1}")
        E(f"v_mul_f32 v{t+2}, s36, v{k0}")
        E(f"v_mul_f32 v{t+3}, s37, v{k1}")
        rnd(t, t + 1)
        rnd(t + 2, t + 3)
        E(f"v_add_f32 v{yA0}, v{yA0}, v{t}")
        E(f"v_add_f32 v{yA1}, v{yA1}, v{t+1}")
        E(f"v_add_f32 v{yB0}, v{yB0}, v{t+2}")
        E(f"v_add_f32 v{yB1}, v{yB1}, v{t+3}")
        rnd(yA0, yA1)
        rnd(yB0, yB1)
        E(f"v_mul_f32 v{yB0}, v{u0}, v{yB0}")
        E(f"v_mul_f32 v{yB1}, v{u1}, v{yB1}")
        rnd(yB0, yB1)
        E(f"v_lshlrev_b32 v{t}, 16, v{8+e}")
        E(f"v_and_b32 v{t+1}, s32, v{8+e}")
        E(f"v_mul_f32 v{yA0}, v{t}, v{yA0}")
        E(f"v_mul_f32 v{yA1}, v{t}, v{yA1}")
        E(f"v_mul_f32 v{yB0}, v{t+1}, v{yB0}")
        E(f"v_mul_f32 v{yB1}, v{t+1}, v{yB1}")
        rnd(yA0, yA1)
        rnd(yB0, yB1)
        E(f"v_add_f32 v{yA0}, v{yA0}, v{yB0}")
        E(f"v_add_f32 v{yA1}, v{yA1}, v{yB1}")
        E(f"v_cvt_pk_bf16_f32 v{yA0}, v{yA0}, v{yA1}")
        E(f"buffer_store_dword v{yA0}, v27, s[52:55], s29 offen offset:{1024*e}")
    L("K2_end")
    E("s_endpgm")
    return kd(name, 160, 64)

def main():
    hdr = HEADER.rstrip("\n")
    pre = [hdr,
           f"; @launch kernel=prep_kernel grid=(256,1,1) block=(1024,1,1) lds={K1_LDS}",
           f"; @launch kernel=conv_kernel grid=(256,1,1) block=(512,1,1) lds={K2_LDS}",
           '.amdgcn_target "amdgcn-amd-amdhsa--gfx950"',
           ".text"]
    k1 = gen_k1()
    k2 = gen_k2()
    txt = "\n".join(pre + out) + '\n.section .rodata,"a"\n.p2align 6\n' + k1 + "\n.p2align 6\n" + k2 + "\n"
    path = sys.argv[1] if len(sys.argv) > 1 else "cdna_kernels/%s.s" % NAME
    open(path, "w").write(txt)

main()
```

```python
import sys

NAME = "gated_mix__ssm_conv_s4__ssm_conv_h3__prompt"
HEADER = open("cdna_kernels/%s.s.ref" % NAME).read().split("; Override launch")[0]
DBG = "--dbg" in sys.argv

out = []
def E(s=""):
    out.append("    " + s)
def L(s):
    out.append(s + ":")
def C(s):
    out.append("    ; " + s)

WS_Z = 0
WS_G = 4 << 20
WS_SIZE = (4 << 20) + 8192
WS_DBG = 16 << 20
if DBG:
    WS_SIZE = 32 << 20

ZROW = 1152
ZBASE = 0
XBASE = 16 * ZROW
XROW = 4128
PM = XBASE + 6 * XROW
PMS = 8192 + 16
PC = PM + 8 * PMS
PCS = 2048 + 16
FLG = PC + 8 * PCS
LDS_SIZE = FLG + 256
S_KT = PM
S_P = S_KT + 24576
S_T = S_P + 8192
S_R = S_T + 8 * 2304
assert S_R + 8 * 3072 <= FLG

NST = [0]
def STAMP(i):
    if DBG:
        E(f"s_memtime s[{80+2*i}:{81+2*i}]")
def DUMP(n, srdreg):
    if DBG:
        E("s_waitcnt lgkmcnt(0)")
        E("s_mov_b64 exec, 1")
        E("s_lshl_b32 s100, s2, 4")
        E("s_add_u32 s100, s100, s3")
        E("s_lshl_b32 s100, s100, 6")
        E(f"s_add_u32 s100, s100, {WS_DBG}")
        for i in range(n):
            E(f"v_mov_b32 v2, s{80+2*i}")
            E(f"v_mov_b32 v3, {4*i}")
            E(f"buffer_store_dword v2, v3, s[{srdreg}:{srdreg+3}], s100 offen")
            E("s_nop 1")

def srd(sd, sp, nbytes):
    E(f"s_mov_b32 s{sd}, s{sp}")
    E(f"s_and_b32 s{sd+1}, s{sp+1}, 0xffff")
    E(f"s_mov_b32 s{sd+2}, {hex(nbytes)}")
    E(f"s_mov_b32 s{sd+3}, 0x00020000")

def R4(r):
    return f"v[{r}:{r+3}]"

SRD_WS, SRD_OUT, SRD_DBGB, SRD_A, SRD_B = 44, 48, 52, 56, 60

def gen():
    name = NAME + "_kernel"
    out.append(f".globl {name}\n.p2align 8\n.type {name},@function")
    L(name)
    E("s_cmp_ge_u32 s2, 256")
    E("s_cbranch_scc1 K_end")
    STAMP(0)
    E("s_load_dwordx16 s[4:19], s[0:1], 0")
    E("s_load_dwordx2 s[20:21], s[0:1], 64")
    E("s_load_dwordx8 s[24:31], s[0:1], 80")
    E("s_load_dwordx8 s[32:39], s[0:1], 112")
    E("s_load_dwordx2 s[40:41], s[0:1], 144")
    E("v_lshrrev_b32 v1, 6, v0")
    E("s_nop 0")
    E("v_readfirstlane_b32 s3, v1")
    E("v_and_b32 v1, 63, v0")
    E("s_and_b32 s64, s2, 7")
    E("s_lshl_b32 s65, s64, 2")
    E("s_lshl_b32 s64, s64, 5")
    E("s_lshr_b32 s66, s2, 3")
    E("s_add_u32 s64, s64, s66")
    E("s_and_b32 s66, s66, 3")
    E("s_add_u32 s65, s65, s66")
    E("s_lshr_b32 s66, s2, 5")
    E("s_and_b32 s67, s3, 3")
    E("s_lshr_b32 s68, s3, 2")
    E("s_lshl_b32 s70, s65, 6")
    E("s_add_u32 s70, s70, s67")
    E("s_lshl_b32 s71, s68, 5")
    E("s_add_u32 s70, s70, s71")
    E("s_lshl_b32 s70, s70, 10")
    E("s_lshl_b32 s71, s66, 7")
    E("s_add_u32 s70, s70, s71")
    E("v_lshrrev_b32 v2, 3, v1")
    E("v_and_b32 v3, 7, v1")
    E("v_lshlrev_b32 v4, 12, v2")
    E("v_lshl_add_u32 v4, v3, 4, v4")
    E("v_add_u32 v4, s70, v4")
    E("v_subrev_u32 v5, 1024, v4")
    E("v_subrev_u32 v6, 2048, v4")
    E("v_subrev_u32 v7, 3072, v4")
    E("s_lshl_b32 s71, s66, 9")
    E("v_lshl_add_u32 v8, v3, 6, s71")
    E("s_lshl_b32 s72, s65, 6")
    E("s_lshl_b32 s71, s66, 3")
    E("s_add_u32 s72, s72, s71")
    E("s_add_u32 s72, s72, s3")
    E("s_lshl_b32 s73, s72, 10")
    E("v_lshlrev_b32 v9, 4, v1")
    E("s_lshl_b32 s70, s64, 1")
    E("s_add_u32 s70, s70, s68")
    E("s_lshl_b32 s70, s70, 8")
    E("s_lshl_b32 s71, s67, 6")
    E("s_add_u32 s70, s70, s71")
    E("v_and_b32 v10, 31, v1")
    E("v_lshl_add_u32 v11, v10, 1, s70")
    E("s_waitcnt lgkmcnt(0)")
    srd(SRD_A, 24, 2 << 20)
    srd(SRD_B, 26, 2 << 20)
    E(f"buffer_load_dwordx4 v[12:15], v4, s[{SRD_A}:{SRD_A+3}], 0 offen")
    E(f"buffer_load_dwordx4 v[16:19], v5, s[{SRD_A}:{SRD_A+3}], 0 offen")
    E(f"buffer_load_dwordx4 v[20:23], v6, s[{SRD_A}:{SRD_A+3}], 0 offen")
    E(f"buffer_load_dwordx4 v[24:27], v7, s[{SRD_A}:{SRD_A+3}], 0 offen")
    E(f"buffer_load_dwordx4 v[28:31], v4, s[{SRD_B}:{SRD_B+3}], 0 offen")
    srd(SRD_A, 28, 4096)
    srd(SRD_B, 4, 2 << 20)
    for i in range(4):
        E(f"buffer_load_dwordx4 v[{40+4*i}:{43+4*i}], v8, s[{SRD_A}:{SRD_A+3}], 0 offen offset:{16*i}")
    E(f"buffer_load_dwordx4 v[32:35], v4, s[{SRD_B}:{SRD_B+3}], 0 offen")
    E(f"buffer_load_dwordx4 v[56:59], v9, s[{SRD_B}:{SRD_B+3}], s73 offen")
    srd(SRD_A, 34, 1024)
    E(f"buffer_load_dwordx4 v[60:63], v9, s[{SRD_A}:{SRD_A+3}], 0 offen")
    for i, sp in enumerate([6, 8, 10, 12, 14, 16]):
        sd = SRD_A if i % 2 == 0 else SRD_B
        srd(sd, sp, 131072)
        E(f"buffer_load_ushort v{84+i}, v11, s[{sd}:{sd+3}], 0 offen")
    srd(SRD_A, 30, 2 << 20)
    E("s_lshl_b32 s70, s64, 13")
    E("s_lshl_b32 s71, s3, 10")
    E("s_add_u32 s70, s70, s71")
    E(f"s_mul_i32 s71, s68, {XROW}")
    E("s_lshl_b32 s74, s67, 10")
    E("s_add_u32 s71, s71, s74")
    E(f"s_add_u32 s71, s71, {XBASE + 4*XROW + 32}")
    E("s_mov_b32 m0, s71")
    E("s_lshl_b32 s74, s64, 2")
    E(f"buffer_load_dwordx4 v9, s[{SRD_A}:{SRD_A+3}], s70 offen lds")
    E("s_load_dword s22, s[18:19], s74")
    E("s_load_dword s23, s[20:21], s74")
    E("s_load_dword s42, s[32:33], s74")
    srd(SRD_WS, 40, WS_SIZE)
    srd(SRD_OUT, 36, 2 << 20)
    srd(SRD_DBGB, 38, 256)
    E("s_mov_b32 s43, 0xffff0000")
    E("s_mul_i32 s70, s3, 2304")
    E(f"s_add_u32 s70, s70, {S_T}")
    E("v_mul_u32_u24 v64, 144, v2")
    E("v_lshl_add_u32 v64, v3, 4, v64")
    E("v_add_u32 v64, s70, v64")
    E("v_lshrrev_b32 v66, 4, v1")
    E("v_and_b32 v67, 1, v66")
    E("v_lshrrev_b32 v66, 1, v66")
    E("v_bfe_u32 v68, v1, 2, 2")
    E("v_and_b32 v69, 3, v1")
    E("v_mul_u32_u24 v65, 1152, v67")
    E("v_mul_u32_u24 v68, 144, v68")
    E("v_add_u32 v65, v65, v68")
    E("v_lshl_add_u32 v65, v66, 5, v65")
    E("v_lshl_add_u32 v65, v69, 3, v65")
    E("v_add_u32 v65, s70, v65")
    E("v_and_b32 v68, 15, v1")
    E("v_lshl_add_u32 v68, v66, 4, v68")
    E("v_lshrrev_b32 v69, 1, v68")
    E("v_and_b32 v68, 1, v68")
    E("v_lshlrev_b32 v69, 14, v69")
    E("v_lshl_add_u32 v69, v68, 4, v69")
    E("v_lshl_add_u32 v69, v67, 5, v69")
    E("s_lshl_b32 s70, s66, 19")
    E("s_lshl_b32 s71, s65, 9")
    E("s_add_u32 s70, s70, s71")
    E("s_lshl_b32 s71, s67, 7")
    E("s_add_u32 s70, s70, s71")
    E("s_lshl_b32 s71, s68, 6")
    E("s_add_u32 s70, s70, s71")
    E("s_add_u32 s71, s70, 0x40000")
    STAMP(1)
    E("s_waitcnt vmcnt(10)")
    STAMP(2)
    for i in range(4):
        c0, c1 = 2 * i, 2 * i + 1
        taps = [(24 + i, 41, True), (20 + i, 41, False), (16 + i, 40, True), (12 + i, 40, False)]
        for ti, (kr, sb, hi) in enumerate(taps):
            E(f"v_lshlrev_b32 v70, 16, v{kr}")
            E(f"v_and_b32 v71, s43, v{kr}")
            if hi:
                E(f"v_and_b32 v72, s43, v{sb+2*c0}")
                E(f"v_and_b32 v73, s43, v{sb+2*c1}")
            else:
                E(f"v_lshlrev_b32 v72, 16, v{sb+2*c0}")
                E(f"v_lshlrev_b32 v73, 16, v{sb+2*c1}")
            E("v_mul_f32 v70, v70, v72")
            E("v_mul_f32 v71, v71, v73")
            E("v_cvt_pk_bf16_f32 v70, v70, v71")
            if ti == 0:
                E("v_lshlrev_b32 v74, 16, v70")
                E("v_and_b32 v75, s43, v70")
            else:
                E("v_and_b32 v71, s43, v70")
                E("v_lshlrev_b32 v70, 16, v70")
                E("v_add_f32 v74, v74, v70")
                E("v_add_f32 v75, v75, v71")
                E("v_cvt_pk_bf16_f32 v74, v74, v75")
                E("v_and_b32 v75, s43, v74")
                E("v_lshlrev_b32 v74, 16, v74")
        E(f"v_lshlrev_b32 v70, 16, v{28+i}")
        E(f"v_and_b32 v71, s43, v{28+i}")
        E("v_mul_f32 v74, v74, v70")
        E("v_mul_f32 v75, v75, v71")
        E(f"v_cvt_pk_bf16_f32 v{36+i}, v74, v75")
    E("ds_write_b128 v64, v[36:39] offset:1152")
    E("s_waitcnt vmcnt(9)")
    E("ds_write_b128 v64, v[32:35]")
    E("s_waitcnt lgkmcnt(0)")
    E("ds_read_b64_tr_b16 v[76:77], v65")
    E("ds_read_b64_tr_b16 v[78:79], v65 offset:576")
    E("ds_read_b64_tr_b16 v[80:81], v65 offset:64")
    E("ds_read_b64_tr_b16 v[82:83], v65 offset:640")
    E("s_waitcnt lgkmcnt(2)")
    E(f"buffer_store_dwordx4 v[76:79], v69, s[{SRD_WS}:{SRD_WS+3}], s70 offen sc1")
    E("s_waitcnt lgkmcnt(0)")
    E(f"buffer_store_dwordx4 v[80:83], v69, s[{SRD_WS}:{SRD_WS+3}], s71 offen sc1")
    E("s_waitcnt vmcnt(9)")
    for i in range(4):
        E(f"v_lshlrev_b32 v70, 16, v{56+i}")
        E(f"v_and_b32 v71, s43, v{56+i}")
        E(f"v_lshlrev_b32 v72, 16, v{60+i}")
        E(f"v_and_b32 v73, s43, v{60+i}")
        E("v_mul_f32 v70, v70, v72")
        E("v_mul_f32 v71, v71, v73")
        E("v_cvt_pk_bf16_f32 v70, v70, v71")
        E("v_and_b32 v71, s43, v70")
        E("v_lshlrev_b32 v70, 16, v70")
        if i == 0:
            E("v_add_f32 v74, v70, v71")
        else:
            E("v_add_f32 v74, v74, v70")
            E("v_add_f32 v74, v74, v71")
    for dpp in ["row_shr:1", "row_shr:2", "row_shr:4", "row_shr:8"]:
        E("s_nop 1")
        E(f"v_add_f32_dpp v74, v74, v74 {dpp} row_mask:0xf bank_mask:0xf bound_ctrl:0")
    E("s_nop 1")
    E("v_add_f32_dpp v74, v74, v74 row_bcast:15 row_mask:0xa bank_mask:0xf")
    E("s_nop 1")
    E("v_add_f32_dpp v74, v74, v74 row_bcast:31 row_mask:0xc bank_mask:0xf")
    E("s_nop 1")
    E("v_cvt_pk_bf16_f32 v74, v74, v74")
    E("v_lshlrev_b32 v74, 16, v74")
    E("v_mul_f32 v74, 0xbfb8aa3b, v74")
    E("v_exp_f32 v74, v74")
    E("s_nop 0")
    E("v_add_f32 v74, 1.0, v74")
    E("v_rcp_f32 v74, v74")
    E("s_nop 0")
    E("v_cvt_pk_bf16_f32 v74, v74, v74")
    E("v_lshlrev_b32 v74, 16, v74")
    E("v_sub_f32 v75, 1.0, v74")
    E("v_cvt_pk_bf16_f32 v74, v74, v75")
    E("s_lshl_b32 s72, s72, 2")
    E(f"s_add_u32 s72, s72, {WS_G}")
    E("v_mov_b32 v75, 0")
    E("v_cmp_eq_u32 vcc, 63, v1")
    E("s_and_saveexec_b64 s[74:75], vcc")
    E(f"buffer_store_dword v74, v75, s[{SRD_WS}:{SRD_WS+3}], s72 offen sc1")
    E("s_mov_b64 exec, s[74:75]")
    STAMP(3)
    E("v_and_b32 v20, 15, v1")
    E("v_lshrrev_b32 v21, 4, v1")
    E("v_lshrrev_b32 v22, 3, v20")
    E("v_and_b32 v23, 7, v20")
    E("v_lshl_add_u32 v22, v22, 7, v23")
    E("v_cvt_f32_u32 v24, v22")
    E("s_mov_b32 s74, 0x02040200")
    E("s_mov_b32 s75, 0x06000400")
    E("s_mov_b32 s76, 0x01800100")
    E("s_mov_b32 s77, 0x0a000800")
    E("s_mov_b32 s78, 0x00020002")
    E("s_mov_b32 s79, 0x00800080")
    E("v_lshrrev_b32 v22, 2, v20")
    E("v_lshlrev_b32 v22, 4, v22")
    E("v_and_b32 v23, 3, v20")
    E("v_lshrrev_b64 v[28:29], v22, s[74:75]")
    E("v_and_b32 v28, 0xffff, v28")
    E("v_lshl_add_u32 v28, v23, 7, v28")
    E("v_cvt_f32_u32 v25, v28")
    E("v_lshrrev_b32 v29, 7, v28")
    E("v_and_b32 v28, 127, v28")
    E("v_cvt_f32_u32 v16, v29")
    E("v_cvt_f32_u32 v17, v28")
    E("v_lshrrev_b64 v[28:29], v22, s[76:77]")
    E("v_and_b32 v28, 0xffff, v28")
    E("v_lshrrev_b64 v[30:31], v22, s[78:79]")
    E("v_and_b32 v30, 0xffff, v30")
    E("v_mad_u32_u24 v28, v23, v30, v28")
    E("v_cvt_f32_u32 v26, v28")
    E("v_lshrrev_b32 v29, 7, v28")
    E("v_and_b32 v28, 127, v28")
    E("v_cvt_f32_u32 v18, v29")
    E("v_cvt_f32_u32 v19, v28")
    E("v_lshlrev_b32 v22, 3, v20")
    E("v_cvt_f32_u32 v27, v22")
    E("s_mul_i32 s70, s68, 12288")
    E(f"s_add_u32 s70, s70, {S_KT}")
    E("v_lshlrev_b32 v32, 5, v20")
    E("v_add_u32 v32, s70, v32")
    E("v_lshlrev_b32 v22, 4, v21")
    E("s_cmp_eq_u32 s67, 1")
    E("s_cbranch_scc1 K_t1")
    E("s_cmp_eq_u32 s67, 2")
    E("s_cbranch_scc1 K_t2")
    E("v_lshrrev_b32 v22, 1, v21")
    E("v_and_b32 v23, 1, v21")
    E("v_lshlrev_b32 v22, 9, v22")
    E("v_lshl_add_u32 v22, v23, 4, v22")
    E("v_add_u32 v35, v32, v22")
    E("v_mov_b32 v30, 4")
    E("s_branch K_t3")
    L("K_t1")
    E("v_lshrrev_b64 v[28:29], v22, s[74:75]")
    E("v_and_b32 v28, 0xffff, v28")
    E("v_lshl_add_u32 v35, v28, 2, v32")
    E("v_mov_b32 v30, 512")
    E("s_branch K_t3")
    L("K_t2")
    E("v_lshrrev_b64 v[28:29], v22, s[76:77]")
    E("v_and_b32 v28, 0xffff, v28")
    E("v_lshl_add_u32 v35, v28, 2, v32")
    E("v_lshrrev_b64 v[30:31], v22, s[78:79]")
    E("v_and_b32 v30, 0xffff, v30")
    E("v_lshlrev_b32 v30, 2, v30")
    L("K_t3")
    E("v_add_u32 v36, v35, v30")
    E("v_add_u32 v37, v36, v30")
    E("v_add_u32 v38, v37, v30")
    E("s_waitcnt lgkmcnt(0)")
    E("s_lshl_b32 s70, s22, 16")
    E("s_and_b32 s22, s22, s43")
    E("s_cmp_eq_u32 s68, 0")
    E("s_cselect_b32 s22, s70, s22")
    E("v_mov_b32 v40, 0x3fb8aa3b")
    E("v_mul_f32 v41, s22, v40")
    E("v_exp_f32 v41, v41")
    E("s_nop 0")
    E("v_cvt_pk_bf16_f32 v41, v41, v41")
    E("v_lshlrev_b32 v41, 16, v41")
    E("s_waitcnt vmcnt(4)")
    for i in range(6):
        E(f"v_lshlrev_b32 v{84+i}, 16, v{84+i}")
    E("v_mul_f32 v84, v41, v84")
    E("v_mul_f32 v85, v41, v85")
    E("v_mul_f32 v86, v41, v86")
    E("v_mul_f32 v87, v41, v87")
    E("v_mul_f32 v44, v40, v84")
    E("v_mul_f32 v45, 0.15915494, v85")
    E("v_rndne_f32 v46, v45")
    E("v_sub_f32 v45, v45, v46")
    E("v_mul_f32 v46, 0x43000000, v45")
    E("v_rndne_f32 v47, v46")
    E("v_sub_f32 v46, v46, v47")
    E("v_mul_f32 v48, v88, v86")
    E("v_fma_f32 v48, -v89, v87, v48")
    E("v_mul_f32 v49, v88, v87")
    E("v_fma_f32 v49, v89, v86, v49")
    E("s_lshl_b32 s70, s3, 10")
    E(f"s_add_u32 s70, s70, {S_P}")
    E("v_lshl_add_u32 v42, v10, 5, s70")
    E("ds_write_b128 v42, v[44:47]")
    E("ds_write_b64 v42, v[48:49] offset:16")
    E("v_lshl_add_u32 v43, v21, 5, s70")
    for r in range(48, 60):
        if r >= 50: E(f"v_mov_b32 v{r}, 0")
    E("s_waitcnt lgkmcnt(0)")
    E("v_mov_b32 v48, 0")
    E("v_mov_b32 v49, 0")
    E("ds_read_b128 v[60:63], v43")
    E("ds_read_b64 v[64:65], v43 offset:16")
    E("s_mov_b32 s70, 0")
    L("K_loop")
    E("s_waitcnt lgkmcnt(0)")
    T = [96, 100, 104, 108]
    E(f"v_mul_f32 v{T[0]}, v60, v24")
    E(f"v_mul_f32 v{T[0]+1}, v61, v24")
    E(f"v_mul_f32 v{T[1]}, v60, v25")
    E(f"v_mul_f32 v{T[1]+1}, v61, v17")
    E(f"v_mul_f32 v{T[2]}, v60, v26")
    E(f"v_mul_f32 v{T[2]+1}, v61, v19")
    E(f"v_mul_f32 v{T[3]}, v60, v27")
    E(f"v_mul_f32 v{T[3]+1}, v61, v27")
    E(f"v_fma_f32 v{T[1]+1}, v62, v16, v{T[1]+1}")
    E(f"v_fma_f32 v{T[2]+1}, v62, v18, v{T[2]+1}")
    E("v_mov_b32 v66, v64")
    E("v_mov_b32 v67, v65")
    E("v_add_u32 v43, 128, v43")
    E("ds_read_b128 v[60:63], v43")
    E("ds_read_b64 v[64:65], v43 offset:16")
    for t in [T[3], T[0], T[1], T[2]]:
        E(f"v_exp_f32 v{t}, v{t}")
        E(f"v_cos_f32 v{t+2}, v{t+1}")
        E(f"v_sin_f32 v{t+3}, v{t+1}")
    t = T[3]
    E(f"v_mul_f32 v{t+2}, v{t}, v{t+2}")
    E(f"v_mul_f32 v{t+3}, v{t}, v{t+3}")
    E(f"v_mul_f32 v{t}, v66, v{t+2}")
    E(f"v_mul_f32 v{t+1}, v66, v{t+3}")
    E(f"v_fma_f32 v{t}, -v67, v{t+3}, v{t}")
    E(f"v_fma_f32 v{t+1}, -v67, v{t+2}, -v{t+1}")
    for t in T[:3]:
        E(f"v_mul_f32 v{t+2}, v{t}, v{t+2}")
        E(f"v_mul_f32 v{t+3}, v{t}, v{t+3}")
    E("s_add_u32 s70, s70, 1")
    E("s_cmp_eq_u32 s70, 3")
    for k in range(3):
        a = 48 + 4 * k
        E(f"v_mfma_f32_16x16x4_f32 {R4(a)}, v{T[k]+2}, v{T[3]}, {R4(a)}")
        E(f"v_mfma_f32_16x16x4_f32 {R4(a)}, v{T[k]+3}, v{T[3]+1}, {R4(a)}")
    E("s_cbranch_scc0 K_noflag")
    E("s_waitcnt vmcnt(0)")
    E("s_barrier")
    E("s_cmp_lg_u32 s3, 0")
    E("s_cbranch_scc1 K_noflag")
    E("s_lshl_b32 s71, s66, 5")
    E("s_add_u32 s71, s71, s65")
    E("v_mov_b32 v68, 1")
    E("v_mov_b32 v69, 0")
    E("s_mov_b64 exec, 1")
    E(f"buffer_store_byte v68, v69, s[{SRD_DBGB}:{SRD_DBGB+3}], s71 offen sc1")
    E("s_mov_b64 exec, -1")
    L("K_noflag")
    E("s_cmp_lt_u32 s70, 8")
    E("s_cbranch_scc1 K_loop")
    E("s_waitcnt lgkmcnt(0)")
    STAMP(4)
    E("v_and_b32 v60, 255, v0")
    E("v_lshlrev_b32 v60, 3, v60")
    E("s_mul_i32 s70, s68, 12288")
    E(f"s_add_u32 s70, s70, {S_KT}")
    for e in range(0, 8, 2):
        E(f"v_add_u32 v62, {e}, v60")
        E(f"v_add_u32 v63, {e+1}, v60")
        E("v_cvt_f32_u32 v62, v62")
        E("v_cvt_f32_u32 v63, v63")
        E("v_cvt_pk_bf16_f32 v62, v62, v63")
        E("v_and_b32 v63, s43, v62")
        E("v_lshlrev_b32 v62, 16, v62")
        E("v_cvt_u32_f32 v62, v62")
        E("v_cvt_u32_f32 v63, v63")
        E(f"v_lshl_add_u32 v{64+e}, v62, 2, s70")
        E(f"v_lshl_add_u32 v{65+e}, v63, 2, s70")
    E("s_mul_i32 s70, s3, 3072")
    E(f"s_add_u32 s70, s70, {S_R}")
    E("v_lshl_add_u32 v39, v1, 4, s70")
    for k in range(3):
        E(f"ds_write_b128 v39, {R4(48+4*k)} offset:{1024*k}")
    E("s_mul_i32 s70, s68, 12288")
    E("s_lshl_b32 s71, s67, 10")
    E("s_add_u32 s70, s70, s71")
    E(f"s_add_u32 s70, s70, {S_R}")
    E("v_lshl_add_u32 v39, v1, 4, s70")
    E(f"s_mul_i32 s70, s68, {XROW}")
    E(f"s_add_u32 s70, s70, {XBASE + 32}")
    E("v_lshl_add_u32 v61, v60, 1, s70")
    E("v_lshrrev_b32 v2, 1, v1")
    E("v_and_b32 v3, 1, v1")
    E("v_lshlrev_b32 v2, 9, v2")
    E("v_lshl_add_u32 v2, v3, 6, v2")
    E("s_lshl_b32 s72, s64, 14")
    E("s_lshl_b32 s71, s68, 5")
    E("s_add_u32 s72, s72, s71")
    E("s_bfe_u32 s71, s3, 0x10001")
    E("s_lshl_b32 s71, s71, 4")
    E("s_add_u32 s72, s72, s71")
    E("s_and_b32 s71, s3, 1")
    E("s_lshl_b32 s71, s71, 8")
    E("s_add_u32 s72, s72, s71")
    E(f"s_mul_i32 s71, s3, {2*ZROW}")
    E(f"s_add_u32 s71, s71, {ZBASE + 128}")
    E("v_lshl_add_u32 v3, v1, 4, s71")
    E("v_and_b32 v4, 15, v1")
    E("v_lshrrev_b32 v5, 4, v1")
    E("v_lshlrev_b32 v6, 2, v4")
    E("v_add_u32 v6, v6, v5")
    E("v_lshlrev_b32 v7, 4, v6")
    E("s_waitcnt lgkmcnt(0)")
    E("s_barrier")
    E("s_cmp_eq_u32 s67, 3")
    E("s_cbranch_scc1 K_nored")
    for k in range(4):
        E(f"ds_read_b128 {R4(96+4*k)}, v39 offset:{3072*k}")
    E("s_waitcnt lgkmcnt(2)")
    for e in range(4):
        E(f"v_add_f32 v{96+e}, v{96+e}, v{100+e}")
    E("s_waitcnt lgkmcnt(0)")
    for e in range(4):
        E(f"v_add_f32 v{104+e}, v{104+e}, v{108+e}")
    for e in range(4):
        E(f"v_add_f32 v{96+e}, v{96+e}, v{104+e}")
    for e in range(4):
        E(f"ds_write_b32 v{35+e}, v{96+e}")
    E("s_branch K_red_done")
    L("K_nored")
    E("s_cmp_eq_u32 s3, 7")
    E("s_cbranch_scc0 K_red_done")
    E("v_lshlrev_b32 v96, 2, v1")
    E("s_mov_b32 s70, 0")
    E("s_mov_b32 s71, 0x01010101")
    L("K_poll")
    E(f"buffer_load_dword v97, v96, s[{SRD_DBGB}:{SRD_DBGB+3}], 0 offen sc1")
    E("s_waitcnt vmcnt(0)")
    E("v_cmp_ne_u32 vcc, s71, v97")
    E("s_add_u32 s70, s70, 1")
    E("s_cmp_eq_u64 vcc, 0")
    E("s_cbranch_scc1 K_red_done")
    E("s_sleep 4")
    E("s_cmp_lt_u32 s70, 0x40000")
    E("s_cbranch_scc1 K_poll")
    L("K_red_done")
    E("s_waitcnt lgkmcnt(0)")
    STAMP(5)
    E("s_barrier")
    STAMP(6)
    E(f"buffer_load_dwordx4 v[112:115], v2, s[{SRD_WS}:{SRD_WS+3}], s72 offen sc1")
    E(f"buffer_load_dwordx4 v[116:119], v2, s[{SRD_WS}:{SRD_WS+3}], s72 offen offset:128 sc1")
    E("s_lshl_b32 s70, s67, 2")
    E(f"s_add_u32 s70, s70, {WS_G}")
    E("s_cmp_eq_u32 s68, 1")
    E("s_cbranch_scc1 K_g1")
    E("s_add_u32 s70, s70, 7168")
    E(f"buffer_load_dword v8, v7, s[{SRD_WS}:{SRD_WS+3}], s70 offen sc1")
    E("s_branch K_g2")
    L("K_g1")
    for q in range(4):
        E(f"buffer_load_dword v{8+q}, v7, s[{SRD_WS}:{SRD_WS+3}], s70 offen offset:{1024*q} sc1")
    E("s_add_u32 s70, s70, 4096")
    for q in range(3):
        E(f"buffer_load_dword v{12+q}, v7, s[{SRD_WS}:{SRD_WS+3}], s70 offen offset:{1024*q} sc1")
    L("K_g2")
    for e in range(8):
        E(f"ds_read_b32 v{72+e}, v{64+e}")
    for e in range(0, 8, 2):
        E(f"s_waitcnt lgkmcnt({6-e})")
        E(f"v_cvt_pk_bf16_f32 v{80+e//2}, v{72+e}, v{73+e}")
        E(f"v_lshlrev_b32 v62, 16, v{80+e//2}")
        E(f"v_and_b32 v63, s43, v{80+e//2}")
        E(f"v_sub_f32 v62, v{72+e}, v62")
        E(f"v_sub_f32 v63, v{73+e}, v63")
        E(f"v_cvt_pk_bf16_f32 v{84+e//2}, v62, v63")
    E("ds_write_b128 v61, v[80:83]")
    E(f"ds_write_b128 v61, v[84:87] offset:{2*XROW}")
    E("s_waitcnt lgkmcnt(0)")
    E("s_barrier")
    E("v_mov_b32 v24, 0")
    E("v_mov_b32 v25, 0")
    E("v_mov_b32 v26, 0")
    E("v_mov_b32 v27, 0")
    E("s_cmp_ge_u32 s3, 3")
    E("s_cbranch_scc1 K_nozero")
    E("s_cmp_eq_u32 s3, 2")
    E("s_cbranch_scc1 K_z2")
    E("v_lshrrev_b32 v16, 3, v0")
    E(f"v_mul_u32_u24 v16, {ZROW}, v16")
    E("v_and_b32 v17, 7, v0")
    E("v_lshl_add_u32 v16, v17, 4, v16")
    E("ds_write_b128 v16, v[24:27]")
    E("s_branch K_nozero")
    L("K_z2")
    E("v_lshrrev_b32 v16, 1, v1")
    E(f"v_mul_u32_u24 v16, {XROW}, v16")
    E("v_and_b32 v17, 1, v1")
    E("v_lshl_add_u32 v16, v17, 4, v16")
    E(f"v_add_u32 v16, {XBASE}, v16")
    E("v_subrev_u32 v17, 12, v1")
    E(f"v_mul_u32_u24 v17, {PMS}, v17")
    E(f"v_add_u32 v17, {PM}, v17")
    E("v_cmp_le_u32 vcc, 12, v1")
    E("v_subrev_u32 v18, 20, v1")
    E(f"v_mul_u32_u24 v18, {PCS}, v18")
    E("v_cndmask_b32 v16, v16, v17, vcc")
    E(f"v_add_u32 v18, {PC}, v18")
    E("v_cmp_le_u32 vcc, 20, v1")
    E("v_subrev_u32 v17, 28, v1")
    E("v_lshlrev_b32 v17, 4, v17")
    E("v_cndmask_b32 v16, v16, v18, vcc")
    E(f"v_add_u32 v17, {FLG}, v17")
    E("v_cmp_le_u32 vcc, 28, v1")
    E("s_nop 1")
    E("v_cndmask_b32 v16, v16, v17, vcc")
    E("v_cmp_gt_u32 vcc, 44, v1")
    E("s_and_saveexec_b64 s[70:71], vcc")
    E("ds_write_b128 v16, v[24:27]")
    E("s_mov_b64 exec, s[70:71]")
    L("K_nozero")
    E("s_bfe_u32 s69, s3, 0x10001")
    vB, vA, vPM, vPC, vF = 16, 17, 18, 19, 20
    E("s_lshl_b32 s70, s3, 1")
    E(f"s_mul_i32 s70, s70, {ZROW}")
    E(f"s_add_u32 s70, s70, {ZBASE + 8}")
    E(f"v_lshlrev_b32 v{vB}, 3, v4")
    E(f"v_lshl_add_u32 v{vB}, v5, 4, v{vB}")
    E(f"v_add_u32 v{vB}, s70, v{vB}")
    E("v_and_b32 v22, 3, v1")
    E("v_bfe_u32 v23, v1, 2, 2")
    E("v_sub_u32 v22, v22, v23")
    E("v_lshlrev_b32 v22, 3, v22")
    E("v_lshlrev_b32 v23, 6, v5")
    E("v_sub_u32 v22, v22, v23")
    E("s_lshl_b32 s70, s68, 2")
    E("s_add_u32 s70, s70, s69")
    E(f"s_mul_i32 s70, s70, {XROW}")
    E(f"s_add_u32 s70, s70, {XBASE + 224}")
    E(f"v_add_u32 v{vA}, s70, v22")
    E(f"s_mul_i32 s70, s3, {PMS}")
    E(f"s_add_u32 s70, s70, {PM + 16}")
    E(f"v_lshl_add_u32 v{vPM}, v1, 4, s70")
    E(f"s_mul_i32 s70, s3, {PCS}")
    E(f"s_add_u32 s70, s70, {PC + 16}")
    E(f"v_lshl_add_u32 v{vPC}, v1, 2, s70")
    E("s_lshl_b32 s70, s3, 2")
    E(f"s_add_u32 s70, s70, {FLG}")
    E(f"v_mov_b32 v{vF}, s70")
    E("v_mov_b32 v21, 1")
    E("s_waitcnt vmcnt(0)")
    E("ds_write_b128 v3, v[112:115]")
    E(f"ds_write_b128 v3, v[116:119] offset:{ZROW}")
    E("s_waitcnt lgkmcnt(0)")
    STAMP(7)
    E("s_barrier")
    STAMP(8)
    if DBG: E("s_waitcnt lgkmcnt(0)")
    E("s_cmp_eq_u32 s68, 1")
    E("s_cbranch_scc1 K_convB")

    def Bf(pp, jj):
        return 64 + 64 * pp + 4 * jj
    def acc(pp, q):
        return 192 + 32 * pp + 4 * q
    def conv(nx, tag):
        ring = 8 // nx
        def Af(n, x):
            return 32 + 4 * ((n % ring) * nx + x)
        queue = []
        def rdA(n):
            for x in range(nx):
                a = Af(n, x)
                off = 256 * n + x * 2 * XROW
                E(f"ds_read_b64_tr_b16 v[{a}:{a+1}], v{vA} offset:{off+32}")
                E(f"ds_read_b64_tr_b16 v[{a+2}:{a+3}], v{vA} offset:{off}")
                queue.extend([("A", n), ("A", n)])
        def rdB(pp, jj):
            b = Bf(pp, jj)
            E(f"ds_read_b64 v[{b}:{b+1}], v{vB} offset:{pp*ZROW + 64*jj}")
            E(f"ds_read_b64 v[{b+2}:{b+3}], v{vB} offset:{pp*ZROW + 64*jj + 8}")
            queue.extend([("B", pp, jj), ("B", pp, jj)])
        def need(keys):
            last = -1
            for idx, k in enumerate(queue):
                if k in keys:
                    last = idx
            if last >= 0:
                n_after = len(queue) - 1 - last
                assert n_after <= 15
                E(f"s_waitcnt lgkmcnt({n_after})")
                del queue[:last + 1]
        def mf(pp, q, n, x, first=False):
            jj = 2 * q - n + 1
            c = "0" if first else R4(acc(pp, q))
            E(f"v_mfma_f32_16x16x32_bf16 {R4(acc(pp,q))}, {R4(Af(n,x))}, {R4(Bf(pp,jj))}, {c}")
        def writeout(q):
            a0, a1 = acc(0, q), acc(1, q)
            E(f"v_add_f32 v{a0+1}, v{a0+1}, v{a1}")
            E(f"v_add_f32 v{a0+2}, v{a0+2}, v{a1+1}")
            E(f"v_add_f32 v{a0+3}, v{a0+3}, v{a1+2}")
            E(f"ds_write_b32 v{vPC}, v{a1+3} offset:{256*q}")
            E(f"ds_write_b128 v{vPM}, {R4(a0)} offset:{1024*q}")
            E(f"ds_write_b32 v{vF}, v21 offset:{32*q}")
            queue.extend([("W",), ("W",), ("W",)])
        rdA(1)
        rdB(0, 0)
        rdA(0)
        rdB(0, 1)
        rdB(1, 0)
        for q in range(8):
            for pp in range(2):
                nxt = []
                if pp == 0:
                    nxt = [(1, 2 * q + 1)] + ([(0, 2 * q + 2)] if q < 7 else [])
                else:
                    nxt = [(0, 2 * q + 3), (1, 2 * q + 2)] if q < 7 else []
                need({("A", 1), ("B", pp, 2 * q)})
                for x in range(nx):
                    mf(pp, q, 1, x, first=(x == 0))
                if nxt:
                    rdB(*nxt[0])
                elif pp == 1:
                    rdA(2)
                need({("A", 0), ("B", pp, 2 * q + 1)})
                for x in range(nx):
                    mf(pp, q, 0, x)
                if len(nxt) > 1:
                    rdB(*nxt[1])
                elif pp == 1:
                    rdA(3)
        if nx == 1:
            sched = {2: [4], 3: [5], 4: [6], 5: [7], 6: [8], 7: [9], 8: [10, 11], 9: [12, 13], 10: [14, 15]}
        else:
            sched = {n: [n + 2] for n in range(2, 14)}
        for n in range(2, 16):
            need({("A", n)})
            q0 = n >> 1
            k = 0
            for q in range(q0, 8):
                for pp in range(2):
                    for x in range(nx):
                        mf(pp, q, n, x)
                    k += 1
                    if k == 1:
                        for m in sched.get(n, []):
                            rdA(m)
                if n % 2 == 0 and q == min(q0 + 1, 7):
                    if n == 14:
                        E("s_nop 3")
                    writeout(q0 - 1)
        E("s_nop 7")
        writeout(7)
    conv(2, "A")
    STAMP(9)
    E("s_mov_b32 s73, 7")
    E("s_branch K_fin")
    L("K_convB")
    E("s_setprio 2")
    conv(1, "B")
    STAMP(9)
    E("s_mov_b32 s73, 0")
    L("K_fin")
    E("v_subrev_u32 v16, 16, v1")
    E("v_add_u32 v17, 47, v1")
    E("v_cmp_eq_u32 vcc, 0, v1")
    E("s_nop 1")
    E("v_cndmask_b32 v17, v17, -1, vcc")
    E("v_cmp_gt_u32 vcc, 16, v1")
    E("s_lshl_b32 s74, s73, 6")
    E("s_nop 0")
    E("v_cndmask_b32 v16, v16, v17, vcc")
    E("v_add_u32 v16, s74, v16")
    E("v_add_u32 v22, s74, v1")
    E("v_add_u32 v6, s74, v6")
    E("s_lshl_b32 s70, s67, 2")
    E(f"s_add_u32 s70, s70, {PM + 16}")
    E("v_lshl_add_u32 v18, v22, 4, s70")
    E("s_add_u32 s70, s67, 2")
    E("s_and_b32 s70, s70, 3")
    E("s_lshl_b32 s70, s70, 2")
    E(f"s_add_u32 s70, s70, {PM + 16 + PMS}")
    E("s_cmp_lt_u32 s67, 2")
    E("s_cselect_b64 vcc, -1, 0")
    E("v_cndmask_b32 v17, v22, v16, vcc")
    E("v_lshl_add_u32 v19, v17, 4, s70")
    E("s_lshr_b32 s70, s67, 1")
    E(f"s_mul_i32 s70, s70, {PCS}")
    E(f"s_add_u32 s70, s70, {PC + 16}")
    E("v_lshl_add_u32 v20, v16, 2, s70")
    E("s_and_b32 s70, s67, 1")
    E("s_cmp_eq_u32 s70, 0")
    E("s_cselect_b64 vcc, -1, 0")
    E("s_cselect_b32 s75, 256, 0")
    E(f"v_mov_b32 v17, {PC}")
    E("v_cndmask_b32 v20, v17, v20, vcc")
    E(f"s_mul_i32 s70, s67, {ZROW}")
    E("v_lshl_add_u32 v21, v6, 1, s70")
    E("s_lshl_b32 s70, s67, 10")
    E("v_lshl_add_u32 v22, v6, 12, s70")
    E("s_lshl_b32 s70, s73, 5")
    E(f"s_add_u32 s70, s70, {FLG}")
    E("v_mov_b32 v23, s70")
    E("s_lshl_b32 s72, s64, 2")
    E("s_lshl_b32 s76, s23, 16")
    E("s_and_b32 s77, s23, s43")
    E("s_lshl_b32 s78, s42, 16")
    E("s_and_b32 s79, s42, s43")
    E("s_sub_u32 s74, 8, s68")
    L("K_hloop")
    for r in range(48, 52):
        E(f"v_mov_b32 v{r}, 0")
    for k in range(4):
        E(f"ds_read_u16_d16_hi v{48+k}, v21 offset:{ZBASE + 4*k*ZROW + 128}")
    L("K_hpoll")
    E("ds_read_b128 v[24:27], v23")
    E("ds_read_b128 v[28:31], v23 offset:16")
    E("s_waitcnt lgkmcnt(0)")
    E("v_and_b32 v24, v24, v25")
    E("v_and_b32 v26, v26, v27")
    E("v_and_b32 v28, v28, v29")
    E("v_and_b32 v30, v30, v31")
    E("v_and_b32 v24, v24, v26")
    E("v_and_b32 v28, v28, v30")
    E("v_and_b32 v24, v24, v28")
    E("s_nop 0")
    E("v_readfirstlane_b32 s70, v24")
    E("s_cmp_eq_u32 s70, 1")
    E("s_cbranch_scc1 K_go")
    E("s_sleep 3")
    E("s_branch K_hpoll")
    L("K_go")
    for k in range(4):
        E(f"ds_read_b32 v{32+k}, v18 offset:{2*k*PMS}")
        E(f"ds_read_b32 v{36+k}, v19 offset:{2*k*PMS}")
        E(f"ds_read_b32 v{40+k}, v20 offset:{2*k*PCS}")
    def rnd(a, b):
        E(f"v_cvt_pk_bf16_f32 v{a}, v{a}, v{b}")
        E(f"v_and_b32 v{b}, s43, v{a}")
        E(f"v_lshlrev_b32 v{a}, 16, v{a}")
    yA0, yA1, yB0, yB1 = 32, 33, 34, 35
    u0, u1, k0, k1 = 48, 49, 50, 51
    t = 52
    E(f"v_mul_f32 v{t}, s76, v{u0}")
    E(f"v_mul_f32 v{t+1}, s77, v{u1}")
    E(f"v_mul_f32 v{t+2}, s78, v{k0}")
    E(f"v_mul_f32 v{t+3}, s79, v{k1}")
    rnd(t, t + 1)
    rnd(t + 2, t + 3)
    E(f"v_lshlrev_b32 v{t+4}, 16, v8")
    E(f"v_and_b32 v{t+5}, s43, v8")
    for q in range(6):
        E(f"v_mov_b32 v{8+q}, v{9+q}")
    E("v_add_u32 v18, 1024, v18")
    E("v_add_u32 v19, 1024, v19")
    E("v_add_u32 v20, s75, v20")
    E("v_add_u32 v21, 128, v21")
    E("v_add_u32 v23, 32, v23")
    for k in range(4):
        E(f"s_waitcnt lgkmcnt({9-3*k})")
        E(f"v_add_f32 v{32+k}, v{32+k}, v{36+k}")
        E(f"v_add_f32 v{32+k}, v{32+k}, v{40+k}")
    rnd(yA0, yA1)
    rnd(yB0, yB1)
    E(f"v_add_f32 v{yA0}, v{yA0}, v{t}")
    E(f"v_add_f32 v{yA1}, v{yA1}, v{t+1}")
    E(f"v_add_f32 v{yB0}, v{yB0}, v{t+2}")
    E(f"v_add_f32 v{yB1}, v{yB1}, v{t+3}")
    rnd(yA0, yA1)
    rnd(yB0, yB1)
    E(f"v_mul_f32 v{yB0}, v{u0}, v{yB0}")
    E(f"v_mul_f32 v{yB1}, v{u1}, v{yB1}")
    rnd(yB0, yB1)
    E(f"v_mul_f32 v{yA0}, v{t+4}, v{yA0}")
    E(f"v_mul_f32 v{yA1}, v{t+4}, v{yA1}")
    E(f"v_mul_f32 v{yB0}, v{t+5}, v{yB0}")
    E(f"v_mul_f32 v{yB1}, v{t+5}, v{yB1}")
    rnd(yA0, yA1)
    rnd(yB0, yB1)
    E(f"v_add_f32 v{yA0}, v{yA0}, v{yB0}")
    E(f"v_add_f32 v{yA1}, v{yA1}, v{yB1}")
    E(f"v_cvt_pk_bf16_f32 v{yA0}, v{yA0}, v{yA1}")
    E(f"buffer_store_dword v{yA0}, v22, s[{SRD_OUT}:{SRD_OUT+3}], s72 offen")
    E("v_add_u32 v22, 0x40000, v22")
    E("s_add_u32 s73, s73, 1")
    E("s_cmp_lt_u32 s73, s74")
    E("s_cbranch_scc1 K_hloop")
    if DBG:
        E("s_waitcnt lgkmcnt(0)")
    STAMP(1)
    if DBG: E("s_waitcnt vmcnt(0)")
    STAMP(2)
    DUMP(10, SRD_WS)
    L("K_end")
    E("s_endpgm")
    sg = 102 if DBG else 80
    return f""".amdhsa_kernel {name}
  .amdhsa_next_free_vgpr 256
  .amdhsa_next_free_sgpr {sg}
  .amdhsa_accum_offset 256
  .amdhsa_group_segment_fixed_size 0
  .amdhsa_kernarg_size 152
  .amdhsa_user_sgpr_count 2
  .amdhsa_user_sgpr_kernarg_segment_ptr 1
  .amdhsa_system_sgpr_workgroup_id_x 1
  .amdhsa_float_denorm_mode_32 3
.end_amdhsa_kernel"""

def main():
    hdr = HEADER.rstrip("\n")
    pre = [hdr,
           f"; @launch grid=(256,1,1) block=(512,1,1) lds={LDS_SIZE}",
           '.amdgcn_target "amdgcn-amd-amdhsa--gfx950"',
           ".text"]
    k = gen()
    txt = "\n".join(pre + out) + '\n.section .rodata,"a"\n.p2align 6\n' + k + "\n"
    args = [a for a in sys.argv[1:] if not a.startswith("--")]
    path = args[0] if args else "cdna_kernels/%s.s" % NAME
    open(path, "w").write(txt)

main()
```

```python
import sys

NAME = "gated_mix__ssm_conv_s4__ssm_conv_h3__prompt"
HEADER = open("cdna_kernels/%s.s.ref" % NAME).read().split("; Override launch")[0]
DBG = "--dbg" in sys.argv
def opt(name, default):
    for a in sys.argv:
        if a.startswith("--" + name + "="):
            return int(a.split("=")[1])
    return default
NA = opt("na", 4)
NB = 8 - NA
FINPRIO = opt("finprio", 1)
PSLEEP = opt("psleep", 8)
CBPRIO = opt("cbprio", 1)
APRIO = opt("aprio", 2)
POLLSC = ["sc1", "sc0 sc1", "sc1 nt"][opt("pollsc", 1)]

out = []
def E(s=""):
    out.append("    " + s)
def L(s):
    out.append(s + ":")

WS_Z = 0
WS_G = 4 << 20
WS_SIZE = (4 << 20) + 8192
WS_DBG = 16 << 20
if DBG:
    WS_SIZE = 32 << 20

ZROW = 1152
ZBASE = 0
XBASE = 16 * ZROW
XROW = 4128
GB = XBASE + 6 * XROW
FLG = GB + 8192
SYN = FLG + 256
PMS = 8192 + 16
PCS = 2048 + 16
PB = SYN + 256
PA = PB + 4 * PMS + 4 * PCS
PSTRIDE = PA - PB
S_KT = PA
S_P = S_KT + 24576
S_TR = S_P + 16384
LDS_SIZE = S_TR + 8 * 3072
assert LDS_SIZE <= 163840 and PA + PSTRIDE <= LDS_SIZE
def PMa(X, w4):
    return (PA if X == 0 else PB) + w4 * PMS
def PCa(X, w4):
    return (PA if X == 0 else PB) + 4 * PMS + w4 * PCS

def STAMP(i):
    if DBG:
        E(f"s_memtime s[{80+2*i}:{81+2*i}]")
def DUMP(n, srdreg):
    if DBG:
        E("s_waitcnt lgkmcnt(0)")
        E("s_mov_b64 exec, 1")
        E("s_lshl_b32 s100, s2, 4")
        E("s_add_u32 s100, s100, s3")
        E("s_lshl_b32 s100, s100, 6")
        E(f"s_add_u32 s100, s100, {WS_DBG}")
        for i in range(n):
            E(f"v_mov_b32 v2, s{80+2*i}")
            E(f"v_mov_b32 v3, {4*i}")
            E(f"buffer_store_dword v2, v3, s[{srdreg}:{srdreg+3}], s100 offen")
            E("s_nop 1")

def srd(sd, sp, nbytes):
    E(f"s_mov_b32 s{sd}, s{sp}")
    E(f"s_and_b32 s{sd+1}, s{sp+1}, 0xffff")
    E(f"s_mov_b32 s{sd+2}, {hex(nbytes)}")
    E(f"s_mov_b32 s{sd+3}, 0x00020000")
def R4(r):
    return f"v[{r}:{r+3}]"
SRD_WS, SRD_OUT, SRD_DBGB, SRD_A, SRD_B = 44, 48, 52, 56, 60

lblc = [0]
def post(kind):
    E(f"ds_write_b32 v28, v29 offset:{32*kind}")
def waitf(kind, lo, hi, t0=24):
    lblc[0] += 1
    n = lblc[0]
    L(f"W{n}_p")
    if hi - lo == 4:
        E(f"ds_read_b128 v[{t0}:{t0+3}], v30 offset:{32*kind + 4*lo}")
        E("s_waitcnt lgkmcnt(0)")
        E(f"v_and_b32 v{t0}, v{t0}, v{t0+1}")
        E(f"v_and_b32 v{t0+2}, v{t0+2}, v{t0+3}")
        E(f"v_and_b32 v{t0}, v{t0}, v{t0+2}")
    else:
        E(f"ds_read_b128 v[{t0}:{t0+3}], v30 offset:{32*kind}")
        E(f"ds_read_b128 v[{t0+4}:{t0+7}], v30 offset:{32*kind + 16}")
        E("s_waitcnt lgkmcnt(0)")
        for k in range(0, 8, 2):
            E(f"v_and_b32 v{t0+k}, v{t0+k}, v{t0+k+1}")
        E(f"v_and_b32 v{t0}, v{t0}, v{t0+2}")
        E(f"v_and_b32 v{t0+4}, v{t0+4}, v{t0+6}")
        E(f"v_and_b32 v{t0}, v{t0}, v{t0+4}")
    E("s_nop 0")
    E(f"v_readfirstlane_b32 s70, v{t0}")
    E("s_cmp_eq_u32 s70, 1")
    E(f"s_cbranch_scc1 W{n}_d")
    E("s_sleep 1")
    E(f"s_branch W{n}_p")
    L(f"W{n}_d")

def gen():
    name = NAME + "_kernel"
    out.append(f".globl {name}\n.p2align 8\n.type {name},@function")
    L(name)
    E("s_cmp_ge_u32 s2, 256")
    E("s_cbranch_scc1 K_end")
    STAMP(0)
    E("s_setprio 3")
    E("s_load_dwordx16 s[4:19], s[0:1], 0")
    E("s_load_dwordx2 s[20:21], s[0:1], 64")
    E("s_load_dwordx8 s[24:31], s[0:1], 80")
    E("s_load_dwordx8 s[32:39], s[0:1], 112")
    E("s_load_dwordx2 s[40:41], s[0:1], 144")
    E("v_lshrrev_b32 v1, 6, v0")
    E("s_nop 0")
    E("v_readfirstlane_b32 s3, v1")
    E("v_and_b32 v1, 63, v0")
    E("s_and_b32 s64, s2, 7")
    E("s_lshl_b32 s65, s64, 2")
    E("s_lshl_b32 s64, s64, 5")
    E("s_lshr_b32 s66, s2, 3")
    E("s_add_u32 s64, s64, s66")
    E("s_and_b32 s66, s66, 3")
    E("s_add_u32 s65, s65, s66")
    E("s_lshr_b32 s66, s2, 5")
    E("s_and_b32 s67, s3, 3")
    E("s_lshr_b32 s68, s3, 2")
    E("s_bfe_u32 s69, s3, 0x10001")
    E("v_mov_b32 v12, 0")
    E("v_mov_b32 v13, 0")
    E("v_mov_b32 v14, 0")
    E("v_mov_b32 v15, 0")
    E("v_and_b32 v2, 31, v1")
    E("v_lshlrev_b32 v2, 4, v2")
    E(f"ds_write_b128 v2, v[12:15] offset:{FLG}")
    E("s_lshl_b32 s70, s3, 2")
    E(f"s_add_u32 s70, s70, {SYN}")
    E("v_mov_b32 v28, s70")
    E("v_mov_b32 v29, 1")
    E("v_mov_b32 v95, 0")
    E(f"v_mov_b32 v30, {SYN}")
    E("s_lshl_b32 s70, s65, 6")
    E("s_add_u32 s70, s70, s67")
    E("s_lshl_b32 s70, s70, 10")
    E("s_lshl_b32 s71, s66, 7")
    E("s_add_u32 s70, s70, s71")
    E("v_lshrrev_b32 v2, 3, v1")
    E("v_and_b32 v3, 7, v1")
    E("v_lshlrev_b32 v4, 12, v2")
    E("v_lshl_add_u32 v4, v3, 4, v4")
    E("v_add_u32 v4, s70, v4")
    E("v_subrev_u32 v5, 1024, v4")
    E("v_subrev_u32 v6, 2048, v4")
    E("v_subrev_u32 v7, 3072, v4")
    E("s_lshl_b32 s71, s66, 9")
    E("v_lshl_add_u32 v8, v3, 6, s71")
    E("s_lshl_b32 s72, s65, 6")
    E("s_lshl_b32 s71, s66, 3")
    E("s_add_u32 s72, s72, s71")
    E("s_lshl_b32 s71, s67, 1")
    E("s_add_u32 s72, s72, s71")
    E("s_lshl_b32 s73, s72, 10")
    E("v_lshlrev_b32 v9, 4, v1")
    E("s_and_b32 s74, s3, 1")
    E(f"s_mul_i32 s75, s74, {8*NA}")
    E(f"s_mul_i32 s76, s74, {8*NB}")
    E(f"s_add_u32 s76, s76, {16*NA}")
    E("s_cmp_eq_u32 s68, 0")
    E("s_cselect_b32 s75, s75, s76")
    E("s_lshl_b32 s70, s64, 1")
    E("s_add_u32 s70, s70, s69")
    E("s_lshl_b32 s70, s70, 7")
    E("s_add_u32 s70, s70, s75")
    E("s_lshl_b32 s70, s70, 1")
    E("v_lshl_add_u32 v11, v1, 1, s70")
    E("s_waitcnt lgkmcnt(0)")
    E("s_cmp_eq_u32 s68, 0")
    E("s_cbranch_scc1 K_noTL")
    srd(SRD_A, 24, 2 << 20)
    srd(SRD_B, 26, 2 << 20)
    E("s_mov_b32 s70, 0x8000")
    E(f"buffer_load_dwordx4 v[12:15], v4, s[{SRD_A}:{SRD_A+3}], 0 offen")
    E(f"buffer_load_dwordx4 v[16:19], v5, s[{SRD_A}:{SRD_A+3}], 0 offen")
    E(f"buffer_load_dwordx4 v[20:23], v6, s[{SRD_A}:{SRD_A+3}], 0 offen")
    E(f"buffer_load_dwordx4 v[24:27], v7, s[{SRD_A}:{SRD_A+3}], 0 offen")
    E(f"buffer_load_dwordx4 v[96:99], v4, s[{SRD_B}:{SRD_B+3}], 0 offen")
    srd(SRD_WS, 28, 4096)
    srd(SRD_OUT, 4, 2 << 20)
    for i in range(4):
        E(f"buffer_load_dwordx4 v[{40+4*i}:{43+4*i}], v8, s[{SRD_WS}:{SRD_WS+3}], 0 offen offset:{16*i}")
    E(f"buffer_load_dwordx4 v[32:35], v4, s[{SRD_OUT}:{SRD_OUT+3}], 0 offen")
    E("v_add_u32 v4, s70, v4")
    E(f"buffer_load_dwordx4 v[128:131], v4, s[{SRD_A}:{SRD_A+3}], 0 offen")
    E("v_subrev_u32 v5, 1024, v4")
    E(f"buffer_load_dwordx4 v[132:135], v5, s[{SRD_A}:{SRD_A+3}], 0 offen")
    E("v_subrev_u32 v6, 2048, v4")
    E(f"buffer_load_dwordx4 v[136:139], v6, s[{SRD_A}:{SRD_A+3}], 0 offen")
    E("v_subrev_u32 v7, 3072, v4")
    E(f"buffer_load_dwordx4 v[140:143], v7, s[{SRD_A}:{SRD_A+3}], 0 offen")
    E(f"buffer_load_dwordx4 v[144:147], v4, s[{SRD_B}:{SRD_B+3}], 0 offen")
    E(f"buffer_load_dwordx4 v[148:151], v4, s[{SRD_OUT}:{SRD_OUT+3}], 0 offen")
    E(f"buffer_load_dwordx4 v[56:59], v9, s[{SRD_OUT}:{SRD_OUT+3}], s73 offen")
    E(f"buffer_load_dwordx4 v[152:155], v9, s[{SRD_OUT}:{SRD_OUT+3}], s73 offen offset:1024")
    srd(SRD_A, 34, 1024)
    E(f"buffer_load_dwordx4 v[60:63], v9, s[{SRD_A}:{SRD_A+3}], 0 offen")
    L("K_noTL")
    for i, sp in enumerate([6, 8, 10, 12, 14, 16]):
        sd = SRD_A if i % 2 == 0 else SRD_B
        srd(sd, sp, 131072)
        E(f"buffer_load_ushort v{84+i}, v11, s[{sd}:{sd+3}], 0 offen")
    srd(SRD_A, 30, 2 << 20)
    E("s_lshl_b32 s70, s64, 13")
    E("s_lshl_b32 s71, s3, 10")
    E("s_add_u32 s70, s70, s71")
    E(f"s_mul_i32 s71, s68, {XROW}")
    E("s_lshl_b32 s74, s67, 10")
    E("s_add_u32 s71, s71, s74")
    E(f"s_add_u32 s71, s71, {XBASE + 4*XROW + 32}")
    E("s_mov_b32 m0, s71")
    E("s_lshl_b32 s74, s64, 2")
    E(f"buffer_load_dwordx4 v9, s[{SRD_A}:{SRD_A+3}], s70 offen lds")
    E("s_load_dword s22, s[18:19], s74")
    E("s_load_dword s23, s[20:21], s74")
    E("s_load_dword s42, s[32:33], s74")
    srd(SRD_WS, 40, WS_SIZE)
    srd(SRD_OUT, 36, 2 << 20)
    srd(SRD_DBGB, 38, 256)
    E("s_mov_b32 s43, 0xffff0000")
    E("s_and_b32 s61, s3, 1")
    E("s_lshl_b32 s70, s2, 3")
    E("s_add_u32 s70, s70, s3")
    E("s_cmp_lg_u32 s70, 4")
    E("s_cbranch_scc1 K_nononce")
    E("s_memrealtime s[70:71]")
    E("s_waitcnt lgkmcnt(0)")
    E("s_or_b32 s70, s70, 1")
    E("v_mov_b32 v100, s70")
    E("v_mov_b32 v101, s71")
    E("v_mov_b32 v102, 0")
    E("s_mov_b64 exec, 1")
    E(f"buffer_store_dwordx2 v[100:101], v102, s[{SRD_DBGB}:{SRD_DBGB+3}], 0 offen sc1")
    E("s_mov_b64 exec, -1")
    E("s_waitcnt vmcnt(0)")
    L("K_nononce")
    E("s_barrier")
    E("s_cmp_eq_u32 s68, 0")
    E("s_cbranch_scc1 K_kgen")
    E("s_mul_i32 s70, s3, 3072")
    E(f"s_add_u32 s70, s70, {S_TR}")
    E("v_mul_u32_u24 v64, 144, v2")
    E("v_lshl_add_u32 v64, v3, 4, v64")
    E("v_add_u32 v64, s70, v64")
    E("v_lshrrev_b32 v66, 4, v1")
    E("v_and_b32 v67, 1, v66")
    E("v_lshrrev_b32 v66, 1, v66")
    E("v_bfe_u32 v68, v1, 2, 2")
    E("v_and_b32 v69, 3, v1")
    E("v_mul_u32_u24 v65, 1152, v67")
    E("v_mul_u32_u24 v68, 144, v68")
    E("v_add_u32 v65, v65, v68")
    E("v_lshl_add_u32 v65, v66, 5, v65")
    E("v_lshl_add_u32 v65, v69, 3, v65")
    E("v_add_u32 v65, s70, v65")
    E("v_and_b32 v68, 15, v1")
    E("v_lshl_add_u32 v68, v66, 4, v68")
    E("v_lshrrev_b32 v69, 1, v68")
    E("v_and_b32 v68, 1, v68")
    E("v_lshlrev_b32 v69, 14, v69")
    E("v_lshl_add_u32 v69, v68, 4, v69")
    E("v_lshl_add_u32 v69, v67, 5, v69")
    E("s_lshl_b32 s70, s66, 19")
    E("s_lshl_b32 s71, s65, 9")
    E("s_add_u32 s70, s70, s71")
    E("s_lshl_b32 s71, s67, 7")
    E("s_add_u32 s70, s70, s71")
    E("s_add_u32 s71, s70, 0x40000")
    E("s_mov_b32 s62, 0")
    E("s_waitcnt vmcnt(17)")
    STAMP(1)
    L("K_tloop")
    for i in range(4):
        c0, c1 = 2 * i, 2 * i + 1
        taps = [(24 + i, 41, True), (20 + i, 41, False), (16 + i, 40, True), (12 + i, 40, False)]
        for ti, (kr, sb, hi) in enumerate(taps):
            E(f"v_lshlrev_b32 v70, 16, v{kr}")
            E(f"v_and_b32 v71, s43, v{kr}")
            if hi:
                E(f"v_and_b32 v72, s43, v{sb+2*c0}")
                E(f"v_and_b32 v73, s43, v{sb+2*c1}")
            else:
                E(f"v_lshlrev_b32 v72, 16, v{sb+2*c0}")
                E(f"v_lshlrev_b32 v73, 16, v{sb+2*c1}")
            E("v_mul_f32 v70, v70, v72")
            E("v_mul_f32 v71, v71, v73")
            E("v_cvt_pk_bf16_f32 v70, v70, v71")
            if ti == 0:
                E("v_lshlrev_b32 v74, 16, v70")
                E("v_and_b32 v75, s43, v70")
            else:
                E("v_and_b32 v71, s43, v70")
                E("v_lshlrev_b32 v70, 16, v70")
                E("v_add_f32 v74, v74, v70")
                E("v_add_f32 v75, v75, v71")
                E("v_cvt_pk_bf16_f32 v74, v74, v75")
                E("v_and_b32 v75, s43, v74")
                E("v_lshlrev_b32 v74, 16, v74")
        E(f"v_lshlrev_b32 v70, 16, v{96+i}")
        E(f"v_and_b32 v71, s43, v{96+i}")
        E("v_mul_f32 v74, v74, v70")
        E("v_mul_f32 v75, v75, v71")
        E(f"v_cvt_pk_bf16_f32 v{36+i}, v74, v75")
    E("ds_write_b128 v64, v[36:39] offset:1152")
    E("s_cmp_eq_u32 s62, 0")
    E("s_cbranch_scc0 K_tw1")
    E("s_waitcnt vmcnt(16)")
    L("K_tw1")
    E("ds_write_b128 v64, v[32:35]")
    E("s_waitcnt lgkmcnt(0)")
    E("ds_read_b64_tr_b16 v[76:77], v65")
    E("ds_read_b64_tr_b16 v[78:79], v65 offset:576")
    E("ds_read_b64_tr_b16 v[80:81], v65 offset:64")
    E("ds_read_b64_tr_b16 v[82:83], v65 offset:640")
    E("s_waitcnt lgkmcnt(2)")
    E(f"buffer_store_dwordx4 v[76:79], v69, s[{SRD_WS}:{SRD_WS+3}], s70 offen sc1")
    E("s_waitcnt lgkmcnt(0)")
    E(f"buffer_store_dwordx4 v[80:83], v69, s[{SRD_WS}:{SRD_WS+3}], s71 offen sc1")
    E("s_cmp_eq_u32 s62, 1")
    E("s_cbranch_scc1 K_tdone")
    E("s_mov_b32 s62, 1")
    E("s_add_u32 s70, s70, 64")
    E("s_add_u32 s71, s71, 64")
    E("s_waitcnt vmcnt(12)")
    for i in range(16):
        E(f"v_mov_b32 v{12+i}, v{128+i}")
    for i in range(4):
        E(f"v_mov_b32 v{96+i}, v{144+i}")
        E(f"v_mov_b32 v{32+i}, v{148+i}")
    E("s_branch K_tloop")
    L("K_tdone")
    E("v_mov_b32 v95, 0")
    E(f"buffer_load_dwordx2 v[92:93], v95, s[{SRD_DBGB}:{SRD_DBGB+3}], 0 offen sc1")
    E("s_mov_b32 s62, 0")
    E("s_waitcnt vmcnt(12)")
    L("K_gloop")
    for i in range(4):
        E(f"v_lshlrev_b32 v70, 16, v{56+i}")
        E(f"v_and_b32 v71, s43, v{56+i}")
        E(f"v_lshlrev_b32 v72, 16, v{60+i}")
        E(f"v_and_b32 v73, s43, v{60+i}")
        E("v_mul_f32 v70, v70, v72")
        E("v_mul_f32 v71, v71, v73")
        E("v_cvt_pk_bf16_f32 v70, v70, v71")
        E("v_and_b32 v71, s43, v70")
        E("v_lshlrev_b32 v70, 16, v70")
        if i == 0:
            E("v_add_f32 v74, v70, v71")
        else:
            E("v_add_f32 v74, v74, v70")
            E("v_add_f32 v74, v74, v71")
    for dpp in ["row_shr:1", "row_shr:2", "row_shr:4", "row_shr:8"]:
        E("s_nop 1")
        E(f"v_add_f32_dpp v74, v74, v74 {dpp} row_mask:0xf bank_mask:0xf bound_ctrl:0")
    E("s_nop 1")
    E("v_add_f32_dpp v74, v74, v74 row_bcast:15 row_mask:0xa bank_mask:0xf")
    E("s_nop 1")
    E("v_add_f32_dpp v74, v74, v74 row_bcast:31 row_mask:0xc bank_mask:0xf")
    E("s_nop 1")
    E("v_cvt_pk_bf16_f32 v74, v74, v74")
    E("v_lshlrev_b32 v74, 16, v74")
    E("v_mul_f32 v74, 0xbfb8aa3b, v74")
    E("v_exp_f32 v74, v74")
    E("s_nop 0")
    E("v_add_f32 v74, 1.0, v74")
    E("v_rcp_f32 v74, v74")
    E("s_nop 0")
    E("v_cvt_pk_bf16_f32 v74, v74, v74")
    E("s_lshl_b32 s72, s67, 1")
    E("s_add_u32 s72, s72, s62")
    E("s_lshl_b32 s72, s72, 1")
    E(f"s_add_u32 s72, s72, {SYN + 224}")
    E("v_mov_b32 v75, s72")
    E("v_cmp_eq_u32 vcc, 63, v1")
    E("s_and_saveexec_b64 s[74:75], vcc")
    E("ds_write_b16 v75, v74")
    E("s_mov_b64 exec, s[74:75]")
    E("s_cmp_eq_u32 s62, 1")
    E("s_cbranch_scc1 K_kgen")
    E("s_mov_b32 s62, 1")
    for i in range(4):
        E(f"v_mov_b32 v{56+i}, v{152+i}")
    E("s_branch K_gloop")
    L("K_kgen")
    E("s_cmp_eq_u32 s68, 1")
    E("s_cbranch_scc1 K_keepprio")
    E(f"s_setprio {APRIO}")
    L("K_keepprio")
    STAMP(2)
    E("v_and_b32 v20, 15, v1")
    E("v_lshrrev_b32 v21, 4, v1")
    E("v_lshrrev_b32 v22, 3, v20")
    E("v_and_b32 v23, 7, v20")
    E("v_lshl_add_u32 v22, v22, 7, v23")
    E("v_cvt_f32_u32 v24, v22")
    E("s_mov_b32 s74, 0x02040200")
    E("s_mov_b32 s75, 0x06000400")
    E("s_mov_b32 s76, 0x01800100")
    E("s_mov_b32 s77, 0x0a000800")
    E("s_mov_b32 s78, 0x00020002")
    E("s_mov_b32 s79, 0x00800080")
    E("v_lshrrev_b32 v22, 2, v20")
    E("v_lshlrev_b32 v22, 4, v22")
    E("v_and_b32 v23, 3, v20")
    E("v_lshrrev_b64 v[32:33], v22, s[74:75]")
    E("v_and_b32 v32, 0xffff, v32")
    E("v_lshl_add_u32 v32, v23, 7, v32")
    E("v_cvt_f32_u32 v25, v32")
    E("v_lshrrev_b32 v33, 7, v32")
    E("v_and_b32 v32, 127, v32")
    E("v_cvt_f32_u32 v16, v33")
    E("v_cvt_f32_u32 v17, v32")
    E("v_lshrrev_b64 v[32:33], v22, s[76:77]")
    E("v_and_b32 v32, 0xffff, v32")
    E("v_lshrrev_b64 v[34:35], v22, s[78:79]")
    E("v_and_b32 v34, 0xffff, v34")
    E("v_mad_u32_u24 v32, v23, v34, v32")
    E("v_cvt_f32_u32 v26, v32")
    E("v_lshrrev_b32 v33, 7, v32")
    E("v_and_b32 v32, 127, v32")
    E("v_cvt_f32_u32 v18, v33")
    E("v_cvt_f32_u32 v19, v32")
    E("v_lshlrev_b32 v22, 3, v20")
    E("v_cvt_f32_u32 v27, v22")
    E("s_waitcnt lgkmcnt(0)")
    E("s_lshl_b32 s70, s22, 16")
    E("s_and_b32 s22, s22, s43")
    E("s_cmp_eq_u32 s69, 0")
    E("s_cselect_b32 s22, s70, s22")
    E("v_mov_b32 v40, 0x3fb8aa3b")
    E("v_mul_f32 v41, s22, v40")
    E("v_exp_f32 v41, v41")
    E("s_nop 0")
    E("v_cvt_pk_bf16_f32 v41, v41, v41")
    E("v_lshlrev_b32 v41, 16, v41")
    E("s_cmp_eq_u32 s68, 0")
    E("s_cbranch_scc1 K_pwA")
    E("s_waitcnt vmcnt(6)")
    E("s_branch K_pwB")
    L("K_pwA")
    E("s_waitcnt vmcnt(1)")
    L("K_pwB")
    for i in range(6):
        E(f"v_lshlrev_b32 v{84+i}, 16, v{84+i}")
    E("v_mul_f32 v84, v41, v84")
    E("v_mul_f32 v85, v41, v85")
    E("v_mul_f32 v86, v41, v86")
    E("v_mul_f32 v87, v41, v87")
    E("v_mul_f32 v44, v40, v84")
    E("v_mul_f32 v45, 0.15915494, v85")
    E("v_rndne_f32 v46, v45")
    E("v_sub_f32 v45, v45, v46")
    E("v_mul_f32 v46, 0x43000000, v45")
    E("v_rndne_f32 v47, v46")
    E("v_sub_f32 v46, v46, v47")
    E("v_mul_f32 v90, v88, v86")
    E("v_fma_f32 v90, -v89, v87, v90")
    E("v_mul_f32 v91, v88, v87")
    E("v_fma_f32 v91, v89, v86, v91")
    E("s_lshl_b32 s70, s3, 11")
    E(f"s_add_u32 s70, s70, {S_P}")
    E("v_lshl_add_u32 v42, v1, 5, s70")
    E("ds_write_b128 v42, v[44:47]")
    E("ds_write_b64 v42, v[90:91] offset:16")
    E("v_lshl_add_u32 v43, v21, 6, s70")
    for r in range(48, 60):
        E(f"v_mov_b32 v{r}, 0")
    E("s_waitcnt lgkmcnt(0)")
    E("ds_read_b128 v[60:63], v43")
    E("ds_read_b64 v[64:65], v43 offset:16")
    E("ds_read_b128 v[136:139], v43 offset:32")
    E("ds_read_b64 v[140:141], v43 offset:48")
    E("s_mov_b32 s62, 0")
    E("s_cmp_eq_u32 s68, 0")
    E(f"s_cselect_b32 s63, {NA}, {NB}")
    L("K_loop")
    E("s_waitcnt lgkmcnt(0)")
    for r in range(12):
        E(f"v_mov_b32 v{68+r}, v{(60 if r < 6 else 136 - 6) + r}")
    E("v_add_u32 v43, 256, v43")
    E("ds_read_b128 v[60:63], v43")
    E("ds_read_b64 v[64:65], v43 offset:16")
    E("ds_read_b128 v[136:139], v43 offset:32")
    E("ds_read_b64 v[140:141], v43 offset:48")
    for nn in range(2):
        zr, zi, w128, cbr, cbi = 68 + 6 * nn, 69 + 6 * nn, 70 + 6 * nn, 72 + 6 * nn, 73 + 6 * nn
        T = [96, 100, 104, 108]
        E(f"v_mul_f32 v{T[3]}, v{zr}, v27")
        E(f"v_mul_f32 v{T[3]+1}, v{zi}, v27")
        E(f"v_mul_f32 v{T[0]}, v{zr}, v24")
        E(f"v_mul_f32 v{T[0]+1}, v{zi}, v24")
        E(f"v_mul_f32 v{T[1]}, v{zr}, v25")
        E(f"v_mul_f32 v{T[1]+1}, v{zi}, v17")
        E(f"v_mul_f32 v{T[2]}, v{zr}, v26")
        E(f"v_mul_f32 v{T[2]+1}, v{zi}, v19")
        E(f"v_fma_f32 v{T[1]+1}, v{w128}, v16, v{T[1]+1}")
        E(f"v_fma_f32 v{T[2]+1}, v{w128}, v18, v{T[2]+1}")
        for t in [T[3], T[0], T[1], T[2]]:
            E(f"v_exp_f32 v{t}, v{t}")
            E(f"v_cos_f32 v{t+2}, v{t+1}")
            E(f"v_sin_f32 v{t+3}, v{t+1}")
        t = T[3]
        E(f"v_mul_f32 v{t+2}, v{t}, v{t+2}")
        E(f"v_mul_f32 v{t+3}, v{t}, v{t+3}")
        E(f"v_mul_f32 v{t}, v{cbr}, v{t+2}")
        E(f"v_mul_f32 v{t+1}, v{cbr}, v{t+3}")
        E(f"v_fma_f32 v{t}, -v{cbi}, v{t+3}, v{t}")
        E(f"v_fma_f32 v{t+3}, -v{cbi}, v{t+2}, -v{t+1}")
        E(f"v_mov_b32 v{t+2}, v{t}")
        for t in T[:3]:
            E(f"v_mul_f32 v{t+2}, v{t}, v{t+2}")
            E(f"v_mul_f32 v{t+3}, v{t}, v{t+3}")
        for k in range(4):
            t = T[k]
            hi = (112 + 2 * k + nn) if k < 3 else (124 + nn)
            lo = (118 + 2 * k + nn) if k < 3 else (126 + nn)
            E(f"v_cvt_pk_bf16_f32 v{hi}, v{t+2}, v{t+3}")
            E(f"v_lshlrev_b32 v{t}, 16, v{hi}")
            E(f"v_and_b32 v{t+1}, s43, v{hi}")
            E(f"v_sub_f32 v{t}, v{t+2}, v{t}")
            E(f"v_sub_f32 v{t+1}, v{t+3}, v{t+1}")
            E(f"v_cvt_pk_bf16_f32 v{lo}, v{t}, v{t+1}")
    E("s_add_u32 s62, s62, 1")
    E("s_cmp_eq_u32 s62, 1")
    for k in range(3):
        a_ = 48 + 4 * k
        E(f"v_mfma_f32_16x16x16_bf16 {R4(a_)}, v[{112+2*k}:{113+2*k}], v[124:125], {R4(a_)}")
        E(f"v_mfma_f32_16x16x16_bf16 {R4(a_)}, v[{112+2*k}:{113+2*k}], v[126:127], {R4(a_)}")
        E(f"v_mfma_f32_16x16x16_bf16 {R4(a_)}, v[{118+2*k}:{119+2*k}], v[124:125], {R4(a_)}")
    E("s_cbranch_scc0 K_nost")
    E("s_waitcnt vmcnt(0)")
    post(0)
    E("s_cmp_eq_u32 s68, 0")
    E("s_cbranch_scc1 K_nost")
    E("s_mov_b32 s70, 0")
    L("K_ncheck")
    E("v_readfirstlane_b32 s56, v92")
    E("v_readfirstlane_b32 s57, v93")
    E("s_add_u32 s70, s70, 1")
    E("s_cmp_lg_u32 s56, 0")
    E("s_cbranch_scc1 K_nok")
    E("s_cmp_ge_u32 s70, 0x40000")
    E("s_cbranch_scc1 K_nok")
    E("s_sleep 4")
    E(f"buffer_load_dwordx2 v[92:93], v95, s[{SRD_DBGB}:{SRD_DBGB+3}], 0 offen sc1")
    E("s_waitcnt vmcnt(0)")
    E("s_branch K_ncheck")
    L("K_nok")
    E("s_cmp_lg_u32 s3, 4")
    E("s_cbranch_scc1 K_nost")
    waitf(0, 4, 8, 144)
    E("v_and_b32 v95, 1, v1")
    E("v_lshlrev_b32 v94, 3, v95")
    E(f"ds_read_b64 v[144:145], v94 offset:{SYN + 224}")
    E("v_mov_b32 v146, s56")
    E("v_mov_b32 v147, s57")
    E("v_lshlrev_b32 v95, 4, v95")
    E("s_lshl_b32 s71, s65, 3")
    E("s_add_u32 s71, s71, s66")
    E("s_lshl_b32 s71, s71, 5")
    E(f"s_add_u32 s71, s71, {WS_G}")
    E("s_waitcnt lgkmcnt(0)")
    E("s_mov_b64 exec, 3")
    E(f"buffer_store_dwordx4 v[144:147], v95, s[{SRD_WS}:{SRD_WS+3}], s71 offen sc1")
    E("s_mov_b64 exec, -1")
    STAMP(9)
    L("K_nost")
    E("s_cmp_lt_u32 s62, s63")
    E("s_cbranch_scc1 K_loop")
    E("s_waitcnt lgkmcnt(0)")
    STAMP(3)
    E("s_mul_i32 s70, s3, 3072")
    E(f"s_add_u32 s70, s70, {S_TR}")
    E("v_lshl_add_u32 v39, v1, 4, s70")
    E("v_and_b32 v4, 15, v1")
    E("v_lshrrev_b32 v5, 4, v1")
    E("v_lshlrev_b32 v6, 2, v4")
    E("v_add_u32 v6, v6, v5")
    E("s_nop 1")
    for k in range(3):
        E(f"ds_write_b128 v39, {R4(48+4*k)} offset:{1024*k}")
    post(1)
    E("s_cmp_eq_u32 s68, 1")
    E("s_cbranch_scc1 K_bwave")
    E("s_mul_i32 s70, s69, 12288")
    E(f"s_add_u32 s70, s70, {S_KT}")
    E("v_lshlrev_b32 v32, 5, v20")
    E("v_add_u32 v32, s70, v32")
    E("v_lshlrev_b32 v22, 4, v21")
    E("v_lshrrev_b64 v[60:61], v22, s[76:77]")
    E("v_and_b32 v60, 0xffff, v60")
    E("v_lshl_add_u32 v44, v60, 2, v32")
    E("v_lshrrev_b64 v[60:61], v22, s[78:79]")
    E("v_and_b32 v60, 0xffff, v60")
    E("v_lshlrev_b32 v60, 2, v60")
    E("v_add_u32 v45, v44, v60")
    E("v_add_u32 v46, v45, v60")
    E("v_add_u32 v47, v46, v60")
    E("s_cmp_eq_u32 s61, 1")
    E("s_cbranch_scc1 K_t1")
    E("v_lshrrev_b32 v22, 1, v21")
    E("v_and_b32 v23, 1, v21")
    E("v_lshlrev_b32 v22, 9, v22")
    E("v_lshl_add_u32 v22, v23, 4, v22")
    E("v_add_u32 v35, v32, v22")
    E("v_mov_b32 v60, 4")
    E("s_branch K_t3")
    L("K_t1")
    E("v_lshrrev_b64 v[60:61], v22, s[74:75]")
    E("v_and_b32 v60, 0xffff, v60")
    E("v_lshl_add_u32 v35, v60, 2, v32")
    E("v_mov_b32 v60, 512")
    L("K_t3")
    E("v_add_u32 v36, v35, v60")
    E("v_add_u32 v37, v36, v60")
    E("v_add_u32 v38, v37, v60")
    E("s_mul_i32 s70, s69, 6144")
    E(f"s_add_u32 s70, s70, {S_TR}")
    E("v_lshl_add_u32 v39, v1, 4, s70")
    E("s_lshl_b32 s71, s61, 10")
    E("v_add_u32 v40, s71, v39")
    E("s_lshl_b32 s71, s61, 9")
    E("v_lshl_add_u32 v60, v1, 3, s71")
    E("s_mul_i32 s70, s69, 12288")
    E(f"s_add_u32 s70, s70, {S_KT}")
    for rr in range(2):
        for e in range(0, 8, 2):
            E(f"v_add_u32 v62, {e + 1024*rr}, v60")
            E(f"v_add_u32 v63, {e + 1 + 1024*rr}, v60")
            E("v_cvt_f32_u32 v62, v62")
            E("v_cvt_f32_u32 v63, v63")
            E("v_cvt_pk_bf16_f32 v62, v62, v63")
            E("v_and_b32 v63, s43, v62")
            E("v_lshlrev_b32 v62, 16, v62")
            E("v_cvt_u32_f32 v62, v62")
            E("v_cvt_u32_f32 v63, v63")
            E(f"v_lshl_add_u32 v{64+8*rr+e}, v62, 2, s70")
            E(f"v_lshl_add_u32 v{65+8*rr+e}, v63, 2, s70")
    E(f"s_mul_i32 s70, s69, {XROW}")
    E(f"s_add_u32 s70, s70, {XBASE + 32}")
    E("v_lshl_add_u32 v61, v60, 1, s70")
    waitf(1, 0, 8, 96)
    srcoff = [0, 3072, 4 * 3072, 5 * 3072]
    for k in range(4):
        E(f"ds_read_b128 {R4(96+4*k)}, v40 offset:{srcoff[k]}")
    for k in range(4):
        E(f"ds_read_b128 {R4(112+4*k)}, v39 offset:{srcoff[k] + 2048}")
    for (b, dst, w) in [(96, 35, 4), (112, 44, 0)]:
        E(f"s_waitcnt lgkmcnt({w})")
        for e in range(4):
            E(f"v_add_f32 v{b+e}, v{b+e}, v{b+4+e}")
        for e in range(4):
            E(f"v_add_f32 v{b+8+e}, v{b+8+e}, v{b+12+e}")
        for e in range(4):
            E(f"v_add_f32 v{b+e}, v{b+e}, v{b+8+e}")
    for (b, dst) in [(96, 35), (112, 44)]:
        for e in range(4):
            E(f"ds_write_b32 v{dst+e}, v{b+e}")
    post(2)
    waitf(2, 0, 4, 96)
    for e in range(16):
        E(f"ds_read_b32 v{96+e}, v{64+e}")
    for rr in range(2):
        for e in range(0, 8, 2):
            src = 96 + 8 * rr + e
            E(f"s_waitcnt lgkmcnt({14 - 8*rr - e})")
            E(f"v_cvt_pk_bf16_f32 v{112+8*rr+e//2}, v{src}, v{src+1}")
            E(f"v_lshlrev_b32 v62, 16, v{112+8*rr+e//2}")
            E(f"v_and_b32 v63, s43, v{112+8*rr+e//2}")
            E(f"v_sub_f32 v62, v{src}, v62")
            E(f"v_sub_f32 v63, v{src+1}, v63")
            E(f"v_cvt_pk_bf16_f32 v{116+8*rr+e//2}, v62, v63")
    for rr in range(2):
        E(f"ds_write_b128 v61, {R4(112+8*rr)} offset:{2048*rr}")
        E(f"ds_write_b128 v61, {R4(116+8*rr)} offset:{2*XROW + 2048*rr}")
    post(3)
    STAMP(4)
    E("s_branch K_csetup")
    L("K_bwave")
    E("v_lshrrev_b32 v2, 1, v1")
    E("v_and_b32 v3, 1, v1")
    E("v_lshlrev_b32 v2, 9, v2")
    E("v_lshl_add_u32 v2, v3, 6, v2")
    E("s_lshl_b32 s72, s64, 14")
    E("s_lshl_b32 s71, s67, 4")
    E("s_add_u32 s72, s72, s71")
    E(f"s_mul_i32 s71, s67, {4*ZROW}")
    E(f"s_add_u32 s71, s71, {ZBASE + 128}")
    E("v_lshl_add_u32 v3, v1, 4, s71")
    E("v_lshlrev_b32 v92, 2, v1")
    E("v_lshlrev_b32 v9, 4, v1")
    E("s_lshl_b32 s73, s67, 11")
    E(f"v_add_u32 v10, {GB}, v9")
    E("v_add_u32 v10, s73, v10")
    E(f"s_add_u32 s73, s73, {WS_G}")
    E("v_mov_b32 v96, 0")
    E("v_mov_b32 v97, 0")
    E("v_mov_b32 v98, 0")
    E("v_mov_b32 v99, 0")
    E("v_bfe_u32 v100, v1, 3, 2")
    E(f"v_mul_u32_u24 v100, {ZROW}, v100")
    E("v_and_b32 v101, 7, v1")
    E("v_lshl_add_u32 v100, v101, 4, v100")
    E(f"s_mul_i32 s71, s67, {4*ZROW}")
    E("v_add_u32 v100, s71, v100")
    E("ds_write_b128 v100, v[96:99]")
    E("v_min_u32 v100, 11, v1")
    E("v_lshrrev_b32 v101, 1, v100")
    E(f"v_mul_u32_u24 v101, {XROW}, v101")
    E("v_and_b32 v100, 1, v100")
    E("v_lshl_add_u32 v100, v100, 4, v101")
    E(f"ds_write_b128 v100, v[96:99] offset:{XBASE}")
    E(f"s_mul_i32 s71, s67, {PMS}")
    E(f"s_add_u32 s71, s71, {PB}")
    E("v_mov_b32 v100, s71")
    E("ds_write_b128 v100, v[96:99]")
    E(f"s_mul_i32 s71, s67, {PCS}")
    E(f"s_add_u32 s71, s71, {PB + 4*PMS}")
    E("v_mov_b32 v100, s71")
    E("ds_write_b128 v100, v[96:99]")
    E("s_mov_b32 s70, 0")
    L("K_poll")
    E(f"buffer_load_dwordx4 v[112:115], v9, s[{SRD_WS}:{SRD_WS+3}], s73 offen sc1")
    E(f"buffer_load_dwordx4 v[116:119], v9, s[{SRD_WS}:{SRD_WS+3}], s73 offen offset:1024 sc1")
    E("s_waitcnt vmcnt(0)")
    E("v_xor_b32 v114, s56, v114")
    E("v_xor_b32 v115, s57, v115")
    E("v_xor_b32 v118, s56, v118")
    E("v_xor_b32 v119, s57, v119")
    E("v_or_b32 v114, v114, v115")
    E("v_or_b32 v118, v118, v119")
    E("v_or_b32 v114, v114, v118")
    E("v_cmp_ne_u32 vcc, 0, v114")
    E("s_add_u32 s70, s70, 1")
    E("s_cmp_eq_u64 vcc, 0")
    E("s_cbranch_scc1 K_pok")
    E(f"s_sleep {PSLEEP}")
    E("s_cmp_lt_u32 s70, 0x40000")
    E("s_cbranch_scc1 K_poll")
    L("K_pok")
    post(5)
    for (src, dst) in [(112, 120), (116, 124)]:
        for hh in range(2):
            E(f"v_lshlrev_b32 v{dst+2*hh}, 16, v{src+hh}")
            E(f"v_and_b32 v{dst+2*hh+1}, s43, v{src+hh}")
        for e in range(4):
            E(f"v_sub_f32 v114, 1.0, v{dst+e}")
            E(f"v_cvt_pk_bf16_f32 v{dst+e}, v{dst+e}, v114")
    E("ds_write_b128 v10, v[120:123]")
    E("ds_write_b128 v10, v[124:127] offset:1024")
    waitf(5, 4, 8, 96)
    STAMP(4)
    for p in range(4):
        E(f"buffer_load_dwordx4 {R4(96+4*p)}, v2, s[{SRD_WS}:{SRD_WS+3}], s72 offen offset:{128*p} sc1")
    for p in range(4):
        E(f"s_waitcnt vmcnt({3-p})")
        E(f"ds_write_b128 v3, {R4(96+4*p)} offset:{p*ZROW}")
    post(4)
    E(f"s_setprio {CBPRIO}")
    L("K_csetup")
    vB, vA, vPM, vPC, vF = 16, 17, 18, 19, 20
    E("s_lshl_b32 s70, s3, 1")
    E(f"s_mul_i32 s70, s70, {ZROW}")
    E(f"s_add_u32 s70, s70, {ZBASE + 8}")
    E(f"v_lshlrev_b32 v{vB}, 3, v4")
    E(f"v_lshl_add_u32 v{vB}, v5, 4, v{vB}")
    E(f"v_add_u32 v{vB}, s70, v{vB}")
    E("v_and_b32 v22, 3, v1")
    E("v_bfe_u32 v23, v1, 2, 2")
    E("v_sub_u32 v22, v22, v23")
    E("v_lshlrev_b32 v22, 3, v22")
    E("v_lshlrev_b32 v23, 6, v5")
    E("v_sub_u32 v22, v22, v23")
    E("s_lshl_b32 s70, s68, 2")
    E("s_add_u32 s70, s70, s69")
    E(f"s_mul_i32 s70, s70, {XROW}")
    E(f"s_add_u32 s70, s70, {XBASE + 224}")
    E(f"v_add_u32 v{vA}, s70, v22")
    E("s_cmp_eq_u32 s68, 0")
    E(f"s_mov_b32 s71, {PB}")
    E(f"s_cselect_b32 s71, {PA}, s71")
    E(f"s_mul_i32 s70, s67, {PMS}")
    E("s_add_u32 s70, s70, s71")
    E("s_add_u32 s72, s70, 16")
    E(f"v_lshl_add_u32 v{vPM}, v1, 4, s72")
    E(f"s_mul_i32 s72, s67, {PCS}")
    E("s_add_u32 s72, s72, s71")
    E(f"s_add_u32 s72, s72, {4*PMS}")
    E("s_add_u32 s73, s72, 16")
    E(f"v_lshl_add_u32 v{vPC}, v1, 2, s73")
    E("s_lshl_b32 s73, s3, 2")
    E(f"s_add_u32 s73, s73, {FLG}")
    E(f"v_mov_b32 v{vF}, s73")
    E("s_cmp_eq_u32 s68, 1")
    E("s_cbranch_scc1 K_convB")
    E("v_mov_b32 v22, s70")
    E("v_mov_b32 v23, s72")
    waitf(3, 0, 4, 24)
    E("v_mov_b32 v24, 0")
    E("v_mov_b32 v25, 0")
    E("v_mov_b32 v26, 0")
    E("v_mov_b32 v27, 0")
    E("ds_write_b128 v22, v[24:27]")
    E("ds_write_b128 v23, v[24:27]")
    waitf(4, 4, 8, 24)
    E("s_setprio 0")
    STAMP(5)

    def Bf(pp, jj):
        return 64 + 64 * pp + 4 * jj
    def acc(pp, q):
        return 192 + 32 * pp + 4 * q
    def conv(nx):
        ring = 8 // nx
        def Af(n, x):
            return 32 + 4 * ((n % ring) * nx + x)
        queue = []
        def rdA(n):
            for x in range(nx):
                a = Af(n, x)
                off = 256 * n + x * 2 * XROW
                E(f"ds_read_b64_tr_b16 v[{a}:{a+1}], v{vA} offset:{off+32}")
                E(f"ds_read_b64_tr_b16 v[{a+2}:{a+3}], v{vA} offset:{off}")
                queue.extend([("A", n), ("A", n)])
        def rdB(pp, jj):
            b = Bf(pp, jj)
            E(f"ds_read_b64 v[{b}:{b+1}], v{vB} offset:{pp*ZROW + 64*jj}")
            E(f"ds_read_b64 v[{b+2}:{b+3}], v{vB} offset:{pp*ZROW + 64*jj + 8}")
            queue.extend([("B", pp, jj), ("B", pp, jj)])
        def need(keys):
            last = -1
            for idx, k in enumerate(queue):
                if k in keys:
                    last = idx
            if last >= 0:
                n_after = len(queue) - 1 - last
                assert n_after <= 15
                E(f"s_waitcnt lgkmcnt({n_after})")
                del queue[:last + 1]
        def mf(pp, q, n, x, first=False):
            jj = 2 * q - n + 1
            c = "0" if first else R4(acc(pp, q))
            E(f"v_mfma_f32_16x16x32_bf16 {R4(acc(pp,q))}, {R4(Af(n,x))}, {R4(Bf(pp,jj))}, {c}")
        def writeout(q):
            a0, a1 = acc(0, q), acc(1, q)
            E(f"v_add_f32 v{a0+1}, v{a0+1}, v{a1}")
            E(f"v_add_f32 v{a0+2}, v{a0+2}, v{a1+1}")
            E(f"v_add_f32 v{a0+3}, v{a0+3}, v{a1+2}")
            E(f"ds_write_b32 v{vPC}, v{a1+3} offset:{256*q}")
            E(f"ds_write_b128 v{vPM}, {R4(a0)} offset:{1024*q}")
            E(f"ds_write_b32 v{vF}, v29 offset:{32*q}")
            queue.extend([("W",), ("W",), ("W",)])
        rdA(1)
        rdB(0, 0)
        rdA(0)
        rdB(0, 1)
        rdB(1, 0)
        for q in range(8):
            for pp in range(2):
                if pp == 0:
                    nxt = [(1, 2 * q + 1)] + ([(0, 2 * q + 2)] if q < 7 else [])
                else:
                    nxt = [(0, 2 * q + 3), (1, 2 * q + 2)] if q < 7 else []
                need({("A", 1), ("B", pp, 2 * q)})
                for x in range(nx):
                    mf(pp, q, 1, x, first=(x == 0))
                if nxt:
                    rdB(*nxt[0])
                elif pp == 1:
                    rdA(2)
                need({("A", 0), ("B", pp, 2 * q + 1)})
                for x in range(nx):
                    mf(pp, q, 0, x)
                if len(nxt) > 1:
                    rdB(*nxt[1])
                elif pp == 1:
                    rdA(3)
        if nx == 1:
            sched = {2: [4], 3: [5], 4: [6], 5: [7], 6: [8], 7: [9], 8: [10, 11], 9: [12, 13], 10: [14, 15]}
        else:
            sched = {n: [n + 2] for n in range(2, 14)}
        for n in range(2, 16):
            need({("A", n)})
            q0 = n >> 1
            k = 0
            for q in range(q0, 8):
                for pp in range(2):
                    for x in range(nx):
                        mf(pp, q, n, x)
                    k += 1
                    if k == 1:
                        for m in sched.get(n, []):
                            rdA(m)
                if n % 2 == 0 and q == min(q0 + 1, 7):
                    if n == 14:
                        E("s_nop 3")
                    writeout(q0 - 1)
        E("s_nop 7")
        writeout(7)
    conv(2)
    STAMP(6)
    E("s_mov_b32 s73, 7")
    E("s_branch K_fin")
    L("K_convB")
    waitf(0, 0, 4, 24)
    waitf(4, 4, 8, 24)
    STAMP(5)
    conv(1)
    STAMP(6)
    E("s_mov_b32 s73, 0")
    if FINPRIO:
        E(f"s_setprio {FINPRIO}")
    L("K_fin")
    E("v_subrev_u32 v16, 16, v1")
    E("v_add_u32 v17, 47, v1")
    E("v_cmp_eq_u32 vcc, 0, v1")
    E("s_nop 1")
    E("v_cndmask_b32 v17, v17, -1, vcc")
    E("v_cmp_gt_u32 vcc, 16, v1")
    E("s_lshl_b32 s74, s73, 6")
    E("s_nop 0")
    E("v_cndmask_b32 v16, v16, v17, vcc")
    E("v_add_u32 v16, s74, v16")
    E("v_add_u32 v22, s74, v1")
    E("v_add_u32 v6, s74, v6")
    E("s_lshl_b32 s70, s67, 2")
    E(f"s_add_u32 s70, s70, {PB + 16}")
    E("v_lshl_add_u32 v18, v22, 4, s70")
    E("s_add_u32 s70, s67, 2")
    E("s_and_b32 s70, s70, 3")
    E("s_lshl_b32 s70, s70, 2")
    E(f"s_add_u32 s70, s70, {PB + 16 + PMS}")
    E("s_cmp_lt_u32 s67, 2")
    E("s_cselect_b64 vcc, -1, 0")
    E("v_cndmask_b32 v17, v22, v16, vcc")
    E("v_lshl_add_u32 v19, v17, 4, s70")
    E("s_lshr_b32 s70, s67, 1")
    E(f"s_mul_i32 s70, s70, {PCS}")
    E(f"s_add_u32 s70, s70, {PB + 4*PMS + 16}")
    E("v_lshl_add_u32 v20, v16, 2, s70")
    E("s_and_b32 s70, s67, 1")
    E("s_cmp_eq_u32 s70, 0")
    E("s_cselect_b64 vcc, -1, 0")
    E("s_cselect_b32 s75, 256, 0")
    E(f"v_mov_b32 v17, {PB + 4*PMS}")
    E("v_cndmask_b32 v20, v17, v20, vcc")
    E(f"s_mul_i32 s70, s67, {ZROW}")
    E("v_lshl_add_u32 v21, v6, 1, s70")
    E("s_lshl_b32 s70, s67, 10")
    E("v_lshl_add_u32 v22, v6, 12, s70")
    E("s_lshl_b32 s70, s67, 2")
    E(f"s_add_u32 s70, s70, {GB}")
    E("v_lshl_add_u32 v7, v6, 4, s70")
    E("s_lshl_b32 s70, s73, 5")
    E(f"s_add_u32 s70, s70, {FLG}")
    E("v_mov_b32 v23, s70")
    E("s_lshl_b32 s72, s64, 2")
    E("s_lshl_b32 s76, s23, 16")
    E("s_and_b32 s77, s23, s43")
    E("s_lshl_b32 s78, s42, 16")
    E("s_and_b32 s79, s42, s43")
    E("s_sub_u32 s74, 8, s68")
    L("K_hloop")
    for r in range(48, 52):
        E(f"v_mov_b32 v{r}, 0")
    for k in range(4):
        E(f"ds_read_u16_d16_hi v{48+k}, v21 offset:{ZBASE + 4*k*ZROW + 128}")
    E("ds_read_b32 v8, v7")
    L("K_hpoll")
    E("ds_read_b128 v[32:35], v23")
    E("ds_read_b128 v[36:39], v23 offset:16")
    E("s_waitcnt lgkmcnt(0)")
    for k in range(0, 8, 2):
        E(f"v_and_b32 v{32+k}, v{32+k}, v{33+k}")
    E("v_and_b32 v32, v32, v34")
    E("v_and_b32 v36, v36, v38")
    E("v_and_b32 v32, v32, v36")
    E("s_nop 0")
    E("v_readfirstlane_b32 s70, v32")
    E("s_cmp_eq_u32 s70, 1")
    E("s_cbranch_scc1 K_go")
    E("s_sleep 3")
    E("s_branch K_hpoll")
    L("K_go")
    for k in range(4):
        X, c = k >> 1, k & 1
        base = PSTRIDE if X == 0 else 0
        E(f"ds_read_b32 v{32+k}, v18 offset:{base + 2*c*PMS}")
        E(f"ds_read_b32 v{36+k}, v19 offset:{base + 2*c*PMS}")
        E(f"ds_read_b32 v{40+k}, v20 offset:{base + 2*c*PCS}")
    def rnd(a, b):
        E(f"v_cvt_pk_bf16_f32 v{a}, v{a}, v{b}")
        E(f"v_and_b32 v{b}, s43, v{a}")
        E(f"v_lshlrev_b32 v{a}, 16, v{a}")
    yA0, yA1, yB0, yB1 = 32, 33, 34, 35
    u0, u1, k0, k1 = 48, 49, 50, 51
    t = 52
    E(f"v_mul_f32 v{t}, s76, v{u0}")
    E(f"v_mul_f32 v{t+1}, s77, v{u1}")
    E(f"v_mul_f32 v{t+2}, s78, v{k0}")
    E(f"v_mul_f32 v{t+3}, s79, v{k1}")
    rnd(t, t + 1)
    rnd(t + 2, t + 3)
    E(f"v_lshlrev_b32 v{t+4}, 16, v8")
    E(f"v_and_b32 v{t+5}, s43, v8")
    E("v_add_u32 v18, 1024, v18")
    E("v_add_u32 v19, 1024, v19")
    E("v_add_u32 v20, s75, v20")
    E("v_add_u32 v21, 128, v21")
    E("v_add_u32 v23, 32, v23")
    E("v_add_u32 v7, 1024, v7")
    for k in range(4):
        E(f"s_waitcnt lgkmcnt({9-3*k})")
        E(f"v_add_f32 v{32+k}, v{32+k}, v{36+k}")
        E(f"v_add_f32 v{32+k}, v{32+k}, v{40+k}")
    rnd(yA0, yA1)
    rnd(yB0, yB1)
    E(f"v_add_f32 v{yA0}, v{yA0}, v{t}")
    E(f"v_add_f32 v{yA1}, v{yA1}, v{t+1}")
    E(f"v_add_f32 v{yB0}, v{yB0}, v{t+2}")
    E(f"v_add_f32 v{yB1}, v{yB1}, v{t+3}")
    rnd(yA0, yA1)
    rnd(yB0, yB1)
    E(f"v_mul_f32 v{yB0}, v{u0}, v{yB0}")
    E(f"v_mul_f32 v{yB1}, v{u1}, v{yB1}")
    rnd(yB0, yB1)
    E(f"v_mul_f32 v{yA0}, v{t+4}, v{yA0}")
    E(f"v_mul_f32 v{yA1}, v{t+4}, v{yA1}")
    E(f"v_mul_f32 v{yB0}, v{t+5}, v{yB0}")
    E(f"v_mul_f32 v{yB1}, v{t+5}, v{yB1}")
    rnd(yA0, yA1)
    rnd(yB0, yB1)
    E(f"v_add_f32 v{yA0}, v{yA0}, v{yB0}")
    E(f"v_add_f32 v{yA1}, v{yA1}, v{yB1}")
    E(f"v_cvt_pk_bf16_f32 v{yA0}, v{yA0}, v{yA1}")
    E(f"buffer_store_dword v{yA0}, v22, s[{SRD_OUT}:{SRD_OUT+3}], s72 offen")
    E("v_add_u32 v22, 0x40000, v22")
    E("s_add_u32 s73, s73, 1")
    E("s_cmp_lt_u32 s73, s74")
    E("s_cbranch_scc1 K_hloop")
    STAMP(7)
    if DBG: E("s_waitcnt vmcnt(0)")
    STAMP(8)
    DUMP(10, SRD_WS)
    L("K_end")
    E("s_endpgm")
    sg = 102 if DBG else 80
    return f""".amdhsa_kernel {name}
  .amdhsa_next_free_vgpr 256
  .amdhsa_next_free_sgpr {sg}
  .amdhsa_accum_offset 256
  .amdhsa_group_segment_fixed_size 0
  .amdhsa_kernarg_size 152
  .amdhsa_user_sgpr_count 2
  .amdhsa_user_sgpr_kernarg_segment_ptr 1
  .amdhsa_system_sgpr_workgroup_id_x 1
  .amdhsa_float_denorm_mode_32 3
.end_amdhsa_kernel"""

def main():
    hdr = HEADER.rstrip("\n")
    pre = [hdr,
           f"; @launch grid=(256,1,1) block=(512,1,1) lds={LDS_SIZE}",
           '.amdgcn_target "amdgcn-amd-amdhsa--gfx950"',
           ".text"]
    k = gen()
    txt = "\n".join(pre + out) + '\n.section .rodata,"a"\n.p2align 6\n' + k + "\n"
    args = [a for a in sys.argv[1:] if not a.startswith("--")]
    path = args[0] if args else "cdna_kernels/%s.s" % NAME
    open(path, "w").write(txt)

main()
```

```python
import sys

NAME = "gated_mix__ssm_conv_s4__ssm_conv_h3__prompt"
HEADER = open("cdna_kernels/%s.s.ref" % NAME).read().split("; Override launch")[0]
DBG = "--dbg" in sys.argv
def opt(name, default):
    for a in sys.argv:
        if a.startswith("--" + name + "="):
            return int(a.split("=")[1])
    return default
NA = 8
NB = 8 - NA
FINPRIO = opt("finprio", 1)
PSLEEP = opt("psleep", 8)
CBPRIO = opt("cbprio", 1)
APRIO = opt("aprio", 2)
POLLSC = ["sc1", "sc0 sc1", "sc1 nt"][opt("pollsc", 1)]

out = []
def E(s=""):
    out.append("    " + s)
def L(s):
    out.append(s + ":")

WS_Z = 0
WS_G = 4 << 20
WS_F = WS_G + 8192
WS_SIZE = (4 << 20) + 16384
WS_DBG = 16 << 20
if DBG:
    WS_SIZE = 32 << 20

ZROW = 1152
ZBASE = 0
XBASE = 16 * ZROW
XROW = 4128
GB = XBASE + 6 * XROW
FLG = GB + 8192
SYN = FLG + 256
PMS = 8192 + 16
PCS = 2048 + 16
PB = SYN + 256
PA = PB + 4 * PMS + 4 * PCS
PSTRIDE = PA - PB
S_KT = PA
S_P = S_KT + 24576
S_TR = S_P + 16384
LDS_SIZE = S_TR + 8 * 3072
assert LDS_SIZE <= 163840 and PA + PSTRIDE <= LDS_SIZE
def PMa(X, w4):
    return (PA if X == 0 else PB) + w4 * PMS
def PCa(X, w4):
    return (PA if X == 0 else PB) + 4 * PMS + w4 * PCS

def STAMP(i):
    if DBG:
        E(f"s_memtime s[{80+2*i}:{81+2*i}]")
def DUMP(n, srdreg):
    if DBG:
        E("s_waitcnt lgkmcnt(0)")
        E("s_mov_b64 exec, 1")
        E("s_lshl_b32 s100, s2, 4")
        E("s_add_u32 s100, s100, s3")
        E("s_lshl_b32 s100, s100, 6")
        E(f"s_add_u32 s100, s100, {WS_DBG}")
        for i in range(n):
            E(f"v_mov_b32 v2, s{80+2*i}")
            E(f"v_mov_b32 v3, {4*i}")
            E(f"buffer_store_dword v2, v3, s[{srdreg}:{srdreg+3}], s100 offen")
            E("s_nop 1")

def srd(sd, sp, nbytes):
    E(f"s_mov_b32 s{sd}, s{sp}")
    E(f"s_and_b32 s{sd+1}, s{sp+1}, 0xffff")
    E(f"s_mov_b32 s{sd+2}, {hex(nbytes)}")
    E(f"s_mov_b32 s{sd+3}, 0x00020000")
def R4(r):
    return f"v[{r}:{r+3}]"
SRD_WS, SRD_OUT, SRD_DBGB, SRD_A, SRD_B = 44, 48, 52, 56, 60

lblc = [0]
def post(kind):
    E(f"ds_write_b32 v28, v29 offset:{32*kind}")
def waitf(kind, lo, hi, t0=24):
    lblc[0] += 1
    n = lblc[0]
    L(f"W{n}_p")
    if hi - lo == 4:
        E(f"ds_read_b128 v[{t0}:{t0+3}], v30 offset:{32*kind + 4*lo}")
        E("s_waitcnt lgkmcnt(0)")
        E(f"v_and_b32 v{t0}, v{t0}, v{t0+1}")
        E(f"v_and_b32 v{t0+2}, v{t0+2}, v{t0+3}")
        E(f"v_and_b32 v{t0}, v{t0}, v{t0+2}")
    else:
        E(f"ds_read_b128 v[{t0}:{t0+3}], v30 offset:{32*kind}")
        E(f"ds_read_b128 v[{t0+4}:{t0+7}], v30 offset:{32*kind + 16}")
        E("s_waitcnt lgkmcnt(0)")
        for k in range(0, 8, 2):
            E(f"v_and_b32 v{t0+k}, v{t0+k}, v{t0+k+1}")
        E(f"v_and_b32 v{t0}, v{t0}, v{t0+2}")
        E(f"v_and_b32 v{t0+4}, v{t0+4}, v{t0+6}")
        E(f"v_and_b32 v{t0}, v{t0}, v{t0+4}")
    E("s_nop 0")
    E(f"v_readfirstlane_b32 s70, v{t0}")
    E("s_cmp_eq_u32 s70, 1")
    E(f"s_cbranch_scc1 W{n}_d")
    E("s_sleep 1")
    E(f"s_branch W{n}_p")
    L(f"W{n}_d")

def gen():
    name = NAME + "_kernel"
    out.append(f".globl {name}\n.p2align 8\n.type {name},@function")
    L(name)
    E("s_cmp_ge_u32 s2, 256")
    E("s_cbranch_scc1 K_end")
    STAMP(0)
    E("s_setprio 3")
    E("s_load_dwordx16 s[4:19], s[0:1], 0")
    E("s_load_dwordx2 s[20:21], s[0:1], 64")
    E("s_load_dwordx8 s[24:31], s[0:1], 80")
    E("s_load_dwordx8 s[32:39], s[0:1], 112")
    E("s_load_dwordx2 s[40:41], s[0:1], 144")
    E("v_lshrrev_b32 v1, 6, v0")
    E("s_nop 0")
    E("v_readfirstlane_b32 s3, v1")
    E("v_and_b32 v1, 63, v0")
    E("s_and_b32 s64, s2, 7")
    E("s_lshl_b32 s65, s64, 2")
    E("s_lshl_b32 s64, s64, 5")
    E("s_lshr_b32 s66, s2, 3")
    E("s_add_u32 s64, s64, s66")
    E("s_and_b32 s66, s66, 3")
    E("s_add_u32 s65, s65, s66")
    E("s_lshr_b32 s66, s2, 5")
    E("s_and_b32 s67, s3, 3")
    E("s_lshr_b32 s68, s3, 2")
    E("s_bfe_u32 s69, s3, 0x10001")
    E("v_mov_b32 v12, 0")
    E("v_mov_b32 v13, 0")
    E("v_mov_b32 v14, 0")
    E("v_mov_b32 v15, 0")
    E("v_and_b32 v2, 31, v1")
    E("v_lshlrev_b32 v2, 4, v2")
    E(f"ds_write_b128 v2, v[12:15] offset:{FLG}")
    E("s_lshl_b32 s70, s3, 2")
    E(f"s_add_u32 s70, s70, {SYN}")
    E("v_mov_b32 v28, s70")
    E("v_mov_b32 v29, 1")
    E("v_mov_b32 v95, 0")
    E(f"v_mov_b32 v30, {SYN}")
    E("s_lshl_b32 s70, s65, 6")
    E("s_add_u32 s70, s70, s67")
    E("s_lshl_b32 s70, s70, 10")
    E("s_lshl_b32 s71, s66, 7")
    E("s_add_u32 s70, s70, s71")
    E("v_lshrrev_b32 v2, 3, v1")
    E("v_and_b32 v3, 7, v1")
    E("v_lshlrev_b32 v4, 12, v2")
    E("v_lshl_add_u32 v4, v3, 4, v4")
    E("v_add_u32 v4, s70, v4")
    E("v_subrev_u32 v5, 1024, v4")
    E("v_subrev_u32 v6, 2048, v4")
    E("v_subrev_u32 v7, 3072, v4")
    E("s_lshl_b32 s71, s66, 9")
    E("v_lshl_add_u32 v8, v3, 6, s71")
    E("s_lshl_b32 s72, s65, 6")
    E("s_lshl_b32 s71, s66, 3")
    E("s_add_u32 s72, s72, s71")
    E("s_lshl_b32 s71, s67, 1")
    E("s_add_u32 s72, s72, s71")
    E("s_lshl_b32 s73, s72, 10")
    E("v_lshlrev_b32 v9, 4, v1")
    E("s_and_b32 s74, s3, 1")
    E(f"s_mul_i32 s75, s74, {8*NA}")
    E(f"s_mul_i32 s76, s74, {8*NB}")
    E(f"s_add_u32 s76, s76, {16*NA}")
    E("s_cmp_eq_u32 s68, 0")
    E("s_cselect_b32 s75, s75, s76")
    E("s_lshl_b32 s70, s64, 1")
    E("s_add_u32 s70, s70, s69")
    E("s_lshl_b32 s70, s70, 7")
    E("s_add_u32 s70, s70, s75")
    E("s_lshl_b32 s70, s70, 1")
    E("v_lshl_add_u32 v11, v1, 1, s70")
    if "--pro" in sys.argv: STAMP(3)
    E("s_waitcnt lgkmcnt(0)")
    if "--pro" in sys.argv: STAMP(4)
    E("s_barrier")
    E("s_cmp_eq_u32 s68, 0")
    E("s_cbranch_scc1 K_noTL")
    srd(SRD_A, 24, 2 << 20)
    srd(SRD_B, 26, 2 << 20)
    E("s_mov_b32 s70, 0x8000")
    E(f"buffer_load_dwordx4 v[12:15], v4, s[{SRD_A}:{SRD_A+3}], 0 offen")
    E(f"buffer_load_dwordx4 v[16:19], v5, s[{SRD_A}:{SRD_A+3}], 0 offen")
    E(f"buffer_load_dwordx4 v[20:23], v6, s[{SRD_A}:{SRD_A+3}], 0 offen")
    E(f"buffer_load_dwordx4 v[24:27], v7, s[{SRD_A}:{SRD_A+3}], 0 offen")
    E(f"buffer_load_dwordx4 v[96:99], v4, s[{SRD_B}:{SRD_B+3}], 0 offen")
    srd(SRD_WS, 28, 4096)
    srd(SRD_OUT, 4, 2 << 20)
    for i in range(4):
        E(f"buffer_load_dwordx4 v[{40+4*i}:{43+4*i}], v8, s[{SRD_WS}:{SRD_WS+3}], 0 offen offset:{16*i}")
    E(f"buffer_load_dwordx4 v[32:35], v4, s[{SRD_OUT}:{SRD_OUT+3}], 0 offen")
    E("v_add_u32 v4, s70, v4")
    E(f"buffer_load_dwordx4 v[128:131], v4, s[{SRD_A}:{SRD_A+3}], 0 offen")
    E("v_subrev_u32 v5, 1024, v4")
    E(f"buffer_load_dwordx4 v[132:135], v5, s[{SRD_A}:{SRD_A+3}], 0 offen")
    E("v_subrev_u32 v6, 2048, v4")
    E(f"buffer_load_dwordx4 v[136:139], v6, s[{SRD_A}:{SRD_A+3}], 0 offen")
    E("v_subrev_u32 v7, 3072, v4")
    E(f"buffer_load_dwordx4 v[140:143], v7, s[{SRD_A}:{SRD_A+3}], 0 offen")
    E(f"buffer_load_dwordx4 v[144:147], v4, s[{SRD_B}:{SRD_B+3}], 0 offen")
    E(f"buffer_load_dwordx4 v[148:151], v4, s[{SRD_OUT}:{SRD_OUT+3}], 0 offen")
    E(f"buffer_load_dwordx4 v[56:59], v9, s[{SRD_OUT}:{SRD_OUT+3}], s73 offen")
    E(f"buffer_load_dwordx4 v[152:155], v9, s[{SRD_OUT}:{SRD_OUT+3}], s73 offen offset:1024")
    srd(SRD_A, 34, 1024)
    E(f"buffer_load_dwordx4 v[60:63], v9, s[{SRD_A}:{SRD_A+3}], 0 offen")
    E("s_branch K_noPL")
    L("K_noTL")
    for i, sp in enumerate([6, 8, 10, 12, 14, 16]):
        sd = SRD_A if i % 2 == 0 else SRD_B
        srd(sd, sp, 131072)
        E(f"buffer_load_ushort v{84+i}, v11, s[{sd}:{sd+3}], 0 offen")
    L("K_noPL")
    srd(SRD_A, 30, 2 << 20)
    E("s_lshl_b32 s70, s64, 13")
    E("s_lshl_b32 s71, s3, 10")
    E("s_add_u32 s70, s70, s71")
    E(f"s_mul_i32 s71, s68, {XROW}")
    E("s_lshl_b32 s74, s67, 10")
    E("s_add_u32 s71, s71, s74")
    E(f"s_add_u32 s71, s71, {XBASE + 4*XROW + 32}")
    E("s_mov_b32 m0, s71")
    E("s_lshl_b32 s74, s64, 2")
    E(f"buffer_load_dwordx4 v9, s[{SRD_A}:{SRD_A+3}], s70 offen lds")
    if "--pro" in sys.argv: STAMP(6)
    E("s_load_dword s22, s[18:19], s74")
    E("s_load_dword s23, s[20:21], s74")
    E("s_load_dword s42, s[32:33], s74")
    srd(SRD_WS, 40, WS_SIZE)
    srd(SRD_OUT, 36, 2 << 20)
    srd(SRD_DBGB, 38, 256)
    E("s_mov_b32 s43, 0xffff0000")
    E("s_and_b32 s61, s3, 1")
    E("s_lshl_b32 s70, s2, 3")
    E("s_add_u32 s70, s70, s3")
    E("s_cmp_lg_u32 s70, 4")
    E("s_cbranch_scc1 K_nononce")
    E("s_memrealtime s[70:71]")
    E("s_waitcnt lgkmcnt(0)")
    E("s_or_b32 s70, s70, 1")
    E("v_mov_b32 v100, s70")
    E("v_mov_b32 v101, s71")
    E("v_mov_b32 v102, 0")
    E("s_mov_b64 exec, 1")
    E(f"buffer_store_dwordx2 v[100:101], v102, s[{SRD_DBGB}:{SRD_DBGB+3}], 0 offen sc1")
    E("s_mov_b64 exec, -1")
    E("s_waitcnt vmcnt(0)")
    L("K_nononce")
    if "--pro" in sys.argv:
        STAMP(7)
        E("s_waitcnt lgkmcnt(0)")
        for i in range(3, 8): E(f"s_mov_b32 s{1+i}, s{80+2*i}")
    E("s_cmp_eq_u32 s68, 0")
    E("s_cbranch_scc1 K_kgen")
    E("s_mul_i32 s70, s3, 3072")
    E(f"s_add_u32 s70, s70, {S_TR}")
    E("v_mul_u32_u24 v64, 144, v2")
    E("v_lshl_add_u32 v64, v3, 4, v64")
    E("v_add_u32 v64, s70, v64")
    E("v_lshrrev_b32 v66, 4, v1")
    E("v_and_b32 v67, 1, v66")
    E("v_lshrrev_b32 v66, 1, v66")
    E("v_bfe_u32 v68, v1, 2, 2")
    E("v_and_b32 v69, 3, v1")
    E("v_mul_u32_u24 v65, 1152, v67")
    E("v_mul_u32_u24 v68, 144, v68")
    E("v_add_u32 v65, v65, v68")
    E("v_lshl_add_u32 v65, v66, 5, v65")
    E("v_lshl_add_u32 v65, v69, 3, v65")
    E("v_add_u32 v65, s70, v65")
    E("v_and_b32 v68, 15, v1")
    E("v_lshl_add_u32 v68, v66, 4, v68")
    E("v_lshrrev_b32 v69, 1, v68")
    E("v_and_b32 v68, 1, v68")
    E("v_lshlrev_b32 v69, 14, v69")
    E("v_lshl_add_u32 v69, v68, 4, v69")
    E("v_lshl_add_u32 v69, v67, 5, v69")
    E("s_lshl_b32 s70, s66, 19")
    E("s_lshl_b32 s71, s65, 9")
    E("s_add_u32 s70, s70, s71")
    E("s_lshl_b32 s71, s67, 7")
    E("s_add_u32 s70, s70, s71")
    E("s_add_u32 s71, s70, 0x40000")
    E("s_mov_b32 s62, 0")
    E("s_mov_b32 s76, 0x00003f80")
    E("s_mov_b32 s77, 0x3f800000")
    E("s_mov_b32 s78, 0x0000ffff")
    E("s_mov_b32 s79, 0x3f803f80")
    E("s_waitcnt vmcnt(11)")
    STAMP(1)
    for t in range(4):
        for i in range(4):
            r0 = 40 + 4 * i + (t >> 1)
            r1 = 40 + 4 * i + 2 + (t >> 1)
            d = 160 + (t * 4 + i) * 2
            if t & 1:
                E(f"v_lshrrev_b32 v{d}, 16, v{r0}")
                E(f"v_and_b32 v{d+1}, s43, v{r1}")
            else:
                E(f"v_and_b32 v{d}, s78, v{r0}")
                E(f"v_lshlrev_b32 v{d+1}, 16, v{r1}")
    L("K_tloop")
    for t in range(4):
        for i in range(4):
            kr = 12 + 4 * t + i
            d = 160 + (t * 4 + i) * 2
            E(f"v_dot2_f32_bf16 v{208+2*i}, v{kr}, v{d}, 0")
            E(f"v_dot2_f32_bf16 v{209+2*i}, v{kr}, v{d+1}, 0")
        E("s_nop 0")
        for i in range(4):
            E(f"v_cvt_pk_bf16_f32 v{192+4*t+i}, v{208+2*i}, v{209+2*i}")
    cur = 192 + 12
    for t in (2, 1, 0):
        for i in range(4):
            E(f"v_lshlrev_b32 v{208+2*i}, 16, v{cur+i}")
            E(f"v_and_b32 v{209+2*i}, s43, v{cur+i}")
        for i in range(4):
            E(f"v_dot2_f32_bf16 v{208+2*i}, v{192+4*t+i}, s76, v{208+2*i}")
            E(f"v_dot2_f32_bf16 v{209+2*i}, v{192+4*t+i}, s77, v{209+2*i}")
        E("s_nop 0")
        for i in range(4):
            E(f"v_cvt_pk_bf16_f32 v{cur+i}, v{208+2*i}, v{209+2*i}")
    for i in range(4):
        E(f"v_and_b32 v{216+2*i}, s78, v{96+i}")
        E(f"v_and_b32 v{217+2*i}, s43, v{96+i}")
    for i in range(4):
        E(f"v_dot2_f32_bf16 v{208+2*i}, v{cur+i}, v{216+2*i}, 0")
        E(f"v_dot2_f32_bf16 v{209+2*i}, v{cur+i}, v{217+2*i}, 0")
    E("s_nop 0")
    for i in range(4):
        E(f"v_cvt_pk_bf16_f32 v{36+i}, v{208+2*i}, v{209+2*i}")
    E("ds_write_b128 v64, v[36:39] offset:1152")
    E("s_cmp_eq_u32 s62, 0")
    E("s_cbranch_scc0 K_tw1")
    E("s_waitcnt vmcnt(10)")
    L("K_tw1")
    E("ds_write_b128 v64, v[32:35]")
    E("s_waitcnt lgkmcnt(0)")
    E("ds_read_b64_tr_b16 v[76:77], v65")
    E("ds_read_b64_tr_b16 v[78:79], v65 offset:576")
    E("ds_read_b64_tr_b16 v[80:81], v65 offset:64")
    E("ds_read_b64_tr_b16 v[82:83], v65 offset:640")
    E("s_waitcnt lgkmcnt(2)")
    E(f"buffer_store_dwordx4 v[76:79], v69, s[{SRD_WS}:{SRD_WS+3}], s70 offen sc1")
    E("s_waitcnt lgkmcnt(0)")
    E(f"buffer_store_dwordx4 v[80:83], v69, s[{SRD_WS}:{SRD_WS+3}], s71 offen sc1")
    E("s_cmp_eq_u32 s62, 1")
    E("s_cbranch_scc1 K_tdone")
    E("s_mov_b32 s62, 1")
    E("s_add_u32 s70, s70, 64")
    E("s_add_u32 s71, s71, 64")
    E("s_waitcnt vmcnt(6)")
    for i in range(16):
        E(f"v_mov_b32 v{12+i}, v{128+i}")
    for i in range(4):
        E(f"v_mov_b32 v{96+i}, v{144+i}")
        E(f"v_mov_b32 v{32+i}, v{148+i}")
    E("s_branch K_tloop")
    L("K_tdone")
    E("v_mov_b32 v95, 0")
    E(f"buffer_load_dwordx2 v[92:93], v95, s[{SRD_DBGB}:{SRD_DBGB+3}], 0 offen sc1")
    E("s_mov_b32 s62, 0")
    E("s_waitcnt vmcnt(6)")
    for i in range(4):
        E(f"v_and_b32 v{216+2*i}, s78, v{60+i}")
        E(f"v_and_b32 v{217+2*i}, s43, v{60+i}")
    L("K_gloop")
    for i in range(4):
        E(f"v_dot2_f32_bf16 v{208+2*i}, v{56+i}, v{216+2*i}, 0")
        E(f"v_dot2_f32_bf16 v{209+2*i}, v{56+i}, v{217+2*i}, 0")
    E("s_nop 0")
    for i in range(4):
        E(f"v_cvt_pk_bf16_f32 v{192+i}, v{208+2*i}, v{209+2*i}")
    for i in range(4):
        E(f"v_dot2_f32_bf16 v{208+i}, v{192+i}, s79, 0")
    E("s_nop 2")
    E("v_add_f32 v208, v208, v209")
    E("v_add_f32 v210, v210, v211")
    E("v_add_f32 v74, v208, v210")
    for dpp in ["row_shr:1", "row_shr:2", "row_shr:4", "row_shr:8"]:
        E("s_nop 1")
        E(f"v_add_f32_dpp v74, v74, v74 {dpp} row_mask:0xf bank_mask:0xf bound_ctrl:0")
    E("s_nop 1")
    E("v_add_f32_dpp v74, v74, v74 row_bcast:15 row_mask:0xa bank_mask:0xf")
    E("s_nop 1")
    E("v_add_f32_dpp v74, v74, v74 row_bcast:31 row_mask:0xc bank_mask:0xf")
    E("s_nop 1")
    E("v_cvt_pk_bf16_f32 v74, v74, v74")
    E("v_lshlrev_b32 v74, 16, v74")
    E("v_mul_f32 v74, 0xbfb8aa3b, v74")
    E("v_exp_f32 v74, v74")
    E("s_nop 0")
    E("v_add_f32 v74, 1.0, v74")
    E("v_rcp_f32 v74, v74")
    E("s_nop 0")
    E("v_cvt_pk_bf16_f32 v74, v74, v74")
    E("s_lshl_b32 s72, s67, 1")
    E("s_add_u32 s72, s72, s62")
    E("s_lshl_b32 s72, s72, 1")
    E(f"s_add_u32 s72, s72, {SYN + 224}")
    E("v_mov_b32 v75, s72")
    E("v_cmp_eq_u32 vcc, 63, v1")
    E("s_and_saveexec_b64 s[74:75], vcc")
    E("ds_write_b16 v75, v74")
    E("s_mov_b64 exec, s[74:75]")
    E("s_cmp_eq_u32 s62, 1")
    E("s_cbranch_scc1 K_bwave")
    E("s_mov_b32 s62, 1")
    for i in range(4):
        E(f"v_mov_b32 v{56+i}, v{152+i}")
    E("s_branch K_gloop")
    L("K_kgen")
    E(f"s_setprio {APRIO}")
    STAMP(2)
    E("v_and_b32 v20, 15, v1")
    E("v_lshrrev_b32 v21, 4, v1")
    E("v_lshrrev_b32 v22, 3, v20")
    E("v_and_b32 v23, 7, v20")
    E("v_lshl_add_u32 v22, v22, 7, v23")
    E("v_cvt_f32_u32 v24, v22")
    E("s_mov_b32 s74, 0x02040200")
    E("s_mov_b32 s75, 0x06000400")
    E("s_mov_b32 s76, 0x01800100")
    E("s_mov_b32 s77, 0x0a000800")
    E("s_mov_b32 s78, 0x00020002")
    E("s_mov_b32 s79, 0x00800080")
    E("v_lshrrev_b32 v22, 2, v20")
    E("v_lshlrev_b32 v22, 4, v22")
    E("v_and_b32 v23, 3, v20")
    E("v_lshrrev_b64 v[32:33], v22, s[74:75]")
    E("v_and_b32 v32, 0xffff, v32")
    E("v_lshl_add_u32 v32, v23, 7, v32")
    E("v_cvt_f32_u32 v25, v32")
    E("v_lshrrev_b32 v33, 7, v32")
    E("v_and_b32 v32, 127, v32")
    E("v_cvt_f32_u32 v16, v33")
    E("v_cvt_f32_u32 v17, v32")
    E("v_lshrrev_b64 v[32:33], v22, s[76:77]")
    E("v_and_b32 v32, 0xffff, v32")
    E("v_lshrrev_b64 v[34:35], v22, s[78:79]")
    E("v_and_b32 v34, 0xffff, v34")
    E("v_mad_u32_u24 v32, v23, v34, v32")
    E("v_cvt_f32_u32 v26, v32")
    E("v_lshrrev_b32 v33, 7, v32")
    E("v_and_b32 v32, 127, v32")
    E("v_cvt_f32_u32 v18, v33")
    E("v_cvt_f32_u32 v19, v32")
    E("v_lshlrev_b32 v22, 3, v20")
    E("v_cvt_f32_u32 v27, v22")
    E("s_waitcnt lgkmcnt(0)")
    E("s_lshl_b32 s70, s22, 16")
    E("s_and_b32 s22, s22, s43")
    E("s_cmp_eq_u32 s69, 0")
    E("s_cselect_b32 s22, s70, s22")
    E("v_mov_b32 v40, 0x3fb8aa3b")
    E("v_mul_f32 v41, s22, v40")
    E("v_exp_f32 v41, v41")
    E("s_nop 0")
    E("v_cvt_pk_bf16_f32 v41, v41, v41")
    E("v_lshlrev_b32 v41, 16, v41")
    E("s_waitcnt vmcnt(1)")
    for i in range(6):
        E(f"v_lshlrev_b32 v{84+i}, 16, v{84+i}")
    E("v_mul_f32 v84, v41, v84")
    E("v_mul_f32 v85, v41, v85")
    E("v_mul_f32 v86, v41, v86")
    E("v_mul_f32 v87, v41, v87")
    E("v_mul_f32 v44, v40, v84")
    E("v_mul_f32 v45, 0.15915494, v85")
    E("v_rndne_f32 v46, v45")
    E("v_sub_f32 v45, v45, v46")
    E("v_mul_f32 v46, 0x43000000, v45")
    E("v_rndne_f32 v47, v46")
    E("v_sub_f32 v46, v46, v47")
    E("v_mul_f32 v90, v88, v86")
    E("v_fma_f32 v90, -v89, v87, v90")
    E("v_mul_f32 v91, v88, v87")
    E("v_fma_f32 v91, v89, v86, v91")
    E("s_lshl_b32 s70, s3, 11")
    E(f"s_add_u32 s70, s70, {S_P}")
    E("v_lshl_add_u32 v42, v1, 5, s70")
    E("ds_write_b128 v42, v[44:47]")
    E("ds_write_b64 v42, v[90:91] offset:16")
    E("v_lshl_add_u32 v43, v21, 6, s70")
    for r in range(48, 60):
        E(f"v_mov_b32 v{r}, 0")
    E("s_waitcnt lgkmcnt(0)")
    E("ds_read_b128 v[60:63], v43")
    E("ds_read_b64 v[64:65], v43 offset:16")
    E("ds_read_b128 v[136:139], v43 offset:32")
    E("ds_read_b64 v[140:141], v43 offset:48")
    E("s_mov_b32 s62, 0")
    E(f"s_mov_b32 s63, {NA}")
    L("K_loop")
    E("s_waitcnt lgkmcnt(0)")
    for r in range(12):
        E(f"v_mov_b32 v{68+r}, v{(60 if r < 6 else 136 - 6) + r}")
    E("v_add_u32 v43, 256, v43")
    E("ds_read_b128 v[60:63], v43")
    E("ds_read_b64 v[64:65], v43 offset:16")
    E("ds_read_b128 v[136:139], v43 offset:32")
    E("ds_read_b64 v[140:141], v43 offset:48")
    for nn in range(2):
        zr, zi, w128, cbr, cbi = 68 + 6 * nn, 69 + 6 * nn, 70 + 6 * nn, 72 + 6 * nn, 73 + 6 * nn
        T = [96, 100, 104, 108]
        E(f"v_mul_f32 v{T[3]}, v{zr}, v27")
        E(f"v_mul_f32 v{T[3]+1}, v{zi}, v27")
        E(f"v_mul_f32 v{T[0]}, v{zr}, v24")
        E(f"v_mul_f32 v{T[0]+1}, v{zi}, v24")
        E(f"v_mul_f32 v{T[1]}, v{zr}, v25")
        E(f"v_mul_f32 v{T[1]+1}, v{zi}, v17")
        E(f"v_mul_f32 v{T[2]}, v{zr}, v26")
        E(f"v_mul_f32 v{T[2]+1}, v{zi}, v19")
        E(f"v_fma_f32 v{T[1]+1}, v{w128}, v16, v{T[1]+1}")
        E(f"v_fma_f32 v{T[2]+1}, v{w128}, v18, v{T[2]+1}")
        for t in [T[3], T[0], T[1], T[2]]:
            E(f"v_exp_f32 v{t}, v{t}")
            E(f"v_cos_f32 v{t+2}, v{t+1}")
            E(f"v_sin_f32 v{t+3}, v{t+1}")
        t = T[3]
        E(f"v_mul_f32 v{t+2}, v{t}, v{t+2}")
        E(f"v_mul_f32 v{t+3}, v{t}, v{t+3}")
        E(f"v_mul_f32 v{t}, v{cbr}, v{t+2}")
        E(f"v_mul_f32 v{t+1}, v{cbr}, v{t+3}")
        E(f"v_fma_f32 v{t}, -v{cbi}, v{t+3}, v{t}")
        E(f"v_fma_f32 v{t+3}, -v{cbi}, v{t+2}, -v{t+1}")
        E(f"v_mov_b32 v{t+2}, v{t}")
        for t in T[:3]:
            E(f"v_mul_f32 v{t+2}, v{t}, v{t+2}")
            E(f"v_mul_f32 v{t+3}, v{t}, v{t+3}")
        for k in range(4):
            t = T[k]
            hi = (112 + 2 * k + nn) if k < 3 else (124 + nn)
            lo = (118 + 2 * k + nn) if k < 3 else (126 + nn)
            E(f"v_cvt_pk_bf16_f32 v{hi}, v{t+2}, v{t+3}")
            E(f"v_lshlrev_b32 v{t}, 16, v{hi}")
            E(f"v_and_b32 v{t+1}, s43, v{hi}")
            E(f"v_sub_f32 v{t}, v{t+2}, v{t}")
            E(f"v_sub_f32 v{t+1}, v{t+3}, v{t+1}")
            E(f"v_cvt_pk_bf16_f32 v{lo}, v{t}, v{t+1}")
    E("s_add_u32 s62, s62, 1")
    E("s_cmp_eq_u32 s62, 1")
    for k in range(3):
        a_ = 48 + 4 * k
        E(f"v_mfma_f32_16x16x16_bf16 {R4(a_)}, v[{112+2*k}:{113+2*k}], v[124:125], {R4(a_)}")
        E(f"v_mfma_f32_16x16x16_bf16 {R4(a_)}, v[{112+2*k}:{113+2*k}], v[126:127], {R4(a_)}")
        E(f"v_mfma_f32_16x16x16_bf16 {R4(a_)}, v[{118+2*k}:{119+2*k}], v[124:125], {R4(a_)}")
    E("s_cbranch_scc0 K_nost")
    E("s_waitcnt vmcnt(0)")
    post(0)
    L("K_nost")
    E("s_cmp_lt_u32 s62, s63")
    E("s_cbranch_scc1 K_loop")
    E("s_waitcnt lgkmcnt(0)")
    STAMP(3)
    E("s_mul_i32 s70, s3, 3072")
    E(f"s_add_u32 s70, s70, {S_TR}")
    E("v_lshl_add_u32 v39, v1, 4, s70")
    E("v_and_b32 v4, 15, v1")
    E("v_lshrrev_b32 v5, 4, v1")
    E("v_lshlrev_b32 v6, 2, v4")
    E("v_add_u32 v6, v6, v5")
    E("s_nop 1")
    for k in range(3):
        E(f"ds_write_b128 v39, {R4(48+4*k)} offset:{1024*k}")
    post(1)
    E("s_mul_i32 s70, s69, 12288")
    E(f"s_add_u32 s70, s70, {S_KT}")
    E("v_lshlrev_b32 v32, 5, v20")
    E("v_add_u32 v32, s70, v32")
    E("v_lshlrev_b32 v22, 4, v21")
    E("v_lshrrev_b64 v[60:61], v22, s[76:77]")
    E("v_and_b32 v60, 0xffff, v60")
    E("v_lshl_add_u32 v44, v60, 2, v32")
    E("v_lshrrev_b64 v[60:61], v22, s[78:79]")
    E("v_and_b32 v60, 0xffff, v60")
    E("v_lshlrev_b32 v60, 2, v60")
    E("v_add_u32 v45, v44, v60")
    E("v_add_u32 v46, v45, v60")
    E("v_add_u32 v47, v46, v60")
    E("s_cmp_eq_u32 s61, 1")
    E("s_cbranch_scc1 K_t1")
    E("v_lshrrev_b32 v22, 1, v21")
    E("v_and_b32 v23, 1, v21")
    E("v_lshlrev_b32 v22, 9, v22")
    E("v_lshl_add_u32 v22, v23, 4, v22")
    E("v_add_u32 v35, v32, v22")
    E("v_mov_b32 v60, 4")
    E("s_branch K_t3")
    L("K_t1")
    E("v_lshrrev_b64 v[60:61], v22, s[74:75]")
    E("v_and_b32 v60, 0xffff, v60")
    E("v_lshl_add_u32 v35, v60, 2, v32")
    E("v_mov_b32 v60, 512")
    L("K_t3")
    E("v_add_u32 v36, v35, v60")
    E("v_add_u32 v37, v36, v60")
    E("v_add_u32 v38, v37, v60")
    E("s_mul_i32 s70, s69, 6144")
    E(f"s_add_u32 s70, s70, {S_TR}")
    E("v_lshl_add_u32 v39, v1, 4, s70")
    E("s_lshl_b32 s71, s61, 10")
    E("v_add_u32 v40, s71, v39")
    E("s_lshl_b32 s71, s61, 9")
    E("v_lshl_add_u32 v60, v1, 3, s71")
    E("s_mul_i32 s70, s69, 12288")
    E(f"s_add_u32 s70, s70, {S_KT}")
    for rr in range(2):
        for e in range(0, 8, 2):
            E(f"v_add_u32 v62, {e + 1024*rr}, v60")
            E(f"v_add_u32 v63, {e + 1 + 1024*rr}, v60")
            E("v_cvt_f32_u32 v62, v62")
            E("v_cvt_f32_u32 v63, v63")
            E("v_cvt_pk_bf16_f32 v62, v62, v63")
            E("v_and_b32 v63, s43, v62")
            E("v_lshlrev_b32 v62, 16, v62")
            E("v_cvt_u32_f32 v62, v62")
            E("v_cvt_u32_f32 v63, v63")
            E(f"v_lshl_add_u32 v{64+8*rr+e}, v62, 2, s70")
            E(f"v_lshl_add_u32 v{65+8*rr+e}, v63, 2, s70")
    E(f"s_mul_i32 s70, s69, {XROW}")
    E(f"s_add_u32 s70, s70, {XBASE + 32}")
    E("v_lshl_add_u32 v61, v60, 1, s70")
    waitf(1, 0, 4, 96)
    srcoff = [0, 3072]
    for k in range(2):
        E(f"ds_read_b128 {R4(96+4*k)}, v40 offset:{srcoff[k]}")
    for k in range(2):
        E(f"ds_read_b128 {R4(112+4*k)}, v39 offset:{srcoff[k] + 2048}")
    for (b, dst, w) in [(96, 35, 2), (112, 44, 0)]:
        E(f"s_waitcnt lgkmcnt({w})")
        for e in range(4):
            E(f"v_add_f32 v{b+e}, v{b+e}, v{b+4+e}")
    for (b, dst) in [(96, 35), (112, 44)]:
        for e in range(4):
            E(f"ds_write_b32 v{dst+e}, v{b+e}")
    post(2)
    waitf(2, 0, 4, 96)
    for e in range(16):
        E(f"ds_read_b32 v{96+e}, v{64+e}")
    for rr in range(2):
        for e in range(0, 8, 2):
            src = 96 + 8 * rr + e
            E(f"s_waitcnt lgkmcnt({14 - 8*rr - e})")
            E(f"v_cvt_pk_bf16_f32 v{112+8*rr+e//2}, v{src}, v{src+1}")
            E(f"v_lshlrev_b32 v62, 16, v{112+8*rr+e//2}")
            E(f"v_and_b32 v63, s43, v{112+8*rr+e//2}")
            E(f"v_sub_f32 v62, v{src}, v62")
            E(f"v_sub_f32 v63, v{src+1}, v63")
            E(f"v_cvt_pk_bf16_f32 v{116+8*rr+e//2}, v62, v63")
    for rr in range(2):
        E(f"ds_write_b128 v61, {R4(112+8*rr)} offset:{2048*rr}")
        E(f"ds_write_b128 v61, {R4(116+8*rr)} offset:{2*XROW + 2048*rr}")
    post(3)
    STAMP(4)
    E("s_branch K_csetup")
    L("K_bwave")
    STAMP(2)
    E("v_and_b32 v4, 15, v1")
    E("v_lshrrev_b32 v5, 4, v1")
    E("v_lshlrev_b32 v6, 2, v4")
    E("v_add_u32 v6, v6, v5")
    E("s_waitcnt vmcnt(0)")
    post(0)
    E("s_mov_b32 s70, 0")
    L("K_ncheck")
    E("v_readfirstlane_b32 s56, v92")
    E("v_readfirstlane_b32 s57, v93")
    E("s_add_u32 s70, s70, 1")
    E("s_cmp_lg_u32 s56, 0")
    E("s_cbranch_scc1 K_nok")
    E("s_cmp_ge_u32 s70, 0x40000")
    E("s_cbranch_scc1 K_nok")
    E("s_sleep 4")
    E(f"buffer_load_dwordx2 v[92:93], v95, s[{SRD_DBGB}:{SRD_DBGB+3}], 0 offen sc1")
    E("s_waitcnt vmcnt(0)")
    E("s_branch K_ncheck")
    L("K_nok")
    E("s_cmp_lg_u32 s3, 4")
    E("s_cbranch_scc1 K_nopub")
    waitf(0, 4, 8, 144)
    E("v_and_b32 v95, 1, v1")
    E("v_lshlrev_b32 v94, 3, v95")
    E(f"ds_read_b64 v[144:145], v94 offset:{SYN + 224}")
    E("v_mov_b32 v146, s56")
    E("v_mov_b32 v147, s57")
    E("v_lshlrev_b32 v95, 4, v95")
    E("s_lshl_b32 s71, s65, 3")
    E("s_add_u32 s71, s71, s66")
    E("s_lshl_b32 s71, s71, 5")
    E(f"s_add_u32 s71, s71, {WS_G}")
    E("s_lshl_b32 s72, s66, 5")
    E("s_add_u32 s72, s72, s65")
    E("s_lshl_b32 s72, s72, 5")
    E(f"s_add_u32 s72, s72, {WS_F}")
    E("s_mov_b64 exec, 1")
    E(f"buffer_store_dwordx2 v[146:147], v95, s[{SRD_WS}:{SRD_WS+3}], s72 offen sc1")
    E("s_waitcnt lgkmcnt(0)")
    E("s_mov_b64 exec, 3")
    E(f"buffer_store_dwordx4 v[144:147], v95, s[{SRD_WS}:{SRD_WS+3}], s71 offen sc1")
    E("s_mov_b64 exec, -1")
    STAMP(9)
    L("K_nopub")
    STAMP(3)
    E("v_and_b32 v2, 3, v1")
    E("v_bfe_u32 v3, v1, 3, 2")
    E("v_lshl_add_u32 v2, v2, 2, v3")
    E(f"v_mul_u32_u24 v2, {ZROW}, v2")
    E("v_bfe_u32 v3, v1, 2, 1")
    E("v_lshl_add_u32 v2, v3, 4, v2")
    E("v_lshrrev_b32 v3, 5, v1")
    E("v_lshl_add_u32 v2, v3, 5, v2")
    E("s_lshl_b32 s71, s67, 8")
    E(f"s_add_u32 s71, s71, {ZBASE + 128}")
    E("v_add_u32 v3, s71, v2")
    E("s_lshl_b32 s72, s64, 14")
    E("s_lshl_b32 s71, s67, 12")
    E("s_add_u32 s72, s72, s71")
    E("v_lshlrev_b32 v92, 2, v1")
    E("v_lshlrev_b32 v9, 4, v1")
    E("s_lshl_b32 s73, s67, 11")
    E(f"v_add_u32 v10, {GB}, v9")
    E("v_add_u32 v10, s73, v10")
    E(f"s_add_u32 s60, s73, {WS_G}")
    E("v_mov_b32 v96, 0")
    E("v_mov_b32 v97, 0")
    E("v_mov_b32 v98, 0")
    E("v_mov_b32 v99, 0")
    E("v_bfe_u32 v100, v1, 3, 2")
    E(f"v_mul_u32_u24 v100, {ZROW}, v100")
    E("v_and_b32 v101, 7, v1")
    E("v_lshl_add_u32 v100, v101, 4, v100")
    E(f"s_mul_i32 s71, s67, {4*ZROW}")
    E("v_add_u32 v100, s71, v100")
    E("ds_write_b128 v100, v[96:99]")
    E("v_min_u32 v100, 11, v1")
    E("v_lshrrev_b32 v101, 1, v100")
    E(f"v_mul_u32_u24 v101, {XROW}, v101")
    E("v_and_b32 v100, 1, v100")
    E("v_lshl_add_u32 v100, v100, 4, v101")
    E(f"ds_write_b128 v100, v[96:99] offset:{XBASE}")
    E(f"s_mul_i32 s71, s67, {PMS}")
    E(f"s_add_u32 s71, s71, {PB}")
    E("v_mov_b32 v100, s71")
    E("ds_write_b128 v100, v[96:99]")
    E(f"s_mul_i32 s71, s67, {PCS}")
    E(f"s_add_u32 s71, s71, {PB + 4*PMS}")
    E("v_mov_b32 v100, s71")
    E("ds_write_b128 v100, v[96:99]")
    E("s_cmp_lg_u32 s3, 4")
    E("s_cbranch_scc1 K_pwait")
    E("v_and_b32 v92, 31, v1")
    E("v_lshlrev_b32 v92, 5, v92")
    E("s_and_b32 s71, s2, 7")
    E("s_lshl_b32 s71, s71, 10")
    E(f"s_add_u32 s71, s71, {WS_F}")
    E("s_mov_b32 s70, 0")
    L("K_poll")
    E(f"buffer_load_dwordx2 v[112:113], v92, s[{SRD_WS}:{SRD_WS+3}], s71 offen sc1")
    E("s_waitcnt vmcnt(0)")
    E("v_xor_b32 v112, s56, v112")
    E("v_xor_b32 v113, s57, v113")
    E("v_or_b32 v112, v112, v113")
    E("v_cmp_ne_u32 vcc, 0, v112")
    E("s_add_u32 s70, s70, 1")
    E("s_cmp_eq_u64 vcc, 0")
    E("s_cbranch_scc1 K_pok")
    E(f"s_sleep {PSLEEP}")
    E("s_cmp_lt_u32 s70, 0x40000")
    E("s_cbranch_scc1 K_poll")
    L("K_pok")
    post(5)
    E("s_branch K_pdone")
    L("K_pwait")
    E(f"ds_read_b32 v93, v30 offset:{32*5 + 16}")
    E("s_waitcnt lgkmcnt(0)")
    E("v_readfirstlane_b32 s70, v93")
    E("s_cmp_eq_u32 s70, 1")
    E("s_cbranch_scc1 K_pdone")
    E("s_sleep 1")
    E("s_branch K_pwait")
    L("K_pdone")
    STAMP(4)
    for p in range(4):
        E(f"buffer_load_dwordx4 {R4(96+4*p)}, v9, s[{SRD_WS}:{SRD_WS+3}], s72 offen offset:{1024*p} sc1")
    for p in range(4):
        E(f"s_waitcnt vmcnt({3-p})")
        E(f"ds_write_b128 v3, {R4(96+4*p)} offset:{64*p}")
    post(4)
    E(f"s_setprio {CBPRIO}")
    L("K_csetup")
    vB, vA, vPM, vPC, vF = 16, 17, 18, 19, 20
    E("s_lshl_b32 s70, s3, 1")
    E(f"s_mul_i32 s70, s70, {ZROW}")
    E(f"s_add_u32 s70, s70, {ZBASE + 8}")
    E(f"v_lshlrev_b32 v{vB}, 3, v4")
    E(f"v_lshl_add_u32 v{vB}, v5, 4, v{vB}")
    E(f"v_add_u32 v{vB}, s70, v{vB}")
    E("v_and_b32 v22, 3, v1")
    E("v_bfe_u32 v23, v1, 2, 2")
    E("v_sub_u32 v22, v22, v23")
    E("v_lshlrev_b32 v22, 3, v22")
    E("v_lshlrev_b32 v23, 6, v5")
    E("v_sub_u32 v22, v22, v23")
    E("s_lshl_b32 s70, s68, 2")
    E("s_add_u32 s70, s70, s69")
    E(f"s_mul_i32 s70, s70, {XROW}")
    E(f"s_add_u32 s70, s70, {XBASE + 224}")
    E(f"v_add_u32 v{vA}, s70, v22")
    E("s_cmp_eq_u32 s68, 0")
    E(f"s_mov_b32 s71, {PB}")
    E(f"s_cselect_b32 s71, {PA}, s71")
    E(f"s_mul_i32 s70, s67, {PMS}")
    E("s_add_u32 s70, s70, s71")
    E("s_add_u32 s72, s70, 16")
    E(f"v_lshl_add_u32 v{vPM}, v1, 4, s72")
    E(f"s_mul_i32 s72, s67, {PCS}")
    E("s_add_u32 s72, s72, s71")
    E(f"s_add_u32 s72, s72, {4*PMS}")
    E("s_add_u32 s73, s72, 16")
    E(f"v_lshl_add_u32 v{vPC}, v1, 2, s73")
    E("s_lshl_b32 s73, s3, 2")
    E(f"s_add_u32 s73, s73, {FLG}")
    E(f"v_mov_b32 v{vF}, s73")
    E("s_cmp_eq_u32 s68, 1")
    E("s_cbranch_scc1 K_convB")
    E("v_mov_b32 v22, s70")
    E("v_mov_b32 v23, s72")
    waitf(3, 0, 4, 24)
    E("v_mov_b32 v24, 0")
    E("v_mov_b32 v25, 0")
    E("v_mov_b32 v26, 0")
    E("v_mov_b32 v27, 0")
    E("ds_write_b128 v22, v[24:27]")
    E("ds_write_b128 v23, v[24:27]")
    waitf(4, 4, 8, 24)
    E("s_setprio 0")
    STAMP(5)

    def Bf(pp, jj):
        return 64 + 64 * pp + 4 * jj
    def acc(pp, q):
        return 192 + 32 * pp + 4 * q
    def conv(nx):
        ring = 8 // nx
        def Af(n, x):
            return 32 + 4 * ((n % ring) * nx + x)
        queue = []
        def rdA(n):
            for x in range(nx):
                a = Af(n, x)
                off = 256 * n + x * 2 * XROW
                E(f"ds_read_b64_tr_b16 v[{a}:{a+1}], v{vA} offset:{off+32}")
                E(f"ds_read_b64_tr_b16 v[{a+2}:{a+3}], v{vA} offset:{off}")
                queue.extend([("A", n), ("A", n)])
        def rdB(pp, jj):
            b = Bf(pp, jj)
            E(f"ds_read_b64 v[{b}:{b+1}], v{vB} offset:{pp*ZROW + 64*jj}")
            E(f"ds_read_b64 v[{b+2}:{b+3}], v{vB} offset:{pp*ZROW + 64*jj + 8}")
            queue.extend([("B", pp, jj), ("B", pp, jj)])
        def need(keys):
            last = -1
            for idx, k in enumerate(queue):
                if k in keys:
                    last = idx
            if last >= 0:
                n_after = len(queue) - 1 - last
                assert n_after <= 15
                E(f"s_waitcnt lgkmcnt({n_after})")
                del queue[:last + 1]
        def mf(pp, q, n, x, first=False):
            jj = 2 * q - n + 1
            c = "0" if first else R4(acc(pp, q))
            E(f"v_mfma_f32_16x16x32_bf16 {R4(acc(pp,q))}, {R4(Af(n,x))}, {R4(Bf(pp,jj))}, {c}")
        def writeout(q):
            a0, a1 = acc(0, q), acc(1, q)
            E(f"v_add_f32 v{a0+1}, v{a0+1}, v{a1}")
            E(f"v_add_f32 v{a0+2}, v{a0+2}, v{a1+1}")
            E(f"v_add_f32 v{a0+3}, v{a0+3}, v{a1+2}")
            E(f"ds_write_b32 v{vPC}, v{a1+3} offset:{256*q}")
            E(f"ds_write_b128 v{vPM}, {R4(a0)} offset:{1024*q}")
            E(f"ds_write_b32 v{vF}, v29 offset:{32*q}")
            queue.extend([("W",), ("W",), ("W",)])
        rdA(1)
        rdB(0, 0)
        rdA(0)
        rdB(0, 1)
        rdB(1, 0)
        for q in range(8):
            for pp in range(2):
                if pp == 0:
                    nxt = [(1, 2 * q + 1)] + ([(0, 2 * q + 2)] if q < 7 else [])
                else:
                    nxt = [(0, 2 * q + 3), (1, 2 * q + 2)] if q < 7 else []
                need({("A", 1), ("B", pp, 2 * q)})
                for x in range(nx):
                    mf(pp, q, 1, x, first=(x == 0))
                if nxt:
                    rdB(*nxt[0])
                elif pp == 1:
                    rdA(2)
                need({("A", 0), ("B", pp, 2 * q + 1)})
                for x in range(nx):
                    mf(pp, q, 0, x)
                if len(nxt) > 1:
                    rdB(*nxt[1])
                elif pp == 1:
                    rdA(3)
        if nx == 1:
            sched = {2: [4], 3: [5], 4: [6], 5: [7], 6: [8], 7: [9], 8: [10, 11], 9: [12, 13], 10: [14, 15]}
        else:
            sched = {n: [n + 2] for n in range(2, 14)}
        for n in range(2, 16):
            need({("A", n)})
            q0 = n >> 1
            k = 0
            for q in range(q0, 8):
                for pp in range(2):
                    for x in range(nx):
                        mf(pp, q, n, x)
                    k += 1
                    if k == 1:
                        for m in sched.get(n, []):
                            rdA(m)
                if n % 2 == 0 and q == min(q0 + 1, 7):
                    if n == 14:
                        E("s_nop 3")
                    writeout(q0 - 1)
        E("s_nop 7")
        writeout(7)
    conv(2)
    STAMP(6)
    E("s_mov_b32 s73, 7")
    E("s_branch K_fin")
    L("K_convB")
    waitf(0, 0, 4, 24)
    waitf(4, 4, 8, 24)
    E(f"buffer_load_dwordx4 v[12:15], v9, s[{SRD_WS}:{SRD_WS+3}], s60 offen sc1")
    E(f"buffer_load_dwordx4 v[24:27], v9, s[{SRD_WS}:{SRD_WS+3}], s60 offen offset:1024 sc1")
    STAMP(5)
    conv(1)
    STAMP(6)
    E("s_mov_b32 s70, 0")
    L("K_gpoll")
    E("s_waitcnt vmcnt(0)")
    E("v_xor_b32 v14, s56, v14")
    E("v_xor_b32 v15, s57, v15")
    E("v_xor_b32 v26, s56, v26")
    E("v_xor_b32 v27, s57, v27")
    E("v_or_b32 v14, v14, v15")
    E("v_or_b32 v26, v26, v27")
    E("v_or_b32 v14, v14, v26")
    E("v_cmp_ne_u32 vcc, 0, v14")
    E("s_add_u32 s70, s70, 1")
    E("s_cmp_eq_u64 vcc, 0")
    E("s_cbranch_scc1 K_gok")
    E("s_cmp_ge_u32 s70, 0x40000")
    E("s_cbranch_scc1 K_gok")
    E("s_sleep 8")
    E(f"buffer_load_dwordx4 v[12:15], v9, s[{SRD_WS}:{SRD_WS+3}], s60 offen sc1")
    E(f"buffer_load_dwordx4 v[24:27], v9, s[{SRD_WS}:{SRD_WS+3}], s60 offen offset:1024 sc1")
    E("s_branch K_gpoll")
    L("K_gok")
    for (src, dst) in [(12, 32), (24, 36)]:
        for hh in range(2):
            E(f"v_lshlrev_b32 v{dst+2*hh}, 16, v{src+hh}")
            E(f"v_and_b32 v{dst+2*hh+1}, s43, v{src+hh}")
        for e in range(4):
            E(f"v_sub_f32 v40, 1.0, v{dst+e}")
            E(f"v_cvt_pk_bf16_f32 v{dst+e}, v{dst+e}, v40")
    E("ds_write_b128 v10, v[32:35]")
    E("ds_write_b128 v10, v[36:39] offset:1024")
    post(6)
    E("s_mov_b32 s73, 0")
    if FINPRIO:
        E(f"s_setprio {FINPRIO}")
    L("K_fin")
    E("v_subrev_u32 v16, 16, v1")
    E("v_add_u32 v17, 47, v1")
    E("v_cmp_eq_u32 vcc, 0, v1")
    E("s_nop 1")
    E("v_cndmask_b32 v17, v17, -1, vcc")
    E("v_cmp_gt_u32 vcc, 16, v1")
    E("s_lshl_b32 s74, s73, 6")
    E("s_nop 0")
    E("v_cndmask_b32 v16, v16, v17, vcc")
    E("v_add_u32 v16, s74, v16")
    E("v_add_u32 v22, s74, v1")
    E("v_add_u32 v6, s74, v6")
    E("s_lshl_b32 s70, s67, 2")
    E(f"s_add_u32 s70, s70, {PB + 16}")
    E("v_lshl_add_u32 v18, v22, 4, s70")
    E("s_add_u32 s70, s67, 2")
    E("s_and_b32 s70, s70, 3")
    E("s_lshl_b32 s70, s70, 2")
    E(f"s_add_u32 s70, s70, {PB + 16 + PMS}")
    E("s_cmp_lt_u32 s67, 2")
    E("s_cselect_b64 vcc, -1, 0")
    E("v_cndmask_b32 v17, v22, v16, vcc")
    E("v_lshl_add_u32 v19, v17, 4, s70")
    E("s_lshr_b32 s70, s67, 1")
    E(f"s_mul_i32 s70, s70, {PCS}")
    E(f"s_add_u32 s70, s70, {PB + 4*PMS + 16}")
    E("v_lshl_add_u32 v20, v16, 2, s70")
    E("s_and_b32 s70, s67, 1")
    E("s_cmp_eq_u32 s70, 0")
    E("s_cselect_b64 vcc, -1, 0")
    E("s_cselect_b32 s75, 256, 0")
    E(f"v_mov_b32 v17, {PB + 4*PMS}")
    E("v_cndmask_b32 v20, v17, v20, vcc")
    E(f"s_mul_i32 s70, s67, {ZROW}")
    E("v_lshl_add_u32 v21, v6, 1, s70")
    E("s_lshl_b32 s70, s67, 10")
    E("v_lshl_add_u32 v22, v6, 12, s70")
    E("s_lshl_b32 s70, s67, 2")
    E(f"s_add_u32 s70, s70, {GB}")
    E("v_lshl_add_u32 v7, v6, 4, s70")
    E("s_lshl_b32 s70, s73, 5")
    E(f"s_add_u32 s70, s70, {FLG}")
    E("v_mov_b32 v23, s70")
    E("s_lshl_b32 s72, s64, 2")
    E("s_lshl_b32 s76, s23, 16")
    E("s_and_b32 s77, s23, s43")
    E("s_lshl_b32 s78, s42, 16")
    E("s_and_b32 s79, s42, s43")
    E("s_sub_u32 s74, 8, s68")
    waitf(6, 4, 8, 32)
    L("K_hloop")
    for r in range(48, 52):
        E(f"v_mov_b32 v{r}, 0")
    for k in range(4):
        E(f"ds_read_u16_d16_hi v{48+k}, v21 offset:{ZBASE + 4*k*ZROW + 128}")
    E("ds_read_b32 v8, v7")
    L("K_hpoll")
    E("ds_read_b128 v[32:35], v23")
    E("ds_read_b128 v[36:39], v23 offset:16")
    E("s_waitcnt lgkmcnt(0)")
    for k in range(0, 8, 2):
        E(f"v_and_b32 v{32+k}, v{32+k}, v{33+k}")
    E("v_and_b32 v32, v32, v34")
    E("v_and_b32 v36, v36, v38")
    E("v_and_b32 v32, v32, v36")
    E("s_nop 0")
    E("v_readfirstlane_b32 s70, v32")
    E("s_cmp_eq_u32 s70, 1")
    E("s_cbranch_scc1 K_go")
    E("s_sleep 3")
    E("s_branch K_hpoll")
    L("K_go")
    for k in range(4):
        X, c = k >> 1, k & 1
        base = PSTRIDE if X == 0 else 0
        E(f"ds_read_b32 v{32+k}, v18 offset:{base + 2*c*PMS}")
        E(f"ds_read_b32 v{36+k}, v19 offset:{base + 2*c*PMS}")
        E(f"ds_read_b32 v{40+k}, v20 offset:{base + 2*c*PCS}")
    def rnd(a, b):
        E(f"v_cvt_pk_bf16_f32 v{a}, v{a}, v{b}")
        E(f"v_and_b32 v{b}, s43, v{a}")
        E(f"v_lshlrev_b32 v{a}, 16, v{a}")
    yA0, yA1, yB0, yB1 = 32, 33, 34, 35
    u0, u1, k0, k1 = 48, 49, 50, 51
    t = 52
    E(f"v_mul_f32 v{t}, s76, v{u0}")
    E(f"v_mul_f32 v{t+1}, s77, v{u1}")
    E(f"v_mul_f32 v{t+2}, s78, v{k0}")
    E(f"v_mul_f32 v{t+3}, s79, v{k1}")
    rnd(t, t + 1)
    rnd(t + 2, t + 3)
    E(f"v_lshlrev_b32 v{t+4}, 16, v8")
    E(f"v_and_b32 v{t+5}, s43, v8")
    E("v_add_u32 v18, 1024, v18")
    E("v_add_u32 v19, 1024, v19")
    E("v_add_u32 v20, s75, v20")
    E("v_add_u32 v21, 128, v21")
    E("v_add_u32 v23, 32, v23")
    E("v_add_u32 v7, 1024, v7")
    for k in range(4):
        E(f"s_waitcnt lgkmcnt({9-3*k})")
        E(f"v_add_f32 v{32+k}, v{32+k}, v{36+k}")
        E(f"v_add_f32 v{32+k}, v{32+k}, v{40+k}")
    rnd(yA0, yA1)
    rnd(yB0, yB1)
    E(f"v_add_f32 v{yA0}, v{yA0}, v{t}")
    E(f"v_add_f32 v{yA1}, v{yA1}, v{t+1}")
    E(f"v_add_f32 v{yB0}, v{yB0}, v{t+2}")
    E(f"v_add_f32 v{yB1}, v{yB1}, v{t+3}")
    rnd(yA0, yA1)
    rnd(yB0, yB1)
    E(f"v_mul_f32 v{yB0}, v{u0}, v{yB0}")
    E(f"v_mul_f32 v{yB1}, v{u1}, v{yB1}")
    rnd(yB0, yB1)
    E(f"v_mul_f32 v{yA0}, v{t+4}, v{yA0}")
    E(f"v_mul_f32 v{yA1}, v{t+4}, v{yA1}")
    E(f"v_mul_f32 v{yB0}, v{t+5}, v{yB0}")
    E(f"v_mul_f32 v{yB1}, v{t+5}, v{yB1}")
    rnd(yA0, yA1)
    rnd(yB0, yB1)
    E(f"v_add_f32 v{yA0}, v{yA0}, v{yB0}")
    E(f"v_add_f32 v{yA1}, v{yA1}, v{yB1}")
    E(f"v_cvt_pk_bf16_f32 v{yA0}, v{yA0}, v{yA1}")
    E(f"buffer_store_dword v{yA0}, v22, s[{SRD_OUT}:{SRD_OUT+3}], s72 offen")
    E("v_add_u32 v22, 0x40000, v22")
    E("s_add_u32 s73, s73, 1")
    E("s_cmp_lt_u32 s73, s74")
    E("s_cbranch_scc1 K_hloop")
    STAMP(7)
    if DBG: E("s_waitcnt vmcnt(0)")
    STAMP(8)
    if "--pro" in sys.argv:
        E("s_waitcnt lgkmcnt(0)")
        for i in range(3, 8): E(f"s_mov_b32 s{80+2*i}, s{1+i}")
    DUMP(10, SRD_WS)
    L("K_end")
    E("s_endpgm")
    sg = 102 if DBG else 80
    return f""".amdhsa_kernel {name}
  .amdhsa_next_free_vgpr 256
  .amdhsa_next_free_sgpr {sg}
  .amdhsa_accum_offset 256
  .amdhsa_group_segment_fixed_size 0
  .amdhsa_kernarg_size 152
  .amdhsa_user_sgpr_count 2
  .amdhsa_user_sgpr_kernarg_segment_ptr 1
  .amdhsa_system_sgpr_workgroup_id_x 1
  .amdhsa_float_denorm_mode_32 3
.end_amdhsa_kernel"""

def main():
    hdr = HEADER.rstrip("\n")
    pre = [hdr,
           f"; @launch grid=(256,1,1) block=(512,1,1) lds={LDS_SIZE}",
           '.amdgcn_target "amdgcn-amd-amdhsa--gfx950"',
           ".text"]
    k = gen()
    txt = "\n".join(pre + out) + '\n.section .rodata,"a"\n.p2align 6\n' + k + "\n"
    args = [a for a in sys.argv[1:] if not a.startswith("--")]
    path = args[0] if args else "cdna_kernels/%s.s" % NAME
    open(path, "w").write(txt)

main()
```

```python
import sys

NAME = "gated_mix__ssm_conv_s4__ssm_conv_h3__prompt"
HEADER = open("cdna_kernels/%s.s.ref" % NAME).read().split("; Override launch")[0]
DBG = "--dbg" in sys.argv
def opt(name, default):
    for a in sys.argv:
        if a.startswith("--" + name + "="):
            return int(a.split("=")[1])
    return default
NA = 8
NB = 8 - NA
FINPRIO = opt("finprio", 1)
PSLEEP = opt("psleep", 8)
CBPRIO = opt("cbprio", 1)
APRIO = opt("aprio", 2)
POLLSC = ["sc1", "sc0 sc1", "sc1 nt"][opt("pollsc", 1)]

out = []
def E(s=""):
    out.append("    " + s)
def L(s):
    out.append(s + ":")

WS_Z = 0
WS_G = 4 << 20
WS_F = WS_G + 8192
WS_SIZE = (4 << 20) + 16384
WS_DBG = 16 << 20
if DBG:
    WS_SIZE = 32 << 20

ZROW = 1152
ZBASE = 0
XBASE = 16 * ZROW
XROW = 4128
GB = XBASE + 6 * XROW
FLG = GB + 8192
SYN = FLG + 256
PMS = 8192 + 16
PCS = 2048 + 16
PB = SYN + 256
PA = PB + 4 * PMS + 4 * PCS
PSTRIDE = PA - PB
S_KT = PA
S_P = S_KT + 24576
S_TR = S_P + 16384
LDS_SIZE = S_TR + 8 * 3072
assert LDS_SIZE <= 163840 and PA + PSTRIDE <= LDS_SIZE
def PMa(X, w4):
    return (PA if X == 0 else PB) + w4 * PMS
def PCa(X, w4):
    return (PA if X == 0 else PB) + 4 * PMS + w4 * PCS

def STAMP(i):
    if DBG:
        E(f"s_memtime s[{80+2*i}:{81+2*i}]")
def DUMP(n, srdreg):
    if DBG:
        E("s_waitcnt lgkmcnt(0)")
        E("s_mov_b64 exec, 1")
        E("s_lshl_b32 s100, s2, 4")
        E("s_add_u32 s100, s100, s3")
        E("s_lshl_b32 s100, s100, 6")
        E(f"s_add_u32 s100, s100, {WS_DBG}")
        for i in range(n):
            E(f"v_mov_b32 v2, s{80+2*i}")
            E(f"v_mov_b32 v3, {4*i}")
            E(f"buffer_store_dword v2, v3, s[{srdreg}:{srdreg+3}], s100 offen")
            E("s_nop 1")

def srd(sd, sp, nbytes):
    E(f"s_mov_b32 s{sd}, s{sp}")
    E(f"s_and_b32 s{sd+1}, s{sp+1}, 0xffff")
    E(f"s_mov_b32 s{sd+2}, {hex(nbytes)}")
    E(f"s_mov_b32 s{sd+3}, 0x00020000")
def R4(r):
    return f"v[{r}:{r+3}]"
SRD_WS, SRD_OUT, SRD_DBGB, SRD_A, SRD_B = 44, 48, 52, 56, 60

lblc = [0]
def post(kind):
    E(f"ds_write_b32 v28, v29 offset:{32*kind}")
def waitf(kind, lo, hi, t0=24):
    lblc[0] += 1
    n = lblc[0]
    L(f"W{n}_p")
    if hi - lo == 4:
        E(f"ds_read_b128 v[{t0}:{t0+3}], v30 offset:{32*kind + 4*lo}")
        E("s_waitcnt lgkmcnt(0)")
        E(f"v_and_b32 v{t0}, v{t0}, v{t0+1}")
        E(f"v_and_b32 v{t0+2}, v{t0+2}, v{t0+3}")
        E(f"v_and_b32 v{t0}, v{t0}, v{t0+2}")
    else:
        E(f"ds_read_b128 v[{t0}:{t0+3}], v30 offset:{32*kind}")
        E(f"ds_read_b128 v[{t0+4}:{t0+7}], v30 offset:{32*kind + 16}")
        E("s_waitcnt lgkmcnt(0)")
        for k in range(0, 8, 2):
            E(f"v_and_b32 v{t0+k}, v{t0+k}, v{t0+k+1}")
        E(f"v_and_b32 v{t0}, v{t0}, v{t0+2}")
        E(f"v_and_b32 v{t0+4}, v{t0+4}, v{t0+6}")
        E(f"v_and_b32 v{t0}, v{t0}, v{t0+4}")
    E("s_nop 0")
    E(f"v_readfirstlane_b32 s70, v{t0}")
    E("s_cmp_eq_u32 s70, 1")
    E(f"s_cbranch_scc1 W{n}_d")
    E("s_sleep 1")
    E(f"s_branch W{n}_p")
    L(f"W{n}_d")

def gen():
    name = NAME + "_kernel"
    out.append(f".globl {name}\n.p2align 8\n.type {name},@function")
    L(name)
    E("s_cmp_ge_u32 s2, 256")
    E("s_cbranch_scc1 K_end")
    STAMP(0)
    if "--probe" in sys.argv:
        E("s_memtime s[84:85]")
        E("s_memrealtime s[86:87]")
    E("s_setprio 3")
    E("s_load_dwordx16 s[4:19], s[0:1], 0")
    E("s_load_dwordx2 s[20:21], s[0:1], 64")
    E("s_load_dwordx8 s[24:31], s[0:1], 80")
    E("s_load_dwordx8 s[32:39], s[0:1], 112")
    E("s_load_dwordx2 s[40:41], s[0:1], 144")
    E("v_lshrrev_b32 v1, 6, v0")
    E("s_nop 0")
    E("v_readfirstlane_b32 s3, v1")
    E("v_and_b32 v1, 63, v0")
    E("s_and_b32 s64, s2, 7")
    E("s_lshl_b32 s65, s64, 2")
    E("s_lshl_b32 s64, s64, 5")
    E("s_lshr_b32 s66, s2, 3")
    E("s_add_u32 s64, s64, s66")
    E("s_and_b32 s66, s66, 3")
    E("s_add_u32 s65, s65, s66")
    E("s_lshr_b32 s66, s2, 5")
    E("s_and_b32 s67, s3, 3")
    E("s_lshr_b32 s68, s3, 2")
    E("s_bfe_u32 s69, s3, 0x10001")
    E("v_mov_b32 v12, 0")
    E("v_mov_b32 v13, 0")
    E("v_mov_b32 v14, 0")
    E("v_mov_b32 v15, 0")
    E("v_and_b32 v2, 31, v1")
    E("v_lshlrev_b32 v2, 4, v2")
    E(f"ds_write_b128 v2, v[12:15] offset:{FLG}")
    E("s_lshl_b32 s70, s3, 2")
    E(f"s_add_u32 s70, s70, {SYN}")
    E("v_mov_b32 v28, s70")
    E("v_mov_b32 v29, 1")
    E("v_mov_b32 v95, 0")
    E(f"v_mov_b32 v30, {SYN}")
    E("s_lshl_b32 s70, s65, 6")
    E("s_add_u32 s70, s70, s67")
    E("s_lshl_b32 s70, s70, 10")
    E("s_lshl_b32 s71, s66, 7")
    E("s_add_u32 s70, s70, s71")
    E("v_lshrrev_b32 v2, 3, v1")
    E("v_and_b32 v3, 7, v1")
    E("v_lshlrev_b32 v4, 12, v2")
    E("v_lshl_add_u32 v4, v3, 4, v4")
    E("v_add_u32 v4, s70, v4")
    E("v_subrev_u32 v5, 1024, v4")
    E("v_subrev_u32 v6, 2048, v4")
    E("v_subrev_u32 v7, 3072, v4")
    E("s_lshl_b32 s71, s66, 9")
    E("v_lshl_add_u32 v8, v3, 6, s71")
    E("s_lshl_b32 s72, s65, 6")
    E("s_lshl_b32 s71, s66, 3")
    E("s_add_u32 s72, s72, s71")
    E("s_lshl_b32 s71, s67, 1")
    E("s_add_u32 s72, s72, s71")
    E("s_lshl_b32 s73, s72, 10")
    E("v_lshlrev_b32 v9, 4, v1")
    E("s_and_b32 s74, s3, 1")
    E(f"s_mul_i32 s75, s74, {8*NA}")
    E(f"s_mul_i32 s76, s74, {8*NB}")
    E(f"s_add_u32 s76, s76, {16*NA}")
    E("s_cmp_eq_u32 s68, 0")
    E("s_cselect_b32 s75, s75, s76")
    E("s_lshl_b32 s70, s64, 1")
    E("s_add_u32 s70, s70, s69")
    E("s_lshl_b32 s70, s70, 7")
    E("s_add_u32 s70, s70, s75")
    E("s_lshl_b32 s70, s70, 1")
    E("v_lshl_add_u32 v11, v1, 1, s70")
    if "--pro" in sys.argv: STAMP(3)
    E("s_waitcnt lgkmcnt(0)")
    if "--pro" in sys.argv: STAMP(4)
    E("s_barrier")
    E("s_cmp_eq_u32 s68, 0")
    E("s_cbranch_scc1 K_noTL")
    srd(SRD_A, 24, 2 << 20)
    srd(SRD_B, 26, 2 << 20)
    E("s_mov_b32 s70, 0x8000")
    E(f"buffer_load_dwordx4 v[12:15], v4, s[{SRD_A}:{SRD_A+3}], 0 offen")
    E(f"buffer_load_dwordx4 v[16:19], v5, s[{SRD_A}:{SRD_A+3}], 0 offen")
    E(f"buffer_load_dwordx4 v[20:23], v6, s[{SRD_A}:{SRD_A+3}], 0 offen")
    E(f"buffer_load_dwordx4 v[24:27], v7, s[{SRD_A}:{SRD_A+3}], 0 offen")
    E(f"buffer_load_dwordx4 v[96:99], v4, s[{SRD_B}:{SRD_B+3}], 0 offen")
    srd(SRD_WS, 28, 4096)
    srd(SRD_OUT, 4, 2 << 20)
    for i in range(4):
        E(f"buffer_load_dwordx4 v[{40+4*i}:{43+4*i}], v8, s[{SRD_WS}:{SRD_WS+3}], 0 offen offset:{16*i}")
    E(f"buffer_load_dwordx4 v[32:35], v4, s[{SRD_OUT}:{SRD_OUT+3}], 0 offen")
    E("v_add_u32 v4, s70, v4")
    E(f"buffer_load_dwordx4 v[128:131], v4, s[{SRD_A}:{SRD_A+3}], 0 offen")
    E("v_subrev_u32 v5, 1024, v4")
    E(f"buffer_load_dwordx4 v[132:135], v5, s[{SRD_A}:{SRD_A+3}], 0 offen")
    E("v_subrev_u32 v6, 2048, v4")
    E(f"buffer_load_dwordx4 v[136:139], v6, s[{SRD_A}:{SRD_A+3}], 0 offen")
    E("v_subrev_u32 v7, 3072, v4")
    E(f"buffer_load_dwordx4 v[140:143], v7, s[{SRD_A}:{SRD_A+3}], 0 offen")
    E(f"buffer_load_dwordx4 v[144:147], v4, s[{SRD_B}:{SRD_B+3}], 0 offen")
    E(f"buffer_load_dwordx4 v[148:151], v4, s[{SRD_OUT}:{SRD_OUT+3}], 0 offen")
    E(f"buffer_load_dwordx4 v[56:59], v9, s[{SRD_OUT}:{SRD_OUT+3}], s73 offen")
    E(f"buffer_load_dwordx4 v[152:155], v9, s[{SRD_OUT}:{SRD_OUT+3}], s73 offen offset:1024")
    srd(SRD_A, 34, 1024)
    E(f"buffer_load_dwordx4 v[60:63], v9, s[{SRD_A}:{SRD_A+3}], 0 offen")
    E("s_branch K_noPL")
    L("K_noTL")
    for i, sp in enumerate([6, 8, 10, 12, 14, 16]):
        sd = SRD_A if i % 2 == 0 else SRD_B
        srd(sd, sp, 131072)
        E(f"buffer_load_ushort v{84+i}, v11, s[{sd}:{sd+3}], 0 offen")
    L("K_noPL")
    srd(SRD_A, 30, 2 << 20)
    E("s_lshl_b32 s70, s64, 13")
    E("s_lshl_b32 s71, s3, 10")
    E("s_add_u32 s70, s70, s71")
    E(f"s_mul_i32 s71, s68, {XROW}")
    E("s_lshl_b32 s74, s67, 10")
    E("s_add_u32 s71, s71, s74")
    E(f"s_add_u32 s71, s71, {XBASE + 4*XROW + 32}")
    E("s_mov_b32 m0, s71")
    E("s_lshl_b32 s74, s64, 2")
    E(f"buffer_load_dwordx4 v9, s[{SRD_A}:{SRD_A+3}], s70 offen lds")
    if "--pro" in sys.argv: STAMP(6)
    E("s_load_dword s22, s[18:19], s74")
    E("s_load_dword s23, s[20:21], s74")
    E("s_load_dword s42, s[32:33], s74")
    srd(SRD_WS, 40, WS_SIZE)
    srd(SRD_OUT, 36, 2 << 20)
    srd(SRD_DBGB, 38, 256)
    E("s_mov_b32 s43, 0xffff0000")
    E("s_and_b32 s61, s3, 1")
    E("s_lshl_b32 s70, s2, 3")
    E("s_add_u32 s70, s70, s3")
    E("s_cmp_lg_u32 s70, 4")
    E("s_cbranch_scc1 K_nononce")
    E("s_memrealtime s[70:71]")
    E("s_waitcnt lgkmcnt(0)")
    E("s_or_b32 s70, s70, 1")
    E("v_mov_b32 v100, s70")
    E("v_mov_b32 v101, s71")
    E("v_mov_b32 v102, 0")
    E("s_mov_b64 exec, 1")
    E(f"buffer_store_dwordx2 v[100:101], v102, s[{SRD_DBGB}:{SRD_DBGB+3}], 0 offen sc1")
    E("s_mov_b64 exec, -1")
    E("s_waitcnt vmcnt(0)")
    L("K_nononce")
    if "--pro" in sys.argv:
        STAMP(7)
        E("s_waitcnt lgkmcnt(0)")
        for i in range(3, 8): E(f"s_mov_b32 s{1+i}, s{80+2*i}")
    E("s_cmp_eq_u32 s68, 0")
    E("s_cbranch_scc1 K_kgen")
    E("s_mul_i32 s70, s3, 3072")
    E(f"s_add_u32 s70, s70, {S_TR}")
    E("v_mul_u32_u24 v64, 144, v2")
    E("v_lshl_add_u32 v64, v3, 4, v64")
    E("v_add_u32 v64, s70, v64")
    E("v_lshrrev_b32 v66, 4, v1")
    E("v_and_b32 v67, 1, v66")
    E("v_lshrrev_b32 v66, 1, v66")
    E("v_bfe_u32 v68, v1, 2, 2")
    E("v_and_b32 v69, 3, v1")
    E("v_mul_u32_u24 v65, 1152, v67")
    E("v_mul_u32_u24 v68, 144, v68")
    E("v_add_u32 v65, v65, v68")
    E("v_lshl_add_u32 v65, v66, 5, v65")
    E("v_lshl_add_u32 v65, v69, 3, v65")
    E("v_add_u32 v65, s70, v65")
    E("v_and_b32 v68, 15, v1")
    E("v_lshl_add_u32 v68, v66, 4, v68")
    E("v_lshrrev_b32 v69, 1, v68")
    E("v_and_b32 v68, 1, v68")
    E("v_lshlrev_b32 v69, 14, v69")
    E("v_lshl_add_u32 v69, v68, 4, v69")
    E("v_lshl_add_u32 v69, v67, 5, v69")
    E("s_lshl_b32 s70, s66, 19")
    E("s_lshl_b32 s71, s65, 9")
    E("s_add_u32 s70, s70, s71")
    E("s_lshl_b32 s71, s67, 7")
    E("s_add_u32 s70, s70, s71")
    E("s_add_u32 s71, s70, 0x40000")
    E("s_mov_b32 s62, 0")
    E("s_mov_b32 s76, 0x00003f80")
    E("s_mov_b32 s77, 0x3f800000")
    E("s_mov_b32 s78, 0x0000ffff")
    E("s_mov_b32 s79, 0x3f803f80")
    E("s_waitcnt vmcnt(11)")
    STAMP(1)
    for t in range(4):
        for i in range(4):
            r0 = 40 + 4 * i + (t >> 1)
            r1 = 40 + 4 * i + 2 + (t >> 1)
            d = 160 + (t * 4 + i) * 2
            if t & 1:
                E(f"v_lshrrev_b32 v{d}, 16, v{r0}")
                E(f"v_and_b32 v{d+1}, s43, v{r1}")
            else:
                E(f"v_and_b32 v{d}, s78, v{r0}")
                E(f"v_lshlrev_b32 v{d+1}, 16, v{r1}")
    L("K_tloop")
    for t in range(4):
        for i in range(4):
            kr = 12 + 4 * t + i
            d = 160 + (t * 4 + i) * 2
            E(f"v_dot2_f32_bf16 v{208+2*i}, v{kr}, v{d}, 0")
            E(f"v_dot2_f32_bf16 v{209+2*i}, v{kr}, v{d+1}, 0")
        E("s_nop 0")
        for i in range(4):
            E(f"v_cvt_pk_bf16_f32 v{192+4*t+i}, v{208+2*i}, v{209+2*i}")
    cur = 192 + 12
    for t in (2, 1, 0):
        for i in range(4):
            E(f"v_lshlrev_b32 v{208+2*i}, 16, v{cur+i}")
            E(f"v_and_b32 v{209+2*i}, s43, v{cur+i}")
        for i in range(4):
            E(f"v_dot2_f32_bf16 v{208+2*i}, v{192+4*t+i}, s76, v{208+2*i}")
            E(f"v_dot2_f32_bf16 v{209+2*i}, v{192+4*t+i}, s77, v{209+2*i}")
        E("s_nop 0")
        for i in range(4):
            E(f"v_cvt_pk_bf16_f32 v{cur+i}, v{208+2*i}, v{209+2*i}")
    for i in range(4):
        E(f"v_and_b32 v{216+2*i}, s78, v{96+i}")
        E(f"v_and_b32 v{217+2*i}, s43, v{96+i}")
    for i in range(4):
        E(f"v_dot2_f32_bf16 v{208+2*i}, v{cur+i}, v{216+2*i}, 0")
        E(f"v_dot2_f32_bf16 v{209+2*i}, v{cur+i}, v{217+2*i}, 0")
    E("s_nop 0")
    for i in range(4):
        E(f"v_cvt_pk_bf16_f32 v{36+i}, v{208+2*i}, v{209+2*i}")
    E("ds_write_b128 v64, v[36:39] offset:1152")
    E("s_cmp_eq_u32 s62, 0")
    E("s_cbranch_scc0 K_tw1")
    E("s_waitcnt vmcnt(10)")
    L("K_tw1")
    E("ds_write_b128 v64, v[32:35]")
    E("s_waitcnt lgkmcnt(0)")
    E("ds_read_b64_tr_b16 v[76:77], v65")
    E("ds_read_b64_tr_b16 v[78:79], v65 offset:576")
    E("ds_read_b64_tr_b16 v[80:81], v65 offset:64")
    E("ds_read_b64_tr_b16 v[82:83], v65 offset:640")
    E("s_waitcnt lgkmcnt(2)")
    E(f"buffer_store_dwordx4 v[76:79], v69, s[{SRD_WS}:{SRD_WS+3}], s70 offen sc1")
    E("s_waitcnt lgkmcnt(0)")
    E(f"buffer_store_dwordx4 v[80:83], v69, s[{SRD_WS}:{SRD_WS+3}], s71 offen sc1")
    E("s_cmp_eq_u32 s62, 1")
    E("s_cbranch_scc1 K_tdone")
    E("s_mov_b32 s62, 1")
    E("s_add_u32 s70, s70, 64")
    E("s_add_u32 s71, s71, 64")
    E("s_waitcnt vmcnt(6)")
    for i in range(16):
        E(f"v_mov_b32 v{12+i}, v{128+i}")
    for i in range(4):
        E(f"v_mov_b32 v{96+i}, v{144+i}")
        E(f"v_mov_b32 v{32+i}, v{148+i}")
    E("s_branch K_tloop")
    L("K_tdone")
    E("v_mov_b32 v95, 0")
    E(f"buffer_load_dwordx2 v[92:93], v95, s[{SRD_DBGB}:{SRD_DBGB+3}], 0 offen sc1")
    E("s_mov_b32 s62, 0")
    E("s_waitcnt vmcnt(6)")
    for i in range(4):
        E(f"v_and_b32 v{216+2*i}, s78, v{60+i}")
        E(f"v_and_b32 v{217+2*i}, s43, v{60+i}")
    L("K_gloop")
    for i in range(4):
        E(f"v_dot2_f32_bf16 v{208+2*i}, v{56+i}, v{216+2*i}, 0")
        E(f"v_dot2_f32_bf16 v{209+2*i}, v{56+i}, v{217+2*i}, 0")
    E("s_nop 0")
    for i in range(4):
        E(f"v_cvt_pk_bf16_f32 v{192+i}, v{208+2*i}, v{209+2*i}")
    for i in range(4):
        E(f"v_dot2_f32_bf16 v{208+i}, v{192+i}, s79, 0")
    E("s_nop 2")
    E("v_add_f32 v208, v208, v209")
    E("v_add_f32 v210, v210, v211")
    E("v_add_f32 v74, v208, v210")
    for dpp in ["row_shr:1", "row_shr:2", "row_shr:4", "row_shr:8"]:
        E("s_nop 1")
        E(f"v_add_f32_dpp v74, v74, v74 {dpp} row_mask:0xf bank_mask:0xf bound_ctrl:0")
    E("s_nop 1")
    E("v_add_f32_dpp v74, v74, v74 row_bcast:15 row_mask:0xa bank_mask:0xf")
    E("s_nop 1")
    E("v_add_f32_dpp v74, v74, v74 row_bcast:31 row_mask:0xc bank_mask:0xf")
    E("s_nop 1")
    E("v_cvt_pk_bf16_f32 v74, v74, v74")
    E("v_lshlrev_b32 v74, 16, v74")
    E("v_mul_f32 v74, 0xbfb8aa3b, v74")
    E("v_exp_f32 v74, v74")
    E("s_nop 0")
    E("v_add_f32 v74, 1.0, v74")
    E("v_rcp_f32 v74, v74")
    E("s_nop 0")
    E("v_cvt_pk_bf16_f32 v74, v74, v74")
    E("s_lshl_b32 s72, s67, 1")
    E("s_add_u32 s72, s72, s62")
    E("s_lshl_b32 s72, s72, 1")
    E(f"s_add_u32 s72, s72, {SYN + 224}")
    E("v_mov_b32 v75, s72")
    E("v_cmp_eq_u32 vcc, 63, v1")
    E("s_and_saveexec_b64 s[74:75], vcc")
    E("ds_write_b16 v75, v74")
    E("s_mov_b64 exec, s[74:75]")
    E("s_cmp_eq_u32 s62, 1")
    E("s_cbranch_scc1 K_bwave")
    E("s_mov_b32 s62, 1")
    for i in range(4):
        E(f"v_mov_b32 v{56+i}, v{152+i}")
    E("s_branch K_gloop")
    L("K_kgen")
    E(f"s_setprio {APRIO}")
    STAMP(2)
    E("v_and_b32 v20, 15, v1")
    E("v_lshrrev_b32 v21, 4, v1")
    E("v_lshrrev_b32 v22, 3, v20")
    E("v_and_b32 v23, 7, v20")
    E("v_lshl_add_u32 v22, v22, 7, v23")
    E("v_cvt_f32_u32 v24, v22")
    E("s_mov_b32 s74, 0x02040200")
    E("s_mov_b32 s75, 0x06000400")
    E("s_mov_b32 s76, 0x01800100")
    E("s_mov_b32 s77, 0x0a000800")
    E("s_mov_b32 s78, 0x00020002")
    E("s_mov_b32 s79, 0x00800080")
    E("v_lshrrev_b32 v22, 2, v20")
    E("v_lshlrev_b32 v22, 4, v22")
    E("v_and_b32 v23, 3, v20")
    E("v_lshrrev_b64 v[32:33], v22, s[74:75]")
    E("v_and_b32 v32, 0xffff, v32")
    E("v_lshl_add_u32 v32, v23, 7, v32")
    E("v_cvt_f32_u32 v25, v32")
    E("v_lshrrev_b32 v33, 7, v32")
    E("v_and_b32 v32, 127, v32")
    E("v_cvt_f32_u32 v16, v33")
    E("v_cvt_f32_u32 v17, v32")
    E("v_lshrrev_b64 v[32:33], v22, s[76:77]")
    E("v_and_b32 v32, 0xffff, v32")
    E("v_lshrrev_b64 v[34:35], v22, s[78:79]")
    E("v_and_b32 v34, 0xffff, v34")
    E("v_mad_u32_u24 v32, v23, v34, v32")
    E("v_cvt_f32_u32 v26, v32")
    E("v_lshrrev_b32 v33, 7, v32")
    E("v_and_b32 v32, 127, v32")
    E("v_cvt_f32_u32 v18, v33")
    E("v_cvt_f32_u32 v19, v32")
    E("v_lshlrev_b32 v22, 3, v20")
    E("v_cvt_f32_u32 v27, v22")
    E("s_waitcnt lgkmcnt(0)")
    E("s_lshl_b32 s70, s22, 16")
    E("s_and_b32 s22, s22, s43")
    E("s_cmp_eq_u32 s69, 0")
    E("s_cselect_b32 s22, s70, s22")
    E("v_mov_b32 v40, 0x3fb8aa3b")
    E("v_mul_f32 v41, s22, v40")
    E("v_exp_f32 v41, v41")
    E("s_nop 0")
    E("v_cvt_pk_bf16_f32 v41, v41, v41")
    E("v_lshlrev_b32 v41, 16, v41")
    E("s_waitcnt vmcnt(1)")
    for i in range(6):
        E(f"v_lshlrev_b32 v{84+i}, 16, v{84+i}")
    E("v_mul_f32 v84, v41, v84")
    E("v_mul_f32 v85, v41, v85")
    E("v_mul_f32 v86, v41, v86")
    E("v_mul_f32 v87, v41, v87")
    E("v_mul_f32 v44, v40, v84")
    E("v_mul_f32 v45, 0.15915494, v85")
    E("v_rndne_f32 v46, v45")
    E("v_sub_f32 v45, v45, v46")
    E("v_mul_f32 v46, 0x43000000, v45")
    E("v_rndne_f32 v47, v46")
    E("v_sub_f32 v46, v46, v47")
    E("v_mul_f32 v90, v88, v86")
    E("v_fma_f32 v90, -v89, v87, v90")
    E("v_mul_f32 v91, v88, v87")
    E("v_fma_f32 v91, v89, v86, v91")
    E("s_lshl_b32 s70, s3, 11")
    E(f"s_add_u32 s70, s70, {S_P}")
    E("v_lshl_add_u32 v42, v1, 5, s70")
    E("ds_write_b128 v42, v[44:47]")
    E("ds_write_b64 v42, v[90:91] offset:16")
    E("v_lshl_add_u32 v43, v21, 6, s70")
    for r in range(48, 60):
        E(f"v_mov_b32 v{r}, 0")
    E("s_waitcnt lgkmcnt(0)")
    E("ds_read_b128 v[60:63], v43")
    E("ds_read_b64 v[64:65], v43 offset:16")
    E("ds_read_b128 v[136:139], v43 offset:32")
    E("ds_read_b64 v[140:141], v43 offset:48")
    E("s_mov_b32 s62, 0")
    E(f"s_mov_b32 s63, {NA}")
    L("K_loop")
    E("s_waitcnt lgkmcnt(0)")
    for r in range(12):
        E(f"v_mov_b32 v{68+r}, v{(60 if r < 6 else 136 - 6) + r}")
    E("v_add_u32 v43, 256, v43")
    E("ds_read_b128 v[60:63], v43")
    E("ds_read_b64 v[64:65], v43 offset:16")
    E("ds_read_b128 v[136:139], v43 offset:32")
    E("ds_read_b64 v[140:141], v43 offset:48")
    for nn in range(2):
        zr, zi, w128, cbr, cbi = 68 + 6 * nn, 69 + 6 * nn, 70 + 6 * nn, 72 + 6 * nn, 73 + 6 * nn
        T = [96, 100, 104, 108]
        E(f"v_mul_f32 v{T[3]}, v{zr}, v27")
        E(f"v_mul_f32 v{T[3]+1}, v{zi}, v27")
        E(f"v_mul_f32 v{T[0]}, v{zr}, v24")
        E(f"v_mul_f32 v{T[0]+1}, v{zi}, v24")
        E(f"v_mul_f32 v{T[1]}, v{zr}, v25")
        E(f"v_mul_f32 v{T[1]+1}, v{zi}, v17")
        E(f"v_mul_f32 v{T[2]}, v{zr}, v26")
        E(f"v_mul_f32 v{T[2]+1}, v{zi}, v19")
        E(f"v_fma_f32 v{T[1]+1}, v{w128}, v16, v{T[1]+1}")
        E(f"v_fma_f32 v{T[2]+1}, v{w128}, v18, v{T[2]+1}")
        for t in [T[3], T[0], T[1], T[2]]:
            E(f"v_exp_f32 v{t}, v{t}")
            E(f"v_cos_f32 v{t+2}, v{t+1}")
            E(f"v_sin_f32 v{t+3}, v{t+1}")
        t = T[3]
        E(f"v_mul_f32 v{t+2}, v{t}, v{t+2}")
        E(f"v_mul_f32 v{t+3}, v{t}, v{t+3}")
        E(f"v_mul_f32 v{t}, v{cbr}, v{t+2}")
        E(f"v_mul_f32 v{t+1}, v{cbr}, v{t+3}")
        E(f"v_fma_f32 v{t}, -v{cbi}, v{t+3}, v{t}")
        E(f"v_fma_f32 v{t+3}, -v{cbi}, v{t+2}, -v{t+1}")
        E(f"v_mov_b32 v{t+2}, v{t}")
        for t in T[:3]:
            E(f"v_mul_f32 v{t+2}, v{t}, v{t+2}")
            E(f"v_mul_f32 v{t+3}, v{t}, v{t+3}")
        for k in range(4):
            t = T[k]
            hi = (112 + 2 * k + nn) if k < 3 else (124 + nn)
            lo = (118 + 2 * k + nn) if k < 3 else (126 + nn)
            E(f"v_cvt_pk_bf16_f32 v{hi}, v{t+2}, v{t+3}")
            E(f"v_lshlrev_b32 v{t}, 16, v{hi}")
            E(f"v_and_b32 v{t+1}, s43, v{hi}")
            E(f"v_sub_f32 v{t}, v{t+2}, v{t}")
            E(f"v_sub_f32 v{t+1}, v{t+3}, v{t+1}")
            E(f"v_cvt_pk_bf16_f32 v{lo}, v{t}, v{t+1}")
    E("s_add_u32 s62, s62, 1")
    E("s_cmp_eq_u32 s62, 1")
    for k in range(3):
        a_ = 48 + 4 * k
        E(f"v_mfma_f32_16x16x16_bf16 {R4(a_)}, v[{112+2*k}:{113+2*k}], v[124:125], {R4(a_)}")
        E(f"v_mfma_f32_16x16x16_bf16 {R4(a_)}, v[{112+2*k}:{113+2*k}], v[126:127], {R4(a_)}")
        E(f"v_mfma_f32_16x16x16_bf16 {R4(a_)}, v[{118+2*k}:{119+2*k}], v[124:125], {R4(a_)}")
    E("s_cbranch_scc0 K_nost")
    E("s_waitcnt vmcnt(0)")
    post(0)
    L("K_nost")
    E("s_cmp_lt_u32 s62, s63")
    E("s_cbranch_scc1 K_loop")
    E("s_waitcnt lgkmcnt(0)")
    STAMP(3)
    E("s_mul_i32 s70, s3, 3072")
    E(f"s_add_u32 s70, s70, {S_TR}")
    E("v_lshl_add_u32 v39, v1, 4, s70")
    E("v_and_b32 v4, 15, v1")
    E("v_lshrrev_b32 v5, 4, v1")
    E("v_lshlrev_b32 v6, 2, v4")
    E("v_add_u32 v6, v6, v5")
    E("s_nop 1")
    for k in range(3):
        E(f"ds_write_b128 v39, {R4(48+4*k)} offset:{1024*k}")
    post(1)
    E("s_mul_i32 s70, s69, 12288")
    E(f"s_add_u32 s70, s70, {S_KT}")
    E("v_lshlrev_b32 v32, 5, v20")
    E("v_add_u32 v32, s70, v32")
    E("v_lshlrev_b32 v22, 4, v21")
    E("v_lshrrev_b64 v[60:61], v22, s[76:77]")
    E("v_and_b32 v60, 0xffff, v60")
    E("v_lshl_add_u32 v44, v60, 2, v32")
    E("v_lshrrev_b64 v[60:61], v22, s[78:79]")
    E("v_and_b32 v60, 0xffff, v60")
    E("v_lshlrev_b32 v60, 2, v60")
    E("v_add_u32 v45, v44, v60")
    E("v_add_u32 v46, v45, v60")
    E("v_add_u32 v47, v46, v60")
    E("s_cmp_eq_u32 s61, 1")
    E("s_cbranch_scc1 K_t1")
    E("v_lshrrev_b32 v22, 1, v21")
    E("v_and_b32 v23, 1, v21")
    E("v_lshlrev_b32 v22, 9, v22")
    E("v_lshl_add_u32 v22, v23, 4, v22")
    E("v_add_u32 v35, v32, v22")
    E("v_mov_b32 v60, 4")
    E("s_branch K_t3")
    L("K_t1")
    E("v_lshrrev_b64 v[60:61], v22, s[74:75]")
    E("v_and_b32 v60, 0xffff, v60")
    E("v_lshl_add_u32 v35, v60, 2, v32")
    E("v_mov_b32 v60, 512")
    L("K_t3")
    E("v_add_u32 v36, v35, v60")
    E("v_add_u32 v37, v36, v60")
    E("v_add_u32 v38, v37, v60")
    E("s_mul_i32 s70, s69, 6144")
    E(f"s_add_u32 s70, s70, {S_TR}")
    E("v_lshl_add_u32 v39, v1, 4, s70")
    E("s_lshl_b32 s71, s61, 10")
    E("v_add_u32 v40, s71, v39")
    E("s_lshl_b32 s71, s61, 9")
    E("v_lshl_add_u32 v60, v1, 3, s71")
    E("s_mul_i32 s70, s69, 12288")
    E(f"s_add_u32 s70, s70, {S_KT}")
    for rr in range(2):
        for e in range(0, 8, 2):
            E(f"v_add_u32 v62, {e + 1024*rr}, v60")
            E(f"v_add_u32 v63, {e + 1 + 1024*rr}, v60")
            E("v_cvt_f32_u32 v62, v62")
            E("v_cvt_f32_u32 v63, v63")
            E("v_cvt_pk_bf16_f32 v62, v62, v63")
            E("v_and_b32 v63, s43, v62")
            E("v_lshlrev_b32 v62, 16, v62")
            E("v_cvt_u32_f32 v62, v62")
            E("v_cvt_u32_f32 v63, v63")
            E(f"v_lshl_add_u32 v{64+8*rr+e}, v62, 2, s70")
            E(f"v_lshl_add_u32 v{65+8*rr+e}, v63, 2, s70")
    E(f"s_mul_i32 s70, s69, {XROW}")
    E(f"s_add_u32 s70, s70, {XBASE + 32}")
    E("v_lshl_add_u32 v61, v60, 1, s70")
    waitf(1, 0, 4, 96)
    srcoff = [0, 3072]
    for k in range(2):
        E(f"ds_read_b128 {R4(96+4*k)}, v40 offset:{srcoff[k]}")
    for k in range(2):
        E(f"ds_read_b128 {R4(112+4*k)}, v39 offset:{srcoff[k] + 2048}")
    for (b, dst, w) in [(96, 35, 2), (112, 44, 0)]:
        E(f"s_waitcnt lgkmcnt({w})")
        for e in range(4):
            E(f"v_add_f32 v{b+e}, v{b+e}, v{b+4+e}")
    for (b, dst) in [(96, 35), (112, 44)]:
        for e in range(4):
            E(f"ds_write_b32 v{dst+e}, v{b+e}")
    post(2)
    waitf(2, 0, 4, 96)
    for e in range(16):
        E(f"ds_read_b32 v{96+e}, v{64+e}")
    for rr in range(2):
        for e in range(0, 8, 2):
            src = 96 + 8 * rr + e
            E(f"s_waitcnt lgkmcnt({14 - 8*rr - e})")
            E(f"v_cvt_pk_bf16_f32 v{112+8*rr+e//2}, v{src}, v{src+1}")
            E(f"v_lshlrev_b32 v62, 16, v{112+8*rr+e//2}")
            E(f"v_and_b32 v63, s43, v{112+8*rr+e//2}")
            E(f"v_sub_f32 v62, v{src}, v62")
            E(f"v_sub_f32 v63, v{src+1}, v63")
            E(f"v_cvt_pk_bf16_f32 v{116+8*rr+e//2}, v62, v63")
    for rr in range(2):
        E(f"ds_write_b128 v61, {R4(112+8*rr)} offset:{2048*rr}")
        E(f"ds_write_b128 v61, {R4(116+8*rr)} offset:{2*XROW + 2048*rr}")
    post(3)
    STAMP(4)
    E("s_branch K_csetup")
    L("K_bwave")
    STAMP(2)
    E("v_and_b32 v4, 15, v1")
    E("v_lshrrev_b32 v5, 4, v1")
    E("v_lshlrev_b32 v6, 2, v4")
    E("v_add_u32 v6, v6, v5")
    E("s_waitcnt vmcnt(0)")
    post(0)
    E("s_mov_b32 s70, 0")
    L("K_ncheck")
    E("v_readfirstlane_b32 s56, v92")
    E("v_readfirstlane_b32 s57, v93")
    E("s_add_u32 s70, s70, 1")
    E("s_cmp_lg_u32 s56, 0")
    E("s_cbranch_scc1 K_nok")
    E("s_cmp_ge_u32 s70, 0x40000")
    E("s_cbranch_scc1 K_nok")
    E("s_sleep 4")
    E(f"buffer_load_dwordx2 v[92:93], v95, s[{SRD_DBGB}:{SRD_DBGB+3}], 0 offen sc1")
    E("s_waitcnt vmcnt(0)")
    E("s_branch K_ncheck")
    L("K_nok")
    E("s_cmp_lg_u32 s3, 4")
    E("s_cbranch_scc1 K_nopub")
    waitf(0, 4, 8, 144)
    E("v_and_b32 v95, 1, v1")
    E("v_lshlrev_b32 v94, 3, v95")
    E(f"ds_read_b64 v[144:145], v94 offset:{SYN + 224}")
    E("v_mov_b32 v146, s56")
    E("v_mov_b32 v147, s57")
    E("v_lshlrev_b32 v95, 4, v95")
    E("s_lshl_b32 s71, s65, 3")
    E("s_add_u32 s71, s71, s66")
    E("s_lshl_b32 s71, s71, 5")
    E(f"s_add_u32 s71, s71, {WS_G}")
    E("s_lshl_b32 s72, s66, 5")
    E("s_add_u32 s72, s72, s65")
    E("s_lshl_b32 s72, s72, 5")
    E(f"s_add_u32 s72, s72, {WS_F}")
    E("s_mov_b64 exec, 1")
    E(f"buffer_store_dwordx2 v[146:147], v95, s[{SRD_WS}:{SRD_WS+3}], s72 offen sc1")
    E("s_waitcnt lgkmcnt(0)")
    E("s_mov_b64 exec, 3")
    E(f"buffer_store_dwordx4 v[144:147], v95, s[{SRD_WS}:{SRD_WS+3}], s71 offen sc1")
    E("s_mov_b64 exec, -1")
    STAMP(9)
    L("K_nopub")
    STAMP(3)
    E("v_and_b32 v2, 3, v1")
    E("v_bfe_u32 v3, v1, 3, 2")
    E("v_lshl_add_u32 v2, v2, 2, v3")
    E(f"v_mul_u32_u24 v2, {ZROW}, v2")
    E("v_bfe_u32 v3, v1, 2, 1")
    E("v_lshl_add_u32 v2, v3, 4, v2")
    E("v_lshrrev_b32 v3, 5, v1")
    E("v_lshl_add_u32 v2, v3, 5, v2")
    E("s_lshl_b32 s71, s67, 8")
    E(f"s_add_u32 s71, s71, {ZBASE + 128}")
    E("v_add_u32 v3, s71, v2")
    E("s_lshl_b32 s72, s64, 14")
    E("s_lshl_b32 s71, s67, 12")
    E("s_add_u32 s72, s72, s71")
    E("v_lshlrev_b32 v92, 2, v1")
    E("v_lshlrev_b32 v9, 4, v1")
    E("s_lshl_b32 s73, s67, 11")
    E(f"v_add_u32 v10, {GB}, v9")
    E("v_add_u32 v10, s73, v10")
    E(f"s_add_u32 s60, s73, {WS_G}")
    E("v_mov_b32 v96, 0")
    E("v_mov_b32 v97, 0")
    E("v_mov_b32 v98, 0")
    E("v_mov_b32 v99, 0")
    E("v_bfe_u32 v100, v1, 3, 2")
    E(f"v_mul_u32_u24 v100, {ZROW}, v100")
    E("v_and_b32 v101, 7, v1")
    E("v_lshl_add_u32 v100, v101, 4, v100")
    E(f"s_mul_i32 s71, s67, {4*ZROW}")
    E("v_add_u32 v100, s71, v100")
    E("ds_write_b128 v100, v[96:99]")
    E("v_min_u32 v100, 11, v1")
    E("v_lshrrev_b32 v101, 1, v100")
    E(f"v_mul_u32_u24 v101, {XROW}, v101")
    E("v_and_b32 v100, 1, v100")
    E("v_lshl_add_u32 v100, v100, 4, v101")
    E(f"ds_write_b128 v100, v[96:99] offset:{XBASE}")
    E(f"s_mul_i32 s71, s67, {PMS}")
    E(f"s_add_u32 s71, s71, {PB}")
    E("v_mov_b32 v100, s71")
    E("ds_write_b128 v100, v[96:99]")
    E(f"s_mul_i32 s71, s67, {PCS}")
    E(f"s_add_u32 s71, s71, {PB + 4*PMS}")
    E("v_mov_b32 v100, s71")
    E("ds_write_b128 v100, v[96:99]")
    E("s_cmp_lg_u32 s3, 4")
    E("s_cbranch_scc1 K_pwait")
    E("v_and_b32 v92, 31, v1")
    E("v_lshlrev_b32 v92, 5, v92")
    E("s_and_b32 s71, s2, 7")
    E("s_lshl_b32 s71, s71, 10")
    E(f"s_add_u32 s71, s71, {WS_F}")
    E("s_mov_b32 s70, 0")
    L("K_poll")
    E(f"buffer_load_dwordx2 v[112:113], v92, s[{SRD_WS}:{SRD_WS+3}], s71 offen sc1")
    E("s_waitcnt vmcnt(0)")
    E("v_xor_b32 v112, s56, v112")
    E("v_xor_b32 v113, s57, v113")
    E("v_or_b32 v112, v112, v113")
    E("v_cmp_ne_u32 vcc, 0, v112")
    E("s_add_u32 s70, s70, 1")
    E("s_cmp_eq_u64 vcc, 0")
    E("s_cbranch_scc1 K_pok")
    E(f"s_sleep {PSLEEP}")
    E("s_cmp_lt_u32 s70, 0x40000")
    E("s_cbranch_scc1 K_poll")
    L("K_pok")
    post(5)
    E("s_branch K_pdone")
    L("K_pwait")
    E(f"ds_read_b32 v93, v30 offset:{32*5 + 16}")
    E("s_waitcnt lgkmcnt(0)")
    E("v_readfirstlane_b32 s70, v93")
    E("s_cmp_eq_u32 s70, 1")
    E("s_cbranch_scc1 K_pdone")
    E("s_sleep 1")
    E("s_branch K_pwait")
    L("K_pdone")
    STAMP(4)
    for p in range(4):
        E(f"buffer_load_dwordx4 {R4(96+4*p)}, v9, s[{SRD_WS}:{SRD_WS+3}], s72 offen offset:{1024*p} sc1")
    for p in range(4):
        E(f"s_waitcnt vmcnt({3-p})")
        E(f"ds_write_b128 v3, {R4(96+4*p)} offset:{64*p}")
    post(4)
    E(f"s_setprio {CBPRIO}")
    L("K_csetup")
    vB, vA, vPM, vPC, vF = 16, 17, 18, 19, 20
    E("s_lshl_b32 s70, s3, 1")
    E(f"s_mul_i32 s70, s70, {ZROW}")
    E(f"s_add_u32 s70, s70, {ZBASE + 8}")
    E(f"v_lshlrev_b32 v{vB}, 3, v4")
    E(f"v_lshl_add_u32 v{vB}, v5, 4, v{vB}")
    E(f"v_add_u32 v{vB}, s70, v{vB}")
    E("v_and_b32 v22, 3, v1")
    E("v_bfe_u32 v23, v1, 2, 2")
    E("v_sub_u32 v22, v22, v23")
    E("v_lshlrev_b32 v22, 3, v22")
    E("v_lshlrev_b32 v23, 6, v5")
    E("v_sub_u32 v22, v22, v23")
    E("s_lshl_b32 s70, s68, 2")
    E("s_add_u32 s70, s70, s69")
    E(f"s_mul_i32 s70, s70, {XROW}")
    E(f"s_add_u32 s70, s70, {XBASE + 224}")
    E(f"v_add_u32 v{vA}, s70, v22")
    E("s_cmp_eq_u32 s68, 0")
    E(f"s_mov_b32 s71, {PB}")
    E(f"s_cselect_b32 s71, {PA}, s71")
    E(f"s_mul_i32 s70, s67, {PMS}")
    E("s_add_u32 s70, s70, s71")
    E("s_add_u32 s72, s70, 16")
    E(f"v_lshl_add_u32 v{vPM}, v1, 4, s72")
    E(f"s_mul_i32 s72, s67, {PCS}")
    E("s_add_u32 s72, s72, s71")
    E(f"s_add_u32 s72, s72, {4*PMS}")
    E("s_add_u32 s73, s72, 16")
    E(f"v_lshl_add_u32 v{vPC}, v1, 2, s73")
    E("s_lshl_b32 s73, s3, 2")
    E(f"s_add_u32 s73, s73, {FLG}")
    E(f"v_mov_b32 v{vF}, s73")
    E("s_cmp_eq_u32 s68, 1")
    E("s_cbranch_scc1 K_convB")
    E("v_mov_b32 v22, s70")
    E("v_mov_b32 v23, s72")
    waitf(3, 0, 4, 24)
    E("v_mov_b32 v24, 0")
    E("v_mov_b32 v25, 0")
    E("v_mov_b32 v26, 0")
    E("v_mov_b32 v27, 0")
    E("ds_write_b128 v22, v[24:27]")
    E("ds_write_b128 v23, v[24:27]")
    waitf(4, 4, 8, 24)
    E("s_setprio 0")
    STAMP(5)

    def Bf(pp, jj):
        return 64 + 64 * pp + 4 * jj
    def acc(pp, q):
        return 192 + 32 * pp + 4 * q
    def conv(nx):
        ring = 8 // nx
        def Af(n, x):
            return 32 + 4 * ((n % ring) * nx + x)
        queue = []
        def rdA(n):
            for x in range(nx):
                a = Af(n, x)
                off = 256 * n + x * 2 * XROW
                E(f"ds_read_b64_tr_b16 v[{a}:{a+1}], v{vA} offset:{off+32}")
                E(f"ds_read_b64_tr_b16 v[{a+2}:{a+3}], v{vA} offset:{off}")
                queue.extend([("A", n), ("A", n)])
        def rdB(pp, jj):
            b = Bf(pp, jj)
            E(f"ds_read_b64 v[{b}:{b+1}], v{vB} offset:{pp*ZROW + 64*jj}")
            E(f"ds_read_b64 v[{b+2}:{b+3}], v{vB} offset:{pp*ZROW + 64*jj + 8}")
            queue.extend([("B", pp, jj), ("B", pp, jj)])
        def need(keys):
            last = -1
            for idx, k in enumerate(queue):
                if k in keys:
                    last = idx
            if last >= 0:
                n_after = len(queue) - 1 - last
                assert n_after <= 15
                E(f"s_waitcnt lgkmcnt({n_after})")
                del queue[:last + 1]
        def mf(pp, q, n, x, first=False):
            jj = 2 * q - n + 1
            c = "0" if first else R4(acc(pp, q))
            E(f"v_mfma_f32_16x16x32_bf16 {R4(acc(pp,q))}, {R4(Af(n,x))}, {R4(Bf(pp,jj))}, {c}")
        def writeout(q):
            a0, a1 = acc(0, q), acc(1, q)
            E(f"v_add_f32 v{a0+1}, v{a0+1}, v{a1}")
            E(f"v_add_f32 v{a0+2}, v{a0+2}, v{a1+1}")
            E(f"v_add_f32 v{a0+3}, v{a0+3}, v{a1+2}")
            E(f"ds_write_b32 v{vPC}, v{a1+3} offset:{256*q}")
            E(f"ds_write_b128 v{vPM}, {R4(a0)} offset:{1024*q}")
            E(f"ds_write_b32 v{vF}, v29 offset:{32*q}")
            queue.extend([("W",), ("W",), ("W",)])
        rdA(1)
        rdB(0, 0)
        rdA(0)
        rdB(0, 1)
        rdB(1, 0)
        for q in range(8):
            for pp in range(2):
                if pp == 0:
                    nxt = [(1, 2 * q + 1)] + ([(0, 2 * q + 2)] if q < 7 else [])
                else:
                    nxt = [(0, 2 * q + 3), (1, 2 * q + 2)] if q < 7 else []
                need({("A", 1), ("B", pp, 2 * q)})
                for x in range(nx):
                    mf(pp, q, 1, x, first=(x == 0))
                if nxt:
                    rdB(*nxt[0])
                elif pp == 1:
                    rdA(2)
                need({("A", 0), ("B", pp, 2 * q + 1)})
                for x in range(nx):
                    mf(pp, q, 0, x)
                if len(nxt) > 1:
                    rdB(*nxt[1])
                elif pp == 1:
                    rdA(3)
        if nx == 1:
            sched = {2: [4], 3: [5], 4: [6], 5: [7], 6: [8], 7: [9], 8: [10, 11], 9: [12, 13], 10: [14, 15]}
        else:
            sched = {n: [n + 2] for n in range(2, 14)}
        for n in range(2, 16):
            need({("A", n)})
            q0 = n >> 1
            k = 0
            for q in range(q0, 8):
                for pp in range(2):
                    for x in range(nx):
                        mf(pp, q, n, x)
                    k += 1
                    if k == 1:
                        for m in sched.get(n, []):
                            rdA(m)
                if n % 2 == 0 and q == min(q0 + 1, 7):
                    if n == 14:
                        E("s_nop 3")
                    writeout(q0 - 1)
        E("s_nop 7")
        writeout(7)
    conv(2)
    STAMP(6)
    E("s_mov_b32 s73, 7")
    E("s_branch K_fin")
    L("K_convB")
    waitf(0, 0, 4, 24)
    waitf(4, 4, 8, 24)
    E(f"buffer_load_dwordx4 v[12:15], v9, s[{SRD_WS}:{SRD_WS+3}], s60 offen sc1")
    E(f"buffer_load_dwordx4 v[24:27], v9, s[{SRD_WS}:{SRD_WS+3}], s60 offen offset:1024 sc1")
    STAMP(5)
    conv(1)
    STAMP(6)
    E("s_mov_b32 s70, 0")
    L("K_gpoll")
    E("s_waitcnt vmcnt(0)")
    E("v_xor_b32 v14, s56, v14")
    E("v_xor_b32 v15, s57, v15")
    E("v_xor_b32 v26, s56, v26")
    E("v_xor_b32 v27, s57, v27")
    E("v_or_b32 v14, v14, v15")
    E("v_or_b32 v26, v26, v27")
    E("v_or_b32 v14, v14, v26")
    E("v_cmp_ne_u32 vcc, 0, v14")
    E("s_add_u32 s70, s70, 1")
    E("s_cmp_eq_u64 vcc, 0")
    E("s_cbranch_scc1 K_gok")
    E("s_cmp_ge_u32 s70, 0x40000")
    E("s_cbranch_scc1 K_gok")
    E("s_sleep 8")
    E(f"buffer_load_dwordx4 v[12:15], v9, s[{SRD_WS}:{SRD_WS+3}], s60 offen sc1")
    E(f"buffer_load_dwordx4 v[24:27], v9, s[{SRD_WS}:{SRD_WS+3}], s60 offen offset:1024 sc1")
    E("s_branch K_gpoll")
    L("K_gok")
    for (src, dst) in [(12, 32), (24, 36)]:
        for hh in range(2):
            E(f"v_lshlrev_b32 v{dst+2*hh}, 16, v{src+hh}")
            E(f"v_and_b32 v{dst+2*hh+1}, s43, v{src+hh}")
        for e in range(4):
            E(f"v_sub_f32 v40, 1.0, v{dst+e}")
            E(f"v_cvt_pk_bf16_f32 v{dst+e}, v{dst+e}, v40")
    E("ds_write_b128 v10, v[32:35]")
    E("ds_write_b128 v10, v[36:39] offset:1024")
    post(6)
    E("s_mov_b32 s73, 0")
    if FINPRIO:
        E(f"s_setprio {FINPRIO}")
    L("K_fin")
    E("v_subrev_u32 v16, 16, v1")
    E("v_add_u32 v17, 47, v1")
    E("v_cmp_eq_u32 vcc, 0, v1")
    E("s_nop 1")
    E("v_cndmask_b32 v17, v17, -1, vcc")
    E("v_cmp_gt_u32 vcc, 16, v1")
    E("s_lshl_b32 s74, s73, 6")
    E("s_nop 0")
    E("v_cndmask_b32 v16, v16, v17, vcc")
    E("v_add_u32 v16, s74, v16")
    E("v_add_u32 v22, s74, v1")
    E("v_add_u32 v6, s74, v6")
    E("s_lshl_b32 s70, s67, 2")
    E(f"s_add_u32 s70, s70, {PB + 16}")
    E("v_lshl_add_u32 v18, v22, 4, s70")
    E("s_add_u32 s70, s67, 2")
    E("s_and_b32 s70, s70, 3")
    E("s_lshl_b32 s70, s70, 2")
    E(f"s_add_u32 s70, s70, {PB + 16 + PMS}")
    E("s_cmp_lt_u32 s67, 2")
    E("s_cselect_b64 vcc, -1, 0")
    E("v_cndmask_b32 v17, v22, v16, vcc")
    E("v_lshl_add_u32 v19, v17, 4, s70")
    E("s_lshr_b32 s70, s67, 1")
    E(f"s_mul_i32 s70, s70, {PCS}")
    E(f"s_add_u32 s70, s70, {PB + 4*PMS + 16}")
    E("v_lshl_add_u32 v20, v16, 2, s70")
    E("s_and_b32 s70, s67, 1")
    E("s_cmp_eq_u32 s70, 0")
    E("s_cselect_b64 vcc, -1, 0")
    E("s_cselect_b32 s75, 256, 0")
    E(f"v_mov_b32 v17, {PB + 4*PMS}")
    E("v_cndmask_b32 v20, v17, v20, vcc")
    E(f"s_mul_i32 s70, s67, {ZROW}")
    E("v_lshl_add_u32 v21, v6, 1, s70")
    E("s_lshl_b32 s70, s67, 10")
    E("v_lshl_add_u32 v22, v6, 12, s70")
    E("s_lshl_b32 s70, s67, 2")
    E(f"s_add_u32 s70, s70, {GB}")
    E("v_lshl_add_u32 v7, v6, 4, s70")
    E("s_lshl_b32 s70, s73, 5")
    E(f"s_add_u32 s70, s70, {FLG}")
    E("v_mov_b32 v23, s70")
    E("s_lshl_b32 s72, s64, 2")
    E("s_lshl_b32 s76, s23, 16")
    E("s_and_b32 s77, s23, s43")
    E("s_lshl_b32 s78, s42, 16")
    E("s_and_b32 s79, s42, s43")
    E("s_sub_u32 s74, 8, s68")
    waitf(6, 4, 8, 32)
    L("K_hloop")
    for r in range(48, 52):
        E(f"v_mov_b32 v{r}, 0")
    for k in range(4):
        E(f"ds_read_u16_d16_hi v{48+k}, v21 offset:{ZBASE + 4*k*ZROW + 128}")
    E("ds_read_b32 v8, v7")
    L("K_hpoll")
    E("ds_read_b128 v[32:35], v23")
    E("ds_read_b128 v[36:39], v23 offset:16")
    E("s_waitcnt lgkmcnt(0)")
    for k in range(0, 8, 2):
        E(f"v_and_b32 v{32+k}, v{32+k}, v{33+k}")
    E("v_and_b32 v32, v32, v34")
    E("v_and_b32 v36, v36, v38")
    E("v_and_b32 v32, v32, v36")
    E("s_nop 0")
    E("v_readfirstlane_b32 s70, v32")
    E("s_cmp_eq_u32 s70, 1")
    E("s_cbranch_scc1 K_go")
    E("s_sleep 3")
    E("s_branch K_hpoll")
    L("K_go")
    for k in range(4):
        X, c = k >> 1, k & 1
        base = PSTRIDE if X == 0 else 0
        E(f"ds_read_b32 v{32+k}, v18 offset:{base + 2*c*PMS}")
        E(f"ds_read_b32 v{36+k}, v19 offset:{base + 2*c*PMS}")
        E(f"ds_read_b32 v{40+k}, v20 offset:{base + 2*c*PCS}")
    def rnd(a, b):
        E(f"v_cvt_pk_bf16_f32 v{a}, v{a}, v{b}")
        E(f"v_and_b32 v{b}, s43, v{a}")
        E(f"v_lshlrev_b32 v{a}, 16, v{a}")
    yA0, yA1, yB0, yB1 = 32, 33, 34, 35
    u0, u1, k0, k1 = 48, 49, 50, 51
    t = 52
    E(f"v_mul_f32 v{t}, s76, v{u0}")
    E(f"v_mul_f32 v{t+1}, s77, v{u1}")
    E(f"v_mul_f32 v{t+2}, s78, v{k0}")
    E(f"v_mul_f32 v{t+3}, s79, v{k1}")
    rnd(t, t + 1)
    rnd(t + 2, t + 3)
    E(f"v_lshlrev_b32 v{t+4}, 16, v8")
    E(f"v_and_b32 v{t+5}, s43, v8")
    E("v_add_u32 v18, 1024, v18")
    E("v_add_u32 v19, 1024, v19")
    E("v_add_u32 v20, s75, v20")
    E("v_add_u32 v21, 128, v21")
    E("v_add_u32 v23, 32, v23")
    E("v_add_u32 v7, 1024, v7")
    for k in range(4):
        E(f"s_waitcnt lgkmcnt({9-3*k})")
        E(f"v_add_f32 v{32+k}, v{32+k}, v{36+k}")
        E(f"v_add_f32 v{32+k}, v{32+k}, v{40+k}")
    rnd(yA0, yA1)
    rnd(yB0, yB1)
    E(f"v_add_f32 v{yA0}, v{yA0}, v{t}")
    E(f"v_add_f32 v{yA1}, v{yA1}, v{t+1}")
    E(f"v_add_f32 v{yB0}, v{yB0}, v{t+2}")
    E(f"v_add_f32 v{yB1}, v{yB1}, v{t+3}")
    rnd(yA0, yA1)
    rnd(yB0, yB1)
    E(f"v_mul_f32 v{yB0}, v{u0}, v{yB0}")
    E(f"v_mul_f32 v{yB1}, v{u1}, v{yB1}")
    rnd(yB0, yB1)
    E(f"v_mul_f32 v{yA0}, v{t+4}, v{yA0}")
    E(f"v_mul_f32 v{yA1}, v{t+4}, v{yA1}")
    E(f"v_mul_f32 v{yB0}, v{t+5}, v{yB0}")
    E(f"v_mul_f32 v{yB1}, v{t+5}, v{yB1}")
    rnd(yA0, yA1)
    rnd(yB0, yB1)
    E(f"v_add_f32 v{yA0}, v{yA0}, v{yB0}")
    E(f"v_add_f32 v{yA1}, v{yA1}, v{yB1}")
    E(f"v_cvt_pk_bf16_f32 v{yA0}, v{yA0}, v{yA1}")
    E(f"buffer_store_dword v{yA0}, v22, s[{SRD_OUT}:{SRD_OUT+3}], s72 offen")
    E("v_add_u32 v22, 0x40000, v22")
    E("s_add_u32 s73, s73, 1")
    E("s_cmp_lt_u32 s73, s74")
    E("s_cbranch_scc1 K_hloop")
    STAMP(7)
    if DBG: E("s_waitcnt vmcnt(0)")
    STAMP(8)
    if "--pro" in sys.argv:
        E("s_waitcnt lgkmcnt(0)")
        for i in range(3, 8): E(f"s_mov_b32 s{80+2*i}, s{1+i}")
    DUMP(10, SRD_WS)
    if "--probe" in sys.argv:
        E("s_lshl_b32 s70, s2, 3")
        E("s_add_u32 s70, s70, s3")
        E("s_cmp_lg_u32 s70, 44")
        E("s_cbranch_scc1 K_end")
        E("s_waitcnt vmcnt(0)")
        E("s_memtime s[88:89]")
        E("s_memrealtime s[90:91]")
        E("s_waitcnt lgkmcnt(0)")
        E("s_sub_u32 s88, s88, s84")
        E("s_sub_u32 s90, s90, s86")
        E("v_mov_b32 v2, s88")
        E("v_mov_b32 v3, s90")
        E("v_mov_b32 v4, 16")
        E("s_mov_b64 exec, 1")
        E(f"buffer_store_dwordx2 v[2:3], v4, s[{SRD_DBGB}:{SRD_DBGB+3}], 0 offen")
    L("K_end")
    E("s_endpgm")
    sg = 102 if (DBG or "--probe" in sys.argv) else 80
    return f""".amdhsa_kernel {name}
  .amdhsa_next_free_vgpr 256
  .amdhsa_next_free_sgpr {sg}
  .amdhsa_accum_offset 256
  .amdhsa_group_segment_fixed_size 0
  .amdhsa_kernarg_size 152
  .amdhsa_user_sgpr_count 2
  .amdhsa_user_sgpr_kernarg_segment_ptr 1
  .amdhsa_system_sgpr_workgroup_id_x 1
  .amdhsa_float_denorm_mode_32 3
.end_amdhsa_kernel"""

def main():
    hdr = HEADER.rstrip("\n")
    pre = [hdr,
           f"; @launch grid=(256,1,1) block=(512,1,1) lds={LDS_SIZE}",
           '.amdgcn_target "amdgcn-amd-amdhsa--gfx950"',
           ".text"]
    k = gen()
    txt = "\n".join(pre + out) + '\n.section .rodata,"a"\n.p2align 6\n' + k + "\n"
    args = [a for a in sys.argv[1:] if not a.startswith("--")]
    path = args[0] if args else "cdna_kernels/%s.s" % NAME
    open(path, "w").write(txt)

main()
```

```python
import sys

NAME = "gated_mix__ssm_conv_s4__ssm_conv_h3__prompt"
HEADER = open("cdna_kernels/%s.s.ref" % NAME).read().split("; Override launch")[0]
DBG = "--dbg" in sys.argv
def opt(name, default):
    for a in sys.argv:
        if a.startswith("--" + name + "="):
            return int(a.split("=")[1])
    return default
NA = 8
NB = 8 - NA
FINPRIO = opt("finprio", 1)
PSLEEP = opt("psleep", 8)
TOUCH = opt("touch", 0)
LATE = opt("late", 5)
DRY = opt("dry", 0)
KLDS = opt("klds", 1)
TSH = opt("tsh", 16)
CBPRIO = opt("cbprio", 1)
APRIO = opt("aprio", 2)
POLLSC = ["sc1", "sc0 sc1", "sc1 nt"][opt("pollsc", 1)]

out = []
def E(s=""):
    out.append("    " + s)
def L(s):
    out.append(s + ":")

WS_Z = 0
WS_G = 4 << 20
WS_F = WS_G + 8192
WS_SIZE = (4 << 20) + 16384
WS_DBG = 16 << 20
if DBG:
    WS_SIZE = 32 << 20

ZROW = 1152
ZBASE = 0
XBASE = 16 * ZROW
XROW = 4128
GB = XBASE + 6 * XROW
FLG = GB + 8192
SYN = FLG + 256
PMS = 8192 + 16
PCS = 2048 + 16
PB = SYN + 288
PA = PB + 4 * PMS + 4 * PCS
PSTRIDE = PA - PB
S_KT = PA
S_P = S_KT + 24576
S_K = S_P + 8192
S_TR = S_K + 9216
LDS_SIZE = S_TR + 8 * 3072
assert LDS_SIZE <= 163840 and PA + PSTRIDE <= LDS_SIZE
def PMa(X, w4):
    return (PA if X == 0 else PB) + w4 * PMS
def PCa(X, w4):
    return (PA if X == 0 else PB) + 4 * PMS + w4 * PCS

TD = "--tiledbg" in sys.argv
def TSTAMP(i):
    if DBG and TD:
        E(f"s_memtime s[{80+2*i}:{81+2*i}]")
def STAMP(i):
    if TD and i in (3, 4, 5, 6, 7): return
    if DBG:
        E(f"s_memtime s[{80+2*i}:{81+2*i}]")
def DUMP(n, srdreg):
    if DBG:
        E("s_waitcnt lgkmcnt(0)")
        E("s_mov_b64 exec, 1")
        E("s_lshl_b32 s100, s2, 4")
        E("s_add_u32 s100, s100, s3")
        E("s_lshl_b32 s100, s100, 6")
        E(f"s_add_u32 s100, s100, {WS_DBG}")
        for i in range(n):
            E(f"v_mov_b32 v2, s{80+2*i}")
            E(f"v_mov_b32 v3, {4*i}")
            E(f"buffer_store_dword v2, v3, s[{srdreg}:{srdreg+3}], s100 offen")
            E("s_nop 1")

def srd(sd, sp, nbytes):
    E(f"s_mov_b32 s{sd}, s{sp}")
    E(f"s_and_b32 s{sd+1}, s{sp+1}, 0xffff")
    E(f"s_mov_b32 s{sd+2}, {hex(nbytes)}")
    E(f"s_mov_b32 s{sd+3}, 0x00020000")
def R4(r):
    return f"v[{r}:{r+3}]"
SRD_WS, SRD_OUT, SRD_DBGB, SRD_A, SRD_B = 44, 48, 52, 56, 60

lblc = [0]
def post(kind):
    E(f"ds_write_b32 v28, v29 offset:{32*kind}")
def waitf(kind, lo, hi, t0=24):
    lblc[0] += 1
    n = lblc[0]
    if DRY > 1:
        E("s_cmp_lg_u32 s5, 0")
        E(f"s_cbranch_scc1 W{n}_d")
    L(f"W{n}_p")
    if hi - lo == 4:
        E(f"ds_read_b128 v[{t0}:{t0+3}], v30 offset:{32*kind + 4*lo}")
        E("s_waitcnt lgkmcnt(0)")
        E(f"v_and_b32 v{t0}, v{t0}, v{t0+1}")
        E(f"v_and_b32 v{t0+2}, v{t0+2}, v{t0+3}")
        E(f"v_and_b32 v{t0}, v{t0}, v{t0+2}")
    else:
        E(f"ds_read_b128 v[{t0}:{t0+3}], v30 offset:{32*kind}")
        E(f"ds_read_b128 v[{t0+4}:{t0+7}], v30 offset:{32*kind + 16}")
        E("s_waitcnt lgkmcnt(0)")
        for k in range(0, 8, 2):
            E(f"v_and_b32 v{t0+k}, v{t0+k}, v{t0+k+1}")
        E(f"v_and_b32 v{t0}, v{t0}, v{t0+2}")
        E(f"v_and_b32 v{t0+4}, v{t0+4}, v{t0+6}")
        E(f"v_and_b32 v{t0}, v{t0}, v{t0+4}")
    E("s_nop 0")
    E(f"v_readfirstlane_b32 s4, v{t0}")
    E("s_cmp_eq_u32 s4, 1")
    E(f"s_cbranch_scc1 W{n}_d")
    E("s_sleep 1")
    E(f"s_branch W{n}_p")
    L(f"W{n}_d")

def gen():
    name = NAME + "_kernel"
    out.append(f".globl {name}\n.p2align 8\n.type {name},@function")
    L(name)
    E("s_cmp_ge_u32 s2, 256")
    E("s_cbranch_scc1 K_end")
    STAMP(0)
    E("s_setprio 3")
    E("s_load_dwordx16 s[4:19], s[0:1], 0")
    E("s_load_dwordx2 s[20:21], s[0:1], 64")
    E("s_load_dwordx8 s[24:31], s[0:1], 80")
    E("s_load_dwordx8 s[32:39], s[0:1], 112")
    E("s_load_dwordx2 s[40:41], s[0:1], 144")
    E("v_lshrrev_b32 v1, 6, v0")
    E("s_nop 0")
    E("v_readfirstlane_b32 s3, v1")
    E("v_and_b32 v1, 63, v0")
    E("s_and_b32 s64, s2, 7")
    E("s_lshl_b32 s65, s64, 2")
    E("s_lshl_b32 s64, s64, 5")
    E("s_lshr_b32 s66, s2, 3")
    E("s_add_u32 s64, s64, s66")
    E("s_and_b32 s66, s66, 3")
    E("s_add_u32 s65, s65, s66")
    E("s_lshr_b32 s66, s2, 5")
    E("s_and_b32 s67, s3, 3")
    E("s_lshr_b32 s68, s3, 2")
    E("s_bfe_u32 s69, s3, 0x10001")
    E("v_mov_b32 v12, 0")
    E("v_mov_b32 v13, 0")
    E("v_mov_b32 v14, 0")
    E("v_mov_b32 v15, 0")
    E("v_and_b32 v2, 31, v1")
    E("v_lshlrev_b32 v2, 4, v2")
    E(f"ds_write_b128 v2, v[12:15] offset:{FLG}")
    E(f"ds_write_b128 v2, v[12:15] offset:{FLG + 32}")
    E("s_lshl_b32 s70, s3, 2")
    E(f"s_add_u32 s70, s70, {SYN}")
    E("v_mov_b32 v28, s70")
    E("v_mov_b32 v29, 1")
    E("v_mov_b32 v95, 0")
    E(f"v_mov_b32 v30, {SYN}")
    E("s_lshl_b32 s70, s65, 6")
    E("s_add_u32 s70, s70, s67")
    E("s_lshl_b32 s70, s70, 10")
    E("s_lshl_b32 s71, s66, 7")
    E("s_add_u32 s70, s70, s71")
    E("v_lshrrev_b32 v2, 3, v1")
    E("v_and_b32 v3, 7, v1")
    E("v_lshlrev_b32 v4, 12, v2")
    E("v_lshl_add_u32 v4, v3, 4, v4")
    E("v_add_u32 v4, s70, v4")
    E("v_subrev_u32 v5, 1024, v4")
    E("v_subrev_u32 v6, 2048, v4")
    E("v_subrev_u32 v7, 3072, v4")
    E("s_lshl_b32 s71, s66, 9")
    E("v_lshl_add_u32 v8, v3, 6, s71")
    E("s_lshl_b32 s72, s65, 6")
    E("s_lshl_b32 s71, s66, 3")
    E("s_add_u32 s72, s72, s71")
    E("s_lshl_b32 s71, s67, 1")
    E("s_add_u32 s72, s72, s71")
    E("s_lshl_b32 s73, s72, 10")
    E("v_lshlrev_b32 v9, 4, v1")
    E("s_and_b32 s74, s3, 1")
    E(f"s_mul_i32 s75, s74, {8*NA}")
    E(f"s_mul_i32 s76, s74, {8*NB}")
    E(f"s_add_u32 s76, s76, {16*NA}")
    E("s_cmp_eq_u32 s68, 0")
    E("s_cselect_b32 s75, s75, s76")
    E("s_lshl_b32 s70, s64, 1")
    E("s_add_u32 s70, s70, s69")
    E("s_lshl_b32 s70, s70, 7")
    E("s_add_u32 s70, s70, s75")
    E("s_lshl_b32 s70, s70, 1")
    E("v_lshl_add_u32 v11, v1, 1, s70")
    if "--pro" in sys.argv: STAMP(3)
    E("s_waitcnt lgkmcnt(0)")
    if "--pro" in sys.argv: STAMP(4)
    E("s_add_u32 s70, s2, s3")
    E("s_cmp_lg_u32 s70, 0")
    E("s_cbranch_scc1 K_nononce")
    E("s_memrealtime s[70:71]")
    srd(SRD_DBGB, 38, 256)
    E("s_waitcnt lgkmcnt(0)")
    E("s_or_b32 s70, s70, 1")
    E("v_mov_b32 v100, s70")
    E("v_mov_b32 v101, s71")
    E("s_mov_b64 exec, 1")
    E(f"buffer_store_dwordx2 v[100:101], v95, s[{SRD_DBGB}:{SRD_DBGB+3}], 0 offen sc1")
    E("s_mov_b64 exec, -1")
    L("K_nononce")
    E("s_barrier")
    E("s_cmp_eq_u32 s68, 0")
    E("s_cbranch_scc1 K_noTL")
    srd(SRD_A, 24, 2 << 20)
    srd(SRD_B, 26, 2 << 20)
    E("s_mov_b32 s70, 0x8000")
    E("v_lshlrev_b32 v5, 10, v2")
    E("v_lshl_add_u32 v5, v3, 4, v5")
    E("s_lshl_b32 s71, s65, 6")
    E("s_lshl_b32 s74, s67, 3")
    E("s_add_u32 s71, s71, s74")
    E("s_sub_u32 s71, s71, 8")
    E("s_lshl_b32 s71, s71, 10")
    E("s_lshl_b32 s74, s66, 7")
    E("s_add_u32 s71, s71, s74")
    E("v_add_u32 v5, s71, v5")
    E("v_add_u32 v6, s70, v5")
    E("v_add_u32 v7, s70, v6")
    E("s_lshl_b32 s74, s67, 10")
    E(f"s_add_u32 s74, s74, {S_K}")
    E("s_mov_b32 m0, s74")
    E("s_add_u32 s74, s74, 4096")
    E(f"buffer_load_dwordx4 v5, s[{SRD_A}:{SRD_A+3}], 0 offen lds")
    E("s_mov_b32 m0, s74")
    E("s_add_u32 s74, s74, 4096")
    E(f"buffer_load_dwordx4 v6, s[{SRD_A}:{SRD_A+3}], 0 offen lds")
    E("s_cmp_lg_u32 s67, 0")
    E("s_cbranch_scc1 K_nok3")
    E("s_mov_b32 m0, s74")
    E("s_nop 0")
    E(f"buffer_load_dwordx4 v7, s[{SRD_A}:{SRD_A+3}], 0 offen lds")
    L("K_nok3")
    E(f"buffer_load_dwordx4 v[96:99], v4, s[{SRD_B}:{SRD_B+3}], 0 offen")
    srd(SRD_WS, 28, 4096)
    srd(SRD_OUT, 4, 2 << 20)
    for i in range(4):
        E(f"buffer_load_dwordx4 v[{40+4*i}:{43+4*i}], v8, s[{SRD_WS}:{SRD_WS+3}], 0 offen offset:{16*i}")
    E(f"buffer_load_dwordx4 v[32:35], v4, s[{SRD_OUT}:{SRD_OUT+3}], 0 offen")
    E("v_add_u32 v4, s70, v4")
    E(f"buffer_load_dwordx4 v[144:147], v4, s[{SRD_B}:{SRD_B+3}], 0 offen")
    E(f"buffer_load_dwordx4 v[148:151], v4, s[{SRD_OUT}:{SRD_OUT+3}], 0 offen")
    E(f"buffer_load_dwordx4 v[56:59], v9, s[{SRD_OUT}:{SRD_OUT+3}], s73 offen")
    E(f"buffer_load_dwordx4 v[152:155], v9, s[{SRD_OUT}:{SRD_OUT+3}], s73 offen offset:1024")
    srd(SRD_A, 34, 1024)
    E(f"buffer_load_dwordx4 v[60:63], v9, s[{SRD_A}:{SRD_A+3}], 0 offen")
    E("s_branch K_noPL")
    L("K_noTL")
    for i, sp in enumerate([6, 8, 10, 12, 14, 16]):
        sd = SRD_A if i % 2 == 0 else SRD_B
        srd(sd, sp, 131072)
        E(f"buffer_load_ushort v{84+i}, v11, s[{sd}:{sd+3}], 0 offen")
    if TOUCH:
        E(f"v_lshlrev_b32 v200, {TSH}, v1")
        E("s_cmp_eq_u32 s3, 0")
        E("s_cbranch_scc0 K_tc1")
        srd(SRD_A, 40, WS_SIZE)
        E(f"buffer_load_dword v201, v200, s[{SRD_A}:{SRD_A+3}], 0 offen")
        E(f"s_mov_b32 s70, {WS_G}")
        E(f"buffer_load_dword v202, v95, s[{SRD_A}:{SRD_A+3}], s70 offen")
        E("s_branch K_tc4")
        L("K_tc1")
        E("s_cmp_eq_u32 s3, 1")
        E("s_cbranch_scc0 K_tc2")
        srd(SRD_A, 36, 2 << 20)
        E(f"buffer_load_dword v201, v200, s[{SRD_A}:{SRD_A+3}], 0 offen")
        srd(SRD_B, 38, 256)
        E(f"buffer_load_dword v202, v95, s[{SRD_B}:{SRD_B+3}], 0 offen")
        E("s_branch K_tc4")
        L("K_tc2")
        E("s_cmp_eq_u32 s3, 2")
        E("s_cbranch_scc0 K_tc3")
        srd(SRD_A, 4, 2 << 20)
        E(f"buffer_load_dword v201, v200, s[{SRD_A}:{SRD_A+3}], 0 offen")
        srd(SRD_B, 24, 2 << 20)
        E(f"buffer_load_dword v202, v200, s[{SRD_B}:{SRD_B+3}], 0 offen")
        E("s_branch K_tc4")
        L("K_tc3")
        srd(SRD_A, 26, 2 << 20)
        E(f"buffer_load_dword v201, v200, s[{SRD_A}:{SRD_A+3}], 0 offen")
        srd(SRD_B, 34, 1024)
        E(f"buffer_load_dword v202, v95, s[{SRD_B}:{SRD_B+3}], 0 offen")
        L("K_tc4")
    L("K_noPL")
    srd(SRD_A, 30, 2 << 20)
    E("s_lshl_b32 s74, s64, 2")
    if "--pro" in sys.argv: STAMP(6)
    E("s_load_dword s22, s[18:19], s74")
    E("s_load_dword s23, s[20:21], s74")
    E("s_load_dword s42, s[32:33], s74")
    srd(SRD_WS, 40, WS_SIZE)
    srd(SRD_OUT, 36, 2 << 20)
    srd(SRD_DBGB, 38, 256)
    E("s_mov_b32 s43, 0xffff0000")
    E("s_mov_b32 s5, 0")
    E("s_and_b32 s61, s3, 1")
    if "--pro" in sys.argv:
        STAMP(7)
        E("s_waitcnt lgkmcnt(0)")
        for i in range(3, 8): E(f"s_mov_b32 s{1+i}, s{80+2*i}")
    E("s_cmp_eq_u32 s68, 0")
    E("s_cbranch_scc1 K_kgen")
    E("s_mul_i32 s70, s3, 3072")
    E(f"s_add_u32 s70, s70, {S_TR}")
    E("v_mul_u32_u24 v64, 144, v2")
    E("v_lshl_add_u32 v64, v3, 4, v64")
    E("v_add_u32 v64, s70, v64")
    E("v_lshrrev_b32 v66, 4, v1")
    E("v_and_b32 v67, 1, v66")
    E("v_lshrrev_b32 v66, 1, v66")
    E("v_bfe_u32 v68, v1, 2, 2")
    E("v_and_b32 v69, 3, v1")
    E("v_mul_u32_u24 v65, 1152, v67")
    E("v_mul_u32_u24 v68, 144, v68")
    E("v_add_u32 v65, v65, v68")
    E("v_lshl_add_u32 v65, v66, 5, v65")
    E("v_lshl_add_u32 v65, v69, 3, v65")
    E("v_add_u32 v65, s70, v65")
    E("v_and_b32 v68, 15, v1")
    E("v_lshl_add_u32 v68, v66, 4, v68")
    E("v_lshrrev_b32 v69, 1, v68")
    E("v_and_b32 v68, 1, v68")
    E("v_lshlrev_b32 v69, 14, v69")
    E("v_lshl_add_u32 v69, v68, 4, v69")
    E("v_lshl_add_u32 v69, v67, 5, v69")
    E("s_lshl_b32 s70, s66, 19")
    E("s_lshl_b32 s71, s65, 9")
    E("s_add_u32 s70, s70, s71")
    E("s_lshl_b32 s71, s67, 7")
    E("s_add_u32 s70, s70, s71")
    E("s_add_u32 s71, s70, 0x40000")
    E("s_mov_b32 s62, 0")
    E("s_mov_b32 s76, 0x00003f80")
    E("s_mov_b32 s77, 0x3f800000")
    E("s_mov_b32 s78, 0x0000ffff")
    E("s_mov_b32 s79, 0x3f803f80")
    if DRY:
        E("s_mov_b32 s5, 1")
        E("s_mov_b64 exec, 0")
        E("s_branch K_tmask")
        L("K_breal")
        E("s_mov_b32 s5, 0")
        E("s_mov_b64 exec, -1")
        E("s_mov_b32 s62, 0")
    E("v_and_b32 v224, 3, v1")
    E("v_bfe_u32 v225, v1, 3, 2")
    E("v_lshl_add_u32 v224, v224, 2, v225")
    E(f"v_mul_u32_u24 v224, {ZROW}, v224")
    E("v_bfe_u32 v225, v1, 2, 1")
    E("v_lshl_add_u32 v224, v225, 4, v224")
    E("v_lshrrev_b32 v225, 5, v1")
    E("v_lshl_add_u32 v224, v225, 5, v224")
    E("s_lshl_b32 s74, s67, 8")
    E(f"s_add_u32 s74, s74, {ZBASE + 128}")
    E("v_add_u32 v224, s74, v224")
    E("s_lshl_b32 s6, s64, 14")
    E("s_lshl_b32 s74, s67, 12")
    E("s_add_u32 s6, s6, s74")
    E("s_lshl_b32 s74, s67, 11")
    E(f"v_add_u32 v10, {GB}, v9")
    E("v_add_u32 v10, s74, v10")
    E(f"s_add_u32 s60, s74, {WS_G}")
    E("v_and_b32 v226, 31, v1")
    E("v_lshlrev_b32 v226, 5, v226")
    E("s_and_b32 s7, s2, 7")
    E("s_lshl_b32 s7, s7, 10")
    E(f"s_add_u32 s7, s7, {WS_F}")
    E("v_and_b32 v227, 1, v1")
    E("v_lshlrev_b32 v225, 3, v227")
    E("v_lshlrev_b32 v227, 4, v227")
    E("s_lshl_b32 s8, s65, 3")
    E("s_add_u32 s8, s8, s66")
    E("s_lshl_b32 s8, s8, 5")
    E(f"s_add_u32 s8, s8, {WS_G}")
    E("s_lshl_b32 s9, s66, 5")
    E("s_add_u32 s9, s9, s65")
    E("s_lshl_b32 s9, s9, 5")
    E(f"s_add_u32 s9, s9, {WS_F}")
    E("v_mov_b32 v100, 0")
    E("v_mov_b32 v101, 0")
    E("v_mov_b32 v102, 0")
    E("v_mov_b32 v103, 0")
    E("v_bfe_u32 v104, v1, 3, 2")
    E(f"v_mul_u32_u24 v104, {ZROW}, v104")
    E("v_and_b32 v105, 7, v1")
    E("v_lshl_add_u32 v104, v105, 4, v104")
    E(f"s_mul_i32 s74, s67, {4*ZROW}")
    E("v_add_u32 v104, s74, v104")
    E("ds_write_b128 v104, v[100:103]")
    E("v_min_u32 v104, 11, v1")
    E("v_lshrrev_b32 v105, 1, v104")
    E(f"v_mul_u32_u24 v105, {XROW}, v105")
    E("v_and_b32 v104, 1, v104")
    E("v_lshl_add_u32 v104, v104, 4, v105")
    E(f"ds_write_b128 v104, v[100:103] offset:{XBASE}")
    E(f"s_mul_i32 s74, s67, {PMS}")
    E(f"s_add_u32 s74, s74, {PB}")
    E("v_mov_b32 v104, s74")
    E("ds_write_b128 v104, v[100:103]")
    E("s_add_u32 s74, s74, 16")
    E("v_lshl_add_u32 v230, v1, 4, s74")
    E(f"s_mul_i32 s74, s67, {PCS}")
    E(f"s_add_u32 s74, s74, {PB + 4*PMS}")
    E("v_mov_b32 v105, s74")
    E("ds_write_b128 v105, v[100:103]")
    E("s_add_u32 s74, s74, 16")
    E("v_lshl_add_u32 v231, v1, 2, s74")
    E("v_and_b32 v4, 15, v1")
    E("v_lshrrev_b32 v5, 4, v1")
    E("v_lshlrev_b32 v6, 2, v4")
    E("v_add_u32 v6, v6, v5")
    E("s_lshl_b32 s74, s3, 1")
    E(f"s_mul_i32 s74, s74, {ZROW}")
    E(f"s_add_u32 s74, s74, {ZBASE + 8}")
    E("v_lshlrev_b32 v228, 3, v4")
    E("v_lshl_add_u32 v228, v5, 4, v228")
    E("v_add_u32 v228, s74, v228")
    E("v_and_b32 v104, 3, v1")
    E("v_bfe_u32 v105, v1, 2, 2")
    E("v_sub_u32 v104, v104, v105")
    E("v_lshlrev_b32 v104, 3, v104")
    E("v_lshlrev_b32 v105, 6, v5")
    E("v_sub_u32 v104, v104, v105")
    E("s_add_u32 s74, s69, 4")
    E(f"s_mul_i32 s74, s74, {XROW}")
    E(f"s_add_u32 s74, s74, {XBASE + 224}")
    E("v_add_u32 v229, s74, v104")
    E("s_lshl_b32 s74, s3, 2")
    E(f"s_add_u32 s74, s74, {FLG}")
    E("v_mov_b32 v232, s74")
    E("v_lshlrev_b32 v70, 9, v2")
    E("v_lshl_add_u32 v70, v3, 4, v70")
    E("s_lshl_b32 s74, s67, 7")
    E(f"s_add_u32 s74, s74, {S_K + 1024 - 384}")
    E("v_add_u32 v70, s74, v70")
    E("s_waitcnt vmcnt(11)")
    post(7)
    E("s_waitcnt vmcnt(6)")
    STAMP(1)
    L("K_tmask")
    for t in range(4):
        for i in range(4):
            r0 = 40 + 4 * i + (t >> 1)
            r1 = 40 + 4 * i + 2 + (t >> 1)
            d = 160 + (t * 4 + i) * 2
            if t & 1:
                E(f"v_lshrrev_b32 v{d}, 16, v{r0}")
                E(f"v_and_b32 v{d+1}, s43, v{r1}")
            else:
                E(f"v_and_b32 v{d}, s78, v{r0}")
                E(f"v_lshlrev_b32 v{d+1}, 16, v{r1}")
    waitf(7, 4, 8, 72)
    TSTAMP(3)
    L("K_tloop")
    for t in range(4):
        E(f"ds_read_b128 {R4(12+4*t)}, v70 offset:{384 - 128*t}")
    E("v_add_u32 v70, 4096, v70")
    E("s_waitcnt lgkmcnt(0)")
    for t in range(4):
        for i in range(4):
            kr = 12 + 4 * t + i
            d = 160 + (t * 4 + i) * 2
            E(f"v_dot2_f32_bf16 v{208+2*i}, v{kr}, v{d}, 0")
            E(f"v_dot2_f32_bf16 v{209+2*i}, v{kr}, v{d+1}, 0")
        E("s_nop 0")
        for i in range(4):
            E(f"v_cvt_pk_bf16_f32 v{192+4*t+i}, v{208+2*i}, v{209+2*i}")
    cur = 192 + 12
    for t in (2, 1, 0):
        for i in range(4):
            E(f"v_lshlrev_b32 v{208+2*i}, 16, v{cur+i}")
            E(f"v_and_b32 v{209+2*i}, s43, v{cur+i}")
        for i in range(4):
            E(f"v_dot2_f32_bf16 v{208+2*i}, v{192+4*t+i}, s76, v{208+2*i}")
            E(f"v_dot2_f32_bf16 v{209+2*i}, v{192+4*t+i}, s77, v{209+2*i}")
        E("s_nop 0")
        for i in range(4):
            E(f"v_cvt_pk_bf16_f32 v{cur+i}, v{208+2*i}, v{209+2*i}")
    for i in range(4):
        E(f"v_and_b32 v{216+2*i}, s78, v{96+i}")
        E(f"v_and_b32 v{217+2*i}, s43, v{96+i}")
    for i in range(4):
        E(f"v_dot2_f32_bf16 v{208+2*i}, v{cur+i}, v{216+2*i}, 0")
        E(f"v_dot2_f32_bf16 v{209+2*i}, v{cur+i}, v{217+2*i}, 0")
    E("s_nop 0")
    for i in range(4):
        E(f"v_cvt_pk_bf16_f32 v{36+i}, v{208+2*i}, v{209+2*i}")
    if DRY:
        E("s_cmp_lg_u32 s5, 0")
        E("s_cbranch_scc1 K_gmask")
    E("ds_write_b128 v64, v[36:39] offset:1152")
    E("s_cmp_eq_u32 s62, 0")
    E("s_cbranch_scc0 K_tw1")
    E("s_waitcnt vmcnt(5)")
    L("K_tw1")
    E("ds_write_b128 v64, v[32:35]")
    E("s_waitcnt lgkmcnt(0)")
    E("ds_read_b64_tr_b16 v[76:77], v65")
    E("ds_read_b64_tr_b16 v[78:79], v65 offset:576")
    E("ds_read_b64_tr_b16 v[80:81], v65 offset:64")
    E("ds_read_b64_tr_b16 v[82:83], v65 offset:640")
    E("s_waitcnt lgkmcnt(2)")
    E(f"buffer_store_dwordx4 v[76:79], v69, s[{SRD_WS}:{SRD_WS+3}], s70 offen sc1")
    E("s_waitcnt lgkmcnt(0)")
    E(f"buffer_store_dwordx4 v[80:83], v69, s[{SRD_WS}:{SRD_WS+3}], s71 offen sc1")
    E("s_cmp_eq_u32 s62, 1")
    E("s_cbranch_scc1 K_tdone")
    E("s_mov_b32 s62, 1")
    E("s_add_u32 s70, s70, 64")
    E("s_add_u32 s71, s71, 64")
    TSTAMP(4)
    E("s_waitcnt vmcnt(5)")
    TSTAMP(5)
    for i in range(4):
        E(f"v_mov_b32 v{96+i}, v{144+i}")
        E(f"v_mov_b32 v{32+i}, v{148+i}")
    E("s_branch K_tloop")
    L("K_tdone")
    STAMP(2)
    E("s_waitcnt vmcnt(0)")
    post(0)
    L("K_nwait")
    E(f"ds_read_b64 v[92:93], v30 offset:272")
    E("s_waitcnt lgkmcnt(0)")
    E("v_readfirstlane_b32 s56, v92")
    E("v_readfirstlane_b32 s57, v93")
    E("s_cmp_lg_u32 s56, 0")
    E("s_cbranch_scc1 K_nok")
    E("s_sleep 1")
    E("s_branch K_nwait")
    L("K_nok")
    E("s_cmp_lg_u32 s3, 4")
    E("s_cbranch_scc1 K_nopub")
    waitf(0, 4, 8, 144)
    E("s_mov_b64 exec, 1")
    E(f"buffer_store_dwordx2 v[92:93], v227, s[{SRD_WS}:{SRD_WS+3}], s9 offen sc1")
    E("s_mov_b64 exec, -1")
    STAMP(9)
    L("K_nopub")
    E("s_mov_b32 s62, 0")
    L("K_gmask")
    for i in range(4):
        E(f"v_and_b32 v{216+2*i}, s78, v{60+i}")
        E(f"v_and_b32 v{217+2*i}, s43, v{60+i}")
    L("K_gloop")
    for i in range(4):
        E(f"v_dot2_f32_bf16 v{208+2*i}, v{56+i}, v{216+2*i}, 0")
        E(f"v_dot2_f32_bf16 v{209+2*i}, v{56+i}, v{217+2*i}, 0")
    E("s_nop 0")
    for i in range(4):
        E(f"v_cvt_pk_bf16_f32 v{192+i}, v{208+2*i}, v{209+2*i}")
    for i in range(4):
        E(f"v_dot2_f32_bf16 v{208+i}, v{192+i}, s79, 0")
    E("s_nop 2")
    E("v_add_f32 v208, v208, v209")
    E("v_add_f32 v210, v210, v211")
    E("v_add_f32 v74, v208, v210")
    for dpp in ["row_shr:1", "row_shr:2", "row_shr:4", "row_shr:8"]:
        E("s_nop 1")
        E(f"v_add_f32_dpp v74, v74, v74 {dpp} row_mask:0xf bank_mask:0xf bound_ctrl:0")
    E("s_nop 1")
    E("v_add_f32_dpp v74, v74, v74 row_bcast:15 row_mask:0xa bank_mask:0xf")
    E("s_nop 1")
    E("v_add_f32_dpp v74, v74, v74 row_bcast:31 row_mask:0xc bank_mask:0xf")
    E("s_nop 1")
    E("v_cvt_pk_bf16_f32 v74, v74, v74")
    E("v_lshlrev_b32 v74, 16, v74")
    E("v_mul_f32 v74, 0xbfb8aa3b, v74")
    E("v_exp_f32 v74, v74")
    E("s_nop 0")
    E("v_add_f32 v74, 1.0, v74")
    E("v_rcp_f32 v74, v74")
    E("s_nop 0")
    E("v_cvt_pk_bf16_f32 v74, v74, v74")
    E("s_lshl_b32 s72, s67, 1")
    E("s_add_u32 s72, s72, s62")
    E("s_lshl_b32 s72, s72, 1")
    E(f"s_add_u32 s72, s72, {SYN + 256}")
    E("v_mov_b32 v75, s72")
    if DRY:
        E("s_cmp_lg_u32 s5, 0")
        E("s_cbranch_scc1 K_breal")
    E("v_cmp_eq_u32 vcc, 63, v1")
    E("s_and_saveexec_b64 s[74:75], vcc")
    E("ds_write_b16 v75, v74")
    E("s_mov_b64 exec, s[74:75]")
    E("s_cmp_eq_u32 s62, 1")
    E("s_cbranch_scc1 K_bwave")
    E("s_mov_b32 s62, 1")
    for i in range(4):
        E(f"v_mov_b32 v{56+i}, v{152+i}")
    E("s_branch K_gloop")
    L("K_kgen")
    E(f"s_setprio {APRIO}")
    STAMP(2)
    E("v_and_b32 v20, 15, v1")
    E("v_lshrrev_b32 v21, 4, v1")
    E("s_mov_b32 s74, 0x00040000")
    E("s_mov_b32 s75, 0x02000100")
    E("s_mov_b32 s76, 0x00010001")
    E("s_mov_b32 s77, 0x00040002")
    E("s_mov_b32 s78, 0x00020002")
    E("s_mov_b32 s79, 0x01000004")
    E("v_lshrrev_b32 v22, 2, v20")
    E("v_lshlrev_b32 v22, 4, v22")
    E("v_lshrrev_b64 v[32:33], v22, s[74:75]")
    E("v_and_b32 v32, 0xffff, v32")
    E("v_lshrrev_b64 v[34:35], v22, s[76:77]")
    E("v_and_b32 v34, 0xffff, v34")
    E("v_and_b32 v23, 1, v20")
    E("v_mad_u32_u24 v32, v23, v34, v32")
    E("v_lshrrev_b64 v[34:35], v22, s[78:79]")
    E("v_and_b32 v34, 0xffff, v34")
    E("v_bfe_u32 v23, v20, 1, 1")
    E("v_mad_u32_u24 v32, v23, v34, v32")
    E("v_cvt_f32_u32 v24, v32")
    E("v_lshrrev_b32 v33, 7, v32")
    E("v_and_b32 v32, 127, v32")
    E("v_cvt_f32_u32 v16, v33")
    E("v_cvt_f32_u32 v17, v32")
    E("v_add_u32 v32, 8, v20")
    E("v_cvt_f32_u32 v18, v32")
    E("v_mul_f32 v26, 0x43000000, v18")
    E("v_lshlrev_b32 v22, 3, v20")
    E("v_cvt_f32_u32 v27, v22")
    if DRY > 1:
        E("s_mov_b32 s5, 1")
        E("s_mov_b64 exec, 0")
        E("s_branch K_dA")
        L("K_areal")
        E("s_mov_b32 s5, 0")
        E("s_mov_b64 exec, -1")
    E("s_waitcnt lgkmcnt(0)")
    E("s_lshl_b32 s70, s22, 16")
    E("s_and_b32 s22, s22, s43")
    E("s_cmp_eq_u32 s69, 0")
    E("s_cselect_b32 s22, s70, s22")
    E("v_mov_b32 v40, 0x3fb8aa3b")
    E("v_mul_f32 v41, s22, v40")
    E("v_exp_f32 v41, v41")
    E("s_nop 0")
    E("v_cvt_pk_bf16_f32 v41, v41, v41")
    E("v_lshlrev_b32 v41, 16, v41")
    E(f"s_waitcnt vmcnt({2 if TOUCH else 0})")
    L("K_dA")
    for i in range(6):
        E(f"v_lshlrev_b32 v{84+i}, 16, v{84+i}")
    E("v_mul_f32 v84, v41, v84")
    E("v_mul_f32 v85, v41, v85")
    E("v_mul_f32 v86, v41, v86")
    E("v_mul_f32 v87, v41, v87")
    E("v_mul_f32 v44, v40, v84")
    E("v_mul_f32 v45, 0.15915494, v85")
    E("v_rndne_f32 v46, v45")
    E("v_sub_f32 v45, v45, v46")
    E("v_mul_f32 v46, 0x43000000, v45")
    E("v_rndne_f32 v47, v46")
    E("v_sub_f32 v46, v46, v47")
    E("v_mul_f32 v84, 0x43000000, v44")
    E("v_exp_f32 v84, v84")
    E("v_cos_f32 v47, v46")
    E("v_sin_f32 v85, v46")
    E("v_mul_f32 v80, v88, v86")
    E("v_fma_f32 v80, -v89, v87, v80")
    E("v_mul_f32 v81, v88, v87")
    E("v_fma_f32 v81, v89, v86, v81")
    E("v_mul_f32 v47, v84, v47")
    E("v_mul_f32 v82, v84, v85")
    E("s_lshl_b32 s70, s3, 11")
    E(f"s_add_u32 s70, s70, {S_P}")
    E("v_lshl_add_u32 v42, v1, 5, s70")
    E("ds_write_b128 v42, v[44:47]")
    E("ds_write_b128 v42, v[80:83] offset:16")
    E("v_lshl_add_u32 v43, v21, 6, s70")
    for r in range(48, 60):
        E(f"v_mov_b32 v{r}, 0")
    E("s_waitcnt lgkmcnt(0)")
    for k in range(4):
        E(f"ds_read_b128 {R4(60+4*k)}, v43 offset:{16*k}")
    E("s_mov_b32 s62, 0")
    E(f"s_mov_b32 s63, {NA}")
    if DRY > 1:
        E("s_cmp_lg_u32 s5, 0")
        E("s_cselect_b32 s63, 1, s63")
    L("K_loop")
    E("s_waitcnt lgkmcnt(0)")
    TT = [[96, 100, 104, 108], [136, 140, 144, 148]]
    for nn in range(2):
        zr, zi, w128 = 60 + 8 * nn, 61 + 8 * nn, 62 + 8 * nn
        T = TT[nn]
        E(f"v_mul_f32 v{T[3]}, v{zr}, v27")
        E(f"v_mul_f32 v{T[3]+1}, v{zi}, v27")
        E(f"v_mul_f32 v{T[0]}, v{zr}, v24")
        E(f"v_mul_f32 v{T[0]+1}, v{zi}, v17")
        E(f"v_mul_f32 v{T[2]}, v{zr}, v26")
        E(f"v_mul_f32 v{T[2]+1}, v{w128}, v18")
        E(f"v_fma_f32 v{T[0]+1}, v{w128}, v16, v{T[0]+1}")
        for k in range(4):
            E(f"v_mov_b32 v{76+4*nn+k}, v{63+8*nn+k}")
    E("v_add_u32 v43, 256, v43")
    for k in range(4):
        E(f"ds_read_b128 {R4(60+4*k)}, v43 offset:{16*k}")
    for nn in range(2):
        er, cbr, cbi, ei = 76 + 4 * nn, 77 + 4 * nn, 78 + 4 * nn, 79 + 4 * nn
        T = TT[nn]
        for t in [T[3], T[0], T[2]]:
            E(f"v_exp_f32 v{t}, v{t}")
            E(f"v_cos_f32 v{t+2}, v{t+1}")
            E(f"v_sin_f32 v{t+3}, v{t+1}")
        t = T[3]
        E(f"v_mul_f32 v{t+2}, v{t}, v{t+2}")
        E(f"v_mul_f32 v{t+3}, v{t}, v{t+3}")
        E(f"v_mul_f32 v{t}, v{cbr}, v{t+2}")
        E(f"v_mul_f32 v{t+1}, v{cbr}, v{t+3}")
        E(f"v_fma_f32 v{t}, -v{cbi}, v{t+3}, v{t}")
        E(f"v_fma_f32 v{t+3}, -v{cbi}, v{t+2}, -v{t+1}")
        E(f"v_mov_b32 v{t+2}, v{t}")
        for t in [T[0], T[2]]:
            E(f"v_mul_f32 v{t+2}, v{t}, v{t+2}")
            E(f"v_mul_f32 v{t+3}, v{t}, v{t+3}")
        p, q = T[0], T[1]
        E(f"v_mul_f32 v{q+2}, v{p+2}, v{er}")
        E(f"v_mul_f32 v{q+3}, v{p+2}, v{ei}")
        E(f"v_fma_f32 v{q+2}, -v{p+3}, v{ei}, v{q+2}")
        E(f"v_fma_f32 v{q+3}, v{p+3}, v{er}, v{q+3}")
        for k in range(4):
            t = T[k]
            hi = (112 + 2 * k + nn) if k < 3 else (124 + nn)
            lo = (118 + 2 * k + nn) if k < 3 else (126 + nn)
            E(f"v_cvt_pk_bf16_f32 v{hi}, v{t+2}, v{t+3}")
            E(f"v_lshlrev_b32 v{t}, 16, v{hi}")
            E(f"v_and_b32 v{t+1}, s43, v{hi}")
            E(f"v_sub_f32 v{t}, v{t+2}, v{t}")
            E(f"v_sub_f32 v{t+1}, v{t+3}, v{t+1}")
            E(f"v_cvt_pk_bf16_f32 v{lo}, v{t}, v{t+1}")
    E("s_add_u32 s62, s62, 1")
    E(f"s_cmp_eq_u32 s62, {LATE}")
    for k in range(3):
        a_ = 48 + 4 * k
        E(f"v_mfma_f32_16x16x16_bf16 {R4(a_)}, v[{112+2*k}:{113+2*k}], v[124:125], {R4(a_)}")
        E(f"v_mfma_f32_16x16x16_bf16 {R4(a_)}, v[{112+2*k}:{113+2*k}], v[126:127], {R4(a_)}")
        E(f"v_mfma_f32_16x16x16_bf16 {R4(a_)}, v[{118+2*k}:{119+2*k}], v[124:125], {R4(a_)}")
    E("s_cbranch_scc0 K_nost")
    E("s_lshl_b32 s70, s64, 13")
    E("s_lshl_b32 s71, s3, 11")
    E("s_add_u32 s70, s70, s71")
    E(f"s_mul_i32 s71, s69, {XROW}")
    E("s_lshl_b32 s72, s61, 11")
    E("s_add_u32 s71, s71, s72")
    E(f"s_add_u32 s71, s71, {XBASE + 4*XROW + 32}")
    E("s_mov_b32 m0, s71")
    E("s_nop 0")
    E(f"buffer_load_dwordx4 v9, s[{SRD_A}:{SRD_A+3}], s70 offen lds")
    E(f"buffer_load_dwordx4 v9, s[{SRD_A}:{SRD_A+3}], s70 offen offset:1024 lds")
    L("K_nost")
    E("s_cmp_lg_u32 s3, 0")
    E("s_cbranch_scc1 K_non")
    E("s_cmp_eq_u32 s62, 1")
    E("s_cbranch_scc0 K_non1")
    E(f"buffer_load_dwordx2 v[92:93], v95, s[{SRD_DBGB}:{SRD_DBGB+3}], 0 offen sc1")
    L("K_non1")
    E("s_cmp_eq_u32 s62, 2")
    E("s_cbranch_scc0 K_non")
    E("s_mov_b32 s70, 0")
    L("K_npoll")
    E("s_waitcnt vmcnt(0)")
    E("v_readfirstlane_b32 s71, v92")
    E("s_add_u32 s70, s70, 1")
    E("s_cmp_lg_u32 s71, 0")
    E("s_cbranch_scc1 K_ngot")
    E("s_sleep 4")
    E(f"buffer_load_dwordx2 v[92:93], v95, s[{SRD_DBGB}:{SRD_DBGB+3}], 0 offen sc1")
    E("s_cmp_lt_u32 s70, 0x40000")
    E("s_cbranch_scc1 K_npoll")
    E("s_waitcnt vmcnt(0)")
    E("v_mov_b32 v92, 1")
    L("K_ngot")
    E("ds_write_b64 v30, v[92:93] offset:272")
    L("K_non")
    E(f"s_cmp_eq_u32 s62, {LATE+3}")
    E("s_cbranch_scc0 K_nost2")
    E("s_waitcnt vmcnt(0)")
    post(0)
    L("K_nost2")
    E("s_cmp_lt_u32 s62, s63")
    E("s_cbranch_scc1 K_loop")
    E("s_waitcnt lgkmcnt(0)")
    STAMP(3)
    E("s_mul_i32 s70, s3, 3072")
    E(f"s_add_u32 s70, s70, {S_TR}")
    E("v_lshl_add_u32 v39, v1, 4, s70")
    E("v_and_b32 v4, 15, v1")
    E("v_lshrrev_b32 v5, 4, v1")
    E("v_lshlrev_b32 v6, 2, v4")
    E("v_add_u32 v6, v6, v5")
    E("s_nop 1")
    for k in range(3):
        E(f"ds_write_b128 v39, {R4(48+4*k)} offset:{1024*k}")
    post(1)
    E("s_mul_i32 s70, s69, 12288")
    E(f"s_add_u32 s70, s70, {S_KT}")
    E("v_lshlrev_b32 v32, 5, v20")
    E("v_add_u32 v32, s70, v32")
    E("v_lshl_add_u32 v44, v21, 11, v32")
    E("v_add_u32 v44, 4096, v44")
    E("v_add_u32 v45, 512, v44")
    E("v_add_u32 v46, 1024, v44")
    E("v_add_u32 v47, 1536, v44")
    E("v_lshlrev_b32 v22, 4, v21")
    E("v_lshrrev_b64 v[60:61], v22, s[74:75]")
    E("v_and_b32 v60, 0xffff, v60")
    E("v_lshl_add_u32 v35, v60, 2, v32")
    E("s_lshl_b32 s71, s61, 9")
    E("v_add_u32 v35, s71, v35")
    E("v_lshrrev_b64 v[60:61], v22, s[76:77]")
    E("v_and_b32 v60, 0xffff, v60")
    E("v_lshl_add_u32 v36, v60, 2, v35")
    E("v_lshrrev_b64 v[62:63], v22, s[78:79]")
    E("v_and_b32 v62, 0xffff, v62")
    E("v_lshl_add_u32 v37, v62, 2, v35")
    E("v_lshl_add_u32 v38, v62, 2, v36")
    E("s_mul_i32 s70, s69, 6144")
    E(f"s_add_u32 s70, s70, {S_TR}")
    E("v_lshl_add_u32 v39, v1, 4, s70")
    E("s_lshl_b32 s71, s61, 10")
    E("v_add_u32 v40, s71, v39")
    E("s_lshl_b32 s71, s61, 9")
    E("v_lshl_add_u32 v60, v1, 3, s71")
    E("s_mul_i32 s70, s69, 12288")
    E(f"s_add_u32 s70, s70, {S_KT}")
    for rr in range(2):
        for e in range(0, 8, 2):
            E(f"v_add_u32 v62, {e + 1024*rr}, v60")
            E(f"v_add_u32 v63, {e + 1 + 1024*rr}, v60")
            E("v_cvt_f32_u32 v62, v62")
            E("v_cvt_f32_u32 v63, v63")
            E("v_cvt_pk_bf16_f32 v62, v62, v63")
            E("v_and_b32 v63, s43, v62")
            E("v_lshlrev_b32 v62, 16, v62")
            E("v_cvt_u32_f32 v62, v62")
            E("v_cvt_u32_f32 v63, v63")
            E(f"v_lshl_add_u32 v{64+8*rr+e}, v62, 2, s70")
            E(f"v_lshl_add_u32 v{65+8*rr+e}, v63, 2, s70")
    E(f"s_mul_i32 s70, s69, {XROW}")
    E(f"s_add_u32 s70, s70, {XBASE + 32}")
    E("v_lshl_add_u32 v61, v60, 1, s70")
    waitf(1, 0, 4, 96)
    srcoff = [0, 3072]
    for k in range(2):
        E(f"ds_read_b128 {R4(96+4*k)}, v40 offset:{srcoff[k]}")
    for k in range(2):
        E(f"ds_read_b128 {R4(112+4*k)}, v39 offset:{srcoff[k] + 2048}")
    for (b, dst, w) in [(96, 35, 2), (112, 44, 0)]:
        E(f"s_waitcnt lgkmcnt({w})")
        for e in range(4):
            E(f"v_add_f32 v{b+e}, v{b+e}, v{b+4+e}")
    for (b, dst) in [(96, 35), (112, 44)]:
        for e in range(4):
            E(f"ds_write_b32 v{dst+e}, v{b+e}")
    post(2)
    waitf(2, 0, 4, 96)
    for e in range(16):
        E(f"ds_read_b32 v{96+e}, v{64+e}")
    for rr in range(2):
        for e in range(0, 8, 2):
            src = 96 + 8 * rr + e
            E(f"s_waitcnt lgkmcnt({14 - 8*rr - e})")
            E(f"v_cvt_pk_bf16_f32 v{112+8*rr+e//2}, v{src}, v{src+1}")
            E(f"v_lshlrev_b32 v62, 16, v{112+8*rr+e//2}")
            E(f"v_and_b32 v63, s43, v{112+8*rr+e//2}")
            E(f"v_sub_f32 v62, v{src}, v62")
            E(f"v_sub_f32 v63, v{src+1}, v63")
            E(f"v_cvt_pk_bf16_f32 v{116+8*rr+e//2}, v62, v63")
    for rr in range(2):
        E(f"ds_write_b128 v61, {R4(112+8*rr)} offset:{2048*rr}")
        E(f"ds_write_b128 v61, {R4(116+8*rr)} offset:{2*XROW + 2048*rr}")
    post(3)
    STAMP(4)
    E("s_branch K_csetup")
    L("K_bwave")
    post(1)
    STAMP(3)
    E("s_cmp_lg_u32 s3, 5")
    E("s_cbranch_scc1 K_norec")
    waitf(1, 4, 8, 144)
    E(f"ds_read_b64 v[144:145], v225 offset:{SYN + 256}")
    E("v_mov_b32 v146, s56")
    E("v_mov_b32 v147, s57")
    E("s_waitcnt lgkmcnt(0)")
    E("s_mov_b64 exec, 3")
    E(f"buffer_store_dwordx4 v[144:147], v227, s[{SRD_WS}:{SRD_WS+3}], s8 offen sc1")
    E("s_mov_b64 exec, -1")
    L("K_norec")
    E("s_cmp_lg_u32 s3, 4")
    E("s_cbranch_scc1 K_pwait")
    E("s_mov_b32 s70, 0")
    L("K_poll")
    E(f"buffer_load_dwordx2 v[112:113], v226, s[{SRD_WS}:{SRD_WS+3}], s7 offen sc1")
    E("s_waitcnt vmcnt(0)")
    E("v_xor_b32 v112, s56, v112")
    E("v_xor_b32 v113, s57, v113")
    E("v_or_b32 v112, v112, v113")
    E("v_cmp_ne_u32 vcc, 0, v112")
    E("s_add_u32 s70, s70, 1")
    E("s_cmp_eq_u64 vcc, 0")
    E("s_cbranch_scc1 K_pok")
    E(f"s_sleep {PSLEEP}")
    E("s_cmp_lt_u32 s70, 0x40000")
    E("s_cbranch_scc1 K_poll")
    L("K_pok")
    post(5)
    E("s_branch K_pdone")
    L("K_pwait")
    E(f"ds_read_b32 v93, v30 offset:{32*5 + 16}")
    E("s_waitcnt lgkmcnt(0)")
    E("v_readfirstlane_b32 s70, v93")
    E("s_cmp_eq_u32 s70, 1")
    E("s_cbranch_scc1 K_pdone")
    E("s_sleep 1")
    E("s_branch K_pwait")
    L("K_pdone")
    STAMP(4)
    for p in range(4):
        E(f"buffer_load_dwordx4 {R4(96+4*p)}, v9, s[{SRD_WS}:{SRD_WS+3}], s6 offen offset:{1024*p} sc1")
    for k in range(5):
        E(f"v_mov_b32 v{16+k}, v{228+k}")
    for p in range(4):
        E(f"s_waitcnt vmcnt({3-p})")
        E(f"ds_write_b128 v224, {R4(96+4*p)} offset:{64*p}")
    post(4)
    E(f"s_setprio {CBPRIO}")
    E("s_branch K_convB")
    L("K_csetup")
    vB, vA, vPM, vPC, vF = 16, 17, 18, 19, 20
    E("s_lshl_b32 s70, s3, 1")
    E(f"s_mul_i32 s70, s70, {ZROW}")
    E(f"s_add_u32 s70, s70, {ZBASE + 8}")
    E(f"v_lshlrev_b32 v{vB}, 3, v4")
    E(f"v_lshl_add_u32 v{vB}, v5, 4, v{vB}")
    E(f"v_add_u32 v{vB}, s70, v{vB}")
    E("v_and_b32 v22, 3, v1")
    E("v_bfe_u32 v23, v1, 2, 2")
    E("v_sub_u32 v22, v22, v23")
    E("v_lshlrev_b32 v22, 3, v22")
    E("v_lshlrev_b32 v23, 6, v5")
    E("v_sub_u32 v22, v22, v23")
    E("s_lshl_b32 s70, s68, 2")
    E("s_add_u32 s70, s70, s69")
    E(f"s_mul_i32 s70, s70, {XROW}")
    E(f"s_add_u32 s70, s70, {XBASE + 224}")
    E(f"v_add_u32 v{vA}, s70, v22")
    E("s_cmp_eq_u32 s68, 0")
    E(f"s_mov_b32 s71, {PB}")
    E(f"s_cselect_b32 s71, {PA}, s71")
    E(f"s_mul_i32 s70, s67, {PMS}")
    E("s_add_u32 s70, s70, s71")
    E("s_add_u32 s72, s70, 16")
    E(f"v_lshl_add_u32 v{vPM}, v1, 4, s72")
    E(f"s_mul_i32 s72, s67, {PCS}")
    E("s_add_u32 s72, s72, s71")
    E(f"s_add_u32 s72, s72, {4*PMS}")
    E("s_add_u32 s73, s72, 16")
    E(f"v_lshl_add_u32 v{vPC}, v1, 2, s73")
    E("s_lshl_b32 s73, s3, 2")
    E(f"s_add_u32 s73, s73, {FLG}")
    E(f"v_mov_b32 v{vF}, s73")
    E("v_mov_b32 v22, s70")
    E("v_mov_b32 v23, s72")
    if DRY > 1:
        E("s_cmp_lg_u32 s5, 0")
        E("s_cbranch_scc1 K_areal")
    waitf(3, 0, 4, 24)
    E("v_mov_b32 v24, 0")
    E("v_mov_b32 v25, 0")
    E("v_mov_b32 v26, 0")
    E("v_mov_b32 v27, 0")
    E("ds_write_b128 v22, v[24:27]")
    E("ds_write_b128 v23, v[24:27]")
    waitf(4, 4, 8, 24)
    E("s_setprio 0")
    STAMP(5)

    def Bf(pp, jj):
        return 64 + 64 * pp + 4 * jj
    def acc(pp, q):
        return 192 + 32 * pp + 4 * q
    def conv(nx):
        ring = 8 // nx
        def Af(n, x):
            return 32 + 4 * ((n % ring) * nx + x)
        queue = []
        def rdA(n):
            for x in range(nx):
                a = Af(n, x)
                off = 256 * n + x * 2 * XROW
                E(f"ds_read_b64_tr_b16 v[{a}:{a+1}], v{vA} offset:{off+32}")
                E(f"ds_read_b64_tr_b16 v[{a+2}:{a+3}], v{vA} offset:{off}")
                queue.extend([("A", n), ("A", n)])
        def rdB(pp, jj):
            b = Bf(pp, jj)
            E(f"ds_read_b64 v[{b}:{b+1}], v{vB} offset:{pp*ZROW + 64*jj}")
            E(f"ds_read_b64 v[{b+2}:{b+3}], v{vB} offset:{pp*ZROW + 64*jj + 8}")
            queue.extend([("B", pp, jj), ("B", pp, jj)])
        def need(keys):
            last = -1
            for idx, k in enumerate(queue):
                if k in keys:
                    last = idx
            if last >= 0:
                n_after = len(queue) - 1 - last
                assert n_after <= 15
                E(f"s_waitcnt lgkmcnt({n_after})")
                del queue[:last + 1]
        def mf(pp, q, n, x, first=False):
            jj = 2 * q - n + 1
            c = "0" if first else R4(acc(pp, q))
            E(f"v_mfma_f32_16x16x32_bf16 {R4(acc(pp,q))}, {R4(Af(n,x))}, {R4(Bf(pp,jj))}, {c}")
        def writeout(q):
            a0, a1 = acc(0, q), acc(1, q)
            E(f"v_add_f32 v{a0+1}, v{a0+1}, v{a1}")
            E(f"v_add_f32 v{a0+2}, v{a0+2}, v{a1+1}")
            E(f"v_add_f32 v{a0+3}, v{a0+3}, v{a1+2}")
            E(f"ds_write_b32 v{vPC}, v{a1+3} offset:{256*q}")
            E(f"ds_write_b128 v{vPM}, {R4(a0)} offset:{1024*q}")
            E(f"ds_write_b32 v{vF}, v29 offset:{32*q}")
            queue.extend([("W",), ("W",), ("W",)])
        rdA(1)
        rdB(0, 0)
        rdA(0)
        rdB(0, 1)
        rdB(1, 0)
        for q in range(8):
            for pp in range(2):
                if pp == 0:
                    nxt = [(1, 2 * q + 1)] + ([(0, 2 * q + 2)] if q < 7 else [])
                else:
                    nxt = [(0, 2 * q + 3), (1, 2 * q + 2)] if q < 7 else []
                need({("A", 1), ("B", pp, 2 * q)})
                for x in range(nx):
                    mf(pp, q, 1, x, first=(x == 0))
                if nxt:
                    rdB(*nxt[0])
                elif pp == 1:
                    rdA(2)
                need({("A", 0), ("B", pp, 2 * q + 1)})
                for x in range(nx):
                    mf(pp, q, 0, x)
                if len(nxt) > 1:
                    rdB(*nxt[1])
                elif pp == 1:
                    rdA(3)
        if nx == 1:
            sched = {2: [4], 3: [5], 4: [6], 5: [7], 6: [8], 7: [9], 8: [10, 11], 9: [12, 13], 10: [14, 15]}
        else:
            sched = {n: [n + 2] for n in range(2, 14)}
        for n in range(2, 16):
            need({("A", n)})
            q0 = n >> 1
            k = 0
            for q in range(q0, 8):
                for pp in range(2):
                    for x in range(nx):
                        mf(pp, q, n, x)
                    k += 1
                    if k == 1:
                        for m in sched.get(n, []):
                            rdA(m)
                if n % 2 == 0 and q == min(q0 + 1, 7):
                    if n == 14:
                        E("s_nop 3")
                    writeout(q0 - 1)
        E("s_nop 7")
        writeout(7)
    conv(2)
    STAMP(6)
    E("s_mov_b32 s73, 7")
    E("s_branch K_fin")
    L("K_convB")
    waitf(0, 0, 4, 24)
    waitf(4, 4, 8, 24)
    E(f"buffer_load_dwordx4 v[12:15], v9, s[{SRD_WS}:{SRD_WS+3}], s60 offen sc1")
    E(f"buffer_load_dwordx4 v[24:27], v9, s[{SRD_WS}:{SRD_WS+3}], s60 offen offset:1024 sc1")
    STAMP(5)
    conv(1)
    STAMP(6)
    E("s_mov_b32 s70, 0")
    L("K_gpoll")
    E("s_waitcnt vmcnt(0)")
    E("v_xor_b32 v14, s56, v14")
    E("v_xor_b32 v15, s57, v15")
    E("v_xor_b32 v26, s56, v26")
    E("v_xor_b32 v27, s57, v27")
    E("v_or_b32 v14, v14, v15")
    E("v_or_b32 v26, v26, v27")
    E("v_or_b32 v14, v14, v26")
    E("v_cmp_ne_u32 vcc, 0, v14")
    E("s_add_u32 s70, s70, 1")
    E("s_cmp_eq_u64 vcc, 0")
    E("s_cbranch_scc1 K_gok")
    E("s_cmp_ge_u32 s70, 0x40000")
    E("s_cbranch_scc1 K_gok")
    E("s_sleep 8")
    E(f"buffer_load_dwordx4 v[12:15], v9, s[{SRD_WS}:{SRD_WS+3}], s60 offen sc1")
    E(f"buffer_load_dwordx4 v[24:27], v9, s[{SRD_WS}:{SRD_WS+3}], s60 offen offset:1024 sc1")
    E("s_branch K_gpoll")
    L("K_gok")
    for (src, dst) in [(12, 32), (24, 36)]:
        for hh in range(2):
            E(f"v_lshlrev_b32 v{dst+2*hh}, 16, v{src+hh}")
            E(f"v_and_b32 v{dst+2*hh+1}, s43, v{src+hh}")
        for e in range(4):
            E(f"v_sub_f32 v40, 1.0, v{dst+e}")
            E(f"v_cvt_pk_bf16_f32 v{dst+e}, v{dst+e}, v40")
    E("ds_write_b128 v10, v[32:35]")
    E("ds_write_b128 v10, v[36:39] offset:1024")
    post(6)
    E("s_mov_b32 s73, 0")
    if FINPRIO:
        E(f"s_setprio {FINPRIO}")
    L("K_fin")
    E("v_subrev_u32 v16, 16, v1")
    E("v_add_u32 v17, 47, v1")
    E("v_cmp_eq_u32 vcc, 0, v1")
    E("s_nop 1")
    E("v_cndmask_b32 v17, v17, -1, vcc")
    E("v_cmp_gt_u32 vcc, 16, v1")
    E("s_lshl_b32 s74, s73, 6")
    E("s_nop 0")
    E("v_cndmask_b32 v16, v16, v17, vcc")
    E("v_add_u32 v16, s74, v16")
    E("v_add_u32 v22, s74, v1")
    E("v_add_u32 v6, s74, v6")
    E("s_lshl_b32 s70, s67, 2")
    E(f"s_add_u32 s70, s70, {PB + 16}")
    E("v_lshl_add_u32 v18, v22, 4, s70")
    E("s_add_u32 s70, s67, 2")
    E("s_and_b32 s70, s70, 3")
    E("s_lshl_b32 s70, s70, 2")
    E(f"s_add_u32 s70, s70, {PB + 16 + PMS}")
    E("s_cmp_lt_u32 s67, 2")
    E("s_cselect_b64 vcc, -1, 0")
    E("v_cndmask_b32 v17, v22, v16, vcc")
    E("v_lshl_add_u32 v19, v17, 4, s70")
    E("s_lshr_b32 s70, s67, 1")
    E(f"s_mul_i32 s70, s70, {PCS}")
    E(f"s_add_u32 s70, s70, {PB + 4*PMS + 16}")
    E("v_lshl_add_u32 v20, v16, 2, s70")
    E("s_and_b32 s70, s67, 1")
    E("s_cmp_eq_u32 s70, 0")
    E("s_cselect_b64 vcc, -1, 0")
    E("s_cselect_b32 s75, 256, 0")
    E(f"v_mov_b32 v17, {PB + 4*PMS}")
    E("v_cndmask_b32 v20, v17, v20, vcc")
    E(f"s_mul_i32 s70, s67, {ZROW}")
    E("v_lshl_add_u32 v21, v6, 1, s70")
    E("s_lshl_b32 s70, s67, 10")
    E("v_lshl_add_u32 v22, v6, 12, s70")
    E("s_lshl_b32 s70, s67, 2")
    E(f"s_add_u32 s70, s70, {GB}")
    E("v_lshl_add_u32 v7, v6, 4, s70")
    E("s_lshl_b32 s70, s73, 5")
    E(f"s_add_u32 s70, s70, {FLG}")
    E("v_mov_b32 v23, s70")
    E("s_lshl_b32 s72, s64, 2")
    E("s_lshl_b32 s76, s23, 16")
    E("s_and_b32 s77, s23, s43")
    E("s_lshl_b32 s78, s42, 16")
    E("s_and_b32 s79, s42, s43")
    E("s_sub_u32 s74, 8, s68")
    waitf(6, 4, 8, 32)
    L("K_hloop")
    for r in range(48, 52):
        E(f"v_mov_b32 v{r}, 0")
    for k in range(4):
        E(f"ds_read_u16_d16_hi v{48+k}, v21 offset:{ZBASE + 4*k*ZROW + 128}")
    E("ds_read_b32 v8, v7")
    L("K_hpoll")
    E("ds_read_b128 v[32:35], v23")
    E("ds_read_b128 v[36:39], v23 offset:16")
    E("s_waitcnt lgkmcnt(0)")
    for k in range(0, 8, 2):
        E(f"v_and_b32 v{32+k}, v{32+k}, v{33+k}")
    E("v_and_b32 v32, v32, v34")
    E("v_and_b32 v36, v36, v38")
    E("v_and_b32 v32, v32, v36")
    E("s_nop 0")
    E("v_readfirstlane_b32 s70, v32")
    E("s_cmp_eq_u32 s70, 1")
    E("s_cbranch_scc1 K_go")
    E("s_sleep 3")
    E("s_branch K_hpoll")
    L("K_go")
    for k in range(4):
        X, c = k >> 1, k & 1
        base = PSTRIDE if X == 0 else 0
        E(f"ds_read_b32 v{32+k}, v18 offset:{base + 2*c*PMS}")
        E(f"ds_read_b32 v{36+k}, v19 offset:{base + 2*c*PMS}")
        E(f"ds_read_b32 v{40+k}, v20 offset:{base + 2*c*PCS}")
    def rnd(a, b):
        E(f"v_cvt_pk_bf16_f32 v{a}, v{a}, v{b}")
        E(f"v_and_b32 v{b}, s43, v{a}")
        E(f"v_lshlrev_b32 v{a}, 16, v{a}")
    yA0, yA1, yB0, yB1 = 32, 33, 34, 35
    u0, u1, k0, k1 = 48, 49, 50, 51
    t = 52
    E(f"v_mul_f32 v{t}, s76, v{u0}")
    E(f"v_mul_f32 v{t+1}, s77, v{u1}")
    E(f"v_mul_f32 v{t+2}, s78, v{k0}")
    E(f"v_mul_f32 v{t+3}, s79, v{k1}")
    rnd(t, t + 1)
    rnd(t + 2, t + 3)
    E(f"v_lshlrev_b32 v{t+4}, 16, v8")
    E(f"v_and_b32 v{t+5}, s43, v8")
    E("v_add_u32 v18, 1024, v18")
    E("v_add_u32 v19, 1024, v19")
    E("v_add_u32 v20, s75, v20")
    E("v_add_u32 v21, 128, v21")
    E("v_add_u32 v23, 32, v23")
    E("v_add_u32 v7, 1024, v7")
    for k in range(4):
        E(f"s_waitcnt lgkmcnt({9-3*k})")
        E(f"v_add_f32 v{32+k}, v{32+k}, v{36+k}")
        E(f"v_add_f32 v{32+k}, v{32+k}, v{40+k}")
    rnd(yA0, yA1)
    rnd(yB0, yB1)
    E(f"v_add_f32 v{yA0}, v{yA0}, v{t}")
    E(f"v_add_f32 v{yA1}, v{yA1}, v{t+1}")
    E(f"v_add_f32 v{yB0}, v{yB0}, v{t+2}")
    E(f"v_add_f32 v{yB1}, v{yB1}, v{t+3}")
    rnd(yA0, yA1)
    rnd(yB0, yB1)
    E(f"v_mul_f32 v{yB0}, v{u0}, v{yB0}")
    E(f"v_mul_f32 v{yB1}, v{u1}, v{yB1}")
    rnd(yB0, yB1)
    E(f"v_mul_f32 v{yA0}, v{t+4}, v{yA0}")
    E(f"v_mul_f32 v{yA1}, v{t+4}, v{yA1}")
    E(f"v_mul_f32 v{yB0}, v{t+5}, v{yB0}")
    E(f"v_mul_f32 v{yB1}, v{t+5}, v{yB1}")
    rnd(yA0, yA1)
    rnd(yB0, yB1)
    E(f"v_add_f32 v{yA0}, v{yA0}, v{yB0}")
    E(f"v_add_f32 v{yA1}, v{yA1}, v{yB1}")
    E(f"v_cvt_pk_bf16_f32 v{yA0}, v{yA0}, v{yA1}")
    E(f"buffer_store_dword v{yA0}, v22, s[{SRD_OUT}:{SRD_OUT+3}], s72 offen")
    E("v_add_u32 v22, 0x40000, v22")
    E("s_add_u32 s73, s73, 1")
    E("s_cmp_lt_u32 s73, s74")
    E("s_cbranch_scc1 K_hloop")
    STAMP(7)
    if DBG: E("s_waitcnt vmcnt(0)")
    STAMP(8)
    if "--pro" in sys.argv:
        E("s_waitcnt lgkmcnt(0)")
        for i in range(3, 8): E(f"s_mov_b32 s{80+2*i}, s{1+i}")
    DUMP(10, SRD_WS)
    L("K_end")
    E("s_endpgm")
    sg = 102 if DBG else 80
    return f""".amdhsa_kernel {name}
  .amdhsa_next_free_vgpr 256
  .amdhsa_next_free_sgpr {sg}
  .amdhsa_accum_offset 256
  .amdhsa_group_segment_fixed_size 0
  .amdhsa_kernarg_size 152
  .amdhsa_user_sgpr_count 2
  .amdhsa_user_sgpr_kernarg_segment_ptr 1
  .amdhsa_system_sgpr_workgroup_id_x 1
  .amdhsa_float_denorm_mode_32 3
.end_amdhsa_kernel"""

def main():
    hdr = HEADER.rstrip("\n")
    pre = [hdr,
           f"; @launch grid=(256,1,1) block=(512,1,1) lds={LDS_SIZE}",
           '.amdgcn_target "amdgcn-amd-amdhsa--gfx950"',
           ".text"]
    k = gen()
    txt = "\n".join(pre + out) + '\n.section .rodata,"a"\n.p2align 6\n' + k + "\n"
    args = [a for a in sys.argv[1:] if not a.startswith("--")]
    path = args[0] if args else "cdna_kernels/%s.s" % NAME
    open(path, "w").write(txt)

main()
```

```python
import sys

NAME = "gated_mix__ssm_conv_s4__ssm_conv_h3__prompt"
HEADER = open("cdna_kernels/%s.s.ref" % NAME).read().split("; Override launch")[0]
DBG = "--dbg" in sys.argv
def opt(name, default):
    for a in sys.argv:
        if a.startswith("--" + name + "="):
            return int(a.split("=")[1])
    return default
NA = 8
NB = 8 - NA
FINPRIO = opt("finprio", 1)
PSLEEP = opt("psleep", 8)
TOUCH = opt("touch", 0)
LATE = opt("late", 5)
DRY = opt("dry", 0)
KLDS = opt("klds", 1)
TSH = opt("tsh", 16)
CBPRIO = opt("cbprio", 1)
APRIO = opt("aprio", 2)
POLLSC = ["sc1", "sc0 sc1", "sc1 nt"][opt("pollsc", 1)]

out = []
def E(s=""):
    out.append("    " + s)
def L(s):
    out.append(s + ":")

WS_Z = 0
WS_G = 4 << 20
WS_F = WS_G + 8192
WS_SIZE = (4 << 20) + 16384
WS_DBG = 16 << 20
if DBG:
    WS_SIZE = 32 << 20

ZROW = 1152
ZBASE = 0
XBASE = 16 * ZROW
XROW = 4128
GB = XBASE + 6 * XROW
FLG = GB + 8192
SYN = FLG + 256
PMS = 8192 + 16
PCS = 2048 + 16
PB = SYN + 288
PA = PB + 4 * PMS + 4 * PCS
PSTRIDE = PA - PB
S_KT = PA
S_P = S_KT + 24576
S_K = S_P + 8192
S_TR = S_K + 9216
LDS_SIZE = S_TR + 8 * 3072
assert LDS_SIZE <= 163840 and PA + PSTRIDE <= LDS_SIZE
def PMa(X, w4):
    return (PA if X == 0 else PB) + w4 * PMS
def PCa(X, w4):
    return (PA if X == 0 else PB) + 4 * PMS + w4 * PCS

TD = "--tiledbg" in sys.argv
RD = "--reddbg" in sys.argv
def RSTAMP(i):
    if DBG and RD:
        E(f"s_memtime s[{80+2*i}:{81+2*i}]")
def TSTAMP(i):
    if DBG and TD:
        E(f"s_memtime s[{80+2*i}:{81+2*i}]")
def STAMP(i):
    if TD and i in (3, 4, 5, 6, 7): return
    if RD and i in (1, 2, 4, 6, 7, 8, 9): return
    if DBG:
        E(f"s_memtime s[{80+2*i}:{81+2*i}]")
def DUMP(n, srdreg):
    if DBG:
        E("s_waitcnt lgkmcnt(0)")
        E("s_mov_b64 exec, 1")
        E("s_lshl_b32 s100, s2, 4")
        E("s_add_u32 s100, s100, s3")
        E("s_lshl_b32 s100, s100, 6")
        E(f"s_add_u32 s100, s100, {WS_DBG}")
        for i in range(n):
            E(f"v_mov_b32 v2, s{80+2*i}")
            E(f"v_mov_b32 v3, {4*i}")
            E(f"buffer_store_dword v2, v3, s[{srdreg}:{srdreg+3}], s100 offen")
            E("s_nop 1")

def srd(sd, sp, nbytes):
    E(f"s_mov_b32 s{sd}, s{sp}")
    E(f"s_and_b32 s{sd+1}, s{sp+1}, 0xffff")
    E(f"s_mov_b32 s{sd+2}, {hex(nbytes)}")
    E(f"s_mov_b32 s{sd+3}, 0x00020000")
def R4(r):
    return f"v[{r}:{r+3}]"
SRD_WS, SRD_OUT, SRD_DBGB, SRD_A, SRD_B = 44, 48, 52, 56, 60

lblc = [0]
def post(kind):
    E(f"ds_write_b32 v28, v29 offset:{32*kind}")
def waitf(kind, lo, hi, t0=24):
    lblc[0] += 1
    n = lblc[0]
    if DRY > 1:
        E("s_cmp_lg_u32 s5, 0")
        E(f"s_cbranch_scc1 W{n}_d")
    L(f"W{n}_p")
    if hi - lo == 4:
        E(f"ds_read_b128 v[{t0}:{t0+3}], v30 offset:{32*kind + 4*lo}")
        E("s_waitcnt lgkmcnt(0)")
        E(f"v_and_b32 v{t0}, v{t0}, v{t0+1}")
        E(f"v_and_b32 v{t0+2}, v{t0+2}, v{t0+3}")
        E(f"v_and_b32 v{t0}, v{t0}, v{t0+2}")
    else:
        E(f"ds_read_b128 v[{t0}:{t0+3}], v30 offset:{32*kind}")
        E(f"ds_read_b128 v[{t0+4}:{t0+7}], v30 offset:{32*kind + 16}")
        E("s_waitcnt lgkmcnt(0)")
        for k in range(0, 8, 2):
            E(f"v_and_b32 v{t0+k}, v{t0+k}, v{t0+k+1}")
        E(f"v_and_b32 v{t0}, v{t0}, v{t0+2}")
        E(f"v_and_b32 v{t0+4}, v{t0+4}, v{t0+6}")
        E(f"v_and_b32 v{t0}, v{t0}, v{t0+4}")
    E("s_nop 0")
    E(f"v_readfirstlane_b32 s4, v{t0}")
    E("s_cmp_eq_u32 s4, 1")
    E(f"s_cbranch_scc1 W{n}_d")
    E("s_sleep 1")
    E(f"s_branch W{n}_p")
    L(f"W{n}_d")

def gen():
    name = NAME + "_kernel"
    out.append(f".globl {name}\n.p2align 8\n.type {name},@function")
    L(name)
    E("s_cmp_ge_u32 s2, 256")
    E("s_cbranch_scc1 K_end")
    STAMP(0)
    E("s_setprio 3")
    E("s_load_dwordx16 s[4:19], s[0:1], 0")
    E("s_load_dwordx2 s[20:21], s[0:1], 64")
    E("s_load_dwordx8 s[24:31], s[0:1], 80")
    E("s_load_dwordx8 s[32:39], s[0:1], 112")
    E("s_load_dwordx2 s[40:41], s[0:1], 144")
    E("v_lshrrev_b32 v1, 6, v0")
    E("s_nop 0")
    E("v_readfirstlane_b32 s3, v1")
    E("v_and_b32 v1, 63, v0")
    E("s_and_b32 s64, s2, 7")
    E("s_lshl_b32 s65, s64, 2")
    E("s_lshl_b32 s64, s64, 5")
    E("s_lshr_b32 s66, s2, 3")
    E("s_add_u32 s64, s64, s66")
    E("s_and_b32 s66, s66, 3")
    E("s_add_u32 s65, s65, s66")
    E("s_lshr_b32 s66, s2, 5")
    E("s_and_b32 s67, s3, 3")
    E("s_lshr_b32 s68, s3, 2")
    E("s_bfe_u32 s69, s3, 0x10001")
    E("v_mov_b32 v12, 0")
    E("v_mov_b32 v13, 0")
    E("v_mov_b32 v14, 0")
    E("v_mov_b32 v15, 0")
    E("v_and_b32 v2, 31, v1")
    E("v_lshlrev_b32 v2, 4, v2")
    E(f"ds_write_b128 v2, v[12:15] offset:{FLG}")
    E(f"ds_write_b128 v2, v[12:15] offset:{FLG + 32}")
    E("s_lshl_b32 s70, s3, 2")
    E(f"s_add_u32 s70, s70, {SYN}")
    E("v_mov_b32 v28, s70")
    E("v_mov_b32 v29, 1")
    E("v_mov_b32 v95, 0")
    E(f"v_mov_b32 v30, {SYN}")
    E("s_lshl_b32 s70, s65, 6")
    E("s_add_u32 s70, s70, s67")
    E("s_lshl_b32 s70, s70, 10")
    E("s_lshl_b32 s71, s66, 7")
    E("s_add_u32 s70, s70, s71")
    E("v_lshrrev_b32 v2, 3, v1")
    E("v_and_b32 v3, 7, v1")
    E("v_lshlrev_b32 v4, 12, v2")
    E("v_lshl_add_u32 v4, v3, 4, v4")
    E("v_add_u32 v4, s70, v4")
    E("v_subrev_u32 v5, 1024, v4")
    E("v_subrev_u32 v6, 2048, v4")
    E("v_subrev_u32 v7, 3072, v4")
    E("s_lshl_b32 s71, s66, 9")
    E("v_lshl_add_u32 v8, v3, 6, s71")
    E("s_lshl_b32 s72, s65, 6")
    E("s_lshl_b32 s71, s66, 3")
    E("s_add_u32 s72, s72, s71")
    E("s_lshl_b32 s71, s67, 1")
    E("s_add_u32 s72, s72, s71")
    E("s_lshl_b32 s73, s72, 10")
    E("v_lshlrev_b32 v9, 4, v1")
    E("s_and_b32 s74, s3, 1")
    E(f"s_mul_i32 s75, s74, {8*NA}")
    E(f"s_mul_i32 s76, s74, {8*NB}")
    E(f"s_add_u32 s76, s76, {16*NA}")
    E("s_cmp_eq_u32 s68, 0")
    E("s_cselect_b32 s75, s75, s76")
    E("s_lshl_b32 s70, s64, 1")
    E("s_add_u32 s70, s70, s69")
    E("s_lshl_b32 s70, s70, 7")
    E("s_add_u32 s70, s70, s75")
    E("s_lshl_b32 s70, s70, 1")
    E("v_lshl_add_u32 v11, v1, 1, s70")
    if "--pro" in sys.argv: STAMP(3)
    E("s_waitcnt lgkmcnt(0)")
    if "--pro" in sys.argv: STAMP(4)
    E("s_add_u32 s70, s2, s3")
    E("s_cmp_lg_u32 s70, 0")
    E("s_cbranch_scc1 K_nononce")
    E("s_memrealtime s[70:71]")
    srd(SRD_DBGB, 38, 256)
    E("s_waitcnt lgkmcnt(0)")
    E("s_or_b32 s70, s70, 1")
    E("v_mov_b32 v100, s70")
    E("v_mov_b32 v101, s71")
    E("s_mov_b64 exec, 1")
    E(f"buffer_store_dwordx2 v[100:101], v95, s[{SRD_DBGB}:{SRD_DBGB+3}], 0 offen sc1")
    E("s_mov_b64 exec, -1")
    L("K_nononce")
    E("s_barrier")
    E("s_cmp_eq_u32 s68, 0")
    E("s_cbranch_scc1 K_noTL")
    srd(SRD_A, 24, 2 << 20)
    srd(SRD_B, 26, 2 << 20)
    E("s_mov_b32 s70, 0x8000")
    E("v_lshlrev_b32 v5, 10, v2")
    E("v_lshl_add_u32 v5, v3, 4, v5")
    E("s_lshl_b32 s71, s65, 6")
    E("s_lshl_b32 s74, s67, 3")
    E("s_add_u32 s71, s71, s74")
    E("s_sub_u32 s71, s71, 8")
    E("s_lshl_b32 s71, s71, 10")
    E("s_lshl_b32 s74, s66, 7")
    E("s_add_u32 s71, s71, s74")
    E("v_add_u32 v5, s71, v5")
    E("v_add_u32 v6, s70, v5")
    E("v_add_u32 v7, s70, v6")
    E("s_lshl_b32 s74, s67, 10")
    E(f"s_add_u32 s74, s74, {S_K}")
    E("s_mov_b32 m0, s74")
    E("s_add_u32 s74, s74, 4096")
    E(f"buffer_load_dwordx4 v5, s[{SRD_A}:{SRD_A+3}], 0 offen lds")
    E("s_mov_b32 m0, s74")
    E("s_add_u32 s74, s74, 4096")
    E(f"buffer_load_dwordx4 v6, s[{SRD_A}:{SRD_A+3}], 0 offen lds")
    E("s_cmp_lg_u32 s67, 0")
    E("s_cbranch_scc1 K_nok3")
    E("s_mov_b32 m0, s74")
    E("s_nop 0")
    E(f"buffer_load_dwordx4 v7, s[{SRD_A}:{SRD_A+3}], 0 offen lds")
    L("K_nok3")
    E(f"buffer_load_dwordx4 v[96:99], v4, s[{SRD_B}:{SRD_B+3}], 0 offen")
    srd(SRD_WS, 28, 4096)
    srd(SRD_OUT, 4, 2 << 20)
    for i in range(4):
        E(f"buffer_load_dwordx4 v[{40+4*i}:{43+4*i}], v8, s[{SRD_WS}:{SRD_WS+3}], 0 offen offset:{16*i}")
    E(f"buffer_load_dwordx4 v[32:35], v4, s[{SRD_OUT}:{SRD_OUT+3}], 0 offen")
    E("v_add_u32 v4, s70, v4")
    E(f"buffer_load_dwordx4 v[144:147], v4, s[{SRD_B}:{SRD_B+3}], 0 offen")
    E(f"buffer_load_dwordx4 v[148:151], v4, s[{SRD_OUT}:{SRD_OUT+3}], 0 offen")
    E(f"buffer_load_dwordx4 v[56:59], v9, s[{SRD_OUT}:{SRD_OUT+3}], s73 offen")
    E(f"buffer_load_dwordx4 v[152:155], v9, s[{SRD_OUT}:{SRD_OUT+3}], s73 offen offset:1024")
    srd(SRD_A, 34, 1024)
    E(f"buffer_load_dwordx4 v[60:63], v9, s[{SRD_A}:{SRD_A+3}], 0 offen")
    E("s_branch K_noPL")
    L("K_noTL")
    for i, sp in enumerate([6, 8, 10, 12, 14, 16]):
        sd = SRD_A if i % 2 == 0 else SRD_B
        srd(sd, sp, 131072)
        E(f"buffer_load_ushort v{84+i}, v11, s[{sd}:{sd+3}], 0 offen")
    if TOUCH:
        E(f"v_lshlrev_b32 v200, {TSH}, v1")
        E("s_cmp_eq_u32 s3, 0")
        E("s_cbranch_scc0 K_tc1")
        srd(SRD_A, 40, WS_SIZE)
        E(f"buffer_load_dword v201, v200, s[{SRD_A}:{SRD_A+3}], 0 offen")
        E(f"s_mov_b32 s70, {WS_G}")
        E(f"buffer_load_dword v202, v95, s[{SRD_A}:{SRD_A+3}], s70 offen")
        E("s_branch K_tc4")
        L("K_tc1")
        E("s_cmp_eq_u32 s3, 1")
        E("s_cbranch_scc0 K_tc2")
        srd(SRD_A, 36, 2 << 20)
        E(f"buffer_load_dword v201, v200, s[{SRD_A}:{SRD_A+3}], 0 offen")
        srd(SRD_B, 38, 256)
        E(f"buffer_load_dword v202, v95, s[{SRD_B}:{SRD_B+3}], 0 offen")
        E("s_branch K_tc4")
        L("K_tc2")
        E("s_cmp_eq_u32 s3, 2")
        E("s_cbranch_scc0 K_tc3")
        srd(SRD_A, 4, 2 << 20)
        E(f"buffer_load_dword v201, v200, s[{SRD_A}:{SRD_A+3}], 0 offen")
        srd(SRD_B, 24, 2 << 20)
        E(f"buffer_load_dword v202, v200, s[{SRD_B}:{SRD_B+3}], 0 offen")
        E("s_branch K_tc4")
        L("K_tc3")
        srd(SRD_A, 26, 2 << 20)
        E(f"buffer_load_dword v201, v200, s[{SRD_A}:{SRD_A+3}], 0 offen")
        srd(SRD_B, 34, 1024)
        E(f"buffer_load_dword v202, v95, s[{SRD_B}:{SRD_B+3}], 0 offen")
        L("K_tc4")
    L("K_noPL")
    srd(SRD_A, 30, 2 << 20)
    E("s_lshl_b32 s74, s64, 2")
    if "--pro" in sys.argv: STAMP(6)
    E("s_load_dword s22, s[18:19], s74")
    E("s_load_dword s23, s[20:21], s74")
    E("s_load_dword s42, s[32:33], s74")
    srd(SRD_WS, 40, WS_SIZE)
    srd(SRD_OUT, 36, 2 << 20)
    srd(SRD_DBGB, 38, 256)
    E("s_mov_b32 s43, 0xffff0000")
    E("s_mov_b32 s5, 0")
    E("s_and_b32 s61, s3, 1")
    if "--pro" in sys.argv:
        STAMP(7)
        E("s_waitcnt lgkmcnt(0)")
        for i in range(3, 8): E(f"s_mov_b32 s{1+i}, s{80+2*i}")
    E("s_cmp_eq_u32 s68, 0")
    E("s_cbranch_scc1 K_kgen")
    E("s_mul_i32 s70, s3, 3072")
    E(f"s_add_u32 s70, s70, {S_TR}")
    E("v_mul_u32_u24 v64, 144, v2")
    E("v_lshl_add_u32 v64, v3, 4, v64")
    E("v_add_u32 v64, s70, v64")
    E("v_lshrrev_b32 v66, 4, v1")
    E("v_and_b32 v67, 1, v66")
    E("v_lshrrev_b32 v66, 1, v66")
    E("v_bfe_u32 v68, v1, 2, 2")
    E("v_and_b32 v69, 3, v1")
    E("v_mul_u32_u24 v65, 1152, v67")
    E("v_mul_u32_u24 v68, 144, v68")
    E("v_add_u32 v65, v65, v68")
    E("v_lshl_add_u32 v65, v66, 5, v65")
    E("v_lshl_add_u32 v65, v69, 3, v65")
    E("v_add_u32 v65, s70, v65")
    E("v_and_b32 v68, 15, v1")
    E("v_lshl_add_u32 v68, v66, 4, v68")
    E("v_lshrrev_b32 v69, 1, v68")
    E("v_and_b32 v68, 1, v68")
    E("v_lshlrev_b32 v69, 14, v69")
    E("v_lshl_add_u32 v69, v68, 4, v69")
    E("v_lshl_add_u32 v69, v67, 5, v69")
    E("s_lshl_b32 s70, s66, 19")
    E("s_lshl_b32 s71, s65, 9")
    E("s_add_u32 s70, s70, s71")
    E("s_lshl_b32 s71, s67, 7")
    E("s_add_u32 s70, s70, s71")
    E("s_add_u32 s71, s70, 0x40000")
    E("s_mov_b32 s62, 0")
    E("s_mov_b32 s76, 0x00003f80")
    E("s_mov_b32 s77, 0x3f800000")
    E("s_mov_b32 s78, 0x0000ffff")
    E("s_mov_b32 s79, 0x3f803f80")
    if DRY:
        E("s_mov_b32 s5, 1")
        E("s_mov_b64 exec, 0")
        E("s_branch K_tmask")
        L("K_breal")
        E("s_mov_b32 s5, 0")
        E("s_mov_b64 exec, -1")
        E("s_mov_b32 s62, 0")
    E("v_and_b32 v224, 3, v1")
    E("v_bfe_u32 v225, v1, 3, 2")
    E("v_lshl_add_u32 v224, v224, 2, v225")
    E(f"v_mul_u32_u24 v224, {ZROW}, v224")
    E("v_bfe_u32 v225, v1, 2, 1")
    E("v_lshl_add_u32 v224, v225, 4, v224")
    E("v_lshrrev_b32 v225, 5, v1")
    E("v_lshl_add_u32 v224, v225, 5, v224")
    E("s_lshl_b32 s74, s67, 8")
    E(f"s_add_u32 s74, s74, {ZBASE + 128}")
    E("v_add_u32 v224, s74, v224")
    E("s_lshl_b32 s6, s64, 14")
    E("s_lshl_b32 s74, s67, 12")
    E("s_add_u32 s6, s6, s74")
    E("s_lshl_b32 s74, s67, 11")
    E(f"v_add_u32 v10, {GB}, v9")
    E("v_add_u32 v10, s74, v10")
    E(f"s_add_u32 s60, s74, {WS_G}")
    E("v_and_b32 v226, 31, v1")
    E("v_lshlrev_b32 v226, 5, v226")
    E("s_and_b32 s7, s2, 7")
    E("s_lshl_b32 s7, s7, 10")
    E(f"s_add_u32 s7, s7, {WS_F}")
    E("v_and_b32 v227, 1, v1")
    E("v_lshlrev_b32 v225, 3, v227")
    E("v_lshlrev_b32 v227, 4, v227")
    E("s_lshl_b32 s8, s65, 3")
    E("s_add_u32 s8, s8, s66")
    E("s_lshl_b32 s8, s8, 5")
    E(f"s_add_u32 s8, s8, {WS_G}")
    E("s_lshl_b32 s9, s66, 5")
    E("s_add_u32 s9, s9, s65")
    E("s_lshl_b32 s9, s9, 5")
    E(f"s_add_u32 s9, s9, {WS_F}")
    E("v_mov_b32 v100, 0")
    E("v_mov_b32 v101, 0")
    E("v_mov_b32 v102, 0")
    E("v_mov_b32 v103, 0")
    E("v_bfe_u32 v104, v1, 3, 2")
    E(f"v_mul_u32_u24 v104, {ZROW}, v104")
    E("v_and_b32 v105, 7, v1")
    E("v_lshl_add_u32 v104, v105, 4, v104")
    E(f"s_mul_i32 s74, s67, {4*ZROW}")
    E("v_add_u32 v104, s74, v104")
    E("ds_write_b128 v104, v[100:103]")
    E("v_min_u32 v104, 11, v1")
    E("v_lshrrev_b32 v105, 1, v104")
    E(f"v_mul_u32_u24 v105, {XROW}, v105")
    E("v_and_b32 v104, 1, v104")
    E("v_lshl_add_u32 v104, v104, 4, v105")
    E(f"ds_write_b128 v104, v[100:103] offset:{XBASE}")
    E(f"s_mul_i32 s74, s67, {PMS}")
    E(f"s_add_u32 s74, s74, {PB}")
    E("v_mov_b32 v104, s74")
    E("ds_write_b128 v104, v[100:103]")
    E("s_add_u32 s74, s74, 16")
    E("v_lshl_add_u32 v230, v1, 4, s74")
    E(f"s_mul_i32 s74, s67, {PCS}")
    E(f"s_add_u32 s74, s74, {PB + 4*PMS}")
    E("v_mov_b32 v105, s74")
    E("ds_write_b128 v105, v[100:103]")
    E("s_add_u32 s74, s74, 16")
    E("v_lshl_add_u32 v231, v1, 2, s74")
    E("v_and_b32 v4, 15, v1")
    E("v_lshrrev_b32 v5, 4, v1")
    E("v_lshlrev_b32 v6, 2, v4")
    E("v_add_u32 v6, v6, v5")
    E("s_lshl_b32 s74, s3, 1")
    E(f"s_mul_i32 s74, s74, {ZROW}")
    E(f"s_add_u32 s74, s74, {ZBASE + 8}")
    E("v_lshlrev_b32 v228, 3, v4")
    E("v_lshl_add_u32 v228, v5, 4, v228")
    E("v_add_u32 v228, s74, v228")
    E("v_and_b32 v104, 3, v1")
    E("v_bfe_u32 v105, v1, 2, 2")
    E("v_sub_u32 v104, v104, v105")
    E("v_lshlrev_b32 v104, 3, v104")
    E("v_lshlrev_b32 v105, 6, v5")
    E("v_sub_u32 v104, v104, v105")
    E("s_add_u32 s74, s69, 4")
    E(f"s_mul_i32 s74, s74, {XROW}")
    E(f"s_add_u32 s74, s74, {XBASE + 224}")
    E("v_add_u32 v229, s74, v104")
    E("s_lshl_b32 s74, s3, 2")
    E(f"s_add_u32 s74, s74, {FLG}")
    E("v_mov_b32 v232, s74")
    E("v_lshlrev_b32 v70, 9, v2")
    E("v_lshl_add_u32 v70, v3, 4, v70")
    E("s_lshl_b32 s74, s67, 7")
    E(f"s_add_u32 s74, s74, {S_K + 1024 - 384}")
    E("v_add_u32 v70, s74, v70")
    E("s_waitcnt vmcnt(11)")
    post(7)
    E("s_waitcnt vmcnt(6)")
    STAMP(1)
    L("K_tmask")
    for t in range(4):
        for i in range(4):
            r0 = 40 + 4 * i + (t >> 1)
            r1 = 40 + 4 * i + 2 + (t >> 1)
            d = 160 + (t * 4 + i) * 2
            if t & 1:
                E(f"v_lshrrev_b32 v{d}, 16, v{r0}")
                E(f"v_and_b32 v{d+1}, s43, v{r1}")
            else:
                E(f"v_and_b32 v{d}, s78, v{r0}")
                E(f"v_lshlrev_b32 v{d+1}, 16, v{r1}")
    waitf(7, 4, 8, 72)
    TSTAMP(3)
    L("K_tloop")
    for t in range(4):
        E(f"ds_read_b128 {R4(12+4*t)}, v70 offset:{384 - 128*t}")
    E("v_add_u32 v70, 4096, v70")
    E("s_waitcnt lgkmcnt(0)")
    for t in range(4):
        for i in range(4):
            kr = 12 + 4 * t + i
            d = 160 + (t * 4 + i) * 2
            E(f"v_dot2_f32_bf16 v{208+2*i}, v{kr}, v{d}, 0")
            E(f"v_dot2_f32_bf16 v{209+2*i}, v{kr}, v{d+1}, 0")
        E("s_nop 0")
        for i in range(4):
            E(f"v_cvt_pk_bf16_f32 v{192+4*t+i}, v{208+2*i}, v{209+2*i}")
    cur = 192 + 12
    for t in (2, 1, 0):
        for i in range(4):
            E(f"v_lshlrev_b32 v{208+2*i}, 16, v{cur+i}")
            E(f"v_and_b32 v{209+2*i}, s43, v{cur+i}")
        for i in range(4):
            E(f"v_dot2_f32_bf16 v{208+2*i}, v{192+4*t+i}, s76, v{208+2*i}")
            E(f"v_dot2_f32_bf16 v{209+2*i}, v{192+4*t+i}, s77, v{209+2*i}")
        E("s_nop 0")
        for i in range(4):
            E(f"v_cvt_pk_bf16_f32 v{cur+i}, v{208+2*i}, v{209+2*i}")
    for i in range(4):
        E(f"v_and_b32 v{216+2*i}, s78, v{96+i}")
        E(f"v_and_b32 v{217+2*i}, s43, v{96+i}")
    for i in range(4):
        E(f"v_dot2_f32_bf16 v{208+2*i}, v{cur+i}, v{216+2*i}, 0")
        E(f"v_dot2_f32_bf16 v{209+2*i}, v{cur+i}, v{217+2*i}, 0")
    E("s_nop 0")
    for i in range(4):
        E(f"v_cvt_pk_bf16_f32 v{36+i}, v{208+2*i}, v{209+2*i}")
    if DRY:
        E("s_cmp_lg_u32 s5, 0")
        E("s_cbranch_scc1 K_gmask")
    E("ds_write_b128 v64, v[36:39] offset:1152")
    E("s_cmp_eq_u32 s62, 0")
    E("s_cbranch_scc0 K_tw1")
    E("s_waitcnt vmcnt(5)")
    L("K_tw1")
    E("ds_write_b128 v64, v[32:35]")
    E("s_waitcnt lgkmcnt(0)")
    E("ds_read_b64_tr_b16 v[76:77], v65")
    E("ds_read_b64_tr_b16 v[78:79], v65 offset:576")
    E("ds_read_b64_tr_b16 v[80:81], v65 offset:64")
    E("ds_read_b64_tr_b16 v[82:83], v65 offset:640")
    E("s_waitcnt lgkmcnt(2)")
    E(f"buffer_store_dwordx4 v[76:79], v69, s[{SRD_WS}:{SRD_WS+3}], s70 offen sc1")
    E("s_waitcnt lgkmcnt(0)")
    E(f"buffer_store_dwordx4 v[80:83], v69, s[{SRD_WS}:{SRD_WS+3}], s71 offen sc1")
    E("s_cmp_eq_u32 s62, 1")
    E("s_cbranch_scc1 K_tdone")
    E("s_mov_b32 s62, 1")
    E("s_add_u32 s70, s70, 64")
    E("s_add_u32 s71, s71, 64")
    TSTAMP(4)
    E("s_waitcnt vmcnt(5)")
    TSTAMP(5)
    for i in range(4):
        E(f"v_mov_b32 v{96+i}, v{144+i}")
        E(f"v_mov_b32 v{32+i}, v{148+i}")
    E("s_branch K_tloop")
    L("K_tdone")
    STAMP(2)
    E("s_waitcnt vmcnt(0)")
    post(0)
    L("K_nwait")
    E(f"ds_read_b64 v[92:93], v30 offset:272")
    E("s_waitcnt lgkmcnt(0)")
    E("v_readfirstlane_b32 s56, v92")
    E("v_readfirstlane_b32 s57, v93")
    E("s_cmp_lg_u32 s56, 0")
    E("s_cbranch_scc1 K_nok")
    E("s_sleep 1")
    E("s_branch K_nwait")
    L("K_nok")
    E("s_cmp_lg_u32 s3, 4")
    E("s_cbranch_scc1 K_nopub")
    waitf(0, 4, 8, 144)
    E("s_mov_b64 exec, 1")
    E(f"buffer_store_dwordx2 v[92:93], v227, s[{SRD_WS}:{SRD_WS+3}], s9 offen sc1")
    E("s_mov_b64 exec, -1")
    STAMP(9)
    L("K_nopub")
    E("s_mov_b32 s62, 0")
    L("K_gmask")
    for i in range(4):
        E(f"v_and_b32 v{216+2*i}, s78, v{60+i}")
        E(f"v_and_b32 v{217+2*i}, s43, v{60+i}")
    L("K_gloop")
    for i in range(4):
        E(f"v_dot2_f32_bf16 v{208+2*i}, v{56+i}, v{216+2*i}, 0")
        E(f"v_dot2_f32_bf16 v{209+2*i}, v{56+i}, v{217+2*i}, 0")
    E("s_nop 0")
    for i in range(4):
        E(f"v_cvt_pk_bf16_f32 v{192+i}, v{208+2*i}, v{209+2*i}")
    for i in range(4):
        E(f"v_dot2_f32_bf16 v{208+i}, v{192+i}, s79, 0")
    E("s_nop 2")
    E("v_add_f32 v208, v208, v209")
    E("v_add_f32 v210, v210, v211")
    E("v_add_f32 v74, v208, v210")
    for dpp in ["row_shr:1", "row_shr:2", "row_shr:4", "row_shr:8"]:
        E("s_nop 1")
        E(f"v_add_f32_dpp v74, v74, v74 {dpp} row_mask:0xf bank_mask:0xf bound_ctrl:0")
    E("s_nop 1")
    E("v_add_f32_dpp v74, v74, v74 row_bcast:15 row_mask:0xa bank_mask:0xf")
    E("s_nop 1")
    E("v_add_f32_dpp v74, v74, v74 row_bcast:31 row_mask:0xc bank_mask:0xf")
    E("s_nop 1")
    E("v_cvt_pk_bf16_f32 v74, v74, v74")
    E("v_lshlrev_b32 v74, 16, v74")
    E("v_mul_f32 v74, 0xbfb8aa3b, v74")
    E("v_exp_f32 v74, v74")
    E("s_nop 0")
    E("v_add_f32 v74, 1.0, v74")
    E("v_rcp_f32 v74, v74")
    E("s_nop 0")
    E("v_cvt_pk_bf16_f32 v74, v74, v74")
    E("s_lshl_b32 s72, s67, 1")
    E("s_add_u32 s72, s72, s62")
    E("s_lshl_b32 s72, s72, 1")
    E(f"s_add_u32 s72, s72, {SYN + 256}")
    E("v_mov_b32 v75, s72")
    if DRY:
        E("s_cmp_lg_u32 s5, 0")
        E("s_cbranch_scc1 K_breal")
    E("v_cmp_eq_u32 vcc, 63, v1")
    E("s_and_saveexec_b64 s[74:75], vcc")
    E("ds_write_b16 v75, v74")
    E("s_mov_b64 exec, s[74:75]")
    E("s_cmp_eq_u32 s62, 1")
    E("s_cbranch_scc1 K_bwave")
    E("s_mov_b32 s62, 1")
    for i in range(4):
        E(f"v_mov_b32 v{56+i}, v{152+i}")
    E("s_branch K_gloop")
    L("K_kgen")
    E(f"s_setprio {APRIO}")
    STAMP(2)
    E("v_and_b32 v20, 15, v1")
    E("v_lshrrev_b32 v21, 4, v1")
    E("s_mov_b32 s74, 0x00040000")
    E("s_mov_b32 s75, 0x02000100")
    E("s_mov_b32 s76, 0x00010001")
    E("s_mov_b32 s77, 0x00040002")
    E("s_mov_b32 s78, 0x00020002")
    E("s_mov_b32 s79, 0x01000004")
    E("v_lshrrev_b32 v22, 2, v20")
    E("v_lshlrev_b32 v22, 4, v22")
    E("v_lshrrev_b64 v[32:33], v22, s[74:75]")
    E("v_and_b32 v32, 0xffff, v32")
    E("v_lshrrev_b64 v[34:35], v22, s[76:77]")
    E("v_and_b32 v34, 0xffff, v34")
    E("v_and_b32 v23, 1, v20")
    E("v_mad_u32_u24 v32, v23, v34, v32")
    E("v_lshrrev_b64 v[34:35], v22, s[78:79]")
    E("v_and_b32 v34, 0xffff, v34")
    E("v_bfe_u32 v23, v20, 1, 1")
    E("v_mad_u32_u24 v32, v23, v34, v32")
    E("v_cvt_f32_u32 v24, v32")
    E("v_lshrrev_b32 v33, 7, v32")
    E("v_and_b32 v32, 127, v32")
    E("v_cvt_f32_u32 v16, v33")
    E("v_cvt_f32_u32 v17, v32")
    E("v_add_u32 v32, 8, v20")
    E("v_cvt_f32_u32 v18, v32")
    E("v_mul_f32 v26, 0x43000000, v18")
    E("v_lshlrev_b32 v22, 3, v20")
    E("v_cvt_f32_u32 v27, v22")
    if DRY > 1:
        E("s_mov_b32 s5, 1")
        E("s_mov_b64 exec, 0")
        E("s_branch K_dA")
        L("K_areal")
        E("s_mov_b32 s5, 0")
        E("s_mov_b64 exec, -1")
    E("s_waitcnt lgkmcnt(0)")
    E("s_lshl_b32 s70, s22, 16")
    E("s_and_b32 s22, s22, s43")
    E("s_cmp_eq_u32 s69, 0")
    E("s_cselect_b32 s22, s70, s22")
    E("v_mov_b32 v40, 0x3fb8aa3b")
    E("v_mul_f32 v41, s22, v40")
    E("v_exp_f32 v41, v41")
    E("s_nop 0")
    E("v_cvt_pk_bf16_f32 v41, v41, v41")
    E("v_lshlrev_b32 v41, 16, v41")
    E(f"s_waitcnt vmcnt({2 if TOUCH else 0})")
    L("K_dA")
    for i in range(6):
        E(f"v_lshlrev_b32 v{84+i}, 16, v{84+i}")
    E("v_mul_f32 v84, v41, v84")
    E("v_mul_f32 v85, v41, v85")
    E("v_mul_f32 v86, v41, v86")
    E("v_mul_f32 v87, v41, v87")
    E("v_mul_f32 v44, v40, v84")
    E("v_mul_f32 v45, 0.15915494, v85")
    E("v_rndne_f32 v46, v45")
    E("v_sub_f32 v45, v45, v46")
    E("v_mul_f32 v46, 0x43000000, v45")
    E("v_rndne_f32 v47, v46")
    E("v_sub_f32 v46, v46, v47")
    E("v_mul_f32 v84, 0x43000000, v44")
    E("v_exp_f32 v84, v84")
    E("v_cos_f32 v47, v46")
    E("v_sin_f32 v85, v46")
    E("v_mul_f32 v80, v88, v86")
    E("v_fma_f32 v80, -v89, v87, v80")
    E("v_mul_f32 v81, v88, v87")
    E("v_fma_f32 v81, v89, v86, v81")
    E("v_mul_f32 v47, v84, v47")
    E("v_mul_f32 v82, v84, v85")
    E("s_lshl_b32 s70, s3, 11")
    E(f"s_add_u32 s70, s70, {S_P}")
    E("v_lshl_add_u32 v42, v1, 5, s70")
    E("ds_write_b128 v42, v[44:47]")
    E("ds_write_b128 v42, v[80:83] offset:16")
    E("v_lshl_add_u32 v43, v21, 6, s70")
    for r in range(48, 60):
        E(f"v_mov_b32 v{r}, 0")
    E("s_waitcnt lgkmcnt(0)")
    for k in range(4):
        E(f"ds_read_b128 {R4(60+4*k)}, v43 offset:{16*k}")
    E("s_mov_b32 s62, 0")
    E(f"s_mov_b32 s63, {NA}")
    if DRY > 1:
        E("s_cmp_lg_u32 s5, 0")
        E("s_cselect_b32 s63, 1, s63")
    L("K_loop")
    E("s_waitcnt lgkmcnt(0)")
    TT = [[96, 100, 104, 108], [136, 140, 144, 148]]
    for nn in range(2):
        zr, zi, w128 = 60 + 8 * nn, 61 + 8 * nn, 62 + 8 * nn
        T = TT[nn]
        E(f"v_mul_f32 v{T[3]}, v{zr}, v27")
        E(f"v_mul_f32 v{T[3]+1}, v{zi}, v27")
        E(f"v_mul_f32 v{T[0]}, v{zr}, v24")
        E(f"v_mul_f32 v{T[0]+1}, v{zi}, v17")
        E(f"v_mul_f32 v{T[2]}, v{zr}, v26")
        E(f"v_mul_f32 v{T[2]+1}, v{w128}, v18")
        E(f"v_fma_f32 v{T[0]+1}, v{w128}, v16, v{T[0]+1}")
        for k in range(4):
            E(f"v_mov_b32 v{76+4*nn+k}, v{63+8*nn+k}")
    E("v_add_u32 v43, 256, v43")
    for k in range(4):
        E(f"ds_read_b128 {R4(60+4*k)}, v43 offset:{16*k}")
    for nn in range(2):
        er, cbr, cbi, ei = 76 + 4 * nn, 77 + 4 * nn, 78 + 4 * nn, 79 + 4 * nn
        T = TT[nn]
        for t in [T[3], T[0], T[2]]:
            E(f"v_exp_f32 v{t}, v{t}")
            E(f"v_cos_f32 v{t+2}, v{t+1}")
            E(f"v_sin_f32 v{t+3}, v{t+1}")
        t = T[3]
        E(f"v_mul_f32 v{t+2}, v{t}, v{t+2}")
        E(f"v_mul_f32 v{t+3}, v{t}, v{t+3}")
        E(f"v_mul_f32 v{t}, v{cbr}, v{t+2}")
        E(f"v_mul_f32 v{t+1}, v{cbr}, v{t+3}")
        E(f"v_fma_f32 v{t}, -v{cbi}, v{t+3}, v{t}")
        E(f"v_fma_f32 v{t+3}, -v{cbi}, v{t+2}, -v{t+1}")
        E(f"v_mov_b32 v{t+2}, v{t}")
        for t in [T[0], T[2]]:
            E(f"v_mul_f32 v{t+2}, v{t}, v{t+2}")
            E(f"v_mul_f32 v{t+3}, v{t}, v{t+3}")
        p, q = T[0], T[1]
        E(f"v_mul_f32 v{q+2}, v{p+2}, v{er}")
        E(f"v_mul_f32 v{q+3}, v{p+2}, v{ei}")
        E(f"v_fma_f32 v{q+2}, -v{p+3}, v{ei}, v{q+2}")
        E(f"v_fma_f32 v{q+3}, v{p+3}, v{er}, v{q+3}")
        for k in range(4):
            t = T[k]
            hi = (112 + 2 * k + nn) if k < 3 else (124 + nn)
            lo = (118 + 2 * k + nn) if k < 3 else (126 + nn)
            E(f"v_cvt_pk_bf16_f32 v{hi}, v{t+2}, v{t+3}")
            E(f"v_lshlrev_b32 v{t}, 16, v{hi}")
            E(f"v_and_b32 v{t+1}, s43, v{hi}")
            E(f"v_sub_f32 v{t}, v{t+2}, v{t}")
            E(f"v_sub_f32 v{t+1}, v{t+3}, v{t+1}")
            E(f"v_cvt_pk_bf16_f32 v{lo}, v{t}, v{t+1}")
    E("s_add_u32 s62, s62, 1")
    E(f"s_cmp_eq_u32 s62, {LATE}")
    for k in range(3):
        a_ = 48 + 4 * k
        E(f"v_mfma_f32_16x16x16_bf16 {R4(a_)}, v[{112+2*k}:{113+2*k}], v[124:125], {R4(a_)}")
        E(f"v_mfma_f32_16x16x16_bf16 {R4(a_)}, v[{112+2*k}:{113+2*k}], v[126:127], {R4(a_)}")
        E(f"v_mfma_f32_16x16x16_bf16 {R4(a_)}, v[{118+2*k}:{119+2*k}], v[124:125], {R4(a_)}")
    E("s_cbranch_scc0 K_nost")
    E("s_lshl_b32 s70, s64, 13")
    E("s_lshl_b32 s71, s3, 11")
    E("s_add_u32 s70, s70, s71")
    E(f"s_mul_i32 s71, s69, {XROW}")
    E("s_lshl_b32 s72, s61, 11")
    E("s_add_u32 s71, s71, s72")
    E(f"s_add_u32 s71, s71, {XBASE + 4*XROW + 32}")
    E("s_mov_b32 m0, s71")
    E("s_nop 0")
    E(f"buffer_load_dwordx4 v9, s[{SRD_A}:{SRD_A+3}], s70 offen lds")
    E(f"buffer_load_dwordx4 v9, s[{SRD_A}:{SRD_A+3}], s70 offen offset:1024 lds")
    L("K_nost")
    E("s_cmp_lg_u32 s3, 0")
    E("s_cbranch_scc1 K_non")
    E("s_cmp_eq_u32 s62, 1")
    E("s_cbranch_scc0 K_non1")
    E(f"buffer_load_dwordx2 v[92:93], v95, s[{SRD_DBGB}:{SRD_DBGB+3}], 0 offen sc1")
    L("K_non1")
    E("s_cmp_eq_u32 s62, 2")
    E("s_cbranch_scc0 K_non")
    E("s_mov_b32 s70, 0")
    L("K_npoll")
    E("s_waitcnt vmcnt(0)")
    E("v_readfirstlane_b32 s71, v92")
    E("s_add_u32 s70, s70, 1")
    E("s_cmp_lg_u32 s71, 0")
    E("s_cbranch_scc1 K_ngot")
    E("s_sleep 4")
    E(f"buffer_load_dwordx2 v[92:93], v95, s[{SRD_DBGB}:{SRD_DBGB+3}], 0 offen sc1")
    E("s_cmp_lt_u32 s70, 0x40000")
    E("s_cbranch_scc1 K_npoll")
    E("s_waitcnt vmcnt(0)")
    E("v_mov_b32 v92, 1")
    L("K_ngot")
    E("ds_write_b64 v30, v[92:93] offset:272")
    L("K_non")
    E(f"s_cmp_eq_u32 s62, {LATE+3}")
    E("s_cbranch_scc0 K_nost2")
    E("s_waitcnt vmcnt(0)")
    post(0)
    L("K_nost2")
    E("s_cmp_lt_u32 s62, s63")
    E("s_cbranch_scc1 K_loop")
    E("s_waitcnt lgkmcnt(0)")
    STAMP(3)
    E("s_mul_i32 s70, s3, 3072")
    E(f"s_add_u32 s70, s70, {S_TR}")
    E("v_lshl_add_u32 v39, v1, 4, s70")
    E("v_and_b32 v4, 15, v1")
    E("v_lshrrev_b32 v5, 4, v1")
    E("v_lshlrev_b32 v6, 2, v4")
    E("v_add_u32 v6, v6, v5")
    E("s_nop 1")
    for k in range(3):
        E(f"ds_write_b128 v39, {R4(48+4*k)} offset:{1024*k}")
    post(1)
    E("s_mul_i32 s70, s69, 12288")
    E(f"s_add_u32 s70, s70, {S_KT}")
    E("v_lshlrev_b32 v32, 5, v20")
    E("v_add_u32 v32, s70, v32")
    E("v_lshl_add_u32 v44, v21, 11, v32")
    E("v_add_u32 v44, 4096, v44")
    E("v_add_u32 v45, 512, v44")
    E("v_add_u32 v46, 1024, v44")
    E("v_add_u32 v47, 1536, v44")
    E("v_lshlrev_b32 v22, 4, v21")
    E("v_lshrrev_b64 v[60:61], v22, s[74:75]")
    E("v_and_b32 v60, 0xffff, v60")
    E("v_lshl_add_u32 v35, v60, 2, v32")
    E("s_lshl_b32 s71, s61, 9")
    E("v_add_u32 v35, s71, v35")
    E("v_lshrrev_b64 v[60:61], v22, s[76:77]")
    E("v_and_b32 v60, 0xffff, v60")
    E("v_lshl_add_u32 v36, v60, 2, v35")
    E("v_lshrrev_b64 v[62:63], v22, s[78:79]")
    E("v_and_b32 v62, 0xffff, v62")
    E("v_lshl_add_u32 v37, v62, 2, v35")
    E("v_lshl_add_u32 v38, v62, 2, v36")
    E("s_mul_i32 s70, s69, 6144")
    E(f"s_add_u32 s70, s70, {S_TR}")
    E("v_lshl_add_u32 v39, v1, 4, s70")
    E("s_lshl_b32 s71, s61, 10")
    E("v_add_u32 v40, s71, v39")
    E("s_lshl_b32 s71, s61, 9")
    E("v_lshl_add_u32 v60, v1, 3, s71")
    E("s_mul_i32 s70, s69, 12288")
    E(f"s_add_u32 s70, s70, {S_KT}")
    for rr in range(2):
        for e in range(0, 8, 2):
            E(f"v_add_u32 v62, {e + 1024*rr}, v60")
            E(f"v_add_u32 v63, {e + 1 + 1024*rr}, v60")
            E("v_cvt_f32_u32 v62, v62")
            E("v_cvt_f32_u32 v63, v63")
            E("v_cvt_pk_bf16_f32 v62, v62, v63")
            E("v_and_b32 v63, s43, v62")
            E("v_lshlrev_b32 v62, 16, v62")
            E("v_cvt_u32_f32 v62, v62")
            E("v_cvt_u32_f32 v63, v63")
            E(f"v_lshl_add_u32 v{64+8*rr+e}, v62, 2, s70")
            E(f"v_lshl_add_u32 v{65+8*rr+e}, v63, 2, s70")
    E(f"s_mul_i32 s70, s69, {XROW}")
    E(f"s_add_u32 s70, s70, {XBASE + 32}")
    E("v_lshl_add_u32 v61, v60, 1, s70")
    RSTAMP(1)
    waitf(1, 0, 4, 96)
    RSTAMP(2)
    srcoff = [0, 3072]
    for k in range(2):
        E(f"ds_read_b128 {R4(96+4*k)}, v40 offset:{srcoff[k]}")
    for k in range(2):
        E(f"ds_read_b128 {R4(112+4*k)}, v39 offset:{srcoff[k] + 2048}")
    for (b, dst, w) in [(96, 35, 2), (112, 44, 0)]:
        E(f"s_waitcnt lgkmcnt({w})")
        for e in range(4):
            E(f"v_add_f32 v{b+e}, v{b+e}, v{b+4+e}")
    for (b, dst) in [(96, 35), (112, 44)]:
        for e in range(4):
            E(f"ds_write_b32 v{dst+e}, v{b+e}")
    post(2)
    RSTAMP(4)
    waitf(2, 0, 4, 96)
    RSTAMP(6)
    for e in range(16):
        E(f"ds_read_b32 v{96+e}, v{64+e}")
    for rr in range(2):
        for e in range(0, 8, 2):
            src = 96 + 8 * rr + e
            E(f"s_waitcnt lgkmcnt({14 - 8*rr - e})")
            E(f"v_cvt_pk_bf16_f32 v{112+8*rr+e//2}, v{src}, v{src+1}")
            E(f"v_lshlrev_b32 v62, 16, v{112+8*rr+e//2}")
            E(f"v_and_b32 v63, s43, v{112+8*rr+e//2}")
            E(f"v_sub_f32 v62, v{src}, v62")
            E(f"v_sub_f32 v63, v{src+1}, v63")
            E(f"v_cvt_pk_bf16_f32 v{116+8*rr+e//2}, v62, v63")
    for rr in range(2):
        E(f"ds_write_b128 v61, {R4(112+8*rr)} offset:{2048*rr}")
        E(f"ds_write_b128 v61, {R4(116+8*rr)} offset:{2*XROW + 2048*rr}")
    post(3)
    RSTAMP(7)
    STAMP(4)
    E("s_branch K_csetup")
    L("K_bwave")
    post(1)
    STAMP(3)
    E("s_cmp_lg_u32 s3, 5")
    E("s_cbranch_scc1 K_norec")
    waitf(1, 4, 8, 144)
    E(f"ds_read_b64 v[144:145], v225 offset:{SYN + 256}")
    E("v_mov_b32 v146, s56")
    E("v_mov_b32 v147, s57")
    E("s_waitcnt lgkmcnt(0)")
    E("s_mov_b64 exec, 3")
    E(f"buffer_store_dwordx4 v[144:147], v227, s[{SRD_WS}:{SRD_WS+3}], s8 offen sc1")
    E("s_mov_b64 exec, -1")
    L("K_norec")
    E("s_cmp_lg_u32 s3, 4")
    E("s_cbranch_scc1 K_pwait")
    E("s_mov_b32 s70, 0")
    L("K_poll")
    E(f"buffer_load_dwordx2 v[112:113], v226, s[{SRD_WS}:{SRD_WS+3}], s7 offen sc1")
    E("s_waitcnt vmcnt(0)")
    E("v_xor_b32 v112, s56, v112")
    E("v_xor_b32 v113, s57, v113")
    E("v_or_b32 v112, v112, v113")
    E("v_cmp_ne_u32 vcc, 0, v112")
    E("s_add_u32 s70, s70, 1")
    E("s_cmp_eq_u64 vcc, 0")
    E("s_cbranch_scc1 K_pok")
    E(f"s_sleep {PSLEEP}")
    E("s_cmp_lt_u32 s70, 0x40000")
    E("s_cbranch_scc1 K_poll")
    L("K_pok")
    post(5)
    E("s_branch K_pdone")
    L("K_pwait")
    E(f"ds_read_b32 v93, v30 offset:{32*5 + 16}")
    E("s_waitcnt lgkmcnt(0)")
    E("v_readfirstlane_b32 s70, v93")
    E("s_cmp_eq_u32 s70, 1")
    E("s_cbranch_scc1 K_pdone")
    E("s_sleep 1")
    E("s_branch K_pwait")
    L("K_pdone")
    STAMP(4)
    for p in range(4):
        E(f"buffer_load_dwordx4 {R4(96+4*p)}, v9, s[{SRD_WS}:{SRD_WS+3}], s6 offen offset:{1024*p} sc1")
    for k in range(5):
        E(f"v_mov_b32 v{16+k}, v{228+k}")
    for p in range(4):
        E(f"s_waitcnt vmcnt({3-p})")
        E(f"ds_write_b128 v224, {R4(96+4*p)} offset:{64*p}")
    post(4)
    E(f"s_setprio {CBPRIO}")
    E("s_branch K_convB")
    L("K_csetup")
    vB, vA, vPM, vPC, vF = 16, 17, 18, 19, 20
    E("s_lshl_b32 s70, s3, 1")
    E(f"s_mul_i32 s70, s70, {ZROW}")
    E(f"s_add_u32 s70, s70, {ZBASE + 8}")
    E(f"v_lshlrev_b32 v{vB}, 3, v4")
    E(f"v_lshl_add_u32 v{vB}, v5, 4, v{vB}")
    E(f"v_add_u32 v{vB}, s70, v{vB}")
    E("v_and_b32 v22, 3, v1")
    E("v_bfe_u32 v23, v1, 2, 2")
    E("v_sub_u32 v22, v22, v23")
    E("v_lshlrev_b32 v22, 3, v22")
    E("v_lshlrev_b32 v23, 6, v5")
    E("v_sub_u32 v22, v22, v23")
    E("s_lshl_b32 s70, s68, 2")
    E("s_add_u32 s70, s70, s69")
    E(f"s_mul_i32 s70, s70, {XROW}")
    E(f"s_add_u32 s70, s70, {XBASE + 224}")
    E(f"v_add_u32 v{vA}, s70, v22")
    E("s_cmp_eq_u32 s68, 0")
    E(f"s_mov_b32 s71, {PB}")
    E(f"s_cselect_b32 s71, {PA}, s71")
    E(f"s_mul_i32 s70, s67, {PMS}")
    E("s_add_u32 s70, s70, s71")
    E("s_add_u32 s72, s70, 16")
    E(f"v_lshl_add_u32 v{vPM}, v1, 4, s72")
    E(f"s_mul_i32 s72, s67, {PCS}")
    E("s_add_u32 s72, s72, s71")
    E(f"s_add_u32 s72, s72, {4*PMS}")
    E("s_add_u32 s73, s72, 16")
    E(f"v_lshl_add_u32 v{vPC}, v1, 2, s73")
    E("s_lshl_b32 s73, s3, 2")
    E(f"s_add_u32 s73, s73, {FLG}")
    E(f"v_mov_b32 v{vF}, s73")
    E("v_mov_b32 v22, s70")
    E("v_mov_b32 v23, s72")
    if DRY > 1:
        E("s_cmp_lg_u32 s5, 0")
        E("s_cbranch_scc1 K_areal")
    RSTAMP(8)
    waitf(3, 0, 4, 24)
    RSTAMP(9)
    E("v_mov_b32 v24, 0")
    E("v_mov_b32 v25, 0")
    E("v_mov_b32 v26, 0")
    E("v_mov_b32 v27, 0")
    E("ds_write_b128 v22, v[24:27]")
    E("ds_write_b128 v23, v[24:27]")
    waitf(4, 4, 8, 24)
    E("s_setprio 0")
    STAMP(5)

    def Bf(pp, jj):
        return 64 + 64 * pp + 4 * jj
    def acc(pp, q):
        return 192 + 32 * pp + 4 * q
    def conv(nx):
        ring = 8 // nx
        def Af(n, x):
            return 32 + 4 * ((n % ring) * nx + x)
        queue = []
        def rdA(n):
            for x in range(nx):
                a = Af(n, x)
                off = 256 * n + x * 2 * XROW
                E(f"ds_read_b64_tr_b16 v[{a}:{a+1}], v{vA} offset:{off+32}")
                E(f"ds_read_b64_tr_b16 v[{a+2}:{a+3}], v{vA} offset:{off}")
                queue.extend([("A", n), ("A", n)])
        def rdB(pp, jj):
            b = Bf(pp, jj)
            E(f"ds_read_b64 v[{b}:{b+1}], v{vB} offset:{pp*ZROW + 64*jj}")
            E(f"ds_read_b64 v[{b+2}:{b+3}], v{vB} offset:{pp*ZROW + 64*jj + 8}")
            queue.extend([("B", pp, jj), ("B", pp, jj)])
        def need(keys):
            last = -1
            for idx, k in enumerate(queue):
                if k in keys:
                    last = idx
            if last >= 0:
                n_after = len(queue) - 1 - last
                assert n_after <= 15
                E(f"s_waitcnt lgkmcnt({n_after})")
                del queue[:last + 1]
        def mf(pp, q, n, x, first=False):
            jj = 2 * q - n + 1
            c = "0" if first else R4(acc(pp, q))
            E(f"v_mfma_f32_16x16x32_bf16 {R4(acc(pp,q))}, {R4(Af(n,x))}, {R4(Bf(pp,jj))}, {c}")
        def writeout(q):
            a0, a1 = acc(0, q), acc(1, q)
            E(f"v_add_f32 v{a0+1}, v{a0+1}, v{a1}")
            E(f"v_add_f32 v{a0+2}, v{a0+2}, v{a1+1}")
            E(f"v_add_f32 v{a0+3}, v{a0+3}, v{a1+2}")
            E(f"ds_write_b32 v{vPC}, v{a1+3} offset:{256*q}")
            E(f"ds_write_b128 v{vPM}, {R4(a0)} offset:{1024*q}")
            E(f"ds_write_b32 v{vF}, v29 offset:{32*q}")
            queue.extend([("W",), ("W",), ("W",)])
        rdA(1)
        rdB(0, 0)
        rdA(0)
        rdB(0, 1)
        rdB(1, 0)
        for q in range(8):
            for pp in range(2):
                if pp == 0:
                    nxt = [(1, 2 * q + 1)] + ([(0, 2 * q + 2)] if q < 7 else [])
                else:
                    nxt = [(0, 2 * q + 3), (1, 2 * q + 2)] if q < 7 else []
                need({("A", 1), ("B", pp, 2 * q)})
                for x in range(nx):
                    mf(pp, q, 1, x, first=(x == 0))
                if nxt:
                    rdB(*nxt[0])
                elif pp == 1:
                    rdA(2)
                need({("A", 0), ("B", pp, 2 * q + 1)})
                for x in range(nx):
                    mf(pp, q, 0, x)
                if len(nxt) > 1:
                    rdB(*nxt[1])
                elif pp == 1:
                    rdA(3)
        if nx == 1:
            sched = {2: [4], 3: [5], 4: [6], 5: [7], 6: [8], 7: [9], 8: [10, 11], 9: [12, 13], 10: [14, 15]}
        else:
            sched = {n: [n + 2] for n in range(2, 14)}
        for n in range(2, 16):
            need({("A", n)})
            q0 = n >> 1
            k = 0
            for q in range(q0, 8):
                for pp in range(2):
                    for x in range(nx):
                        mf(pp, q, n, x)
                    k += 1
                    if k == 1:
                        for m in sched.get(n, []):
                            rdA(m)
                if n % 2 == 0 and q == min(q0 + 1, 7):
                    if n == 14:
                        E("s_nop 3")
                    writeout(q0 - 1)
        E("s_nop 7")
        writeout(7)
    conv(2)
    STAMP(6)
    E("s_mov_b32 s73, 7")
    E("s_branch K_fin")
    L("K_convB")
    waitf(0, 0, 4, 24)
    waitf(4, 4, 8, 24)
    E(f"buffer_load_dwordx4 v[12:15], v9, s[{SRD_WS}:{SRD_WS+3}], s60 offen sc1")
    E(f"buffer_load_dwordx4 v[24:27], v9, s[{SRD_WS}:{SRD_WS+3}], s60 offen offset:1024 sc1")
    STAMP(5)
    conv(1)
    STAMP(6)
    E("s_mov_b32 s70, 0")
    L("K_gpoll")
    E("s_waitcnt vmcnt(0)")
    E("v_xor_b32 v14, s56, v14")
    E("v_xor_b32 v15, s57, v15")
    E("v_xor_b32 v26, s56, v26")
    E("v_xor_b32 v27, s57, v27")
    E("v_or_b32 v14, v14, v15")
    E("v_or_b32 v26, v26, v27")
    E("v_or_b32 v14, v14, v26")
    E("v_cmp_ne_u32 vcc, 0, v14")
    E("s_add_u32 s70, s70, 1")
    E("s_cmp_eq_u64 vcc, 0")
    E("s_cbranch_scc1 K_gok")
    E("s_cmp_ge_u32 s70, 0x40000")
    E("s_cbranch_scc1 K_gok")
    E("s_sleep 8")
    E(f"buffer_load_dwordx4 v[12:15], v9, s[{SRD_WS}:{SRD_WS+3}], s60 offen sc1")
    E(f"buffer_load_dwordx4 v[24:27], v9, s[{SRD_WS}:{SRD_WS+3}], s60 offen offset:1024 sc1")
    E("s_branch K_gpoll")
    L("K_gok")
    for (src, dst) in [(12, 32), (24, 36)]:
        for hh in range(2):
            E(f"v_lshlrev_b32 v{dst+2*hh}, 16, v{src+hh}")
            E(f"v_and_b32 v{dst+2*hh+1}, s43, v{src+hh}")
        for e in range(4):
            E(f"v_sub_f32 v40, 1.0, v{dst+e}")
            E(f"v_cvt_pk_bf16_f32 v{dst+e}, v{dst+e}, v40")
    E("ds_write_b128 v10, v[32:35]")
    E("ds_write_b128 v10, v[36:39] offset:1024")
    post(6)
    E("s_mov_b32 s73, 0")
    if FINPRIO:
        E(f"s_setprio {FINPRIO}")
    L("K_fin")
    E("v_subrev_u32 v16, 16, v1")
    E("v_add_u32 v17, 47, v1")
    E("v_cmp_eq_u32 vcc, 0, v1")
    E("s_nop 1")
    E("v_cndmask_b32 v17, v17, -1, vcc")
    E("v_cmp_gt_u32 vcc, 16, v1")
    E("s_lshl_b32 s74, s73, 6")
    E("s_nop 0")
    E("v_cndmask_b32 v16, v16, v17, vcc")
    E("v_add_u32 v16, s74, v16")
    E("v_add_u32 v22, s74, v1")
    E("v_add_u32 v6, s74, v6")
    E("s_lshl_b32 s70, s67, 2")
    E(f"s_add_u32 s70, s70, {PB + 16}")
    E("v_lshl_add_u32 v18, v22, 4, s70")
    E("s_add_u32 s70, s67, 2")
    E("s_and_b32 s70, s70, 3")
    E("s_lshl_b32 s70, s70, 2")
    E(f"s_add_u32 s70, s70, {PB + 16 + PMS}")
    E("s_cmp_lt_u32 s67, 2")
    E("s_cselect_b64 vcc, -1, 0")
    E("v_cndmask_b32 v17, v22, v16, vcc")
    E("v_lshl_add_u32 v19, v17, 4, s70")
    E("s_lshr_b32 s70, s67, 1")
    E(f"s_mul_i32 s70, s70, {PCS}")
    E(f"s_add_u32 s70, s70, {PB + 4*PMS + 16}")
    E("v_lshl_add_u32 v20, v16, 2, s70")
    E("s_and_b32 s70, s67, 1")
    E("s_cmp_eq_u32 s70, 0")
    E("s_cselect_b64 vcc, -1, 0")
    E("s_cselect_b32 s75, 256, 0")
    E(f"v_mov_b32 v17, {PB + 4*PMS}")
    E("v_cndmask_b32 v20, v17, v20, vcc")
    E(f"s_mul_i32 s70, s67, {ZROW}")
    E("v_lshl_add_u32 v21, v6, 1, s70")
    E("s_lshl_b32 s70, s67, 10")
    E("v_lshl_add_u32 v22, v6, 12, s70")
    E("s_lshl_b32 s70, s67, 2")
    E(f"s_add_u32 s70, s70, {GB}")
    E("v_lshl_add_u32 v7, v6, 4, s70")
    E("s_lshl_b32 s70, s73, 5")
    E(f"s_add_u32 s70, s70, {FLG}")
    E("v_mov_b32 v23, s70")
    E("s_lshl_b32 s72, s64, 2")
    E("s_lshl_b32 s76, s23, 16")
    E("s_and_b32 s77, s23, s43")
    E("s_lshl_b32 s78, s42, 16")
    E("s_and_b32 s79, s42, s43")
    E("s_sub_u32 s74, 8, s68")
    waitf(6, 4, 8, 32)
    L("K_hloop")
    for r in range(48, 52):
        E(f"v_mov_b32 v{r}, 0")
    for k in range(4):
        E(f"ds_read_u16_d16_hi v{48+k}, v21 offset:{ZBASE + 4*k*ZROW + 128}")
    E("ds_read_b32 v8, v7")
    L("K_hpoll")
    E("ds_read_b128 v[32:35], v23")
    E("ds_read_b128 v[36:39], v23 offset:16")
    E("s_waitcnt lgkmcnt(0)")
    for k in range(0, 8, 2):
        E(f"v_and_b32 v{32+k}, v{32+k}, v{33+k}")
    E("v_and_b32 v32, v32, v34")
    E("v_and_b32 v36, v36, v38")
    E("v_and_b32 v32, v32, v36")
    E("s_nop 0")
    E("v_readfirstlane_b32 s70, v32")
    E("s_cmp_eq_u32 s70, 1")
    E("s_cbranch_scc1 K_go")
    E("s_sleep 3")
    E("s_branch K_hpoll")
    L("K_go")
    for k in range(4):
        X, c = k >> 1, k & 1
        base = PSTRIDE if X == 0 else 0
        E(f"ds_read_b32 v{32+k}, v18 offset:{base + 2*c*PMS}")
        E(f"ds_read_b32 v{36+k}, v19 offset:{base + 2*c*PMS}")
        E(f"ds_read_b32 v{40+k}, v20 offset:{base + 2*c*PCS}")
    def rnd(a, b):
        E(f"v_cvt_pk_bf16_f32 v{a}, v{a}, v{b}")
        E(f"v_and_b32 v{b}, s43, v{a}")
        E(f"v_lshlrev_b32 v{a}, 16, v{a}")
    yA0, yA1, yB0, yB1 = 32, 33, 34, 35
    u0, u1, k0, k1 = 48, 49, 50, 51
    t = 52
    E(f"v_mul_f32 v{t}, s76, v{u0}")
    E(f"v_mul_f32 v{t+1}, s77, v{u1}")
    E(f"v_mul_f32 v{t+2}, s78, v{k0}")
    E(f"v_mul_f32 v{t+3}, s79, v{k1}")
    rnd(t, t + 1)
    rnd(t + 2, t + 3)
    E(f"v_lshlrev_b32 v{t+4}, 16, v8")
    E(f"v_and_b32 v{t+5}, s43, v8")
    E("v_add_u32 v18, 1024, v18")
    E("v_add_u32 v19, 1024, v19")
    E("v_add_u32 v20, s75, v20")
    E("v_add_u32 v21, 128, v21")
    E("v_add_u32 v23, 32, v23")
    E("v_add_u32 v7, 1024, v7")
    for k in range(4):
        E(f"s_waitcnt lgkmcnt({9-3*k})")
        E(f"v_add_f32 v{32+k}, v{32+k}, v{36+k}")
        E(f"v_add_f32 v{32+k}, v{32+k}, v{40+k}")
    rnd(yA0, yA1)
    rnd(yB0, yB1)
    E(f"v_add_f32 v{yA0}, v{yA0}, v{t}")
    E(f"v_add_f32 v{yA1}, v{yA1}, v{t+1}")
    E(f"v_add_f32 v{yB0}, v{yB0}, v{t+2}")
    E(f"v_add_f32 v{yB1}, v{yB1}, v{t+3}")
    rnd(yA0, yA1)
    rnd(yB0, yB1)
    E(f"v_mul_f32 v{yB0}, v{u0}, v{yB0}")
    E(f"v_mul_f32 v{yB1}, v{u1}, v{yB1}")
    rnd(yB0, yB1)
    E(f"v_mul_f32 v{yA0}, v{t+4}, v{yA0}")
    E(f"v_mul_f32 v{yA1}, v{t+4}, v{yA1}")
    E(f"v_mul_f32 v{yB0}, v{t+5}, v{yB0}")
    E(f"v_mul_f32 v{yB1}, v{t+5}, v{yB1}")
    rnd(yA0, yA1)
    rnd(yB0, yB1)
    E(f"v_add_f32 v{yA0}, v{yA0}, v{yB0}")
    E(f"v_add_f32 v{yA1}, v{yA1}, v{yB1}")
    E(f"v_cvt_pk_bf16_f32 v{yA0}, v{yA0}, v{yA1}")
    E(f"buffer_store_dword v{yA0}, v22, s[{SRD_OUT}:{SRD_OUT+3}], s72 offen")
    E("v_add_u32 v22, 0x40000, v22")
    E("s_add_u32 s73, s73, 1")
    E("s_cmp_lt_u32 s73, s74")
    E("s_cbranch_scc1 K_hloop")
    STAMP(7)
    if DBG: E("s_waitcnt vmcnt(0)")
    STAMP(8)
    if "--pro" in sys.argv:
        E("s_waitcnt lgkmcnt(0)")
        for i in range(3, 8): E(f"s_mov_b32 s{80+2*i}, s{1+i}")
    DUMP(10, SRD_WS)
    L("K_end")
    E("s_endpgm")
    sg = 102 if DBG else 80
    return f""".amdhsa_kernel {name}
  .amdhsa_next_free_vgpr 256
  .amdhsa_next_free_sgpr {sg}
  .amdhsa_accum_offset 256
  .amdhsa_group_segment_fixed_size 0
  .amdhsa_kernarg_size 152
  .amdhsa_user_sgpr_count 2
  .amdhsa_user_sgpr_kernarg_segment_ptr 1
  .amdhsa_system_sgpr_workgroup_id_x 1
  .amdhsa_float_denorm_mode_32 3
.end_amdhsa_kernel"""

def main():
    hdr = HEADER.rstrip("\n")
    pre = [hdr,
           f"; @launch grid=(256,1,1) block=(512,1,1) lds={LDS_SIZE}",
           '.amdgcn_target "amdgcn-amd-amdhsa--gfx950"',
           ".text"]
    k = gen()
    txt = "\n".join(pre + out) + '\n.section .rodata,"a"\n.p2align 6\n' + k + "\n"
    args = [a for a in sys.argv[1:] if not a.startswith("--")]
    path = args[0] if args else "cdna_kernels/%s.s" % NAME
    open(path, "w").write(txt)

main()
```

```python
import sys

NAME = "gated_mix__ssm_conv_s4__ssm_conv_h3__prompt"
HEADER = open("cdna_kernels/%s.s.ref" % NAME).read().split("; Override launch")[0]
DBG = "--dbg" in sys.argv
def opt(name, default):
    for a in sys.argv:
        if a.startswith("--" + name + "="):
            return int(a.split("=")[1])
    return default
NA = 8
NB = 8 - NA
FINPRIO = opt("finprio", 1)
PSLEEP = opt("psleep", 8)
TOUCH = opt("touch", 0)
LATE = opt("late", 5)
DRY = opt("dry", 0)
KLDS = opt("klds", 1)
TSH = opt("tsh", 16)
CBPRIO = opt("cbprio", 1)
APRIO = opt("aprio", 2)
POLLSC = ["sc1", "sc0 sc1", "sc1 nt"][opt("pollsc", 1)]

out = []
def E(s=""):
    out.append("    " + s)
def L(s):
    out.append(s + ":")

WS_Z = 0
WS_G = 4 << 20
WS_F = WS_G + 8192
WS_SIZE = (4 << 20) + 16384
WS_DBG = 16 << 20
if DBG:
    WS_SIZE = 32 << 20

ZROW = 1152
ZBASE = 0
XBASE = 16 * ZROW
XROW = 4128
GB = XBASE + 6 * XROW
FLG = GB + 8192
SYN = FLG + 256
PMS = 8192 + 16
PCS = 2048 + 16
PB = SYN + 288
PA = PB + 4 * PMS + 4 * PCS
PSTRIDE = PA - PB
S_KT = PA
S_P = S_KT + 24576
S_K = S_P + 8192
S_TR = S_K + 9216
LDS_SIZE = S_TR + 8 * 3072
assert LDS_SIZE <= 163840 and PA + PSTRIDE <= LDS_SIZE
def PMa(X, w4):
    return (PA if X == 0 else PB) + w4 * PMS
def PCa(X, w4):
    return (PA if X == 0 else PB) + 4 * PMS + w4 * PCS

TD = "--tiledbg" in sys.argv
RD = "--reddbg" in sys.argv
def RSTAMP(i):
    if DBG and RD:
        E(f"s_memtime s[{80+2*i}:{81+2*i}]")
def TSTAMP(i):
    if DBG and TD:
        E(f"s_memtime s[{80+2*i}:{81+2*i}]")
def STAMP(i):
    if TD and i in (3, 4, 5, 6, 7): return
    if RD and i in (1, 2, 4, 6, 7, 8, 9): return
    if DBG:
        E(f"s_memtime s[{80+2*i}:{81+2*i}]")
def DUMP(n, srdreg):
    if DBG:
        E("s_waitcnt lgkmcnt(0)")
        E("s_mov_b64 exec, 1")
        E("s_lshl_b32 s100, s2, 4")
        E("s_add_u32 s100, s100, s3")
        E("s_lshl_b32 s100, s100, 6")
        E(f"s_add_u32 s100, s100, {WS_DBG}")
        for i in range(n):
            E(f"v_mov_b32 v2, s{80+2*i}")
            E(f"v_mov_b32 v3, {4*i}")
            E(f"buffer_store_dword v2, v3, s[{srdreg}:{srdreg+3}], s100 offen")
            E("s_nop 1")

def srd(sd, sp, nbytes):
    E(f"s_mov_b32 s{sd}, s{sp}")
    E(f"s_and_b32 s{sd+1}, s{sp+1}, 0xffff")
    E(f"s_mov_b32 s{sd+2}, {hex(nbytes)}")
    E(f"s_mov_b32 s{sd+3}, 0x00020000")
def R4(r):
    return f"v[{r}:{r+3}]"
SRD_WS, SRD_OUT, SRD_DBGB, SRD_A, SRD_B = 44, 48, 52, 56, 60

lblc = [0]
def post(kind):
    E(f"ds_write_b32 v28, v29 offset:{32*kind}")
def waitf(kind, lo, hi, t0=24):
    lblc[0] += 1
    n = lblc[0]
    if DRY > 1:
        E("s_cmp_lg_u32 s5, 0")
        E(f"s_cbranch_scc1 W{n}_d")
    L(f"W{n}_p")
    if hi - lo == 4:
        E(f"ds_read_b128 v[{t0}:{t0+3}], v30 offset:{32*kind + 4*lo}")
        E("s_waitcnt lgkmcnt(0)")
        E(f"v_and_b32 v{t0}, v{t0}, v{t0+1}")
        E(f"v_and_b32 v{t0+2}, v{t0+2}, v{t0+3}")
        E(f"v_and_b32 v{t0}, v{t0}, v{t0+2}")
    else:
        E(f"ds_read_b128 v[{t0}:{t0+3}], v30 offset:{32*kind}")
        E(f"ds_read_b128 v[{t0+4}:{t0+7}], v30 offset:{32*kind + 16}")
        E("s_waitcnt lgkmcnt(0)")
        for k in range(0, 8, 2):
            E(f"v_and_b32 v{t0+k}, v{t0+k}, v{t0+k+1}")
        E(f"v_and_b32 v{t0}, v{t0}, v{t0+2}")
        E(f"v_and_b32 v{t0+4}, v{t0+4}, v{t0+6}")
        E(f"v_and_b32 v{t0}, v{t0}, v{t0+4}")
    E("s_nop 0")
    E(f"v_readfirstlane_b32 s4, v{t0}")
    E("s_cmp_eq_u32 s4, 1")
    E(f"s_cbranch_scc1 W{n}_d")
    E("s_sleep 1")
    E(f"s_branch W{n}_p")
    L(f"W{n}_d")

def gen():
    name = NAME + "_kernel"
    out.append(f".globl {name}\n.p2align 8\n.type {name},@function")
    L(name)
    E("s_cmp_ge_u32 s2, 256")
    E("s_cbranch_scc1 K_end")
    STAMP(0)
    E("s_setprio 3")
    if opt("dly", 0) == 3: E("s_sleep 47")
    E("s_load_dwordx16 s[4:19], s[0:1], 0")
    E("s_load_dwordx2 s[20:21], s[0:1], 64")
    E("s_load_dwordx8 s[24:31], s[0:1], 80")
    E("s_load_dwordx8 s[32:39], s[0:1], 112")
    E("s_load_dwordx2 s[40:41], s[0:1], 144")
    E("v_lshrrev_b32 v1, 6, v0")
    E("s_nop 0")
    E("v_readfirstlane_b32 s3, v1")
    E("v_and_b32 v1, 63, v0")
    E("s_and_b32 s64, s2, 7")
    E("s_lshl_b32 s65, s64, 2")
    E("s_lshl_b32 s64, s64, 5")
    E("s_lshr_b32 s66, s2, 3")
    E("s_add_u32 s64, s64, s66")
    E("s_and_b32 s66, s66, 3")
    E("s_add_u32 s65, s65, s66")
    E("s_lshr_b32 s66, s2, 5")
    E("s_and_b32 s67, s3, 3")
    E("s_lshr_b32 s68, s3, 2")
    E("s_bfe_u32 s69, s3, 0x10001")
    E("v_mov_b32 v12, 0")
    E("v_mov_b32 v13, 0")
    E("v_mov_b32 v14, 0")
    E("v_mov_b32 v15, 0")
    E("v_and_b32 v2, 31, v1")
    E("v_lshlrev_b32 v2, 4, v2")
    E(f"ds_write_b128 v2, v[12:15] offset:{FLG}")
    E(f"ds_write_b128 v2, v[12:15] offset:{FLG + 32}")
    E("s_lshl_b32 s70, s3, 2")
    E(f"s_add_u32 s70, s70, {SYN}")
    E("v_mov_b32 v28, s70")
    E("v_mov_b32 v29, 1")
    E("v_mov_b32 v95, 0")
    E(f"v_mov_b32 v30, {SYN}")
    E("s_lshl_b32 s70, s65, 6")
    E("s_add_u32 s70, s70, s67")
    E("s_lshl_b32 s70, s70, 10")
    E("s_lshl_b32 s71, s66, 7")
    E("s_add_u32 s70, s70, s71")
    E("v_lshrrev_b32 v2, 3, v1")
    E("v_and_b32 v3, 7, v1")
    E("v_lshlrev_b32 v4, 12, v2")
    E("v_lshl_add_u32 v4, v3, 4, v4")
    E("v_add_u32 v4, s70, v4")
    E("v_subrev_u32 v5, 1024, v4")
    E("v_subrev_u32 v6, 2048, v4")
    E("v_subrev_u32 v7, 3072, v4")
    E("s_lshl_b32 s71, s66, 9")
    E("v_lshl_add_u32 v8, v3, 6, s71")
    E("s_lshl_b32 s72, s65, 6")
    E("s_lshl_b32 s71, s66, 3")
    E("s_add_u32 s72, s72, s71")
    E("s_lshl_b32 s71, s67, 1")
    E("s_add_u32 s72, s72, s71")
    E("s_lshl_b32 s73, s72, 10")
    E("v_lshlrev_b32 v9, 4, v1")
    E("s_and_b32 s74, s3, 1")
    E(f"s_mul_i32 s75, s74, {8*NA}")
    E(f"s_mul_i32 s76, s74, {8*NB}")
    E(f"s_add_u32 s76, s76, {16*NA}")
    E("s_cmp_eq_u32 s68, 0")
    E("s_cselect_b32 s75, s75, s76")
    E("s_lshl_b32 s70, s64, 1")
    E("s_add_u32 s70, s70, s69")
    E("s_lshl_b32 s70, s70, 7")
    E("s_add_u32 s70, s70, s75")
    E("s_lshl_b32 s70, s70, 1")
    E("v_lshl_add_u32 v11, v1, 1, s70")
    if "--pro" in sys.argv: STAMP(3)
    E("s_waitcnt lgkmcnt(0)")
    if "--pro" in sys.argv: STAMP(4)
    E("s_add_u32 s70, s2, s3")
    E("s_cmp_lg_u32 s70, 0")
    E("s_cbranch_scc1 K_nononce")
    E("s_memrealtime s[70:71]")
    srd(SRD_DBGB, 38, 256)
    E("s_waitcnt lgkmcnt(0)")
    E("s_or_b32 s70, s70, 1")
    E("v_mov_b32 v100, s70")
    E("v_mov_b32 v101, s71")
    E("s_mov_b64 exec, 1")
    E(f"buffer_store_dwordx2 v[100:101], v95, s[{SRD_DBGB}:{SRD_DBGB+3}], 0 offen sc1")
    E("s_mov_b64 exec, -1")
    L("K_nononce")
    E("s_barrier")
    E("s_cmp_eq_u32 s68, 0")
    E("s_cbranch_scc1 K_noTL")
    srd(SRD_A, 24, 2 << 20)
    srd(SRD_B, 26, 2 << 20)
    E("s_mov_b32 s70, 0x8000")
    E("v_lshlrev_b32 v5, 10, v2")
    E("v_lshl_add_u32 v5, v3, 4, v5")
    E("s_lshl_b32 s71, s65, 6")
    E("s_lshl_b32 s74, s67, 3")
    E("s_add_u32 s71, s71, s74")
    E("s_sub_u32 s71, s71, 8")
    E("s_lshl_b32 s71, s71, 10")
    E("s_lshl_b32 s74, s66, 7")
    E("s_add_u32 s71, s71, s74")
    E("v_add_u32 v5, s71, v5")
    E("v_add_u32 v6, s70, v5")
    E("v_add_u32 v7, s70, v6")
    E("s_lshl_b32 s74, s67, 10")
    E(f"s_add_u32 s74, s74, {S_K}")
    E("s_mov_b32 m0, s74")
    E("s_add_u32 s74, s74, 4096")
    E(f"buffer_load_dwordx4 v5, s[{SRD_A}:{SRD_A+3}], 0 offen lds")
    E("s_mov_b32 m0, s74")
    E("s_add_u32 s74, s74, 4096")
    E(f"buffer_load_dwordx4 v6, s[{SRD_A}:{SRD_A+3}], 0 offen lds")
    E("s_cmp_lg_u32 s67, 0")
    E("s_cbranch_scc1 K_nok3")
    E("s_mov_b32 m0, s74")
    E("s_nop 0")
    E(f"buffer_load_dwordx4 v7, s[{SRD_A}:{SRD_A+3}], 0 offen lds")
    L("K_nok3")
    E(f"buffer_load_dwordx4 v[96:99], v4, s[{SRD_B}:{SRD_B+3}], 0 offen")
    srd(SRD_WS, 28, 4096)
    srd(SRD_OUT, 4, 2 << 20)
    for i in range(4):
        E(f"buffer_load_dwordx4 v[{40+4*i}:{43+4*i}], v8, s[{SRD_WS}:{SRD_WS+3}], 0 offen offset:{16*i}")
    E(f"buffer_load_dwordx4 v[32:35], v4, s[{SRD_OUT}:{SRD_OUT+3}], 0 offen")
    E("v_add_u32 v4, s70, v4")
    E(f"buffer_load_dwordx4 v[144:147], v4, s[{SRD_B}:{SRD_B+3}], 0 offen")
    E(f"buffer_load_dwordx4 v[148:151], v4, s[{SRD_OUT}:{SRD_OUT+3}], 0 offen")
    E(f"buffer_load_dwordx4 v[56:59], v9, s[{SRD_OUT}:{SRD_OUT+3}], s73 offen")
    E(f"buffer_load_dwordx4 v[152:155], v9, s[{SRD_OUT}:{SRD_OUT+3}], s73 offen offset:1024")
    srd(SRD_A, 34, 1024)
    E(f"buffer_load_dwordx4 v[60:63], v9, s[{SRD_A}:{SRD_A+3}], 0 offen")
    E("s_branch K_noPL")
    L("K_noTL")
    for i, sp in enumerate([6, 8, 10, 12, 14, 16]):
        sd = SRD_A if i % 2 == 0 else SRD_B
        srd(sd, sp, 131072)
        E(f"buffer_load_ushort v{84+i}, v11, s[{sd}:{sd+3}], 0 offen")
    if TOUCH:
        E(f"v_lshlrev_b32 v200, {TSH}, v1")
        E("s_cmp_eq_u32 s3, 0")
        E("s_cbranch_scc0 K_tc1")
        srd(SRD_A, 40, WS_SIZE)
        E(f"buffer_load_dword v201, v200, s[{SRD_A}:{SRD_A+3}], 0 offen")
        E(f"s_mov_b32 s70, {WS_G}")
        E(f"buffer_load_dword v202, v95, s[{SRD_A}:{SRD_A+3}], s70 offen")
        E("s_branch K_tc4")
        L("K_tc1")
        E("s_cmp_eq_u32 s3, 1")
        E("s_cbranch_scc0 K_tc2")
        srd(SRD_A, 36, 2 << 20)
        E(f"buffer_load_dword v201, v200, s[{SRD_A}:{SRD_A+3}], 0 offen")
        srd(SRD_B, 38, 256)
        E(f"buffer_load_dword v202, v95, s[{SRD_B}:{SRD_B+3}], 0 offen")
        E("s_branch K_tc4")
        L("K_tc2")
        E("s_cmp_eq_u32 s3, 2")
        E("s_cbranch_scc0 K_tc3")
        srd(SRD_A, 4, 2 << 20)
        E(f"buffer_load_dword v201, v200, s[{SRD_A}:{SRD_A+3}], 0 offen")
        srd(SRD_B, 24, 2 << 20)
        E(f"buffer_load_dword v202, v200, s[{SRD_B}:{SRD_B+3}], 0 offen")
        E("s_branch K_tc4")
        L("K_tc3")
        srd(SRD_A, 26, 2 << 20)
        E(f"buffer_load_dword v201, v200, s[{SRD_A}:{SRD_A+3}], 0 offen")
        srd(SRD_B, 34, 1024)
        E(f"buffer_load_dword v202, v95, s[{SRD_B}:{SRD_B+3}], 0 offen")
        L("K_tc4")
    L("K_noPL")
    srd(SRD_A, 30, 2 << 20)
    E("s_lshl_b32 s74, s64, 2")
    if "--pro" in sys.argv: STAMP(6)
    E("s_load_dword s22, s[18:19], s74")
    E("s_load_dword s23, s[20:21], s74")
    E("s_load_dword s42, s[32:33], s74")
    srd(SRD_WS, 40, WS_SIZE)
    srd(SRD_OUT, 36, 2 << 20)
    srd(SRD_DBGB, 38, 256)
    E("s_mov_b32 s43, 0xffff0000")
    E("s_mov_b32 s5, 0")
    E("s_and_b32 s61, s3, 1")
    if "--pro" in sys.argv:
        STAMP(7)
        E("s_waitcnt lgkmcnt(0)")
        for i in range(3, 8): E(f"s_mov_b32 s{1+i}, s{80+2*i}")
    E("s_cmp_eq_u32 s68, 0")
    E("s_cbranch_scc1 K_kgen")
    E("s_mul_i32 s70, s3, 3072")
    E(f"s_add_u32 s70, s70, {S_TR}")
    E("v_mul_u32_u24 v64, 144, v2")
    E("v_lshl_add_u32 v64, v3, 4, v64")
    E("v_add_u32 v64, s70, v64")
    E("v_lshrrev_b32 v66, 4, v1")
    E("v_and_b32 v67, 1, v66")
    E("v_lshrrev_b32 v66, 1, v66")
    E("v_bfe_u32 v68, v1, 2, 2")
    E("v_and_b32 v69, 3, v1")
    E("v_mul_u32_u24 v65, 1152, v67")
    E("v_mul_u32_u24 v68, 144, v68")
    E("v_add_u32 v65, v65, v68")
    E("v_lshl_add_u32 v65, v66, 5, v65")
    E("v_lshl_add_u32 v65, v69, 3, v65")
    E("v_add_u32 v65, s70, v65")
    E("v_and_b32 v68, 15, v1")
    E("v_lshl_add_u32 v68, v66, 4, v68")
    E("v_lshrrev_b32 v69, 1, v68")
    E("v_and_b32 v68, 1, v68")
    E("v_lshlrev_b32 v69, 14, v69")
    E("v_lshl_add_u32 v69, v68, 4, v69")
    E("v_lshl_add_u32 v69, v67, 5, v69")
    E("s_lshl_b32 s70, s66, 19")
    E("s_lshl_b32 s71, s65, 9")
    E("s_add_u32 s70, s70, s71")
    E("s_lshl_b32 s71, s67, 7")
    E("s_add_u32 s70, s70, s71")
    E("s_add_u32 s71, s70, 0x40000")
    E("s_mov_b32 s62, 0")
    E("s_mov_b32 s76, 0x00003f80")
    E("s_mov_b32 s77, 0x3f800000")
    E("s_mov_b32 s78, 0x0000ffff")
    E("s_mov_b32 s79, 0x3f803f80")
    if DRY:
        E("s_mov_b32 s5, 1")
        E("s_mov_b64 exec, 0")
        E("s_branch K_tmask")
        L("K_breal")
        E("s_mov_b32 s5, 0")
        E("s_mov_b64 exec, -1")
        E("s_mov_b32 s62, 0")
    E("v_and_b32 v224, 3, v1")
    E("v_bfe_u32 v225, v1, 3, 2")
    E("v_lshl_add_u32 v224, v224, 2, v225")
    E(f"v_mul_u32_u24 v224, {ZROW}, v224")
    E("v_bfe_u32 v225, v1, 2, 1")
    E("v_lshl_add_u32 v224, v225, 4, v224")
    E("v_lshrrev_b32 v225, 5, v1")
    E("v_lshl_add_u32 v224, v225, 5, v224")
    E("s_lshl_b32 s74, s67, 8")
    E(f"s_add_u32 s74, s74, {ZBASE + 128}")
    E("v_add_u32 v224, s74, v224")
    E("s_lshl_b32 s6, s64, 14")
    E("s_lshl_b32 s74, s67, 12")
    E("s_add_u32 s6, s6, s74")
    E("s_lshl_b32 s74, s67, 11")
    E(f"v_add_u32 v10, {GB}, v9")
    E("v_add_u32 v10, s74, v10")
    E(f"s_add_u32 s60, s74, {WS_G}")
    E("v_and_b32 v226, 31, v1")
    E("v_lshlrev_b32 v226, 5, v226")
    E("s_and_b32 s7, s2, 7")
    E("s_lshl_b32 s7, s7, 10")
    E(f"s_add_u32 s7, s7, {WS_F}")
    E("v_and_b32 v227, 1, v1")
    E("v_lshlrev_b32 v225, 3, v227")
    E("v_lshlrev_b32 v227, 4, v227")
    E("s_lshl_b32 s8, s65, 3")
    E("s_add_u32 s8, s8, s66")
    E("s_lshl_b32 s8, s8, 5")
    E(f"s_add_u32 s8, s8, {WS_G}")
    E("s_lshl_b32 s9, s66, 5")
    E("s_add_u32 s9, s9, s65")
    E("s_lshl_b32 s9, s9, 5")
    E(f"s_add_u32 s9, s9, {WS_F}")
    E("v_mov_b32 v100, 0")
    E("v_mov_b32 v101, 0")
    E("v_mov_b32 v102, 0")
    E("v_mov_b32 v103, 0")
    E("v_bfe_u32 v104, v1, 3, 2")
    E(f"v_mul_u32_u24 v104, {ZROW}, v104")
    E("v_and_b32 v105, 7, v1")
    E("v_lshl_add_u32 v104, v105, 4, v104")
    E(f"s_mul_i32 s74, s67, {4*ZROW}")
    E("v_add_u32 v104, s74, v104")
    E("ds_write_b128 v104, v[100:103]")
    E("v_min_u32 v104, 11, v1")
    E("v_lshrrev_b32 v105, 1, v104")
    E(f"v_mul_u32_u24 v105, {XROW}, v105")
    E("v_and_b32 v104, 1, v104")
    E("v_lshl_add_u32 v104, v104, 4, v105")
    E(f"ds_write_b128 v104, v[100:103] offset:{XBASE}")
    E(f"s_mul_i32 s74, s67, {PMS}")
    E(f"s_add_u32 s74, s74, {PB}")
    E("v_mov_b32 v104, s74")
    E("ds_write_b128 v104, v[100:103]")
    E("s_add_u32 s74, s74, 16")
    E("v_lshl_add_u32 v230, v1, 4, s74")
    E(f"s_mul_i32 s74, s67, {PCS}")
    E(f"s_add_u32 s74, s74, {PB + 4*PMS}")
    E("v_mov_b32 v105, s74")
    E("ds_write_b128 v105, v[100:103]")
    E("s_add_u32 s74, s74, 16")
    E("v_lshl_add_u32 v231, v1, 2, s74")
    E("v_and_b32 v4, 15, v1")
    E("v_lshrrev_b32 v5, 4, v1")
    E("v_lshlrev_b32 v6, 2, v4")
    E("v_add_u32 v6, v6, v5")
    E("s_lshl_b32 s74, s3, 1")
    E(f"s_mul_i32 s74, s74, {ZROW}")
    E(f"s_add_u32 s74, s74, {ZBASE + 8}")
    E("v_lshlrev_b32 v228, 3, v4")
    E("v_lshl_add_u32 v228, v5, 4, v228")
    E("v_add_u32 v228, s74, v228")
    E("v_and_b32 v104, 3, v1")
    E("v_bfe_u32 v105, v1, 2, 2")
    E("v_sub_u32 v104, v104, v105")
    E("v_lshlrev_b32 v104, 3, v104")
    E("v_lshlrev_b32 v105, 6, v5")
    E("v_sub_u32 v104, v104, v105")
    E("s_add_u32 s74, s69, 4")
    E(f"s_mul_i32 s74, s74, {XROW}")
    E(f"s_add_u32 s74, s74, {XBASE + 224}")
    E("v_add_u32 v229, s74, v104")
    E("s_lshl_b32 s74, s3, 2")
    E(f"s_add_u32 s74, s74, {FLG}")
    E("v_mov_b32 v232, s74")
    E("v_lshlrev_b32 v70, 9, v2")
    E("v_lshl_add_u32 v70, v3, 4, v70")
    E("s_lshl_b32 s74, s67, 7")
    E(f"s_add_u32 s74, s74, {S_K + 1024 - 384}")
    E("v_add_u32 v70, s74, v70")
    E("s_waitcnt vmcnt(11)")
    post(7)
    E("s_waitcnt vmcnt(6)")
    STAMP(1)
    L("K_tmask")
    for t in range(4):
        for i in range(4):
            r0 = 40 + 4 * i + (t >> 1)
            r1 = 40 + 4 * i + 2 + (t >> 1)
            d = 160 + (t * 4 + i) * 2
            if t & 1:
                E(f"v_lshrrev_b32 v{d}, 16, v{r0}")
                E(f"v_and_b32 v{d+1}, s43, v{r1}")
            else:
                E(f"v_and_b32 v{d}, s78, v{r0}")
                E(f"v_lshlrev_b32 v{d+1}, 16, v{r1}")
    waitf(7, 4, 8, 72)
    TSTAMP(3)
    L("K_tloop")
    for t in range(4):
        E(f"ds_read_b128 {R4(12+4*t)}, v70 offset:{384 - 128*t}")
    E("v_add_u32 v70, 4096, v70")
    E("s_waitcnt lgkmcnt(0)")
    for t in range(4):
        for i in range(4):
            kr = 12 + 4 * t + i
            d = 160 + (t * 4 + i) * 2
            E(f"v_dot2_f32_bf16 v{208+2*i}, v{kr}, v{d}, 0")
            E(f"v_dot2_f32_bf16 v{209+2*i}, v{kr}, v{d+1}, 0")
        E("s_nop 0")
        for i in range(4):
            E(f"v_cvt_pk_bf16_f32 v{192+4*t+i}, v{208+2*i}, v{209+2*i}")
    cur = 192 + 12
    for t in (2, 1, 0):
        for i in range(4):
            E(f"v_lshlrev_b32 v{208+2*i}, 16, v{cur+i}")
            E(f"v_and_b32 v{209+2*i}, s43, v{cur+i}")
        for i in range(4):
            E(f"v_dot2_f32_bf16 v{208+2*i}, v{192+4*t+i}, s76, v{208+2*i}")
            E(f"v_dot2_f32_bf16 v{209+2*i}, v{192+4*t+i}, s77, v{209+2*i}")
        E("s_nop 0")
        for i in range(4):
            E(f"v_cvt_pk_bf16_f32 v{cur+i}, v{208+2*i}, v{209+2*i}")
    for i in range(4):
        E(f"v_and_b32 v{216+2*i}, s78, v{96+i}")
        E(f"v_and_b32 v{217+2*i}, s43, v{96+i}")
    for i in range(4):
        E(f"v_dot2_f32_bf16 v{208+2*i}, v{cur+i}, v{216+2*i}, 0")
        E(f"v_dot2_f32_bf16 v{209+2*i}, v{cur+i}, v{217+2*i}, 0")
    E("s_nop 0")
    for i in range(4):
        E(f"v_cvt_pk_bf16_f32 v{36+i}, v{208+2*i}, v{209+2*i}")
    if DRY:
        E("s_cmp_lg_u32 s5, 0")
        E("s_cbranch_scc1 K_gmask")
    E("ds_write_b128 v64, v[36:39] offset:1152")
    E("s_cmp_eq_u32 s62, 0")
    E("s_cbranch_scc0 K_tw1")
    E("s_waitcnt vmcnt(5)")
    L("K_tw1")
    E("ds_write_b128 v64, v[32:35]")
    E("s_waitcnt lgkmcnt(0)")
    E("ds_read_b64_tr_b16 v[76:77], v65")
    E("ds_read_b64_tr_b16 v[78:79], v65 offset:576")
    E("ds_read_b64_tr_b16 v[80:81], v65 offset:64")
    E("ds_read_b64_tr_b16 v[82:83], v65 offset:640")
    E("s_waitcnt lgkmcnt(2)")
    E(f"buffer_store_dwordx4 v[76:79], v69, s[{SRD_WS}:{SRD_WS+3}], s70 offen sc1")
    E("s_waitcnt lgkmcnt(0)")
    E(f"buffer_store_dwordx4 v[80:83], v69, s[{SRD_WS}:{SRD_WS+3}], s71 offen sc1")
    E("s_cmp_eq_u32 s62, 1")
    E("s_cbranch_scc1 K_tdone")
    E("s_mov_b32 s62, 1")
    E("s_add_u32 s70, s70, 64")
    E("s_add_u32 s71, s71, 64")
    TSTAMP(4)
    E("s_waitcnt vmcnt(5)")
    TSTAMP(5)
    for i in range(4):
        E(f"v_mov_b32 v{96+i}, v{144+i}")
        E(f"v_mov_b32 v{32+i}, v{148+i}")
    E("s_branch K_tloop")
    L("K_tdone")
    if opt("dly", 0) == 1: E("s_sleep 47")
    STAMP(2)
    E("s_waitcnt vmcnt(0)")
    post(0)
    L("K_nwait")
    E(f"ds_read_b64 v[92:93], v30 offset:272")
    E("s_waitcnt lgkmcnt(0)")
    E("v_readfirstlane_b32 s56, v92")
    E("v_readfirstlane_b32 s57, v93")
    E("s_cmp_lg_u32 s56, 0")
    E("s_cbranch_scc1 K_nok")
    E("s_sleep 1")
    E("s_branch K_nwait")
    L("K_nok")
    E("s_cmp_lg_u32 s3, 4")
    E("s_cbranch_scc1 K_nopub")
    waitf(0, 4, 8, 144)
    E("s_mov_b64 exec, 1")
    E(f"buffer_store_dwordx2 v[92:93], v227, s[{SRD_WS}:{SRD_WS+3}], s9 offen sc1")
    E("s_mov_b64 exec, -1")
    STAMP(9)
    L("K_nopub")
    E("s_mov_b32 s62, 0")
    L("K_gmask")
    for i in range(4):
        E(f"v_and_b32 v{216+2*i}, s78, v{60+i}")
        E(f"v_and_b32 v{217+2*i}, s43, v{60+i}")
    L("K_gloop")
    for i in range(4):
        E(f"v_dot2_f32_bf16 v{208+2*i}, v{56+i}, v{216+2*i}, 0")
        E(f"v_dot2_f32_bf16 v{209+2*i}, v{56+i}, v{217+2*i}, 0")
    E("s_nop 0")
    for i in range(4):
        E(f"v_cvt_pk_bf16_f32 v{192+i}, v{208+2*i}, v{209+2*i}")
    for i in range(4):
        E(f"v_dot2_f32_bf16 v{208+i}, v{192+i}, s79, 0")
    E("s_nop 2")
    E("v_add_f32 v208, v208, v209")
    E("v_add_f32 v210, v210, v211")
    E("v_add_f32 v74, v208, v210")
    for dpp in ["row_shr:1", "row_shr:2", "row_shr:4", "row_shr:8"]:
        E("s_nop 1")
        E(f"v_add_f32_dpp v74, v74, v74 {dpp} row_mask:0xf bank_mask:0xf bound_ctrl:0")
    E("s_nop 1")
    E("v_add_f32_dpp v74, v74, v74 row_bcast:15 row_mask:0xa bank_mask:0xf")
    E("s_nop 1")
    E("v_add_f32_dpp v74, v74, v74 row_bcast:31 row_mask:0xc bank_mask:0xf")
    E("s_nop 1")
    E("v_cvt_pk_bf16_f32 v74, v74, v74")
    E("v_lshlrev_b32 v74, 16, v74")
    E("v_mul_f32 v74, 0xbfb8aa3b, v74")
    E("v_exp_f32 v74, v74")
    E("s_nop 0")
    E("v_add_f32 v74, 1.0, v74")
    E("v_rcp_f32 v74, v74")
    E("s_nop 0")
    E("v_cvt_pk_bf16_f32 v74, v74, v74")
    E("s_lshl_b32 s72, s67, 1")
    E("s_add_u32 s72, s72, s62")
    E("s_lshl_b32 s72, s72, 1")
    E(f"s_add_u32 s72, s72, {SYN + 256}")
    E("v_mov_b32 v75, s72")
    if DRY:
        E("s_cmp_lg_u32 s5, 0")
        E("s_cbranch_scc1 K_breal")
    E("v_cmp_eq_u32 vcc, 63, v1")
    E("s_and_saveexec_b64 s[74:75], vcc")
    E("ds_write_b16 v75, v74")
    E("s_mov_b64 exec, s[74:75]")
    E("s_cmp_eq_u32 s62, 1")
    E("s_cbranch_scc1 K_bwave")
    E("s_mov_b32 s62, 1")
    for i in range(4):
        E(f"v_mov_b32 v{56+i}, v{152+i}")
    E("s_branch K_gloop")
    L("K_kgen")
    E(f"s_setprio {APRIO}")
    STAMP(2)
    E("v_and_b32 v20, 15, v1")
    E("v_lshrrev_b32 v21, 4, v1")
    E("s_mov_b32 s74, 0x00040000")
    E("s_mov_b32 s75, 0x02000100")
    E("s_mov_b32 s76, 0x00010001")
    E("s_mov_b32 s77, 0x00040002")
    E("s_mov_b32 s78, 0x00020002")
    E("s_mov_b32 s79, 0x01000004")
    E("v_lshrrev_b32 v22, 2, v20")
    E("v_lshlrev_b32 v22, 4, v22")
    E("v_lshrrev_b64 v[32:33], v22, s[74:75]")
    E("v_and_b32 v32, 0xffff, v32")
    E("v_lshrrev_b64 v[34:35], v22, s[76:77]")
    E("v_and_b32 v34, 0xffff, v34")
    E("v_and_b32 v23, 1, v20")
    E("v_mad_u32_u24 v32, v23, v34, v32")
    E("v_lshrrev_b64 v[34:35], v22, s[78:79]")
    E("v_and_b32 v34, 0xffff, v34")
    E("v_bfe_u32 v23, v20, 1, 1")
    E("v_mad_u32_u24 v32, v23, v34, v32")
    E("v_cvt_f32_u32 v24, v32")
    E("v_lshrrev_b32 v33, 7, v32")
    E("v_and_b32 v32, 127, v32")
    E("v_cvt_f32_u32 v16, v33")
    E("v_cvt_f32_u32 v17, v32")
    E("v_add_u32 v32, 8, v20")
    E("v_cvt_f32_u32 v18, v32")
    E("v_mul_f32 v26, 0x43000000, v18")
    E("v_lshlrev_b32 v22, 3, v20")
    E("v_cvt_f32_u32 v27, v22")
    if DRY > 1:
        E("s_mov_b32 s5, 1")
        E("s_mov_b64 exec, 0")
        E("s_branch K_dA")
        L("K_areal")
        E("s_mov_b32 s5, 0")
        E("s_mov_b64 exec, -1")
    E("s_waitcnt lgkmcnt(0)")
    E("s_lshl_b32 s70, s22, 16")
    E("s_and_b32 s22, s22, s43")
    E("s_cmp_eq_u32 s69, 0")
    E("s_cselect_b32 s22, s70, s22")
    E("v_mov_b32 v40, 0x3fb8aa3b")
    E("v_mul_f32 v41, s22, v40")
    E("v_exp_f32 v41, v41")
    E("s_nop 0")
    E("v_cvt_pk_bf16_f32 v41, v41, v41")
    E("v_lshlrev_b32 v41, 16, v41")
    E(f"s_waitcnt vmcnt({2 if TOUCH else 0})")
    L("K_dA")
    for i in range(6):
        E(f"v_lshlrev_b32 v{84+i}, 16, v{84+i}")
    E("v_mul_f32 v84, v41, v84")
    E("v_mul_f32 v85, v41, v85")
    E("v_mul_f32 v86, v41, v86")
    E("v_mul_f32 v87, v41, v87")
    E("v_mul_f32 v44, v40, v84")
    E("v_mul_f32 v45, 0.15915494, v85")
    E("v_rndne_f32 v46, v45")
    E("v_sub_f32 v45, v45, v46")
    E("v_mul_f32 v46, 0x43000000, v45")
    E("v_rndne_f32 v47, v46")
    E("v_sub_f32 v46, v46, v47")
    E("v_mul_f32 v84, 0x43000000, v44")
    E("v_exp_f32 v84, v84")
    E("v_cos_f32 v47, v46")
    E("v_sin_f32 v85, v46")
    E("v_mul_f32 v80, v88, v86")
    E("v_fma_f32 v80, -v89, v87, v80")
    E("v_mul_f32 v81, v88, v87")
    E("v_fma_f32 v81, v89, v86, v81")
    E("v_mul_f32 v47, v84, v47")
    E("v_mul_f32 v82, v84, v85")
    E("s_lshl_b32 s70, s3, 11")
    E(f"s_add_u32 s70, s70, {S_P}")
    E("v_lshl_add_u32 v42, v1, 5, s70")
    E("ds_write_b128 v42, v[44:47]")
    E("ds_write_b128 v42, v[80:83] offset:16")
    E("v_lshl_add_u32 v43, v21, 6, s70")
    for r in range(48, 60):
        E(f"v_mov_b32 v{r}, 0")
    E("s_waitcnt lgkmcnt(0)")
    for k in range(4):
        E(f"ds_read_b128 {R4(60+4*k)}, v43 offset:{16*k}")
    E("s_mov_b32 s62, 0")
    E(f"s_mov_b32 s63, {NA}")
    if DRY > 1:
        E("s_cmp_lg_u32 s5, 0")
        E("s_cselect_b32 s63, 1, s63")
    L("K_loop")
    E("s_waitcnt lgkmcnt(0)")
    TT = [[96, 100, 104, 108], [136, 140, 144, 148]]
    for nn in range(2):
        zr, zi, w128 = 60 + 8 * nn, 61 + 8 * nn, 62 + 8 * nn
        T = TT[nn]
        E(f"v_mul_f32 v{T[3]}, v{zr}, v27")
        E(f"v_mul_f32 v{T[3]+1}, v{zi}, v27")
        E(f"v_mul_f32 v{T[0]}, v{zr}, v24")
        E(f"v_mul_f32 v{T[0]+1}, v{zi}, v17")
        E(f"v_mul_f32 v{T[2]}, v{zr}, v26")
        E(f"v_mul_f32 v{T[2]+1}, v{w128}, v18")
        E(f"v_fma_f32 v{T[0]+1}, v{w128}, v16, v{T[0]+1}")
        for k in range(4):
            E(f"v_mov_b32 v{76+4*nn+k}, v{63+8*nn+k}")
    E("v_add_u32 v43, 256, v43")
    for k in range(4):
        E(f"ds_read_b128 {R4(60+4*k)}, v43 offset:{16*k}")
    for nn in range(2):
        er, cbr, cbi, ei = 76 + 4 * nn, 77 + 4 * nn, 78 + 4 * nn, 79 + 4 * nn
        T = TT[nn]
        for t in [T[3], T[0], T[2]]:
            E(f"v_exp_f32 v{t}, v{t}")
            E(f"v_cos_f32 v{t+2}, v{t+1}")
            E(f"v_sin_f32 v{t+3}, v{t+1}")
        t = T[3]
        E(f"v_mul_f32 v{t+2}, v{t}, v{t+2}")
        E(f"v_mul_f32 v{t+3}, v{t}, v{t+3}")
        E(f"v_mul_f32 v{t}, v{cbr}, v{t+2}")
        E(f"v_mul_f32 v{t+1}, v{cbr}, v{t+3}")
        E(f"v_fma_f32 v{t}, -v{cbi}, v{t+3}, v{t}")
        E(f"v_fma_f32 v{t+3}, -v{cbi}, v{t+2}, -v{t+1}")
        E(f"v_mov_b32 v{t+2}, v{t}")
        for t in [T[0], T[2]]:
            E(f"v_mul_f32 v{t+2}, v{t}, v{t+2}")
            E(f"v_mul_f32 v{t+3}, v{t}, v{t+3}")
        p, q = T[0], T[1]
        E(f"v_mul_f32 v{q+2}, v{p+2}, v{er}")
        E(f"v_mul_f32 v{q+3}, v{p+2}, v{ei}")
        E(f"v_fma_f32 v{q+2}, -v{p+3}, v{ei}, v{q+2}")
        E(f"v_fma_f32 v{q+3}, v{p+3}, v{er}, v{q+3}")
        for k in range(4):
            t = T[k]
            hi = (112 + 2 * k + nn) if k < 3 else (124 + nn)
            lo = (118 + 2 * k + nn) if k < 3 else (126 + nn)
            E(f"v_cvt_pk_bf16_f32 v{hi}, v{t+2}, v{t+3}")
            E(f"v_lshlrev_b32 v{t}, 16, v{hi}")
            E(f"v_and_b32 v{t+1}, s43, v{hi}")
            E(f"v_sub_f32 v{t}, v{t+2}, v{t}")
            E(f"v_sub_f32 v{t+1}, v{t+3}, v{t+1}")
            E(f"v_cvt_pk_bf16_f32 v{lo}, v{t}, v{t+1}")
    E("s_add_u32 s62, s62, 1")
    E(f"s_cmp_eq_u32 s62, {LATE}")
    for k in range(3):
        a_ = 48 + 4 * k
        E(f"v_mfma_f32_16x16x16_bf16 {R4(a_)}, v[{112+2*k}:{113+2*k}], v[124:125], {R4(a_)}")
        E(f"v_mfma_f32_16x16x16_bf16 {R4(a_)}, v[{112+2*k}:{113+2*k}], v[126:127], {R4(a_)}")
        E(f"v_mfma_f32_16x16x16_bf16 {R4(a_)}, v[{118+2*k}:{119+2*k}], v[124:125], {R4(a_)}")
    E("s_cbranch_scc0 K_nost")
    E("s_lshl_b32 s70, s64, 13")
    E("s_lshl_b32 s71, s3, 11")
    E("s_add_u32 s70, s70, s71")
    E(f"s_mul_i32 s71, s69, {XROW}")
    E("s_lshl_b32 s72, s61, 11")
    E("s_add_u32 s71, s71, s72")
    E(f"s_add_u32 s71, s71, {XBASE + 4*XROW + 32}")
    E("s_mov_b32 m0, s71")
    E("s_nop 0")
    E(f"buffer_load_dwordx4 v9, s[{SRD_A}:{SRD_A+3}], s70 offen lds")
    E(f"buffer_load_dwordx4 v9, s[{SRD_A}:{SRD_A+3}], s70 offen offset:1024 lds")
    L("K_nost")
    E("s_cmp_lg_u32 s3, 0")
    E("s_cbranch_scc1 K_non")
    E("s_cmp_eq_u32 s62, 1")
    E("s_cbranch_scc0 K_non1")
    E(f"buffer_load_dwordx2 v[92:93], v95, s[{SRD_DBGB}:{SRD_DBGB+3}], 0 offen sc1")
    L("K_non1")
    E("s_cmp_eq_u32 s62, 2")
    E("s_cbranch_scc0 K_non")
    E("s_mov_b32 s70, 0")
    L("K_npoll")
    E("s_waitcnt vmcnt(0)")
    E("v_readfirstlane_b32 s71, v92")
    E("s_add_u32 s70, s70, 1")
    E("s_cmp_lg_u32 s71, 0")
    E("s_cbranch_scc1 K_ngot")
    E("s_sleep 4")
    E(f"buffer_load_dwordx2 v[92:93], v95, s[{SRD_DBGB}:{SRD_DBGB+3}], 0 offen sc1")
    E("s_cmp_lt_u32 s70, 0x40000")
    E("s_cbranch_scc1 K_npoll")
    E("s_waitcnt vmcnt(0)")
    E("v_mov_b32 v92, 1")
    L("K_ngot")
    E("ds_write_b64 v30, v[92:93] offset:272")
    L("K_non")
    E(f"s_cmp_eq_u32 s62, {LATE+3}")
    E("s_cbranch_scc0 K_nost2")
    E("s_waitcnt vmcnt(0)")
    post(0)
    L("K_nost2")
    E("s_cmp_lt_u32 s62, s63")
    E("s_cbranch_scc1 K_loop")
    E("s_waitcnt lgkmcnt(0)")
    STAMP(3)
    if opt("dly", 0) == 2: E("s_sleep 47")
    E("s_mul_i32 s70, s3, 3072")
    E(f"s_add_u32 s70, s70, {S_TR}")
    E("v_lshl_add_u32 v39, v1, 4, s70")
    E("v_and_b32 v4, 15, v1")
    E("v_lshrrev_b32 v5, 4, v1")
    E("v_lshlrev_b32 v6, 2, v4")
    E("v_add_u32 v6, v6, v5")
    E("s_nop 1")
    for k in range(3):
        E(f"ds_write_b128 v39, {R4(48+4*k)} offset:{1024*k}")
    post(1)
    E("s_mul_i32 s70, s69, 12288")
    E(f"s_add_u32 s70, s70, {S_KT}")
    E("v_lshlrev_b32 v32, 5, v20")
    E("v_add_u32 v32, s70, v32")
    E("v_lshl_add_u32 v44, v21, 11, v32")
    E("v_add_u32 v44, 4096, v44")
    E("v_add_u32 v45, 512, v44")
    E("v_add_u32 v46, 1024, v44")
    E("v_add_u32 v47, 1536, v44")
    E("v_lshlrev_b32 v22, 4, v21")
    E("v_lshrrev_b64 v[60:61], v22, s[74:75]")
    E("v_and_b32 v60, 0xffff, v60")
    E("v_lshl_add_u32 v35, v60, 2, v32")
    E("s_lshl_b32 s71, s61, 9")
    E("v_add_u32 v35, s71, v35")
    E("v_lshrrev_b64 v[60:61], v22, s[76:77]")
    E("v_and_b32 v60, 0xffff, v60")
    E("v_lshl_add_u32 v36, v60, 2, v35")
    E("v_lshrrev_b64 v[62:63], v22, s[78:79]")
    E("v_and_b32 v62, 0xffff, v62")
    E("v_lshl_add_u32 v37, v62, 2, v35")
    E("v_lshl_add_u32 v38, v62, 2, v36")
    E("s_mul_i32 s70, s69, 6144")
    E(f"s_add_u32 s70, s70, {S_TR}")
    E("v_lshl_add_u32 v39, v1, 4, s70")
    E("s_lshl_b32 s71, s61, 10")
    E("v_add_u32 v40, s71, v39")
    E("s_lshl_b32 s71, s61, 9")
    E("v_lshl_add_u32 v60, v1, 3, s71")
    E("s_mul_i32 s70, s69, 12288")
    E(f"s_add_u32 s70, s70, {S_KT}")
    for rr in range(2):
        for e in range(0, 8, 2):
            E(f"v_add_u32 v62, {e + 1024*rr}, v60")
            E(f"v_add_u32 v63, {e + 1 + 1024*rr}, v60")
            E("v_cvt_f32_u32 v62, v62")
            E("v_cvt_f32_u32 v63, v63")
            E("v_cvt_pk_bf16_f32 v62, v62, v63")
            E("v_and_b32 v63, s43, v62")
            E("v_lshlrev_b32 v62, 16, v62")
            E("v_cvt_u32_f32 v62, v62")
            E("v_cvt_u32_f32 v63, v63")
            E(f"v_lshl_add_u32 v{64+8*rr+e}, v62, 2, s70")
            E(f"v_lshl_add_u32 v{65+8*rr+e}, v63, 2, s70")
    E(f"s_mul_i32 s70, s69, {XROW}")
    E(f"s_add_u32 s70, s70, {XBASE + 32}")
    E("v_lshl_add_u32 v61, v60, 1, s70")
    RSTAMP(1)
    waitf(1, 0, 4, 96)
    RSTAMP(2)
    srcoff = [0, 3072]
    for k in range(2):
        E(f"ds_read_b128 {R4(96+4*k)}, v40 offset:{srcoff[k]}")
    for k in range(2):
        E(f"ds_read_b128 {R4(112+4*k)}, v39 offset:{srcoff[k] + 2048}")
    for (b, dst, w) in [(96, 35, 2), (112, 44, 0)]:
        E(f"s_waitcnt lgkmcnt({w})")
        for e in range(4):
            E(f"v_add_f32 v{b+e}, v{b+e}, v{b+4+e}")
    for (b, dst) in [(96, 35), (112, 44)]:
        for e in range(4):
            E(f"ds_write_b32 v{dst+e}, v{b+e}")
    post(2)
    RSTAMP(4)
    waitf(2, 0, 4, 96)
    RSTAMP(6)
    for e in range(16):
        E(f"ds_read_b32 v{96+e}, v{64+e}")
    for rr in range(2):
        for e in range(0, 8, 2):
            src = 96 + 8 * rr + e
            E(f"s_waitcnt lgkmcnt({14 - 8*rr - e})")
            E(f"v_cvt_pk_bf16_f32 v{112+8*rr+e//2}, v{src}, v{src+1}")
            E(f"v_lshlrev_b32 v62, 16, v{112+8*rr+e//2}")
            E(f"v_and_b32 v63, s43, v{112+8*rr+e//2}")
            E(f"v_sub_f32 v62, v{src}, v62")
            E(f"v_sub_f32 v63, v{src+1}, v63")
            E(f"v_cvt_pk_bf16_f32 v{116+8*rr+e//2}, v62, v63")
    for rr in range(2):
        E(f"ds_write_b128 v61, {R4(112+8*rr)} offset:{2048*rr}")
        E(f"ds_write_b128 v61, {R4(116+8*rr)} offset:{2*XROW + 2048*rr}")
    post(3)
    RSTAMP(7)
    STAMP(4)
    E("s_branch K_csetup")
    L("K_bwave")
    post(1)
    STAMP(3)
    E("s_cmp_lg_u32 s3, 5")
    E("s_cbranch_scc1 K_norec")
    waitf(1, 4, 8, 144)
    E(f"ds_read_b64 v[144:145], v225 offset:{SYN + 256}")
    E("v_mov_b32 v146, s56")
    E("v_mov_b32 v147, s57")
    E("s_waitcnt lgkmcnt(0)")
    E("s_mov_b64 exec, 3")
    E(f"buffer_store_dwordx4 v[144:147], v227, s[{SRD_WS}:{SRD_WS+3}], s8 offen sc1")
    E("s_mov_b64 exec, -1")
    L("K_norec")
    E("s_cmp_lg_u32 s3, 4")
    E("s_cbranch_scc1 K_pwait")
    E("s_mov_b32 s70, 0")
    L("K_poll")
    E(f"buffer_load_dwordx2 v[112:113], v226, s[{SRD_WS}:{SRD_WS+3}], s7 offen sc1")
    E("s_waitcnt vmcnt(0)")
    E("v_xor_b32 v112, s56, v112")
    E("v_xor_b32 v113, s57, v113")
    E("v_or_b32 v112, v112, v113")
    E("v_cmp_ne_u32 vcc, 0, v112")
    E("s_add_u32 s70, s70, 1")
    E("s_cmp_eq_u64 vcc, 0")
    E("s_cbranch_scc1 K_pok")
    E(f"s_sleep {PSLEEP}")
    E("s_cmp_lt_u32 s70, 0x40000")
    E("s_cbranch_scc1 K_poll")
    L("K_pok")
    post(5)
    E("s_branch K_pdone")
    L("K_pwait")
    E(f"ds_read_b32 v93, v30 offset:{32*5 + 16}")
    E("s_waitcnt lgkmcnt(0)")
    E("v_readfirstlane_b32 s70, v93")
    E("s_cmp_eq_u32 s70, 1")
    E("s_cbranch_scc1 K_pdone")
    E("s_sleep 1")
    E("s_branch K_pwait")
    L("K_pdone")
    STAMP(4)
    for p in range(4):
        E(f"buffer_load_dwordx4 {R4(96+4*p)}, v9, s[{SRD_WS}:{SRD_WS+3}], s6 offen offset:{1024*p} sc1")
    for k in range(5):
        E(f"v_mov_b32 v{16+k}, v{228+k}")
    for p in range(4):
        E(f"s_waitcnt vmcnt({3-p})")
        E(f"ds_write_b128 v224, {R4(96+4*p)} offset:{64*p}")
    post(4)
    E(f"s_setprio {CBPRIO}")
    E("s_branch K_convB")
    L("K_csetup")
    vB, vA, vPM, vPC, vF = 16, 17, 18, 19, 20
    E("s_lshl_b32 s70, s3, 1")
    E(f"s_mul_i32 s70, s70, {ZROW}")
    E(f"s_add_u32 s70, s70, {ZBASE + 8}")
    E(f"v_lshlrev_b32 v{vB}, 3, v4")
    E(f"v_lshl_add_u32 v{vB}, v5, 4, v{vB}")
    E(f"v_add_u32 v{vB}, s70, v{vB}")
    E("v_and_b32 v22, 3, v1")
    E("v_bfe_u32 v23, v1, 2, 2")
    E("v_sub_u32 v22, v22, v23")
    E("v_lshlrev_b32 v22, 3, v22")
    E("v_lshlrev_b32 v23, 6, v5")
    E("v_sub_u32 v22, v22, v23")
    E("s_lshl_b32 s70, s68, 2")
    E("s_add_u32 s70, s70, s69")
    E(f"s_mul_i32 s70, s70, {XROW}")
    E(f"s_add_u32 s70, s70, {XBASE + 224}")
    E(f"v_add_u32 v{vA}, s70, v22")
    E("s_cmp_eq_u32 s68, 0")
    E(f"s_mov_b32 s71, {PB}")
    E(f"s_cselect_b32 s71, {PA}, s71")
    E(f"s_mul_i32 s70, s67, {PMS}")
    E("s_add_u32 s70, s70, s71")
    E("s_add_u32 s72, s70, 16")
    E(f"v_lshl_add_u32 v{vPM}, v1, 4, s72")
    E(f"s_mul_i32 s72, s67, {PCS}")
    E("s_add_u32 s72, s72, s71")
    E(f"s_add_u32 s72, s72, {4*PMS}")
    E("s_add_u32 s73, s72, 16")
    E(f"v_lshl_add_u32 v{vPC}, v1, 2, s73")
    E("s_lshl_b32 s73, s3, 2")
    E(f"s_add_u32 s73, s73, {FLG}")
    E(f"v_mov_b32 v{vF}, s73")
    E("v_mov_b32 v22, s70")
    E("v_mov_b32 v23, s72")
    if DRY > 1:
        E("s_cmp_lg_u32 s5, 0")
        E("s_cbranch_scc1 K_areal")
    RSTAMP(8)
    waitf(3, 0, 4, 24)
    RSTAMP(9)
    E("v_mov_b32 v24, 0")
    E("v_mov_b32 v25, 0")
    E("v_mov_b32 v26, 0")
    E("v_mov_b32 v27, 0")
    E("ds_write_b128 v22, v[24:27]")
    E("ds_write_b128 v23, v[24:27]")
    waitf(4, 4, 8, 24)
    E("s_setprio 0")
    STAMP(5)

    def Bf(pp, jj):
        return 64 + 64 * pp + 4 * jj
    def acc(pp, q):
        return 192 + 32 * pp + 4 * q
    def conv(nx):
        ring = 8 // nx
        def Af(n, x):
            return 32 + 4 * ((n % ring) * nx + x)
        queue = []
        def rdA(n):
            for x in range(nx):
                a = Af(n, x)
                off = 256 * n + x * 2 * XROW
                E(f"ds_read_b64_tr_b16 v[{a}:{a+1}], v{vA} offset:{off+32}")
                E(f"ds_read_b64_tr_b16 v[{a+2}:{a+3}], v{vA} offset:{off}")
                queue.extend([("A", n), ("A", n)])
        def rdB(pp, jj):
            b = Bf(pp, jj)
            E(f"ds_read_b64 v[{b}:{b+1}], v{vB} offset:{pp*ZROW + 64*jj}")
            E(f"ds_read_b64 v[{b+2}:{b+3}], v{vB} offset:{pp*ZROW + 64*jj + 8}")
            queue.extend([("B", pp, jj), ("B", pp, jj)])
        def need(keys):
            last = -1
            for idx, k in enumerate(queue):
                if k in keys:
                    last = idx
            if last >= 0:
                n_after = len(queue) - 1 - last
                assert n_after <= 15
                E(f"s_waitcnt lgkmcnt({n_after})")
                del queue[:last + 1]
        def mf(pp, q, n, x, first=False):
            jj = 2 * q - n + 1
            c = "0" if first else R4(acc(pp, q))
            E(f"v_mfma_f32_16x16x32_bf16 {R4(acc(pp,q))}, {R4(Af(n,x))}, {R4(Bf(pp,jj))}, {c}")
        def writeout(q):
            a0, a1 = acc(0, q), acc(1, q)
            E(f"v_add_f32 v{a0+1}, v{a0+1}, v{a1}")
            E(f"v_add_f32 v{a0+2}, v{a0+2}, v{a1+1}")
            E(f"v_add_f32 v{a0+3}, v{a0+3}, v{a1+2}")
            E(f"ds_write_b32 v{vPC}, v{a1+3} offset:{256*q}")
            E(f"ds_write_b128 v{vPM}, {R4(a0)} offset:{1024*q}")
            E(f"ds_write_b32 v{vF}, v29 offset:{32*q}")
            queue.extend([("W",), ("W",), ("W",)])
        rdA(1)
        rdB(0, 0)
        rdA(0)
        rdB(0, 1)
        rdB(1, 0)
        for q in range(8):
            for pp in range(2):
                if pp == 0:
                    nxt = [(1, 2 * q + 1)] + ([(0, 2 * q + 2)] if q < 7 else [])
                else:
                    nxt = [(0, 2 * q + 3), (1, 2 * q + 2)] if q < 7 else []
                need({("A", 1), ("B", pp, 2 * q)})
                for x in range(nx):
                    mf(pp, q, 1, x, first=(x == 0))
                if nxt:
                    rdB(*nxt[0])
                elif pp == 1:
                    rdA(2)
                need({("A", 0), ("B", pp, 2 * q + 1)})
                for x in range(nx):
                    mf(pp, q, 0, x)
                if len(nxt) > 1:
                    rdB(*nxt[1])
                elif pp == 1:
                    rdA(3)
        if nx == 1:
            sched = {2: [4], 3: [5], 4: [6], 5: [7], 6: [8], 7: [9], 8: [10, 11], 9: [12, 13], 10: [14, 15]}
        else:
            sched = {n: [n + 2] for n in range(2, 14)}
        for n in range(2, 16):
            need({("A", n)})
            q0 = n >> 1
            k = 0
            for q in range(q0, 8):
                for pp in range(2):
                    for x in range(nx):
                        mf(pp, q, n, x)
                    k += 1
                    if k == 1:
                        for m in sched.get(n, []):
                            rdA(m)
                if n % 2 == 0 and q == min(q0 + 1, 7):
                    if n == 14:
                        E("s_nop 3")
                    writeout(q0 - 1)
        E("s_nop 7")
        writeout(7)
    conv(2)
    STAMP(6)
    E("s_mov_b32 s73, 7")
    E("s_branch K_fin")
    L("K_convB")
    waitf(0, 0, 4, 24)
    waitf(4, 4, 8, 24)
    E(f"buffer_load_dwordx4 v[12:15], v9, s[{SRD_WS}:{SRD_WS+3}], s60 offen sc1")
    E(f"buffer_load_dwordx4 v[24:27], v9, s[{SRD_WS}:{SRD_WS+3}], s60 offen offset:1024 sc1")
    STAMP(5)
    conv(1)
    STAMP(6)
    E("s_mov_b32 s70, 0")
    L("K_gpoll")
    E("s_waitcnt vmcnt(0)")
    E("v_xor_b32 v14, s56, v14")
    E("v_xor_b32 v15, s57, v15")
    E("v_xor_b32 v26, s56, v26")
    E("v_xor_b32 v27, s57, v27")
    E("v_or_b32 v14, v14, v15")
    E("v_or_b32 v26, v26, v27")
    E("v_or_b32 v14, v14, v26")
    E("v_cmp_ne_u32 vcc, 0, v14")
    E("s_add_u32 s70, s70, 1")
    E("s_cmp_eq_u64 vcc, 0")
    E("s_cbranch_scc1 K_gok")
    E("s_cmp_ge_u32 s70, 0x40000")
    E("s_cbranch_scc1 K_gok")
    E("s_sleep 8")
    E(f"buffer_load_dwordx4 v[12:15], v9, s[{SRD_WS}:{SRD_WS+3}], s60 offen sc1")
    E(f"buffer_load_dwordx4 v[24:27], v9, s[{SRD_WS}:{SRD_WS+3}], s60 offen offset:1024 sc1")
    E("s_branch K_gpoll")
    L("K_gok")
    for (src, dst) in [(12, 32), (24, 36)]:
        for hh in range(2):
            E(f"v_lshlrev_b32 v{dst+2*hh}, 16, v{src+hh}")
            E(f"v_and_b32 v{dst+2*hh+1}, s43, v{src+hh}")
        for e in range(4):
            E(f"v_sub_f32 v40, 1.0, v{dst+e}")
            E(f"v_cvt_pk_bf16_f32 v{dst+e}, v{dst+e}, v40")
    E("ds_write_b128 v10, v[32:35]")
    E("ds_write_b128 v10, v[36:39] offset:1024")
    post(6)
    E("s_mov_b32 s73, 0")
    if FINPRIO:
        E(f"s_setprio {FINPRIO}")
    L("K_fin")
    E("v_subrev_u32 v16, 16, v1")
    E("v_add_u32 v17, 47, v1")
    E("v_cmp_eq_u32 vcc, 0, v1")
    E("s_nop 1")
    E("v_cndmask_b32 v17, v17, -1, vcc")
    E("v_cmp_gt_u32 vcc, 16, v1")
    E("s_lshl_b32 s74, s73, 6")
    E("s_nop 0")
    E("v_cndmask_b32 v16, v16, v17, vcc")
    E("v_add_u32 v16, s74, v16")
    E("v_add_u32 v22, s74, v1")
    E("v_add_u32 v6, s74, v6")
    E("s_lshl_b32 s70, s67, 2")
    E(f"s_add_u32 s70, s70, {PB + 16}")
    E("v_lshl_add_u32 v18, v22, 4, s70")
    E("s_add_u32 s70, s67, 2")
    E("s_and_b32 s70, s70, 3")
    E("s_lshl_b32 s70, s70, 2")
    E(f"s_add_u32 s70, s70, {PB + 16 + PMS}")
    E("s_cmp_lt_u32 s67, 2")
    E("s_cselect_b64 vcc, -1, 0")
    E("v_cndmask_b32 v17, v22, v16, vcc")
    E("v_lshl_add_u32 v19, v17, 4, s70")
    E("s_lshr_b32 s70, s67, 1")
    E(f"s_mul_i32 s70, s70, {PCS}")
    E(f"s_add_u32 s70, s70, {PB + 4*PMS + 16}")
    E("v_lshl_add_u32 v20, v16, 2, s70")
    E("s_and_b32 s70, s67, 1")
    E("s_cmp_eq_u32 s70, 0")
    E("s_cselect_b64 vcc, -1, 0")
    E("s_cselect_b32 s75, 256, 0")
    E(f"v_mov_b32 v17, {PB + 4*PMS}")
    E("v_cndmask_b32 v20, v17, v20, vcc")
    E(f"s_mul_i32 s70, s67, {ZROW}")
    E("v_lshl_add_u32 v21, v6, 1, s70")
    E("s_lshl_b32 s70, s67, 10")
    E("v_lshl_add_u32 v22, v6, 12, s70")
    E("s_lshl_b32 s70, s67, 2")
    E(f"s_add_u32 s70, s70, {GB}")
    E("v_lshl_add_u32 v7, v6, 4, s70")
    E("s_lshl_b32 s70, s73, 5")
    E(f"s_add_u32 s70, s70, {FLG}")
    E("v_mov_b32 v23, s70")
    E("s_lshl_b32 s72, s64, 2")
    E("s_lshl_b32 s76, s23, 16")
    E("s_and_b32 s77, s23, s43")
    E("s_lshl_b32 s78, s42, 16")
    E("s_and_b32 s79, s42, s43")
    E("s_sub_u32 s74, 8, s68")
    waitf(6, 4, 8, 32)
    L("K_hloop")
    for r in range(48, 52):
        E(f"v_mov_b32 v{r}, 0")
    for k in range(4):
        E(f"ds_read_u16_d16_hi v{48+k}, v21 offset:{ZBASE + 4*k*ZROW + 128}")
    E("ds_read_b32 v8, v7")
    L("K_hpoll")
    E("ds_read_b128 v[32:35], v23")
    E("ds_read_b128 v[36:39], v23 offset:16")
    E("s_waitcnt lgkmcnt(0)")
    for k in range(0, 8, 2):
        E(f"v_and_b32 v{32+k}, v{32+k}, v{33+k}")
    E("v_and_b32 v32, v32, v34")
    E("v_and_b32 v36, v36, v38")
    E("v_and_b32 v32, v32, v36")
    E("s_nop 0")
    E("v_readfirstlane_b32 s70, v32")
    E("s_cmp_eq_u32 s70, 1")
    E("s_cbranch_scc1 K_go")
    E("s_sleep 3")
    E("s_branch K_hpoll")
    L("K_go")
    for k in range(4):
        X, c = k >> 1, k & 1
        base = PSTRIDE if X == 0 else 0
        E(f"ds_read_b32 v{32+k}, v18 offset:{base + 2*c*PMS}")
        E(f"ds_read_b32 v{36+k}, v19 offset:{base + 2*c*PMS}")
        E(f"ds_read_b32 v{40+k}, v20 offset:{base + 2*c*PCS}")
    def rnd(a, b):
        E(f"v_cvt_pk_bf16_f32 v{a}, v{a}, v{b}")
        E(f"v_and_b32 v{b}, s43, v{a}")
        E(f"v_lshlrev_b32 v{a}, 16, v{a}")
    yA0, yA1, yB0, yB1 = 32, 33, 34, 35
    u0, u1, k0, k1 = 48, 49, 50, 51
    t = 52
    E(f"v_mul_f32 v{t}, s76, v{u0}")
    E(f"v_mul_f32 v{t+1}, s77, v{u1}")
    E(f"v_mul_f32 v{t+2}, s78, v{k0}")
    E(f"v_mul_f32 v{t+3}, s79, v{k1}")
    rnd(t, t + 1)
    rnd(t + 2, t + 3)
    E(f"v_lshlrev_b32 v{t+4}, 16, v8")
    E(f"v_and_b32 v{t+5}, s43, v8")
    E("v_add_u32 v18, 1024, v18")
    E("v_add_u32 v19, 1024, v19")
    E("v_add_u32 v20, s75, v20")
    E("v_add_u32 v21, 128, v21")
    E("v_add_u32 v23, 32, v23")
    E("v_add_u32 v7, 1024, v7")
    for k in range(4):
        E(f"s_waitcnt lgkmcnt({9-3*k})")
        E(f"v_add_f32 v{32+k}, v{32+k}, v{36+k}")
        E(f"v_add_f32 v{32+k}, v{32+k}, v{40+k}")
    rnd(yA0, yA1)
    rnd(yB0, yB1)
    E(f"v_add_f32 v{yA0}, v{yA0}, v{t}")
    E(f"v_add_f32 v{yA1}, v{yA1}, v{t+1}")
    E(f"v_add_f32 v{yB0}, v{yB0}, v{t+2}")
    E(f"v_add_f32 v{yB1}, v{yB1}, v{t+3}")
    rnd(yA0, yA1)
    rnd(yB0, yB1)
    E(f"v_mul_f32 v{yB0}, v{u0}, v{yB0}")
    E(f"v_mul_f32 v{yB1}, v{u1}, v{yB1}")
    rnd(yB0, yB1)
    E(f"v_mul_f32 v{yA0}, v{t+4}, v{yA0}")
    E(f"v_mul_f32 v{yA1}, v{t+4}, v{yA1}")
    E(f"v_mul_f32 v{yB0}, v{t+5}, v{yB0}")
    E(f"v_mul_f32 v{yB1}, v{t+5}, v{yB1}")
    rnd(yA0, yA1)
    rnd(yB0, yB1)
    E(f"v_add_f32 v{yA0}, v{yA0}, v{yB0}")
    E(f"v_add_f32 v{yA1}, v{yA1}, v{yB1}")
    E(f"v_cvt_pk_bf16_f32 v{yA0}, v{yA0}, v{yA1}")
    E(f"buffer_store_dword v{yA0}, v22, s[{SRD_OUT}:{SRD_OUT+3}], s72 offen")
    E("v_add_u32 v22, 0x40000, v22")
    E("s_add_u32 s73, s73, 1")
    E("s_cmp_lt_u32 s73, s74")
    E("s_cbranch_scc1 K_hloop")
    STAMP(7)
    if DBG: E("s_waitcnt vmcnt(0)")
    STAMP(8)
    if "--pro" in sys.argv:
        E("s_waitcnt lgkmcnt(0)")
        for i in range(3, 8): E(f"s_mov_b32 s{80+2*i}, s{1+i}")
    DUMP(10, SRD_WS)
    L("K_end")
    E("s_endpgm")
    sg = 102 if DBG else 80
    return f""".amdhsa_kernel {name}
  .amdhsa_next_free_vgpr 256
  .amdhsa_next_free_sgpr {sg}
  .amdhsa_accum_offset 256
  .amdhsa_group_segment_fixed_size 0
  .amdhsa_kernarg_size 152
  .amdhsa_user_sgpr_count 2
  .amdhsa_user_sgpr_kernarg_segment_ptr 1
  .amdhsa_system_sgpr_workgroup_id_x 1
  .amdhsa_float_denorm_mode_32 3
.end_amdhsa_kernel"""

def main():
    hdr = HEADER.rstrip("\n")
    pre = [hdr,
           f"; @launch grid=(256,1,1) block=(512,1,1) lds={LDS_SIZE}",
           '.amdgcn_target "amdgcn-amd-amdhsa--gfx950"',
           ".text"]
    k = gen()
    txt = "\n".join(pre + out) + '\n.section .rodata,"a"\n.p2align 6\n' + k + "\n"
    args = [a for a in sys.argv[1:] if not a.startswith("--")]
    path = args[0] if args else "cdna_kernels/%s.s" % NAME
    open(path, "w").write(txt)

main()
```

```python
import sys

NAME = "gated_mix__ssm_conv_s4__ssm_conv_h3__prompt"
HEADER = open("cdna_kernels/%s.s.ref" % NAME).read().split("; Override launch")[0]
DBG = "--dbg" in sys.argv
def opt(name, default):
    for a in sys.argv:
        if a.startswith("--" + name + "="):
            return int(a.split("=")[1])
    return default
NA = 8
NB = 8 - NA
FINPRIO = opt("finprio", 1)
PSLEEP = opt("psleep", 8)
TOUCH = opt("touch", 0)
LATE = opt("late", 5)
DRY = opt("dry", 0)
KLDS = opt("klds", 1)
TSH = opt("tsh", 16)
CBPRIO = opt("cbprio", 1)
APRIO = opt("aprio", 2)
POLLSC = ["sc1", "sc0 sc1", "sc1 nt"][opt("pollsc", 1)]

out = []
def E(s=""):
    out.append("    " + s)
def L(s):
    out.append(s + ":")

WS_Z = 0
WS_G = 4 << 20
WS_F = WS_G + 8192
WS_SIZE = (4 << 20) + 16384
WS_DBG = 16 << 20
if DBG:
    WS_SIZE = 32 << 20

ZROW = 1152
ZBASE = 0
XBASE = 16 * ZROW
XROW = 4128
GB = XBASE + 6 * XROW
FLG = GB + 8192
SYN = FLG + 256
PMS = 8192 + 16
PCS = 2048 + 16
PB = SYN + 288
PA = PB + 4 * PMS + 4 * PCS
PSTRIDE = PA - PB
S_KT = PA
S_P = S_KT + 24576
S_K = S_P + 8192
S_TR = S_K + 9216
LDS_SIZE = S_TR + 8 * 3072
assert LDS_SIZE <= 163840 and PA + PSTRIDE <= LDS_SIZE
def PMa(X, w4):
    return (PA if X == 0 else PB) + w4 * PMS
def PCa(X, w4):
    return (PA if X == 0 else PB) + 4 * PMS + w4 * PCS

TD = "--tiledbg" in sys.argv
RD = "--reddbg" in sys.argv
def RSTAMP(i):
    if DBG and RD:
        E(f"s_memtime s[{80+2*i}:{81+2*i}]")
def TSTAMP(i):
    if DBG and TD:
        E(f"s_memtime s[{80+2*i}:{81+2*i}]")
def STAMP(i):
    if TD and i in (3, 4, 5, 6, 7): return
    if RD and i in (1, 2, 4, 6, 7, 8, 9): return
    if DBG:
        E(f"s_memtime s[{80+2*i}:{81+2*i}]")
def DUMP(n, srdreg):
    if DBG:
        E("s_waitcnt lgkmcnt(0)")
        E("s_mov_b64 exec, 1")
        E("s_lshl_b32 s100, s2, 4")
        E("s_add_u32 s100, s100, s3")
        E("s_lshl_b32 s100, s100, 6")
        E(f"s_add_u32 s100, s100, {WS_DBG}")
        for i in range(n):
            E(f"v_mov_b32 v2, s{80+2*i}")
            E(f"v_mov_b32 v3, {4*i}")
            E(f"buffer_store_dword v2, v3, s[{srdreg}:{srdreg+3}], s100 offen")
            E("s_nop 1")

def srd(sd, sp, nbytes):
    E(f"s_mov_b32 s{sd}, s{sp}")
    E(f"s_and_b32 s{sd+1}, s{sp+1}, 0xffff")
    E(f"s_mov_b32 s{sd+2}, {hex(nbytes)}")
    E(f"s_mov_b32 s{sd+3}, 0x00020000")
def R4(r):
    return f"v[{r}:{r+3}]"
SRD_WS, SRD_OUT, SRD_DBGB, SRD_A, SRD_B = 44, 48, 52, 56, 60

lblc = [0]
def post(kind):
    E(f"ds_write_b32 v28, v29 offset:{32*kind}")
def waitf(kind, lo, hi, t0=24):
    lblc[0] += 1
    n = lblc[0]
    if DRY > 1:
        E("s_cmp_lg_u32 s5, 0")
        E(f"s_cbranch_scc1 W{n}_d")
    L(f"W{n}_p")
    if hi - lo == 4:
        E(f"ds_read_b128 v[{t0}:{t0+3}], v30 offset:{32*kind + 4*lo}")
        E("s_waitcnt lgkmcnt(0)")
        E(f"v_and_b32 v{t0}, v{t0}, v{t0+1}")
        E(f"v_and_b32 v{t0+2}, v{t0+2}, v{t0+3}")
        E(f"v_and_b32 v{t0}, v{t0}, v{t0+2}")
    else:
        E(f"ds_read_b128 v[{t0}:{t0+3}], v30 offset:{32*kind}")
        E(f"ds_read_b128 v[{t0+4}:{t0+7}], v30 offset:{32*kind + 16}")
        E("s_waitcnt lgkmcnt(0)")
        for k in range(0, 8, 2):
            E(f"v_and_b32 v{t0+k}, v{t0+k}, v{t0+k+1}")
        E(f"v_and_b32 v{t0}, v{t0}, v{t0+2}")
        E(f"v_and_b32 v{t0+4}, v{t0+4}, v{t0+6}")
        E(f"v_and_b32 v{t0}, v{t0}, v{t0+4}")
    E("s_nop 0")
    E(f"v_readfirstlane_b32 s4, v{t0}")
    E("s_cmp_eq_u32 s4, 1")
    E(f"s_cbranch_scc1 W{n}_d")
    E("s_sleep 1")
    E(f"s_branch W{n}_p")
    L(f"W{n}_d")

def gen():
    name = NAME + "_kernel"
    out.append(f".globl {name}\n.p2align 8\n.type {name},@function")
    L(name)
    E("s_cmp_ge_u32 s2, 256")
    E("s_cbranch_scc1 K_end")
    STAMP(0)
    E("s_setprio 3")
    if opt("dly", 0) == 3: E("s_sleep 47")
    E("s_load_dwordx16 s[4:19], s[0:1], 0")
    E("s_load_dwordx2 s[20:21], s[0:1], 64")
    E("s_load_dwordx8 s[24:31], s[0:1], 80")
    E("s_load_dwordx8 s[32:39], s[0:1], 112")
    E("s_load_dwordx2 s[40:41], s[0:1], 144")
    E("v_lshrrev_b32 v1, 6, v0")
    E("s_nop 0")
    E("v_readfirstlane_b32 s3, v1")
    E("v_and_b32 v1, 63, v0")
    E("s_and_b32 s64, s2, 7")
    E("s_lshl_b32 s65, s64, 2")
    E("s_lshl_b32 s64, s64, 5")
    E("s_lshr_b32 s66, s2, 3")
    E("s_add_u32 s64, s64, s66")
    E("s_and_b32 s66, s66, 3")
    E("s_add_u32 s65, s65, s66")
    E("s_lshr_b32 s66, s2, 5")
    E("s_and_b32 s67, s3, 3")
    E("s_lshr_b32 s68, s3, 2")
    E("s_bfe_u32 s69, s3, 0x10001")
    E("v_mov_b32 v12, 0")
    E("v_mov_b32 v13, 0")
    E("v_mov_b32 v14, 0")
    E("v_mov_b32 v15, 0")
    E("v_and_b32 v2, 31, v1")
    E("v_lshlrev_b32 v2, 4, v2")
    E(f"ds_write_b128 v2, v[12:15] offset:{FLG}")
    E(f"ds_write_b128 v2, v[12:15] offset:{FLG + 32}")
    E("s_lshl_b32 s70, s3, 2")
    E(f"s_add_u32 s70, s70, {SYN}")
    E("v_mov_b32 v28, s70")
    E("v_mov_b32 v29, 1")
    E("v_mov_b32 v95, 0")
    E(f"v_mov_b32 v30, {SYN}")
    E("s_lshl_b32 s70, s65, 6")
    E("s_add_u32 s70, s70, s67")
    E("s_lshl_b32 s70, s70, 10")
    E("s_lshl_b32 s71, s66, 7")
    E("s_add_u32 s70, s70, s71")
    E("v_lshrrev_b32 v2, 3, v1")
    E("v_and_b32 v3, 7, v1")
    E("v_lshlrev_b32 v4, 12, v2")
    E("v_lshl_add_u32 v4, v3, 4, v4")
    E("v_add_u32 v4, s70, v4")
    E("v_subrev_u32 v5, 1024, v4")
    E("v_subrev_u32 v6, 2048, v4")
    E("v_subrev_u32 v7, 3072, v4")
    E("s_lshl_b32 s71, s66, 9")
    E("v_lshl_add_u32 v8, v3, 6, s71")
    E("s_lshl_b32 s72, s65, 6")
    E("s_lshl_b32 s71, s66, 3")
    E("s_add_u32 s72, s72, s71")
    E("s_lshl_b32 s71, s67, 1")
    E("s_add_u32 s72, s72, s71")
    E("s_lshl_b32 s73, s72, 10")
    E("v_lshlrev_b32 v9, 4, v1")
    E("s_and_b32 s74, s3, 1")
    E(f"s_mul_i32 s75, s74, {8*NA}")
    E(f"s_mul_i32 s76, s74, {8*NB}")
    E(f"s_add_u32 s76, s76, {16*NA}")
    E("s_cmp_eq_u32 s68, 0")
    E("s_cselect_b32 s75, s75, s76")
    E("s_lshl_b32 s70, s64, 1")
    E("s_add_u32 s70, s70, s69")
    E("s_lshl_b32 s70, s70, 7")
    E("s_add_u32 s70, s70, s75")
    E("s_lshl_b32 s70, s70, 1")
    E("v_lshl_add_u32 v11, v1, 1, s70")
    if "--pro" in sys.argv: STAMP(3)
    E("s_waitcnt lgkmcnt(0)")
    if "--pro" in sys.argv: STAMP(4)
    E("s_add_u32 s70, s2, s3")
    E("s_cmp_lg_u32 s70, 0")
    E("s_cbranch_scc1 K_nononce")
    E("s_memrealtime s[70:71]")
    srd(SRD_DBGB, 38, 256)
    E("s_waitcnt lgkmcnt(0)")
    E("s_or_b32 s70, s70, 1")
    E("v_mov_b32 v100, s70")
    E("v_mov_b32 v101, s71")
    E("s_mov_b64 exec, 1")
    E(f"buffer_store_dwordx2 v[100:101], v95, s[{SRD_DBGB}:{SRD_DBGB+3}], 0 offen sc1")
    E("s_mov_b64 exec, -1")
    L("K_nononce")
    E("s_barrier")
    E("s_cmp_eq_u32 s68, 0")
    E("s_cbranch_scc1 K_noTL")
    srd(SRD_A, 24, 2 << 20)
    srd(SRD_B, 26, 2 << 20)
    E("s_mov_b32 s70, 0x8000")
    E("v_lshlrev_b32 v5, 10, v2")
    E("v_lshl_add_u32 v5, v3, 4, v5")
    E("s_lshl_b32 s71, s65, 6")
    E("s_lshl_b32 s74, s67, 3")
    E("s_add_u32 s71, s71, s74")
    E("s_sub_u32 s71, s71, 8")
    E("s_lshl_b32 s71, s71, 10")
    E("s_lshl_b32 s74, s66, 7")
    E("s_add_u32 s71, s71, s74")
    E("v_add_u32 v5, s71, v5")
    E("v_add_u32 v6, s70, v5")
    E("v_add_u32 v7, s70, v6")
    E("s_lshl_b32 s74, s67, 10")
    E(f"s_add_u32 s74, s74, {S_K}")
    E("s_mov_b32 m0, s74")
    E("s_add_u32 s74, s74, 4096")
    E(f"buffer_load_dwordx4 v5, s[{SRD_A}:{SRD_A+3}], 0 offen lds")
    E("s_mov_b32 m0, s74")
    E("s_add_u32 s74, s74, 4096")
    E(f"buffer_load_dwordx4 v6, s[{SRD_A}:{SRD_A+3}], 0 offen lds")
    E("s_cmp_lg_u32 s67, 0")
    E("s_cbranch_scc1 K_nok3")
    E("s_mov_b32 m0, s74")
    E("s_nop 0")
    E(f"buffer_load_dwordx4 v7, s[{SRD_A}:{SRD_A+3}], 0 offen lds")
    L("K_nok3")
    E(f"buffer_load_dwordx4 v[96:99], v4, s[{SRD_B}:{SRD_B+3}], 0 offen")
    srd(SRD_WS, 28, 4096)
    srd(SRD_OUT, 4, 2 << 20)
    for i in range(4):
        E(f"buffer_load_dwordx4 v[{40+4*i}:{43+4*i}], v8, s[{SRD_WS}:{SRD_WS+3}], 0 offen offset:{16*i}")
    E(f"buffer_load_dwordx4 v[32:35], v4, s[{SRD_OUT}:{SRD_OUT+3}], 0 offen")
    E("v_add_u32 v4, s70, v4")
    E(f"buffer_load_dwordx4 v[144:147], v4, s[{SRD_B}:{SRD_B+3}], 0 offen")
    E(f"buffer_load_dwordx4 v[148:151], v4, s[{SRD_OUT}:{SRD_OUT+3}], 0 offen")
    E(f"buffer_load_dwordx4 v[56:59], v9, s[{SRD_OUT}:{SRD_OUT+3}], s73 offen")
    E(f"buffer_load_dwordx4 v[152:155], v9, s[{SRD_OUT}:{SRD_OUT+3}], s73 offen offset:1024")
    srd(SRD_A, 34, 1024)
    E(f"buffer_load_dwordx4 v[60:63], v9, s[{SRD_A}:{SRD_A+3}], 0 offen")
    E("s_branch K_noPL")
    L("K_noTL")
    for i, sp in enumerate([6, 8, 10, 12, 14, 16]):
        sd = SRD_A if i % 2 == 0 else SRD_B
        srd(sd, sp, 131072)
        E(f"buffer_load_ushort v{84+i}, v11, s[{sd}:{sd+3}], 0 offen")
    if TOUCH:
        E(f"v_lshlrev_b32 v200, {TSH}, v1")
        E("s_cmp_eq_u32 s3, 0")
        E("s_cbranch_scc0 K_tc1")
        srd(SRD_A, 40, WS_SIZE)
        E(f"buffer_load_dword v201, v200, s[{SRD_A}:{SRD_A+3}], 0 offen")
        E(f"s_mov_b32 s70, {WS_G}")
        E(f"buffer_load_dword v202, v95, s[{SRD_A}:{SRD_A+3}], s70 offen")
        E("s_branch K_tc4")
        L("K_tc1")
        E("s_cmp_eq_u32 s3, 1")
        E("s_cbranch_scc0 K_tc2")
        srd(SRD_A, 36, 2 << 20)
        E(f"buffer_load_dword v201, v200, s[{SRD_A}:{SRD_A+3}], 0 offen")
        srd(SRD_B, 38, 256)
        E(f"buffer_load_dword v202, v95, s[{SRD_B}:{SRD_B+3}], 0 offen")
        E("s_branch K_tc4")
        L("K_tc2")
        E("s_cmp_eq_u32 s3, 2")
        E("s_cbranch_scc0 K_tc3")
        srd(SRD_A, 4, 2 << 20)
        E(f"buffer_load_dword v201, v200, s[{SRD_A}:{SRD_A+3}], 0 offen")
        srd(SRD_B, 24, 2 << 20)
        E(f"buffer_load_dword v202, v200, s[{SRD_B}:{SRD_B+3}], 0 offen")
        E("s_branch K_tc4")
        L("K_tc3")
        srd(SRD_A, 26, 2 << 20)
        E(f"buffer_load_dword v201, v200, s[{SRD_A}:{SRD_A+3}], 0 offen")
        srd(SRD_B, 34, 1024)
        E(f"buffer_load_dword v202, v95, s[{SRD_B}:{SRD_B+3}], 0 offen")
        L("K_tc4")
    L("K_noPL")
    srd(SRD_A, 30, 2 << 20)
    E("s_lshl_b32 s74, s64, 2")
    if "--pro" in sys.argv: STAMP(6)
    E("s_load_dword s22, s[18:19], s74")
    E("s_load_dword s23, s[20:21], s74")
    E("s_load_dword s42, s[32:33], s74")
    srd(SRD_WS, 40, WS_SIZE)
    srd(SRD_OUT, 36, 2 << 20)
    srd(SRD_DBGB, 38, 256)
    E("s_mov_b32 s43, 0xffff0000")
    E("s_mov_b32 s5, 0")
    E("s_and_b32 s61, s3, 1")
    if "--pro" in sys.argv:
        STAMP(7)
        E("s_waitcnt lgkmcnt(0)")
        for i in range(3, 8): E(f"s_mov_b32 s{1+i}, s{80+2*i}")
    E("s_cmp_eq_u32 s68, 0")
    E("s_cbranch_scc1 K_kgen")
    E("s_mul_i32 s70, s3, 3072")
    E(f"s_add_u32 s70, s70, {S_TR}")
    E("v_mul_u32_u24 v64, 144, v2")
    E("v_lshl_add_u32 v64, v3, 4, v64")
    E("v_add_u32 v64, s70, v64")
    E("v_lshrrev_b32 v66, 4, v1")
    E("v_and_b32 v67, 1, v66")
    E("v_lshrrev_b32 v66, 1, v66")
    E("v_bfe_u32 v68, v1, 2, 2")
    E("v_and_b32 v69, 3, v1")
    E("v_mul_u32_u24 v65, 1152, v67")
    E("v_mul_u32_u24 v68, 144, v68")
    E("v_add_u32 v65, v65, v68")
    E("v_lshl_add_u32 v65, v66, 5, v65")
    E("v_lshl_add_u32 v65, v69, 3, v65")
    E("v_add_u32 v65, s70, v65")
    E("v_and_b32 v68, 15, v1")
    E("v_lshl_add_u32 v68, v66, 4, v68")
    E("v_lshrrev_b32 v69, 1, v68")
    E("v_and_b32 v68, 1, v68")
    E("v_lshlrev_b32 v69, 14, v69")
    E("v_lshl_add_u32 v69, v68, 4, v69")
    E("v_lshl_add_u32 v69, v67, 5, v69")
    E("s_lshl_b32 s70, s66, 19")
    E("s_lshl_b32 s71, s65, 9")
    E("s_add_u32 s70, s70, s71")
    E("s_lshl_b32 s71, s67, 7")
    E("s_add_u32 s70, s70, s71")
    E("s_add_u32 s71, s70, 0x40000")
    E("s_mov_b32 s62, 0")
    E("s_mov_b32 s76, 0x00003f80")
    E("s_mov_b32 s77, 0x3f800000")
    E("s_mov_b32 s78, 0x0000ffff")
    E("s_mov_b32 s79, 0x3f803f80")
    if DRY:
        E("s_mov_b32 s5, 1")
        E("s_mov_b64 exec, 0")
        E("s_branch K_tmask")
        L("K_breal")
        E("s_mov_b32 s5, 0")
        E("s_mov_b64 exec, -1")
        E("s_mov_b32 s62, 0")
    E("v_and_b32 v224, 3, v1")
    E("v_bfe_u32 v225, v1, 3, 2")
    E("v_lshl_add_u32 v224, v224, 2, v225")
    E(f"v_mul_u32_u24 v224, {ZROW}, v224")
    E("v_bfe_u32 v225, v1, 2, 1")
    E("v_lshl_add_u32 v224, v225, 4, v224")
    E("v_lshrrev_b32 v225, 5, v1")
    E("v_lshl_add_u32 v224, v225, 5, v224")
    E("s_lshl_b32 s74, s67, 8")
    E(f"s_add_u32 s74, s74, {ZBASE + 128}")
    E("v_add_u32 v224, s74, v224")
    E("s_lshl_b32 s6, s64, 14")
    E("s_lshl_b32 s74, s67, 12")
    E("s_add_u32 s6, s6, s74")
    E("s_lshl_b32 s74, s67, 11")
    E(f"v_add_u32 v10, {GB}, v9")
    E("v_add_u32 v10, s74, v10")
    E(f"s_add_u32 s60, s74, {WS_G}")
    E("v_and_b32 v226, 31, v1")
    E("v_lshlrev_b32 v226, 5, v226")
    E("s_and_b32 s7, s2, 7")
    E("s_lshl_b32 s7, s7, 10")
    E(f"s_add_u32 s7, s7, {WS_F}")
    E("v_and_b32 v227, 1, v1")
    E("v_lshlrev_b32 v225, 3, v227")
    E("v_lshlrev_b32 v227, 4, v227")
    E("s_lshl_b32 s8, s65, 3")
    E("s_add_u32 s8, s8, s66")
    E("s_lshl_b32 s8, s8, 5")
    E(f"s_add_u32 s8, s8, {WS_G}")
    E("s_lshl_b32 s9, s66, 5")
    E("s_add_u32 s9, s9, s65")
    E("s_lshl_b32 s9, s9, 5")
    E(f"s_add_u32 s9, s9, {WS_F}")
    E("v_mov_b32 v100, 0")
    E("v_mov_b32 v101, 0")
    E("v_mov_b32 v102, 0")
    E("v_mov_b32 v103, 0")
    E("v_bfe_u32 v104, v1, 3, 2")
    E(f"v_mul_u32_u24 v104, {ZROW}, v104")
    E("v_and_b32 v105, 7, v1")
    E("v_lshl_add_u32 v104, v105, 4, v104")
    E(f"s_mul_i32 s74, s67, {4*ZROW}")
    E("v_add_u32 v104, s74, v104")
    E("ds_write_b128 v104, v[100:103]")
    E("v_min_u32 v104, 11, v1")
    E("v_lshrrev_b32 v105, 1, v104")
    E(f"v_mul_u32_u24 v105, {XROW}, v105")
    E("v_and_b32 v104, 1, v104")
    E("v_lshl_add_u32 v104, v104, 4, v105")
    E(f"ds_write_b128 v104, v[100:103] offset:{XBASE}")
    E(f"s_mul_i32 s74, s67, {PMS}")
    E(f"s_add_u32 s74, s74, {PB}")
    E("v_mov_b32 v104, s74")
    E("ds_write_b128 v104, v[100:103]")
    E("s_add_u32 s74, s74, 16")
    E("v_lshl_add_u32 v230, v1, 4, s74")
    E(f"s_mul_i32 s74, s67, {PCS}")
    E(f"s_add_u32 s74, s74, {PB + 4*PMS}")
    E("v_mov_b32 v105, s74")
    E("ds_write_b128 v105, v[100:103]")
    E("s_add_u32 s74, s74, 16")
    E("v_lshl_add_u32 v231, v1, 2, s74")
    E("v_and_b32 v4, 15, v1")
    E("v_lshrrev_b32 v5, 4, v1")
    E("v_lshlrev_b32 v6, 2, v4")
    E("v_add_u32 v6, v6, v5")
    E("s_lshl_b32 s74, s3, 1")
    E(f"s_mul_i32 s74, s74, {ZROW}")
    E(f"s_add_u32 s74, s74, {ZBASE + 8}")
    E("v_lshlrev_b32 v228, 3, v4")
    E("v_lshl_add_u32 v228, v5, 4, v228")
    E("v_add_u32 v228, s74, v228")
    E("v_and_b32 v104, 3, v1")
    E("v_bfe_u32 v105, v1, 2, 2")
    E("v_sub_u32 v104, v104, v105")
    E("v_lshlrev_b32 v104, 3, v104")
    E("v_lshlrev_b32 v105, 6, v5")
    E("v_sub_u32 v104, v104, v105")
    E("s_add_u32 s74, s69, 4")
    E(f"s_mul_i32 s74, s74, {XROW}")
    E(f"s_add_u32 s74, s74, {XBASE + 224}")
    E("v_add_u32 v229, s74, v104")
    E("s_lshl_b32 s74, s3, 2")
    E(f"s_add_u32 s74, s74, {FLG}")
    E("v_mov_b32 v232, s74")
    E("v_lshlrev_b32 v70, 9, v2")
    E("v_lshl_add_u32 v70, v3, 4, v70")
    E("s_lshl_b32 s74, s67, 7")
    E(f"s_add_u32 s74, s74, {S_K + 1024 - 384}")
    E("v_add_u32 v70, s74, v70")
    E("s_waitcnt vmcnt(11)")
    post(7)
    E("s_waitcnt vmcnt(6)")
    STAMP(1)
    if opt("dly", 0) == 4: E("s_sleep 47")
    L("K_tmask")
    for t in range(4):
        for i in range(4):
            r0 = 40 + 4 * i + (t >> 1)
            r1 = 40 + 4 * i + 2 + (t >> 1)
            d = 160 + (t * 4 + i) * 2
            if t & 1:
                E(f"v_lshrrev_b32 v{d}, 16, v{r0}")
                E(f"v_and_b32 v{d+1}, s43, v{r1}")
            else:
                E(f"v_and_b32 v{d}, s78, v{r0}")
                E(f"v_lshlrev_b32 v{d+1}, 16, v{r1}")
    waitf(7, 4, 8, 72)
    TSTAMP(3)
    L("K_tloop")
    for t in range(4):
        E(f"ds_read_b128 {R4(12+4*t)}, v70 offset:{384 - 128*t}")
    E("v_add_u32 v70, 4096, v70")
    E("s_waitcnt lgkmcnt(0)")
    for t in range(4):
        for i in range(4):
            kr = 12 + 4 * t + i
            d = 160 + (t * 4 + i) * 2
            E(f"v_dot2_f32_bf16 v{208+2*i}, v{kr}, v{d}, 0")
            E(f"v_dot2_f32_bf16 v{209+2*i}, v{kr}, v{d+1}, 0")
        E("s_nop 0")
        for i in range(4):
            E(f"v_cvt_pk_bf16_f32 v{192+4*t+i}, v{208+2*i}, v{209+2*i}")
    cur = 192 + 12
    for t in (2, 1, 0):
        for i in range(4):
            E(f"v_lshlrev_b32 v{208+2*i}, 16, v{cur+i}")
            E(f"v_and_b32 v{209+2*i}, s43, v{cur+i}")
        for i in range(4):
            E(f"v_dot2_f32_bf16 v{208+2*i}, v{192+4*t+i}, s76, v{208+2*i}")
            E(f"v_dot2_f32_bf16 v{209+2*i}, v{192+4*t+i}, s77, v{209+2*i}")
        E("s_nop 0")
        for i in range(4):
            E(f"v_cvt_pk_bf16_f32 v{cur+i}, v{208+2*i}, v{209+2*i}")
    for i in range(4):
        E(f"v_and_b32 v{216+2*i}, s78, v{96+i}")
        E(f"v_and_b32 v{217+2*i}, s43, v{96+i}")
    for i in range(4):
        E(f"v_dot2_f32_bf16 v{208+2*i}, v{cur+i}, v{216+2*i}, 0")
        E(f"v_dot2_f32_bf16 v{209+2*i}, v{cur+i}, v{217+2*i}, 0")
    E("s_nop 0")
    for i in range(4):
        E(f"v_cvt_pk_bf16_f32 v{36+i}, v{208+2*i}, v{209+2*i}")
    if DRY:
        E("s_cmp_lg_u32 s5, 0")
        E("s_cbranch_scc1 K_gmask")
    E("ds_write_b128 v64, v[36:39] offset:1152")
    E("s_cmp_eq_u32 s62, 0")
    E("s_cbranch_scc0 K_tw1")
    E("s_waitcnt vmcnt(5)")
    L("K_tw1")
    E("ds_write_b128 v64, v[32:35]")
    E("s_waitcnt lgkmcnt(0)")
    E("ds_read_b64_tr_b16 v[76:77], v65")
    E("ds_read_b64_tr_b16 v[78:79], v65 offset:576")
    E("ds_read_b64_tr_b16 v[80:81], v65 offset:64")
    E("ds_read_b64_tr_b16 v[82:83], v65 offset:640")
    E("s_waitcnt lgkmcnt(2)")
    E(f"buffer_store_dwordx4 v[76:79], v69, s[{SRD_WS}:{SRD_WS+3}], s70 offen sc1")
    E("s_waitcnt lgkmcnt(0)")
    E(f"buffer_store_dwordx4 v[80:83], v69, s[{SRD_WS}:{SRD_WS+3}], s71 offen sc1")
    E("s_cmp_eq_u32 s62, 1")
    E("s_cbranch_scc1 K_tdone")
    E("s_mov_b32 s62, 1")
    E("s_add_u32 s70, s70, 64")
    E("s_add_u32 s71, s71, 64")
    TSTAMP(4)
    E("s_waitcnt vmcnt(5)")
    TSTAMP(5)
    for i in range(4):
        E(f"v_mov_b32 v{96+i}, v{144+i}")
        E(f"v_mov_b32 v{32+i}, v{148+i}")
    E("s_branch K_tloop")
    L("K_tdone")
    if opt("dly", 0) == 1: E("s_sleep 47")
    STAMP(2)
    E("s_waitcnt vmcnt(0)")
    post(0)
    L("K_nwait")
    E(f"ds_read_b64 v[92:93], v30 offset:272")
    E("s_waitcnt lgkmcnt(0)")
    E("v_readfirstlane_b32 s56, v92")
    E("v_readfirstlane_b32 s57, v93")
    E("s_cmp_lg_u32 s56, 0")
    E("s_cbranch_scc1 K_nok")
    E("s_sleep 1")
    E("s_branch K_nwait")
    L("K_nok")
    E("s_cmp_lg_u32 s3, 4")
    E("s_cbranch_scc1 K_nopub")
    waitf(0, 4, 8, 144)
    E("s_mov_b64 exec, 1")
    E(f"buffer_store_dwordx2 v[92:93], v227, s[{SRD_WS}:{SRD_WS+3}], s9 offen sc1")
    E("s_mov_b64 exec, -1")
    STAMP(9)
    L("K_nopub")
    if opt("dly", 0) == 5: E("s_sleep 47")
    E("s_mov_b32 s62, 0")
    L("K_gmask")
    for i in range(4):
        E(f"v_and_b32 v{216+2*i}, s78, v{60+i}")
        E(f"v_and_b32 v{217+2*i}, s43, v{60+i}")
    L("K_gloop")
    for i in range(4):
        E(f"v_dot2_f32_bf16 v{208+2*i}, v{56+i}, v{216+2*i}, 0")
        E(f"v_dot2_f32_bf16 v{209+2*i}, v{56+i}, v{217+2*i}, 0")
    E("s_nop 0")
    for i in range(4):
        E(f"v_cvt_pk_bf16_f32 v{192+i}, v{208+2*i}, v{209+2*i}")
    for i in range(4):
        E(f"v_dot2_f32_bf16 v{208+i}, v{192+i}, s79, 0")
    E("s_nop 2")
    E("v_add_f32 v208, v208, v209")
    E("v_add_f32 v210, v210, v211")
    E("v_add_f32 v74, v208, v210")
    for dpp in ["row_shr:1", "row_shr:2", "row_shr:4", "row_shr:8"]:
        E("s_nop 1")
        E(f"v_add_f32_dpp v74, v74, v74 {dpp} row_mask:0xf bank_mask:0xf bound_ctrl:0")
    E("s_nop 1")
    E("v_add_f32_dpp v74, v74, v74 row_bcast:15 row_mask:0xa bank_mask:0xf")
    E("s_nop 1")
    E("v_add_f32_dpp v74, v74, v74 row_bcast:31 row_mask:0xc bank_mask:0xf")
    E("s_nop 1")
    E("v_cvt_pk_bf16_f32 v74, v74, v74")
    E("v_lshlrev_b32 v74, 16, v74")
    E("v_mul_f32 v74, 0xbfb8aa3b, v74")
    E("v_exp_f32 v74, v74")
    E("s_nop 0")
    E("v_add_f32 v74, 1.0, v74")
    E("v_rcp_f32 v74, v74")
    E("s_nop 0")
    E("v_cvt_pk_bf16_f32 v74, v74, v74")
    E("s_lshl_b32 s72, s67, 1")
    E("s_add_u32 s72, s72, s62")
    E("s_lshl_b32 s72, s72, 1")
    E(f"s_add_u32 s72, s72, {SYN + 256}")
    E("v_mov_b32 v75, s72")
    if DRY:
        E("s_cmp_lg_u32 s5, 0")
        E("s_cbranch_scc1 K_breal")
    E("v_cmp_eq_u32 vcc, 63, v1")
    E("s_and_saveexec_b64 s[74:75], vcc")
    E("ds_write_b16 v75, v74")
    E("s_mov_b64 exec, s[74:75]")
    E("s_cmp_eq_u32 s62, 1")
    E("s_cbranch_scc1 K_bwave")
    E("s_mov_b32 s62, 1")
    for i in range(4):
        E(f"v_mov_b32 v{56+i}, v{152+i}")
    E("s_branch K_gloop")
    L("K_kgen")
    E(f"s_setprio {APRIO}")
    STAMP(2)
    E("v_and_b32 v20, 15, v1")
    E("v_lshrrev_b32 v21, 4, v1")
    E("s_mov_b32 s74, 0x00040000")
    E("s_mov_b32 s75, 0x02000100")
    E("s_mov_b32 s76, 0x00010001")
    E("s_mov_b32 s77, 0x00040002")
    E("s_mov_b32 s78, 0x00020002")
    E("s_mov_b32 s79, 0x01000004")
    E("v_lshrrev_b32 v22, 2, v20")
    E("v_lshlrev_b32 v22, 4, v22")
    E("v_lshrrev_b64 v[32:33], v22, s[74:75]")
    E("v_and_b32 v32, 0xffff, v32")
    E("v_lshrrev_b64 v[34:35], v22, s[76:77]")
    E("v_and_b32 v34, 0xffff, v34")
    E("v_and_b32 v23, 1, v20")
    E("v_mad_u32_u24 v32, v23, v34, v32")
    E("v_lshrrev_b64 v[34:35], v22, s[78:79]")
    E("v_and_b32 v34, 0xffff, v34")
    E("v_bfe_u32 v23, v20, 1, 1")
    E("v_mad_u32_u24 v32, v23, v34, v32")
    E("v_cvt_f32_u32 v24, v32")
    E("v_lshrrev_b32 v33, 7, v32")
    E("v_and_b32 v32, 127, v32")
    E("v_cvt_f32_u32 v16, v33")
    E("v_cvt_f32_u32 v17, v32")
    E("v_add_u32 v32, 8, v20")
    E("v_cvt_f32_u32 v18, v32")
    E("v_mul_f32 v26, 0x43000000, v18")
    E("v_lshlrev_b32 v22, 3, v20")
    E("v_cvt_f32_u32 v27, v22")
    if DRY > 1:
        E("s_mov_b32 s5, 1")
        E("s_mov_b64 exec, 0")
        E("s_branch K_dA")
        L("K_areal")
        E("s_mov_b32 s5, 0")
        E("s_mov_b64 exec, -1")
    E("s_waitcnt lgkmcnt(0)")
    E("s_lshl_b32 s70, s22, 16")
    E("s_and_b32 s22, s22, s43")
    E("s_cmp_eq_u32 s69, 0")
    E("s_cselect_b32 s22, s70, s22")
    E("v_mov_b32 v40, 0x3fb8aa3b")
    E("v_mul_f32 v41, s22, v40")
    E("v_exp_f32 v41, v41")
    E("s_nop 0")
    E("v_cvt_pk_bf16_f32 v41, v41, v41")
    E("v_lshlrev_b32 v41, 16, v41")
    E(f"s_waitcnt vmcnt({2 if TOUCH else 0})")
    L("K_dA")
    for i in range(6):
        E(f"v_lshlrev_b32 v{84+i}, 16, v{84+i}")
    E("v_mul_f32 v84, v41, v84")
    E("v_mul_f32 v85, v41, v85")
    E("v_mul_f32 v86, v41, v86")
    E("v_mul_f32 v87, v41, v87")
    E("v_mul_f32 v44, v40, v84")
    E("v_mul_f32 v45, 0.15915494, v85")
    E("v_rndne_f32 v46, v45")
    E("v_sub_f32 v45, v45, v46")
    E("v_mul_f32 v46, 0x43000000, v45")
    E("v_rndne_f32 v47, v46")
    E("v_sub_f32 v46, v46, v47")
    E("v_mul_f32 v84, 0x43000000, v44")
    E("v_exp_f32 v84, v84")
    E("v_cos_f32 v47, v46")
    E("v_sin_f32 v85, v46")
    E("v_mul_f32 v80, v88, v86")
    E("v_fma_f32 v80, -v89, v87, v80")
    E("v_mul_f32 v81, v88, v87")
    E("v_fma_f32 v81, v89, v86, v81")
    E("v_mul_f32 v47, v84, v47")
    E("v_mul_f32 v82, v84, v85")
    E("s_lshl_b32 s70, s3, 11")
    E(f"s_add_u32 s70, s70, {S_P}")
    E("v_lshl_add_u32 v42, v1, 5, s70")
    E("ds_write_b128 v42, v[44:47]")
    E("ds_write_b128 v42, v[80:83] offset:16")
    E("v_lshl_add_u32 v43, v21, 6, s70")
    for r in range(48, 60):
        E(f"v_mov_b32 v{r}, 0")
    E("s_waitcnt lgkmcnt(0)")
    for k in range(4):
        E(f"ds_read_b128 {R4(60+4*k)}, v43 offset:{16*k}")
    E("s_mov_b32 s62, 0")
    E(f"s_mov_b32 s63, {NA}")
    if DRY > 1:
        E("s_cmp_lg_u32 s5, 0")
        E("s_cselect_b32 s63, 1, s63")
    L("K_loop")
    E("s_waitcnt lgkmcnt(0)")
    TT = [[96, 100, 104, 108], [136, 140, 144, 148]]
    for nn in range(2):
        zr, zi, w128 = 60 + 8 * nn, 61 + 8 * nn, 62 + 8 * nn
        T = TT[nn]
        E(f"v_mul_f32 v{T[3]}, v{zr}, v27")
        E(f"v_mul_f32 v{T[3]+1}, v{zi}, v27")
        E(f"v_mul_f32 v{T[0]}, v{zr}, v24")
        E(f"v_mul_f32 v{T[0]+1}, v{zi}, v17")
        E(f"v_mul_f32 v{T[2]}, v{zr}, v26")
        E(f"v_mul_f32 v{T[2]+1}, v{w128}, v18")
        E(f"v_fma_f32 v{T[0]+1}, v{w128}, v16, v{T[0]+1}")
        for k in range(4):
            E(f"v_mov_b32 v{76+4*nn+k}, v{63+8*nn+k}")
    E("v_add_u32 v43, 256, v43")
    for k in range(4):
        E(f"ds_read_b128 {R4(60+4*k)}, v43 offset:{16*k}")
    for nn in range(2):
        er, cbr, cbi, ei = 76 + 4 * nn, 77 + 4 * nn, 78 + 4 * nn, 79 + 4 * nn
        T = TT[nn]
        for t in [T[3], T[0], T[2]]:
            E(f"v_exp_f32 v{t}, v{t}")
            E(f"v_cos_f32 v{t+2}, v{t+1}")
            E(f"v_sin_f32 v{t+3}, v{t+1}")
        t = T[3]
        E(f"v_mul_f32 v{t+2}, v{t}, v{t+2}")
        E(f"v_mul_f32 v{t+3}, v{t}, v{t+3}")
        E(f"v_mul_f32 v{t}, v{cbr}, v{t+2}")
        E(f"v_mul_f32 v{t+1}, v{cbr}, v{t+3}")
        E(f"v_fma_f32 v{t}, -v{cbi}, v{t+3}, v{t}")
        E(f"v_fma_f32 v{t+3}, -v{cbi}, v{t+2}, -v{t+1}")
        E(f"v_mov_b32 v{t+2}, v{t}")
        for t in [T[0], T[2]]:
            E(f"v_mul_f32 v{t+2}, v{t}, v{t+2}")
            E(f"v_mul_f32 v{t+3}, v{t}, v{t+3}")
        p, q = T[0], T[1]
        E(f"v_mul_f32 v{q+2}, v{p+2}, v{er}")
        E(f"v_mul_f32 v{q+3}, v{p+2}, v{ei}")
        E(f"v_fma_f32 v{q+2}, -v{p+3}, v{ei}, v{q+2}")
        E(f"v_fma_f32 v{q+3}, v{p+3}, v{er}, v{q+3}")
        for k in range(4):
            t = T[k]
            hi = (112 + 2 * k + nn) if k < 3 else (124 + nn)
            lo = (118 + 2 * k + nn) if k < 3 else (126 + nn)
            E(f"v_cvt_pk_bf16_f32 v{hi}, v{t+2}, v{t+3}")
            E(f"v_lshlrev_b32 v{t}, 16, v{hi}")
            E(f"v_and_b32 v{t+1}, s43, v{hi}")
            E(f"v_sub_f32 v{t}, v{t+2}, v{t}")
            E(f"v_sub_f32 v{t+1}, v{t+3}, v{t+1}")
            E(f"v_cvt_pk_bf16_f32 v{lo}, v{t}, v{t+1}")
    E("s_add_u32 s62, s62, 1")
    E(f"s_cmp_eq_u32 s62, {LATE}")
    for k in range(3):
        a_ = 48 + 4 * k
        E(f"v_mfma_f32_16x16x16_bf16 {R4(a_)}, v[{112+2*k}:{113+2*k}], v[124:125], {R4(a_)}")
        E(f"v_mfma_f32_16x16x16_bf16 {R4(a_)}, v[{112+2*k}:{113+2*k}], v[126:127], {R4(a_)}")
        E(f"v_mfma_f32_16x16x16_bf16 {R4(a_)}, v[{118+2*k}:{119+2*k}], v[124:125], {R4(a_)}")
    E("s_cbranch_scc0 K_nost")
    E("s_lshl_b32 s70, s64, 13")
    E("s_lshl_b32 s71, s3, 11")
    E("s_add_u32 s70, s70, s71")
    E(f"s_mul_i32 s71, s69, {XROW}")
    E("s_lshl_b32 s72, s61, 11")
    E("s_add_u32 s71, s71, s72")
    E(f"s_add_u32 s71, s71, {XBASE + 4*XROW + 32}")
    E("s_mov_b32 m0, s71")
    E("s_nop 0")
    E(f"buffer_load_dwordx4 v9, s[{SRD_A}:{SRD_A+3}], s70 offen lds")
    E(f"buffer_load_dwordx4 v9, s[{SRD_A}:{SRD_A+3}], s70 offen offset:1024 lds")
    L("K_nost")
    E("s_cmp_lg_u32 s3, 0")
    E("s_cbranch_scc1 K_non")
    E("s_cmp_eq_u32 s62, 1")
    E("s_cbranch_scc0 K_non1")
    E(f"buffer_load_dwordx2 v[92:93], v95, s[{SRD_DBGB}:{SRD_DBGB+3}], 0 offen sc1")
    L("K_non1")
    E("s_cmp_eq_u32 s62, 2")
    E("s_cbranch_scc0 K_non")
    E("s_mov_b32 s70, 0")
    L("K_npoll")
    E("s_waitcnt vmcnt(0)")
    E("v_readfirstlane_b32 s71, v92")
    E("s_add_u32 s70, s70, 1")
    E("s_cmp_lg_u32 s71, 0")
    E("s_cbranch_scc1 K_ngot")
    E("s_sleep 4")
    E(f"buffer_load_dwordx2 v[92:93], v95, s[{SRD_DBGB}:{SRD_DBGB+3}], 0 offen sc1")
    E("s_cmp_lt_u32 s70, 0x40000")
    E("s_cbranch_scc1 K_npoll")
    E("s_waitcnt vmcnt(0)")
    E("v_mov_b32 v92, 1")
    L("K_ngot")
    E("ds_write_b64 v30, v[92:93] offset:272")
    L("K_non")
    E(f"s_cmp_eq_u32 s62, {LATE+3}")
    E("s_cbranch_scc0 K_nost2")
    E("s_waitcnt vmcnt(0)")
    post(0)
    L("K_nost2")
    E("s_cmp_lt_u32 s62, s63")
    E("s_cbranch_scc1 K_loop")
    E("s_waitcnt lgkmcnt(0)")
    STAMP(3)
    if opt("dly", 0) == 2: E("s_sleep 47")
    if opt("dly", 0) == 7: E("s_sleep 94")
    E("s_mul_i32 s70, s3, 3072")
    E(f"s_add_u32 s70, s70, {S_TR}")
    E("v_lshl_add_u32 v39, v1, 4, s70")
    E("v_and_b32 v4, 15, v1")
    E("v_lshrrev_b32 v5, 4, v1")
    E("v_lshlrev_b32 v6, 2, v4")
    E("v_add_u32 v6, v6, v5")
    E("s_nop 1")
    for k in range(3):
        E(f"ds_write_b128 v39, {R4(48+4*k)} offset:{1024*k}")
    post(1)
    E("s_mul_i32 s70, s69, 12288")
    E(f"s_add_u32 s70, s70, {S_KT}")
    E("v_lshlrev_b32 v32, 5, v20")
    E("v_add_u32 v32, s70, v32")
    E("v_lshl_add_u32 v44, v21, 11, v32")
    E("v_add_u32 v44, 4096, v44")
    E("v_add_u32 v45, 512, v44")
    E("v_add_u32 v46, 1024, v44")
    E("v_add_u32 v47, 1536, v44")
    E("v_lshlrev_b32 v22, 4, v21")
    E("v_lshrrev_b64 v[60:61], v22, s[74:75]")
    E("v_and_b32 v60, 0xffff, v60")
    E("v_lshl_add_u32 v35, v60, 2, v32")
    E("s_lshl_b32 s71, s61, 9")
    E("v_add_u32 v35, s71, v35")
    E("v_lshrrev_b64 v[60:61], v22, s[76:77]")
    E("v_and_b32 v60, 0xffff, v60")
    E("v_lshl_add_u32 v36, v60, 2, v35")
    E("v_lshrrev_b64 v[62:63], v22, s[78:79]")
    E("v_and_b32 v62, 0xffff, v62")
    E("v_lshl_add_u32 v37, v62, 2, v35")
    E("v_lshl_add_u32 v38, v62, 2, v36")
    E("s_mul_i32 s70, s69, 6144")
    E(f"s_add_u32 s70, s70, {S_TR}")
    E("v_lshl_add_u32 v39, v1, 4, s70")
    E("s_lshl_b32 s71, s61, 10")
    E("v_add_u32 v40, s71, v39")
    E("s_lshl_b32 s71, s61, 9")
    E("v_lshl_add_u32 v60, v1, 3, s71")
    E("s_mul_i32 s70, s69, 12288")
    E(f"s_add_u32 s70, s70, {S_KT}")
    for rr in range(2):
        for e in range(0, 8, 2):
            E(f"v_add_u32 v62, {e + 1024*rr}, v60")
            E(f"v_add_u32 v63, {e + 1 + 1024*rr}, v60")
            E("v_cvt_f32_u32 v62, v62")
            E("v_cvt_f32_u32 v63, v63")
            E("v_cvt_pk_bf16_f32 v62, v62, v63")
            E("v_and_b32 v63, s43, v62")
            E("v_lshlrev_b32 v62, 16, v62")
            E("v_cvt_u32_f32 v62, v62")
            E("v_cvt_u32_f32 v63, v63")
            E(f"v_lshl_add_u32 v{64+8*rr+e}, v62, 2, s70")
            E(f"v_lshl_add_u32 v{65+8*rr+e}, v63, 2, s70")
    E(f"s_mul_i32 s70, s69, {XROW}")
    E(f"s_add_u32 s70, s70, {XBASE + 32}")
    E("v_lshl_add_u32 v61, v60, 1, s70")
    RSTAMP(1)
    waitf(1, 0, 4, 96)
    RSTAMP(2)
    srcoff = [0, 3072]
    for k in range(2):
        E(f"ds_read_b128 {R4(96+4*k)}, v40 offset:{srcoff[k]}")
    for k in range(2):
        E(f"ds_read_b128 {R4(112+4*k)}, v39 offset:{srcoff[k] + 2048}")
    for (b, dst, w) in [(96, 35, 2), (112, 44, 0)]:
        E(f"s_waitcnt lgkmcnt({w})")
        for e in range(4):
            E(f"v_add_f32 v{b+e}, v{b+e}, v{b+4+e}")
    for (b, dst) in [(96, 35), (112, 44)]:
        for e in range(4):
            E(f"ds_write_b32 v{dst+e}, v{b+e}")
    post(2)
    RSTAMP(4)
    waitf(2, 0, 4, 96)
    RSTAMP(6)
    for e in range(16):
        E(f"ds_read_b32 v{96+e}, v{64+e}")
    for rr in range(2):
        for e in range(0, 8, 2):
            src = 96 + 8 * rr + e
            E(f"s_waitcnt lgkmcnt({14 - 8*rr - e})")
            E(f"v_cvt_pk_bf16_f32 v{112+8*rr+e//2}, v{src}, v{src+1}")
            E(f"v_lshlrev_b32 v62, 16, v{112+8*rr+e//2}")
            E(f"v_and_b32 v63, s43, v{112+8*rr+e//2}")
            E(f"v_sub_f32 v62, v{src}, v62")
            E(f"v_sub_f32 v63, v{src+1}, v63")
            E(f"v_cvt_pk_bf16_f32 v{116+8*rr+e//2}, v62, v63")
    for rr in range(2):
        E(f"ds_write_b128 v61, {R4(112+8*rr)} offset:{2048*rr}")
        E(f"ds_write_b128 v61, {R4(116+8*rr)} offset:{2*XROW + 2048*rr}")
    post(3)
    RSTAMP(7)
    STAMP(4)
    E("s_branch K_csetup")
    L("K_bwave")
    post(1)
    STAMP(3)
    E("s_cmp_lg_u32 s3, 5")
    E("s_cbranch_scc1 K_norec")
    waitf(1, 4, 8, 144)
    E(f"ds_read_b64 v[144:145], v225 offset:{SYN + 256}")
    E("v_mov_b32 v146, s56")
    E("v_mov_b32 v147, s57")
    E("s_waitcnt lgkmcnt(0)")
    E("s_mov_b64 exec, 3")
    E(f"buffer_store_dwordx4 v[144:147], v227, s[{SRD_WS}:{SRD_WS+3}], s8 offen sc1")
    E("s_mov_b64 exec, -1")
    L("K_norec")
    E("s_cmp_lg_u32 s3, 4")
    E("s_cbranch_scc1 K_pwait")
    E("s_mov_b32 s70, 0")
    L("K_poll")
    E(f"buffer_load_dwordx2 v[112:113], v226, s[{SRD_WS}:{SRD_WS+3}], s7 offen sc1")
    E("s_waitcnt vmcnt(0)")
    E("v_xor_b32 v112, s56, v112")
    E("v_xor_b32 v113, s57, v113")
    E("v_or_b32 v112, v112, v113")
    E("v_cmp_ne_u32 vcc, 0, v112")
    E("s_add_u32 s70, s70, 1")
    E("s_cmp_eq_u64 vcc, 0")
    E("s_cbranch_scc1 K_pok")
    E(f"s_sleep {PSLEEP}")
    E("s_cmp_lt_u32 s70, 0x40000")
    E("s_cbranch_scc1 K_poll")
    L("K_pok")
    post(5)
    E("s_branch K_pdone")
    L("K_pwait")
    E(f"ds_read_b32 v93, v30 offset:{32*5 + 16}")
    E("s_waitcnt lgkmcnt(0)")
    E("v_readfirstlane_b32 s70, v93")
    E("s_cmp_eq_u32 s70, 1")
    E("s_cbranch_scc1 K_pdone")
    E("s_sleep 1")
    E("s_branch K_pwait")
    L("K_pdone")
    if opt("dly", 0) == 6: E("s_sleep 47")
    STAMP(4)
    for p in range(4):
        E(f"buffer_load_dwordx4 {R4(96+4*p)}, v9, s[{SRD_WS}:{SRD_WS+3}], s6 offen offset:{1024*p} sc1")
    for k in range(5):
        E(f"v_mov_b32 v{16+k}, v{228+k}")
    for p in range(4):
        E(f"s_waitcnt vmcnt({3-p})")
        E(f"ds_write_b128 v224, {R4(96+4*p)} offset:{64*p}")
    post(4)
    E(f"s_setprio {CBPRIO}")
    E("s_branch K_convB")
    L("K_csetup")
    vB, vA, vPM, vPC, vF = 16, 17, 18, 19, 20
    E("s_lshl_b32 s70, s3, 1")
    E(f"s_mul_i32 s70, s70, {ZROW}")
    E(f"s_add_u32 s70, s70, {ZBASE + 8}")
    E(f"v_lshlrev_b32 v{vB}, 3, v4")
    E(f"v_lshl_add_u32 v{vB}, v5, 4, v{vB}")
    E(f"v_add_u32 v{vB}, s70, v{vB}")
    E("v_and_b32 v22, 3, v1")
    E("v_bfe_u32 v23, v1, 2, 2")
    E("v_sub_u32 v22, v22, v23")
    E("v_lshlrev_b32 v22, 3, v22")
    E("v_lshlrev_b32 v23, 6, v5")
    E("v_sub_u32 v22, v22, v23")
    E("s_lshl_b32 s70, s68, 2")
    E("s_add_u32 s70, s70, s69")
    E(f"s_mul_i32 s70, s70, {XROW}")
    E(f"s_add_u32 s70, s70, {XBASE + 224}")
    E(f"v_add_u32 v{vA}, s70, v22")
    E("s_cmp_eq_u32 s68, 0")
    E(f"s_mov_b32 s71, {PB}")
    E(f"s_cselect_b32 s71, {PA}, s71")
    E(f"s_mul_i32 s70, s67, {PMS}")
    E("s_add_u32 s70, s70, s71")
    E("s_add_u32 s72, s70, 16")
    E(f"v_lshl_add_u32 v{vPM}, v1, 4, s72")
    E(f"s_mul_i32 s72, s67, {PCS}")
    E("s_add_u32 s72, s72, s71")
    E(f"s_add_u32 s72, s72, {4*PMS}")
    E("s_add_u32 s73, s72, 16")
    E(f"v_lshl_add_u32 v{vPC}, v1, 2, s73")
    E("s_lshl_b32 s73, s3, 2")
    E(f"s_add_u32 s73, s73, {FLG}")
    E(f"v_mov_b32 v{vF}, s73")
    E("v_mov_b32 v22, s70")
    E("v_mov_b32 v23, s72")
    if DRY > 1:
        E("s_cmp_lg_u32 s5, 0")
        E("s_cbranch_scc1 K_areal")
    RSTAMP(8)
    waitf(3, 0, 4, 24)
    RSTAMP(9)
    E("v_mov_b32 v24, 0")
    E("v_mov_b32 v25, 0")
    E("v_mov_b32 v26, 0")
    E("v_mov_b32 v27, 0")
    E("ds_write_b128 v22, v[24:27]")
    E("ds_write_b128 v23, v[24:27]")
    waitf(4, 4, 8, 24)
    E("s_setprio 0")
    STAMP(5)

    def Bf(pp, jj):
        return 64 + 64 * pp + 4 * jj
    def acc(pp, q):
        return 192 + 32 * pp + 4 * q
    def conv(nx):
        ring = 8 // nx
        def Af(n, x):
            return 32 + 4 * ((n % ring) * nx + x)
        queue = []
        def rdA(n):
            for x in range(nx):
                a = Af(n, x)
                off = 256 * n + x * 2 * XROW
                E(f"ds_read_b64_tr_b16 v[{a}:{a+1}], v{vA} offset:{off+32}")
                E(f"ds_read_b64_tr_b16 v[{a+2}:{a+3}], v{vA} offset:{off}")
                queue.extend([("A", n), ("A", n)])
        def rdB(pp, jj):
            b = Bf(pp, jj)
            E(f"ds_read_b64 v[{b}:{b+1}], v{vB} offset:{pp*ZROW + 64*jj}")
            E(f"ds_read_b64 v[{b+2}:{b+3}], v{vB} offset:{pp*ZROW + 64*jj + 8}")
            queue.extend([("B", pp, jj), ("B", pp, jj)])
        def need(keys):
            last = -1
            for idx, k in enumerate(queue):
                if k in keys:
                    last = idx
            if last >= 0:
                n_after = len(queue) - 1 - last
                assert n_after <= 15
                E(f"s_waitcnt lgkmcnt({n_after})")
                del queue[:last + 1]
        def mf(pp, q, n, x, first=False):
            jj = 2 * q - n + 1
            c = "0" if first else R4(acc(pp, q))
            E(f"v_mfma_f32_16x16x32_bf16 {R4(acc(pp,q))}, {R4(Af(n,x))}, {R4(Bf(pp,jj))}, {c}")
        def writeout(q):
            a0, a1 = acc(0, q), acc(1, q)
            E(f"v_add_f32 v{a0+1}, v{a0+1}, v{a1}")
            E(f"v_add_f32 v{a0+2}, v{a0+2}, v{a1+1}")
            E(f"v_add_f32 v{a0+3}, v{a0+3}, v{a1+2}")
            E(f"ds_write_b32 v{vPC}, v{a1+3} offset:{256*q}")
            E(f"ds_write_b128 v{vPM}, {R4(a0)} offset:{1024*q}")
            E(f"ds_write_b32 v{vF}, v29 offset:{32*q}")
            queue.extend([("W",), ("W",), ("W",)])
        rdA(1)
        rdB(0, 0)
        rdA(0)
        rdB(0, 1)
        rdB(1, 0)
        for q in range(8):
            for pp in range(2):
                if pp == 0:
                    nxt = [(1, 2 * q + 1)] + ([(0, 2 * q + 2)] if q < 7 else [])
                else:
                    nxt = [(0, 2 * q + 3), (1, 2 * q + 2)] if q < 7 else []
                need({("A", 1), ("B", pp, 2 * q)})
                for x in range(nx):
                    mf(pp, q, 1, x, first=(x == 0))
                if nxt:
                    rdB(*nxt[0])
                elif pp == 1:
                    rdA(2)
                need({("A", 0), ("B", pp, 2 * q + 1)})
                for x in range(nx):
                    mf(pp, q, 0, x)
                if len(nxt) > 1:
                    rdB(*nxt[1])
                elif pp == 1:
                    rdA(3)
        if nx == 1:
            sched = {2: [4], 3: [5], 4: [6], 5: [7], 6: [8], 7: [9], 8: [10, 11], 9: [12, 13], 10: [14, 15]}
        else:
            sched = {n: [n + 2] for n in range(2, 14)}
        for n in range(2, 16):
            need({("A", n)})
            q0 = n >> 1
            k = 0
            for q in range(q0, 8):
                for pp in range(2):
                    for x in range(nx):
                        mf(pp, q, n, x)
                    k += 1
                    if k == 1:
                        for m in sched.get(n, []):
                            rdA(m)
                if n % 2 == 0 and q == min(q0 + 1, 7):
                    if n == 14:
                        E("s_nop 3")
                    writeout(q0 - 1)
        E("s_nop 7")
        writeout(7)
    conv(2)
    STAMP(6)
    E("s_mov_b32 s73, 7")
    E("s_branch K_fin")
    L("K_convB")
    waitf(0, 0, 4, 24)
    waitf(4, 4, 8, 24)
    E(f"buffer_load_dwordx4 v[12:15], v9, s[{SRD_WS}:{SRD_WS+3}], s60 offen sc1")
    E(f"buffer_load_dwordx4 v[24:27], v9, s[{SRD_WS}:{SRD_WS+3}], s60 offen offset:1024 sc1")
    STAMP(5)
    conv(1)
    STAMP(6)
    E("s_mov_b32 s70, 0")
    L("K_gpoll")
    E("s_waitcnt vmcnt(0)")
    E("v_xor_b32 v14, s56, v14")
    E("v_xor_b32 v15, s57, v15")
    E("v_xor_b32 v26, s56, v26")
    E("v_xor_b32 v27, s57, v27")
    E("v_or_b32 v14, v14, v15")
    E("v_or_b32 v26, v26, v27")
    E("v_or_b32 v14, v14, v26")
    E("v_cmp_ne_u32 vcc, 0, v14")
    E("s_add_u32 s70, s70, 1")
    E("s_cmp_eq_u64 vcc, 0")
    E("s_cbranch_scc1 K_gok")
    E("s_cmp_ge_u32 s70, 0x40000")
    E("s_cbranch_scc1 K_gok")
    E("s_sleep 8")
    E(f"buffer_load_dwordx4 v[12:15], v9, s[{SRD_WS}:{SRD_WS+3}], s60 offen sc1")
    E(f"buffer_load_dwordx4 v[24:27], v9, s[{SRD_WS}:{SRD_WS+3}], s60 offen offset:1024 sc1")
    E("s_branch K_gpoll")
    L("K_gok")
    for (src, dst) in [(12, 32), (24, 36)]:
        for hh in range(2):
            E(f"v_lshlrev_b32 v{dst+2*hh}, 16, v{src+hh}")
            E(f"v_and_b32 v{dst+2*hh+1}, s43, v{src+hh}")
        for e in range(4):
            E(f"v_sub_f32 v40, 1.0, v{dst+e}")
            E(f"v_cvt_pk_bf16_f32 v{dst+e}, v{dst+e}, v40")
    E("ds_write_b128 v10, v[32:35]")
    E("ds_write_b128 v10, v[36:39] offset:1024")
    post(6)
    E("s_mov_b32 s73, 0")
    if FINPRIO:
        E(f"s_setprio {FINPRIO}")
    L("K_fin")
    E("v_subrev_u32 v16, 16, v1")
    E("v_add_u32 v17, 47, v1")
    E("v_cmp_eq_u32 vcc, 0, v1")
    E("s_nop 1")
    E("v_cndmask_b32 v17, v17, -1, vcc")
    E("v_cmp_gt_u32 vcc, 16, v1")
    E("s_lshl_b32 s74, s73, 6")
    E("s_nop 0")
    E("v_cndmask_b32 v16, v16, v17, vcc")
    E("v_add_u32 v16, s74, v16")
    E("v_add_u32 v22, s74, v1")
    E("v_add_u32 v6, s74, v6")
    E("s_lshl_b32 s70, s67, 2")
    E(f"s_add_u32 s70, s70, {PB + 16}")
    E("v_lshl_add_u32 v18, v22, 4, s70")
    E("s_add_u32 s70, s67, 2")
    E("s_and_b32 s70, s70, 3")
    E("s_lshl_b32 s70, s70, 2")
    E(f"s_add_u32 s70, s70, {PB + 16 + PMS}")
    E("s_cmp_lt_u32 s67, 2")
    E("s_cselect_b64 vcc, -1, 0")
    E("v_cndmask_b32 v17, v22, v16, vcc")
    E("v_lshl_add_u32 v19, v17, 4, s70")
    E("s_lshr_b32 s70, s67, 1")
    E(f"s_mul_i32 s70, s70, {PCS}")
    E(f"s_add_u32 s70, s70, {PB + 4*PMS + 16}")
    E("v_lshl_add_u32 v20, v16, 2, s70")
    E("s_and_b32 s70, s67, 1")
    E("s_cmp_eq_u32 s70, 0")
    E("s_cselect_b64 vcc, -1, 0")
    E("s_cselect_b32 s75, 256, 0")
    E(f"v_mov_b32 v17, {PB + 4*PMS}")
    E("v_cndmask_b32 v20, v17, v20, vcc")
    E(f"s_mul_i32 s70, s67, {ZROW}")
    E("v_lshl_add_u32 v21, v6, 1, s70")
    E("s_lshl_b32 s70, s67, 10")
    E("v_lshl_add_u32 v22, v6, 12, s70")
    E("s_lshl_b32 s70, s67, 2")
    E(f"s_add_u32 s70, s70, {GB}")
    E("v_lshl_add_u32 v7, v6, 4, s70")
    E("s_lshl_b32 s70, s73, 5")
    E(f"s_add_u32 s70, s70, {FLG}")
    E("v_mov_b32 v23, s70")
    E("s_lshl_b32 s72, s64, 2")
    E("s_lshl_b32 s76, s23, 16")
    E("s_and_b32 s77, s23, s43")
    E("s_lshl_b32 s78, s42, 16")
    E("s_and_b32 s79, s42, s43")
    E("s_sub_u32 s74, 8, s68")
    waitf(6, 4, 8, 32)
    L("K_hloop")
    for r in range(48, 52):
        E(f"v_mov_b32 v{r}, 0")
    for k in range(4):
        E(f"ds_read_u16_d16_hi v{48+k}, v21 offset:{ZBASE + 4*k*ZROW + 128}")
    E("ds_read_b32 v8, v7")
    L("K_hpoll")
    E("ds_read_b128 v[32:35], v23")
    E("ds_read_b128 v[36:39], v23 offset:16")
    E("s_waitcnt lgkmcnt(0)")
    for k in range(0, 8, 2):
        E(f"v_and_b32 v{32+k}, v{32+k}, v{33+k}")
    E("v_and_b32 v32, v32, v34")
    E("v_and_b32 v36, v36, v38")
    E("v_and_b32 v32, v32, v36")
    E("s_nop 0")
    E("v_readfirstlane_b32 s70, v32")
    E("s_cmp_eq_u32 s70, 1")
    E("s_cbranch_scc1 K_go")
    E("s_sleep 3")
    E("s_branch K_hpoll")
    L("K_go")
    for k in range(4):
        X, c = k >> 1, k & 1
        base = PSTRIDE if X == 0 else 0
        E(f"ds_read_b32 v{32+k}, v18 offset:{base + 2*c*PMS}")
        E(f"ds_read_b32 v{36+k}, v19 offset:{base + 2*c*PMS}")
        E(f"ds_read_b32 v{40+k}, v20 offset:{base + 2*c*PCS}")
    def rnd(a, b):
        E(f"v_cvt_pk_bf16_f32 v{a}, v{a}, v{b}")
        E(f"v_and_b32 v{b}, s43, v{a}")
        E(f"v_lshlrev_b32 v{a}, 16, v{a}")
    yA0, yA1, yB0, yB1 = 32, 33, 34, 35
    u0, u1, k0, k1 = 48, 49, 50, 51
    t = 52
    E(f"v_mul_f32 v{t}, s76, v{u0}")
    E(f"v_mul_f32 v{t+1}, s77, v{u1}")
    E(f"v_mul_f32 v{t+2}, s78, v{k0}")
    E(f"v_mul_f32 v{t+3}, s79, v{k1}")
    rnd(t, t + 1)
    rnd(t + 2, t + 3)
    E(f"v_lshlrev_b32 v{t+4}, 16, v8")
    E(f"v_and_b32 v{t+5}, s43, v8")
    E("v_add_u32 v18, 1024, v18")
    E("v_add_u32 v19, 1024, v19")
    E("v_add_u32 v20, s75, v20")
    E("v_add_u32 v21, 128, v21")
    E("v_add_u32 v23, 32, v23")
    E("v_add_u32 v7, 1024, v7")
    for k in range(4):
        E(f"s_waitcnt lgkmcnt({9-3*k})")
        E(f"v_add_f32 v{32+k}, v{32+k}, v{36+k}")
        E(f"v_add_f32 v{32+k}, v{32+k}, v{40+k}")
    rnd(yA0, yA1)
    rnd(yB0, yB1)
    E(f"v_add_f32 v{yA0}, v{yA0}, v{t}")
    E(f"v_add_f32 v{yA1}, v{yA1}, v{t+1}")
    E(f"v_add_f32 v{yB0}, v{yB0}, v{t+2}")
    E(f"v_add_f32 v{yB1}, v{yB1}, v{t+3}")
    rnd(yA0, yA1)
    rnd(yB0, yB1)
    E(f"v_mul_f32 v{yB0}, v{u0}, v{yB0}")
    E(f"v_mul_f32 v{yB1}, v{u1}, v{yB1}")
    rnd(yB0, yB1)
    E(f"v_mul_f32 v{yA0}, v{t+4}, v{yA0}")
    E(f"v_mul_f32 v{yA1}, v{t+4}, v{yA1}")
    E(f"v_mul_f32 v{yB0}, v{t+5}, v{yB0}")
    E(f"v_mul_f32 v{yB1}, v{t+5}, v{yB1}")
    rnd(yA0, yA1)
    rnd(yB0, yB1)
    E(f"v_add_f32 v{yA0}, v{yA0}, v{yB0}")
    E(f"v_add_f32 v{yA1}, v{yA1}, v{yB1}")
    E(f"v_cvt_pk_bf16_f32 v{yA0}, v{yA0}, v{yA1}")
    E(f"buffer_store_dword v{yA0}, v22, s[{SRD_OUT}:{SRD_OUT+3}], s72 offen")
    E("v_add_u32 v22, 0x40000, v22")
    E("s_add_u32 s73, s73, 1")
    E("s_cmp_lt_u32 s73, s74")
    E("s_cbranch_scc1 K_hloop")
    STAMP(7)
    if DBG: E("s_waitcnt vmcnt(0)")
    STAMP(8)
    if "--pro" in sys.argv:
        E("s_waitcnt lgkmcnt(0)")
        for i in range(3, 8): E(f"s_mov_b32 s{80+2*i}, s{1+i}")
    DUMP(10, SRD_WS)
    L("K_end")
    E("s_endpgm")
    sg = 102 if DBG else 80
    return f""".amdhsa_kernel {name}
  .amdhsa_next_free_vgpr 256
  .amdhsa_next_free_sgpr {sg}
  .amdhsa_accum_offset 256
  .amdhsa_group_segment_fixed_size 0
  .amdhsa_kernarg_size 152
  .amdhsa_user_sgpr_count 2
  .amdhsa_user_sgpr_kernarg_segment_ptr 1
  .amdhsa_system_sgpr_workgroup_id_x 1
  .amdhsa_float_denorm_mode_32 3
.end_amdhsa_kernel"""

def main():
    hdr = HEADER.rstrip("\n")
    pre = [hdr,
           f"; @launch grid=(256,1,1) block=(512,1,1) lds={LDS_SIZE}",
           '.amdgcn_target "amdgcn-amd-amdhsa--gfx950"',
           ".text"]
    k = gen()
    txt = "\n".join(pre + out) + '\n.section .rodata,"a"\n.p2align 6\n' + k + "\n"
    args = [a for a in sys.argv[1:] if not a.startswith("--")]
    path = args[0] if args else "cdna_kernels/%s.s" % NAME
    open(path, "w").write(txt)

main()
```

```python
import sys

NAME = "gated_mix__ssm_conv_s4__ssm_conv_h3__prompt"
HEADER = open("cdna_kernels/%s.s.ref" % NAME).read().split("; Override launch")[0]
DBG = "--dbg" in sys.argv
def opt(name, default):
    for a in sys.argv:
        if a.startswith("--" + name + "="):
            return int(a.split("=")[1])
    return default
NA = 8
NB = 8 - NA
FINPRIO = opt("finprio", 2)
PSLEEP = opt("psleep", 8)
TOUCH = opt("touch", 0)
LATE = opt("late", 3)
DRY = opt("dry", 0)
KLDS = opt("klds", 1)
TSH = opt("tsh", 16)
ZSC = ["sc1", "sc0 sc1", "sc1 nt"][opt("zsc", 0)]
ALLPOLL = opt("allpoll", 0)
CBPRIO = opt("cbprio", 2)
APRIO = opt("aprio", 2)
POLLSC = ["sc1", "sc0 sc1", "sc1 nt"][opt("pollsc", 1)]

out = []
def E(s=""):
    out.append("    " + s)
def L(s):
    out.append(s + ":")

WS_Z = 0
WS_G = 4 << 20
WS_F = WS_G + 8192
WS_SIZE = (4 << 20) + 16384
WS_DBG = 16 << 20
if DBG:
    WS_SIZE = 32 << 20

ZROW = 1152
ZBASE = 0
XBASE = 16 * ZROW
XROW = 4128
GB = XBASE + 6 * XROW
FLG = GB + 8192
SYN = FLG + 256
PMS = 8192 + 16
PCS = 2048 + 16
PB = SYN + 288
PA = PB + 4 * PMS + 4 * PCS
PSTRIDE = PA - PB
S_KT = PA
S_P = S_KT + 24576
S_K = S_P + 8192
S_TR = S_K + 9216
LDS_SIZE = S_TR + 8 * 3072
assert LDS_SIZE <= 163840 and PA + PSTRIDE <= LDS_SIZE
def PMa(X, w4):
    return (PA if X == 0 else PB) + w4 * PMS
def PCa(X, w4):
    return (PA if X == 0 else PB) + 4 * PMS + w4 * PCS

TD = "--tiledbg" in sys.argv
RD = "--reddbg" in sys.argv
def RSTAMP(i):
    if DBG and RD:
        E(f"s_memtime s[{80+2*i}:{81+2*i}]")
def TSTAMP(i):
    if DBG and TD:
        E(f"s_memtime s[{80+2*i}:{81+2*i}]")
def STAMP(i):
    if TD and i in (3, 4, 5, 6, 7): return
    if RD and i in (1, 2, 4, 6, 7, 8, 9): return
    if DBG:
        E(f"s_memtime s[{80+2*i}:{81+2*i}]")
def DUMP(n, srdreg):
    if DBG:
        E("s_waitcnt lgkmcnt(0)")
        E("s_mov_b64 exec, 1")
        E("s_lshl_b32 s100, s2, 4")
        E("s_add_u32 s100, s100, s3")
        E("s_lshl_b32 s100, s100, 6")
        E(f"s_add_u32 s100, s100, {WS_DBG}")
        for i in range(n):
            E(f"v_mov_b32 v2, s{80+2*i}")
            E(f"v_mov_b32 v3, {4*i}")
            E(f"buffer_store_dword v2, v3, s[{srdreg}:{srdreg+3}], s100 offen")
            E("s_nop 1")

def srd(sd, sp, nbytes):
    E(f"s_mov_b32 s{sd}, s{sp}")
    E(f"s_and_b32 s{sd+1}, s{sp+1}, 0xffff")
    E(f"s_mov_b32 s{sd+2}, {hex(nbytes)}")
    E(f"s_mov_b32 s{sd+3}, 0x00020000")
def R4(r):
    return f"v[{r}:{r+3}]"
SRD_WS, SRD_OUT, SRD_DBGB, SRD_A, SRD_B = 44, 48, 52, 56, 60

lblc = [0]
def post(kind):
    E(f"ds_write_b32 v28, v29 offset:{32*kind}")
def waitf(kind, lo, hi, t0=24):
    lblc[0] += 1
    n = lblc[0]
    if DRY > 1:
        E("s_cmp_lg_u32 s5, 0")
        E(f"s_cbranch_scc1 W{n}_d")
    L(f"W{n}_p")
    if hi - lo == 4:
        E(f"ds_read_b128 v[{t0}:{t0+3}], v30 offset:{32*kind + 4*lo}")
        E("s_waitcnt lgkmcnt(0)")
        E(f"v_and_b32 v{t0}, v{t0}, v{t0+1}")
        E(f"v_and_b32 v{t0+2}, v{t0+2}, v{t0+3}")
        E(f"v_and_b32 v{t0}, v{t0}, v{t0+2}")
    else:
        E(f"ds_read_b128 v[{t0}:{t0+3}], v30 offset:{32*kind}")
        E(f"ds_read_b128 v[{t0+4}:{t0+7}], v30 offset:{32*kind + 16}")
        E("s_waitcnt lgkmcnt(0)")
        for k in range(0, 8, 2):
            E(f"v_and_b32 v{t0+k}, v{t0+k}, v{t0+k+1}")
        E(f"v_and_b32 v{t0}, v{t0}, v{t0+2}")
        E(f"v_and_b32 v{t0+4}, v{t0+4}, v{t0+6}")
        E(f"v_and_b32 v{t0}, v{t0}, v{t0+4}")
    E("s_nop 0")
    E(f"v_readfirstlane_b32 s4, v{t0}")
    E("s_cmp_eq_u32 s4, 1")
    E(f"s_cbranch_scc1 W{n}_d")
    E("s_sleep 1")
    E(f"s_branch W{n}_p")
    L(f"W{n}_d")

def gen():
    name = NAME + "_kernel"
    out.append(f".globl {name}\n.p2align 8\n.type {name},@function")
    L(name)
    E("s_cmp_ge_u32 s2, 256")
    E("s_cbranch_scc1 K_end")
    STAMP(0)
    E("s_setprio 3")
    E("s_load_dwordx16 s[4:19], s[0:1], 0")
    E("s_load_dwordx2 s[20:21], s[0:1], 64")
    E("s_load_dwordx8 s[24:31], s[0:1], 80")
    E("s_load_dwordx8 s[32:39], s[0:1], 112")
    E("s_load_dwordx2 s[40:41], s[0:1], 144")
    E("v_lshrrev_b32 v1, 6, v0")
    E("s_nop 0")
    E("v_readfirstlane_b32 s3, v1")
    E("v_and_b32 v1, 63, v0")
    E("s_and_b32 s64, s2, 7")
    E("s_lshl_b32 s65, s64, 2")
    E("s_lshl_b32 s64, s64, 5")
    E("s_lshr_b32 s66, s2, 3")
    E("s_add_u32 s64, s64, s66")
    E("s_and_b32 s66, s66, 3")
    E("s_add_u32 s65, s65, s66")
    E("s_lshr_b32 s66, s2, 5")
    E("s_and_b32 s67, s3, 3")
    E("s_lshr_b32 s68, s3, 2")
    E("s_bfe_u32 s69, s3, 0x10001")
    E("v_mov_b32 v12, 0")
    E("v_mov_b32 v13, 0")
    E("v_mov_b32 v14, 0")
    E("v_mov_b32 v15, 0")
    E("v_and_b32 v2, 31, v1")
    E("v_lshlrev_b32 v2, 4, v2")
    E(f"ds_write_b128 v2, v[12:15] offset:{FLG}")
    E(f"ds_write_b128 v2, v[12:15] offset:{FLG + 32}")
    E("s_lshl_b32 s70, s3, 2")
    E(f"s_add_u32 s70, s70, {SYN}")
    E("v_mov_b32 v28, s70")
    E("v_mov_b32 v29, 1")
    E("v_mov_b32 v95, 0")
    E(f"v_mov_b32 v30, {SYN}")
    E("s_lshl_b32 s70, s65, 6")
    E("s_add_u32 s70, s70, s67")
    E("s_lshl_b32 s70, s70, 10")
    E("s_lshl_b32 s71, s66, 7")
    E("s_add_u32 s70, s70, s71")
    E("v_lshrrev_b32 v2, 3, v1")
    E("v_and_b32 v3, 7, v1")
    E("v_lshlrev_b32 v4, 12, v2")
    E("v_lshl_add_u32 v4, v3, 4, v4")
    E("v_add_u32 v4, s70, v4")
    E("v_subrev_u32 v5, 1024, v4")
    E("v_subrev_u32 v6, 2048, v4")
    E("v_subrev_u32 v7, 3072, v4")
    E("s_lshl_b32 s71, s66, 9")
    E("v_lshl_add_u32 v8, v3, 6, s71")
    E("s_lshl_b32 s72, s65, 6")
    E("s_lshl_b32 s71, s66, 3")
    E("s_add_u32 s72, s72, s71")
    E("s_lshl_b32 s71, s67, 1")
    E("s_add_u32 s72, s72, s71")
    E("s_lshl_b32 s73, s72, 10")
    E("v_lshlrev_b32 v9, 4, v1")
    E("s_and_b32 s74, s3, 1")
    E(f"s_mul_i32 s75, s74, {8*NA}")
    E(f"s_mul_i32 s76, s74, {8*NB}")
    E(f"s_add_u32 s76, s76, {16*NA}")
    E("s_cmp_eq_u32 s68, 0")
    E("s_cselect_b32 s75, s75, s76")
    E("s_lshl_b32 s70, s64, 1")
    E("s_add_u32 s70, s70, s69")
    E("s_lshl_b32 s70, s70, 7")
    E("s_add_u32 s70, s70, s75")
    E("s_lshl_b32 s70, s70, 1")
    E("v_lshl_add_u32 v11, v1, 1, s70")
    if "--pro" in sys.argv: STAMP(3)
    E("s_waitcnt lgkmcnt(0)")
    if "--pro" in sys.argv: STAMP(4)
    E("s_add_u32 s70, s2, s3")
    E("s_cmp_lg_u32 s70, 0")
    E("s_cbranch_scc1 K_nononce")
    E("s_memrealtime s[70:71]")
    srd(SRD_DBGB, 38, 256)
    E("s_waitcnt lgkmcnt(0)")
    E("s_or_b32 s70, s70, 1")
    E("v_mov_b32 v100, s70")
    E("v_mov_b32 v101, s71")
    E("s_mov_b64 exec, 1")
    E(f"buffer_store_dwordx2 v[100:101], v95, s[{SRD_DBGB}:{SRD_DBGB+3}], 0 offen sc1")
    E("s_mov_b64 exec, -1")
    L("K_nononce")
    E("s_barrier")
    E("s_cmp_eq_u32 s68, 0")
    E("s_cbranch_scc1 K_noTL")
    srd(SRD_A, 24, 2 << 20)
    srd(SRD_B, 26, 2 << 20)
    E("s_mov_b32 s70, 0x8000")
    E("v_lshlrev_b32 v5, 10, v2")
    E("v_lshl_add_u32 v5, v3, 4, v5")
    E("s_lshl_b32 s71, s65, 6")
    E("s_lshl_b32 s74, s67, 3")
    E("s_add_u32 s71, s71, s74")
    E("s_sub_u32 s71, s71, 8")
    E("s_lshl_b32 s71, s71, 10")
    E("s_lshl_b32 s74, s66, 7")
    E("s_add_u32 s71, s71, s74")
    E("v_add_u32 v5, s71, v5")
    E("v_add_u32 v6, s70, v5")
    E("v_add_u32 v7, s70, v6")
    E("s_lshl_b32 s74, s67, 10")
    E(f"s_add_u32 s74, s74, {S_K}")
    E("s_mov_b32 m0, s74")
    E("s_add_u32 s74, s74, 4096")
    E(f"buffer_load_dwordx4 v5, s[{SRD_A}:{SRD_A+3}], 0 offen lds")
    E("s_mov_b32 m0, s74")
    E("s_add_u32 s74, s74, 4096")
    E(f"buffer_load_dwordx4 v6, s[{SRD_A}:{SRD_A+3}], 0 offen lds")
    E("s_cmp_lg_u32 s67, 0")
    E("s_cbranch_scc1 K_nok3")
    E("s_mov_b32 m0, s74")
    E("s_nop 0")
    E(f"buffer_load_dwordx4 v7, s[{SRD_A}:{SRD_A+3}], 0 offen lds")
    L("K_nok3")
    E(f"buffer_load_dwordx4 v[96:99], v4, s[{SRD_B}:{SRD_B+3}], 0 offen")
    srd(SRD_WS, 28, 4096)
    srd(SRD_OUT, 4, 2 << 20)
    for i in range(4):
        E(f"buffer_load_dwordx4 v[{40+4*i}:{43+4*i}], v8, s[{SRD_WS}:{SRD_WS+3}], 0 offen offset:{16*i}")
    E(f"buffer_load_dwordx4 v[32:35], v4, s[{SRD_OUT}:{SRD_OUT+3}], 0 offen")
    E("v_add_u32 v4, s70, v4")
    E(f"buffer_load_dwordx4 v[144:147], v4, s[{SRD_B}:{SRD_B+3}], 0 offen")
    E(f"buffer_load_dwordx4 v[148:151], v4, s[{SRD_OUT}:{SRD_OUT+3}], 0 offen")
    E(f"buffer_load_dwordx4 v[56:59], v9, s[{SRD_OUT}:{SRD_OUT+3}], s73 offen")
    E(f"buffer_load_dwordx4 v[152:155], v9, s[{SRD_OUT}:{SRD_OUT+3}], s73 offen offset:1024")
    srd(SRD_A, 34, 1024)
    E(f"buffer_load_dwordx4 v[60:63], v9, s[{SRD_A}:{SRD_A+3}], 0 offen")
    E("s_branch K_noPL")
    L("K_noTL")
    for i, sp in enumerate([6, 8, 10, 12, 14, 16]):
        sd = SRD_A if i % 2 == 0 else SRD_B
        srd(sd, sp, 131072)
        E(f"buffer_load_ushort v{84+i}, v11, s[{sd}:{sd+3}], 0 offen")
    if TOUCH:
        E(f"v_lshlrev_b32 v200, {TSH}, v1")
        E("s_cmp_eq_u32 s3, 0")
        E("s_cbranch_scc0 K_tc1")
        srd(SRD_A, 40, WS_SIZE)
        E(f"buffer_load_dword v201, v200, s[{SRD_A}:{SRD_A+3}], 0 offen")
        E(f"s_mov_b32 s70, {WS_G}")
        E(f"buffer_load_dword v202, v95, s[{SRD_A}:{SRD_A+3}], s70 offen")
        E("s_branch K_tc4")
        L("K_tc1")
        E("s_cmp_eq_u32 s3, 1")
        E("s_cbranch_scc0 K_tc2")
        srd(SRD_A, 36, 2 << 20)
        E(f"buffer_load_dword v201, v200, s[{SRD_A}:{SRD_A+3}], 0 offen")
        srd(SRD_B, 38, 256)
        E(f"buffer_load_dword v202, v95, s[{SRD_B}:{SRD_B+3}], 0 offen")
        E("s_branch K_tc4")
        L("K_tc2")
        E("s_cmp_eq_u32 s3, 2")
        E("s_cbranch_scc0 K_tc3")
        srd(SRD_A, 4, 2 << 20)
        E(f"buffer_load_dword v201, v200, s[{SRD_A}:{SRD_A+3}], 0 offen")
        srd(SRD_B, 24, 2 << 20)
        E(f"buffer_load_dword v202, v200, s[{SRD_B}:{SRD_B+3}], 0 offen")
        E("s_branch K_tc4")
        L("K_tc3")
        srd(SRD_A, 26, 2 << 20)
        E(f"buffer_load_dword v201, v200, s[{SRD_A}:{SRD_A+3}], 0 offen")
        srd(SRD_B, 34, 1024)
        E(f"buffer_load_dword v202, v95, s[{SRD_B}:{SRD_B+3}], 0 offen")
        L("K_tc4")
    L("K_noPL")
    srd(SRD_A, 30, 2 << 20)
    E("s_lshl_b32 s74, s64, 2")
    if "--pro" in sys.argv: STAMP(6)
    E("s_load_dword s22, s[18:19], s74")
    E("s_load_dword s23, s[20:21], s74")
    E("s_load_dword s42, s[32:33], s74")
    srd(SRD_WS, 40, WS_SIZE)
    srd(SRD_OUT, 36, 2 << 20)
    srd(SRD_DBGB, 38, 256)
    E("s_mov_b32 s43, 0xffff0000")
    E("s_mov_b32 s5, 0")
    E("s_and_b32 s61, s3, 1")
    if "--pro" in sys.argv:
        STAMP(7)
        E("s_waitcnt lgkmcnt(0)")
        for i in range(3, 8): E(f"s_mov_b32 s{1+i}, s{80+2*i}")
    E("s_cmp_eq_u32 s68, 0")
    E("s_cbranch_scc1 K_kgen")
    E("s_mul_i32 s70, s3, 3072")
    E(f"s_add_u32 s70, s70, {S_TR}")
    E("v_mul_u32_u24 v64, 144, v2")
    E("v_lshl_add_u32 v64, v3, 4, v64")
    E("v_add_u32 v64, s70, v64")
    E("v_lshrrev_b32 v66, 4, v1")
    E("v_and_b32 v67, 1, v66")
    E("v_lshrrev_b32 v66, 1, v66")
    E("v_bfe_u32 v68, v1, 2, 2")
    E("v_and_b32 v69, 3, v1")
    E("v_mul_u32_u24 v65, 1152, v67")
    E("v_mul_u32_u24 v68, 144, v68")
    E("v_add_u32 v65, v65, v68")
    E("v_lshl_add_u32 v65, v66, 5, v65")
    E("v_lshl_add_u32 v65, v69, 3, v65")
    E("v_add_u32 v65, s70, v65")
    E("v_and_b32 v68, 15, v1")
    E("v_lshl_add_u32 v68, v66, 4, v68")
    E("v_lshrrev_b32 v69, 1, v68")
    E("v_and_b32 v68, 1, v68")
    E("v_lshlrev_b32 v69, 14, v69")
    E("v_lshl_add_u32 v69, v68, 4, v69")
    E("v_lshl_add_u32 v69, v67, 5, v69")
    E("s_lshl_b32 s70, s66, 19")
    E("s_lshl_b32 s71, s65, 9")
    E("s_add_u32 s70, s70, s71")
    E("s_lshl_b32 s71, s67, 7")
    E("s_add_u32 s70, s70, s71")
    E("s_add_u32 s71, s70, 0x40000")
    E("s_mov_b32 s62, 0")
    E("s_mov_b32 s76, 0x00003f80")
    E("s_mov_b32 s77, 0x3f800000")
    E("s_mov_b32 s78, 0x0000ffff")
    E("s_mov_b32 s79, 0x3f803f80")
    if DRY:
        E("s_mov_b32 s5, 1")
        E("s_mov_b64 exec, 0")
        E("s_branch K_tmask")
        L("K_breal")
        E("s_mov_b32 s5, 0")
        E("s_mov_b64 exec, -1")
        E("s_mov_b32 s62, 0")
    E("v_and_b32 v224, 3, v1")
    E("v_bfe_u32 v225, v1, 3, 2")
    E("v_lshl_add_u32 v224, v224, 2, v225")
    E(f"v_mul_u32_u24 v224, {ZROW}, v224")
    E("v_bfe_u32 v225, v1, 2, 1")
    E("v_lshl_add_u32 v224, v225, 4, v224")
    E("v_lshrrev_b32 v225, 5, v1")
    E("v_lshl_add_u32 v224, v225, 5, v224")
    E("s_lshl_b32 s74, s67, 8")
    E(f"s_add_u32 s74, s74, {ZBASE + 128}")
    E("v_add_u32 v224, s74, v224")
    E("s_lshl_b32 s6, s64, 14")
    E("s_lshl_b32 s74, s67, 12")
    E("s_add_u32 s6, s6, s74")
    E("s_lshl_b32 s74, s67, 11")
    E(f"v_add_u32 v10, {GB}, v9")
    E("v_add_u32 v10, s74, v10")
    E(f"s_add_u32 s60, s74, {WS_G}")
    E("v_and_b32 v226, 31, v1")
    E("v_lshlrev_b32 v226, 5, v226")
    E("s_and_b32 s7, s2, 7")
    E("s_lshl_b32 s7, s7, 10")
    E(f"s_add_u32 s7, s7, {WS_F}")
    E("v_and_b32 v227, 1, v1")
    E("v_lshlrev_b32 v225, 3, v227")
    E("v_lshlrev_b32 v227, 4, v227")
    E("s_lshl_b32 s8, s65, 3")
    E("s_add_u32 s8, s8, s66")
    E("s_lshl_b32 s8, s8, 5")
    E(f"s_add_u32 s8, s8, {WS_G}")
    E("s_lshl_b32 s9, s66, 5")
    E("s_add_u32 s9, s9, s65")
    E("s_lshl_b32 s9, s9, 5")
    E(f"s_add_u32 s9, s9, {WS_F}")
    E("v_mov_b32 v100, 0")
    E("v_mov_b32 v101, 0")
    E("v_mov_b32 v102, 0")
    E("v_mov_b32 v103, 0")
    E("v_bfe_u32 v104, v1, 3, 2")
    E(f"v_mul_u32_u24 v104, {ZROW}, v104")
    E("v_and_b32 v105, 7, v1")
    E("v_lshl_add_u32 v104, v105, 4, v104")
    E(f"s_mul_i32 s74, s67, {4*ZROW}")
    E("v_add_u32 v104, s74, v104")
    E("ds_write_b128 v104, v[100:103]")
    E("v_min_u32 v104, 11, v1")
    E("v_lshrrev_b32 v105, 1, v104")
    E(f"v_mul_u32_u24 v105, {XROW}, v105")
    E("v_and_b32 v104, 1, v104")
    E("v_lshl_add_u32 v104, v104, 4, v105")
    E(f"ds_write_b128 v104, v[100:103] offset:{XBASE}")
    E(f"s_mul_i32 s74, s67, {PMS}")
    E(f"s_add_u32 s74, s74, {PB}")
    E("v_mov_b32 v104, s74")
    E("ds_write_b128 v104, v[100:103]")
    E("s_add_u32 s74, s74, 16")
    E("v_lshl_add_u32 v230, v1, 4, s74")
    E(f"s_mul_i32 s74, s67, {PCS}")
    E(f"s_add_u32 s74, s74, {PB + 4*PMS}")
    E("v_mov_b32 v105, s74")
    E("ds_write_b128 v105, v[100:103]")
    E("s_add_u32 s74, s74, 16")
    E("v_lshl_add_u32 v231, v1, 2, s74")
    E("v_and_b32 v4, 15, v1")
    E("v_lshrrev_b32 v5, 4, v1")
    E("v_lshlrev_b32 v6, 2, v4")
    E("v_add_u32 v6, v6, v5")
    E("s_lshl_b32 s74, s3, 1")
    E(f"s_mul_i32 s74, s74, {ZROW}")
    E(f"s_add_u32 s74, s74, {ZBASE + 8}")
    E("v_lshlrev_b32 v228, 3, v4")
    E("v_lshl_add_u32 v228, v5, 4, v228")
    E("v_add_u32 v228, s74, v228")
    E("v_and_b32 v104, 3, v1")
    E("v_bfe_u32 v105, v1, 2, 2")
    E("v_sub_u32 v104, v104, v105")
    E("v_lshlrev_b32 v104, 3, v104")
    E("v_lshlrev_b32 v105, 6, v5")
    E("v_sub_u32 v104, v104, v105")
    E("s_add_u32 s74, s69, 4")
    E(f"s_mul_i32 s74, s74, {XROW}")
    E(f"s_add_u32 s74, s74, {XBASE + 224}")
    E("v_add_u32 v229, s74, v104")
    E("s_lshl_b32 s74, s3, 2")
    E(f"s_add_u32 s74, s74, {FLG}")
    E("v_mov_b32 v232, s74")
    E("v_lshlrev_b32 v70, 9, v2")
    E("v_lshl_add_u32 v70, v3, 4, v70")
    E("s_lshl_b32 s74, s67, 7")
    E(f"s_add_u32 s74, s74, {S_K + 1024 - 384}")
    E("v_add_u32 v70, s74, v70")
    E("s_waitcnt vmcnt(11)")
    post(7)
    E("s_waitcnt vmcnt(6)")
    STAMP(1)
    L("K_tmask")
    for t in range(4):
        for i in range(4):
            r0 = 40 + 4 * i + (t >> 1)
            r1 = 40 + 4 * i + 2 + (t >> 1)
            d = 160 + (t * 4 + i) * 2
            if t & 1:
                E(f"v_lshrrev_b32 v{d}, 16, v{r0}")
                E(f"v_and_b32 v{d+1}, s43, v{r1}")
            else:
                E(f"v_and_b32 v{d}, s78, v{r0}")
                E(f"v_lshlrev_b32 v{d+1}, 16, v{r1}")
    waitf(7, 4, 8, 72)
    TSTAMP(3)
    L("K_tloop")
    for t in range(4):
        E(f"ds_read_b128 {R4(12+4*t)}, v70 offset:{384 - 128*t}")
    E("v_add_u32 v70, 4096, v70")
    E("s_waitcnt lgkmcnt(0)")
    for t in range(4):
        for i in range(4):
            kr = 12 + 4 * t + i
            d = 160 + (t * 4 + i) * 2
            E(f"v_dot2_f32_bf16 v{208+2*i}, v{kr}, v{d}, 0")
            E(f"v_dot2_f32_bf16 v{209+2*i}, v{kr}, v{d+1}, 0")
        E("s_nop 0")
        for i in range(4):
            E(f"v_cvt_pk_bf16_f32 v{192+4*t+i}, v{208+2*i}, v{209+2*i}")
    cur = 192 + 12
    for t in (2, 1, 0):
        for i in range(4):
            E(f"v_lshlrev_b32 v{208+2*i}, 16, v{cur+i}")
            E(f"v_and_b32 v{209+2*i}, s43, v{cur+i}")
        for i in range(4):
            E(f"v_dot2_f32_bf16 v{208+2*i}, v{192+4*t+i}, s76, v{208+2*i}")
            E(f"v_dot2_f32_bf16 v{209+2*i}, v{192+4*t+i}, s77, v{209+2*i}")
        E("s_nop 0")
        for i in range(4):
            E(f"v_cvt_pk_bf16_f32 v{cur+i}, v{208+2*i}, v{209+2*i}")
    for i in range(4):
        E(f"v_and_b32 v{216+2*i}, s78, v{96+i}")
        E(f"v_and_b32 v{217+2*i}, s43, v{96+i}")
    for i in range(4):
        E(f"v_dot2_f32_bf16 v{208+2*i}, v{cur+i}, v{216+2*i}, 0")
        E(f"v_dot2_f32_bf16 v{209+2*i}, v{cur+i}, v{217+2*i}, 0")
    E("s_nop 0")
    for i in range(4):
        E(f"v_cvt_pk_bf16_f32 v{36+i}, v{208+2*i}, v{209+2*i}")
    if DRY:
        E("s_cmp_lg_u32 s5, 0")
        E("s_cbranch_scc1 K_gmask")
    E("ds_write_b128 v64, v[36:39] offset:1152")
    E("s_cmp_eq_u32 s62, 0")
    E("s_cbranch_scc0 K_tw1")
    E("s_waitcnt vmcnt(5)")
    L("K_tw1")
    E("ds_write_b128 v64, v[32:35]")
    E("s_waitcnt lgkmcnt(0)")
    E("ds_read_b64_tr_b16 v[76:77], v65")
    E("ds_read_b64_tr_b16 v[78:79], v65 offset:576")
    E("ds_read_b64_tr_b16 v[80:81], v65 offset:64")
    E("ds_read_b64_tr_b16 v[82:83], v65 offset:640")
    E("s_waitcnt lgkmcnt(2)")
    E(f"buffer_store_dwordx4 v[76:79], v69, s[{SRD_WS}:{SRD_WS+3}], s70 offen {ZSC}")
    E("s_waitcnt lgkmcnt(0)")
    E(f"buffer_store_dwordx4 v[80:83], v69, s[{SRD_WS}:{SRD_WS+3}], s71 offen {ZSC}")
    E("s_cmp_eq_u32 s62, 1")
    E("s_cbranch_scc1 K_tdone")
    E("s_mov_b32 s62, 1")
    E("s_add_u32 s70, s70, 64")
    E("s_add_u32 s71, s71, 64")
    TSTAMP(4)
    E("s_waitcnt vmcnt(5)")
    TSTAMP(5)
    for i in range(4):
        E(f"v_mov_b32 v{96+i}, v{144+i}")
        E(f"v_mov_b32 v{32+i}, v{148+i}")
    E("s_branch K_tloop")
    L("K_tdone")
    STAMP(2)
    E("s_waitcnt vmcnt(0)")
    post(0)
    L("K_nwait")
    E(f"ds_read_b64 v[92:93], v30 offset:272")
    E("s_waitcnt lgkmcnt(0)")
    E("v_readfirstlane_b32 s56, v92")
    E("v_readfirstlane_b32 s57, v93")
    E("s_cmp_lg_u32 s56, 0")
    E("s_cbranch_scc1 K_nok")
    E("s_sleep 1")
    E("s_branch K_nwait")
    L("K_nok")
    E("s_cmp_lg_u32 s3, 4")
    E("s_cbranch_scc1 K_nopub")
    waitf(0, 4, 8, 144)
    E("s_mov_b64 exec, 1")
    E(f"buffer_store_dwordx2 v[92:93], v227, s[{SRD_WS}:{SRD_WS+3}], s9 offen sc1")
    E("s_mov_b64 exec, -1")
    STAMP(9)
    L("K_nopub")
    E("s_mov_b32 s62, 0")
    L("K_gmask")
    for i in range(4):
        E(f"v_and_b32 v{216+2*i}, s78, v{60+i}")
        E(f"v_and_b32 v{217+2*i}, s43, v{60+i}")
    L("K_gloop")
    for i in range(4):
        E(f"v_dot2_f32_bf16 v{208+2*i}, v{56+i}, v{216+2*i}, 0")
        E(f"v_dot2_f32_bf16 v{209+2*i}, v{56+i}, v{217+2*i}, 0")
    E("s_nop 0")
    for i in range(4):
        E(f"v_cvt_pk_bf16_f32 v{192+i}, v{208+2*i}, v{209+2*i}")
    for i in range(4):
        E(f"v_dot2_f32_bf16 v{208+i}, v{192+i}, s79, 0")
    E("s_nop 2")
    E("v_add_f32 v208, v208, v209")
    E("v_add_f32 v210, v210, v211")
    E("v_add_f32 v74, v208, v210")
    for dpp in ["row_shr:1", "row_shr:2", "row_shr:4", "row_shr:8"]:
        E("s_nop 1")
        E(f"v_add_f32_dpp v74, v74, v74 {dpp} row_mask:0xf bank_mask:0xf bound_ctrl:0")
    E("s_nop 1")
    E("v_add_f32_dpp v74, v74, v74 row_bcast:15 row_mask:0xa bank_mask:0xf")
    E("s_nop 1")
    E("v_add_f32_dpp v74, v74, v74 row_bcast:31 row_mask:0xc bank_mask:0xf")
    E("s_nop 1")
    E("v_cvt_pk_bf16_f32 v74, v74, v74")
    E("v_lshlrev_b32 v74, 16, v74")
    E("v_mul_f32 v74, 0xbfb8aa3b, v74")
    E("v_exp_f32 v74, v74")
    E("s_nop 0")
    E("v_add_f32 v74, 1.0, v74")
    E("v_rcp_f32 v74, v74")
    E("s_nop 0")
    E("v_cvt_pk_bf16_f32 v74, v74, v74")
    E("s_lshl_b32 s72, s67, 1")
    E("s_add_u32 s72, s72, s62")
    E("s_lshl_b32 s72, s72, 1")
    E(f"s_add_u32 s72, s72, {SYN + 256}")
    E("v_mov_b32 v75, s72")
    if DRY:
        E("s_cmp_lg_u32 s5, 0")
        E("s_cbranch_scc1 K_breal")
    E("v_cmp_eq_u32 vcc, 63, v1")
    E("s_and_saveexec_b64 s[74:75], vcc")
    E("ds_write_b16 v75, v74")
    E("s_mov_b64 exec, s[74:75]")
    E("s_cmp_eq_u32 s62, 1")
    E("s_cbranch_scc1 K_bwave")
    E("s_mov_b32 s62, 1")
    for i in range(4):
        E(f"v_mov_b32 v{56+i}, v{152+i}")
    E("s_branch K_gloop")
    L("K_kgen")
    E(f"s_setprio {APRIO}")
    STAMP(2)
    E("v_and_b32 v20, 15, v1")
    E("v_lshrrev_b32 v21, 4, v1")
    E("s_mov_b32 s74, 0x00040000")
    E("s_mov_b32 s75, 0x02000100")
    E("s_mov_b32 s76, 0x00010001")
    E("s_mov_b32 s77, 0x00040002")
    E("s_mov_b32 s78, 0x00020002")
    E("s_mov_b32 s79, 0x01000004")
    E("v_lshrrev_b32 v22, 2, v20")
    E("v_lshlrev_b32 v22, 4, v22")
    E("v_lshrrev_b64 v[32:33], v22, s[74:75]")
    E("v_and_b32 v32, 0xffff, v32")
    E("v_lshrrev_b64 v[34:35], v22, s[76:77]")
    E("v_and_b32 v34, 0xffff, v34")
    E("v_and_b32 v23, 1, v20")
    E("v_mad_u32_u24 v32, v23, v34, v32")
    E("v_lshrrev_b64 v[34:35], v22, s[78:79]")
    E("v_and_b32 v34, 0xffff, v34")
    E("v_bfe_u32 v23, v20, 1, 1")
    E("v_mad_u32_u24 v32, v23, v34, v32")
    E("v_cvt_f32_u32 v24, v32")
    E("v_lshrrev_b32 v33, 7, v32")
    E("v_and_b32 v32, 127, v32")
    E("v_cvt_f32_u32 v16, v33")
    E("v_cvt_f32_u32 v17, v32")
    E("v_add_u32 v32, 8, v20")
    E("v_cvt_f32_u32 v18, v32")
    E("v_mul_f32 v26, 0x43000000, v18")
    E("v_lshlrev_b32 v22, 3, v20")
    E("v_cvt_f32_u32 v27, v22")
    if DRY > 1:
        E("s_mov_b32 s5, 1")
        E("s_mov_b64 exec, 0")
        E("s_branch K_dA")
        L("K_areal")
        E("s_mov_b32 s5, 0")
        E("s_mov_b64 exec, -1")
    E("s_waitcnt lgkmcnt(0)")
    E("s_lshl_b32 s70, s22, 16")
    E("s_and_b32 s22, s22, s43")
    E("s_cmp_eq_u32 s69, 0")
    E("s_cselect_b32 s22, s70, s22")
    E("v_mov_b32 v40, 0x3fb8aa3b")
    E("v_mul_f32 v41, s22, v40")
    E("v_exp_f32 v41, v41")
    E("s_nop 0")
    E("v_cvt_pk_bf16_f32 v41, v41, v41")
    E("v_lshlrev_b32 v41, 16, v41")
    E(f"s_waitcnt vmcnt({2 if TOUCH else 0})")
    L("K_dA")
    for i in range(6):
        E(f"v_lshlrev_b32 v{84+i}, 16, v{84+i}")
    E("v_mul_f32 v84, v41, v84")
    E("v_mul_f32 v85, v41, v85")
    E("v_mul_f32 v86, v41, v86")
    E("v_mul_f32 v87, v41, v87")
    E("v_mul_f32 v44, v40, v84")
    E("v_mul_f32 v45, 0.15915494, v85")
    E("v_rndne_f32 v46, v45")
    E("v_sub_f32 v45, v45, v46")
    E("v_mul_f32 v46, 0x43000000, v45")
    E("v_rndne_f32 v47, v46")
    E("v_sub_f32 v46, v46, v47")
    E("v_mul_f32 v84, 0x43000000, v44")
    E("v_exp_f32 v84, v84")
    E("v_cos_f32 v47, v46")
    E("v_sin_f32 v85, v46")
    E("v_mul_f32 v80, v88, v86")
    E("v_fma_f32 v80, -v89, v87, v80")
    E("v_mul_f32 v81, v88, v87")
    E("v_fma_f32 v81, v89, v86, v81")
    E("v_mul_f32 v47, v84, v47")
    E("v_mul_f32 v82, v84, v85")
    E("s_lshl_b32 s70, s3, 11")
    E(f"s_add_u32 s70, s70, {S_P}")
    E("v_lshl_add_u32 v42, v1, 5, s70")
    E("ds_write_b128 v42, v[44:47]")
    E("ds_write_b128 v42, v[80:83] offset:16")
    E("v_lshl_add_u32 v43, v21, 6, s70")
    for r in range(48, 60):
        E(f"v_mov_b32 v{r}, 0")
    E("s_waitcnt lgkmcnt(0)")
    for k in range(4):
        E(f"ds_read_b128 {R4(60+4*k)}, v43 offset:{16*k}")
    E("s_mov_b32 s62, 0")
    E(f"s_mov_b32 s63, {NA}")
    if DRY > 1:
        E("s_cmp_lg_u32 s5, 0")
        E("s_cselect_b32 s63, 1, s63")
    L("K_loop")
    E("s_waitcnt lgkmcnt(0)")
    TT = [[96, 100, 104, 108], [136, 140, 144, 148]]
    for nn in range(2):
        zr, zi, w128 = 60 + 8 * nn, 61 + 8 * nn, 62 + 8 * nn
        T = TT[nn]
        E(f"v_mul_f32 v{T[3]}, v{zr}, v27")
        E(f"v_mul_f32 v{T[3]+1}, v{zi}, v27")
        E(f"v_mul_f32 v{T[0]}, v{zr}, v24")
        E(f"v_mul_f32 v{T[0]+1}, v{zi}, v17")
        E(f"v_mul_f32 v{T[2]}, v{zr}, v26")
        E(f"v_mul_f32 v{T[2]+1}, v{w128}, v18")
        E(f"v_fma_f32 v{T[0]+1}, v{w128}, v16, v{T[0]+1}")
        for k in range(4):
            E(f"v_mov_b32 v{76+4*nn+k}, v{63+8*nn+k}")
    E("v_add_u32 v43, 256, v43")
    for k in range(4):
        E(f"ds_read_b128 {R4(60+4*k)}, v43 offset:{16*k}")
    for nn in range(2):
        er, cbr, cbi, ei = 76 + 4 * nn, 77 + 4 * nn, 78 + 4 * nn, 79 + 4 * nn
        T = TT[nn]
        for t in [T[3], T[0], T[2]]:
            E(f"v_exp_f32 v{t}, v{t}")
            E(f"v_cos_f32 v{t+2}, v{t+1}")
            E(f"v_sin_f32 v{t+3}, v{t+1}")
        t = T[3]
        E(f"v_mul_f32 v{t+2}, v{t}, v{t+2}")
        E(f"v_mul_f32 v{t+3}, v{t}, v{t+3}")
        E(f"v_mul_f32 v{t}, v{cbr}, v{t+2}")
        E(f"v_mul_f32 v{t+1}, v{cbr}, v{t+3}")
        E(f"v_fma_f32 v{t}, -v{cbi}, v{t+3}, v{t}")
        E(f"v_fma_f32 v{t+3}, -v{cbi}, v{t+2}, -v{t+1}")
        E(f"v_mov_b32 v{t+2}, v{t}")
        for t in [T[0], T[2]]:
            E(f"v_mul_f32 v{t+2}, v{t}, v{t+2}")
            E(f"v_mul_f32 v{t+3}, v{t}, v{t+3}")
        p, q = T[0], T[1]
        E(f"v_mul_f32 v{q+2}, v{p+2}, v{er}")
        E(f"v_mul_f32 v{q+3}, v{p+2}, v{ei}")
        E(f"v_fma_f32 v{q+2}, -v{p+3}, v{ei}, v{q+2}")
        E(f"v_fma_f32 v{q+3}, v{p+3}, v{er}, v{q+3}")
        for k in range(4):
            t = T[k]
            hi = (112 + 2 * k + nn) if k < 3 else (124 + nn)
            lo = (118 + 2 * k + nn) if k < 3 else (126 + nn)
            E(f"v_cvt_pk_bf16_f32 v{hi}, v{t+2}, v{t+3}")
            E(f"v_lshlrev_b32 v{t}, 16, v{hi}")
            E(f"v_and_b32 v{t+1}, s43, v{hi}")
            E(f"v_sub_f32 v{t}, v{t+2}, v{t}")
            E(f"v_sub_f32 v{t+1}, v{t+3}, v{t+1}")
            E(f"v_cvt_pk_bf16_f32 v{lo}, v{t}, v{t+1}")
    E("s_add_u32 s62, s62, 1")
    E(f"s_cmp_eq_u32 s62, {LATE}")
    for k in range(3):
        a_ = 48 + 4 * k
        E(f"v_mfma_f32_16x16x16_bf16 {R4(a_)}, v[{112+2*k}:{113+2*k}], v[124:125], {R4(a_)}")
        E(f"v_mfma_f32_16x16x16_bf16 {R4(a_)}, v[{112+2*k}:{113+2*k}], v[126:127], {R4(a_)}")
        E(f"v_mfma_f32_16x16x16_bf16 {R4(a_)}, v[{118+2*k}:{119+2*k}], v[124:125], {R4(a_)}")
    E("s_cbranch_scc0 K_nost")
    E("s_lshl_b32 s70, s64, 13")
    E("s_lshl_b32 s71, s3, 11")
    E("s_add_u32 s70, s70, s71")
    E(f"s_mul_i32 s71, s69, {XROW}")
    E("s_lshl_b32 s72, s61, 11")
    E("s_add_u32 s71, s71, s72")
    E(f"s_add_u32 s71, s71, {XBASE + 4*XROW + 32}")
    E("s_mov_b32 m0, s71")
    E("s_nop 0")
    E(f"buffer_load_dwordx4 v9, s[{SRD_A}:{SRD_A+3}], s70 offen lds")
    E(f"buffer_load_dwordx4 v9, s[{SRD_A}:{SRD_A+3}], s70 offen offset:1024 lds")
    L("K_nost")
    E("s_cmp_lg_u32 s3, 0")
    E("s_cbranch_scc1 K_non")
    E("s_cmp_eq_u32 s62, 1")
    E("s_cbranch_scc0 K_non1")
    E(f"buffer_load_dwordx2 v[92:93], v95, s[{SRD_DBGB}:{SRD_DBGB+3}], 0 offen sc1")
    L("K_non1")
    E("s_cmp_eq_u32 s62, 2")
    E("s_cbranch_scc0 K_non")
    E("s_mov_b32 s70, 0")
    L("K_npoll")
    E("s_waitcnt vmcnt(0)")
    E("v_readfirstlane_b32 s71, v92")
    E("s_add_u32 s70, s70, 1")
    E("s_cmp_lg_u32 s71, 0")
    E("s_cbranch_scc1 K_ngot")
    E("s_sleep 4")
    E(f"buffer_load_dwordx2 v[92:93], v95, s[{SRD_DBGB}:{SRD_DBGB+3}], 0 offen sc1")
    E("s_cmp_lt_u32 s70, 0x40000")
    E("s_cbranch_scc1 K_npoll")
    E("s_waitcnt vmcnt(0)")
    E("v_mov_b32 v92, 1")
    L("K_ngot")
    E("ds_write_b64 v30, v[92:93] offset:272")
    L("K_non")
    E(f"s_cmp_eq_u32 s62, {LATE+3}")
    E("s_cbranch_scc0 K_nost2")
    E("s_waitcnt vmcnt(0)")
    post(0)
    L("K_nost2")
    E("s_cmp_lt_u32 s62, s63")
    E("s_cbranch_scc1 K_loop")
    E("s_waitcnt lgkmcnt(0)")
    STAMP(3)
    E("s_mul_i32 s70, s3, 3072")
    E(f"s_add_u32 s70, s70, {S_TR}")
    E("v_lshl_add_u32 v39, v1, 4, s70")
    E("v_and_b32 v4, 15, v1")
    E("v_lshrrev_b32 v5, 4, v1")
    E("v_lshlrev_b32 v6, 2, v4")
    E("v_add_u32 v6, v6, v5")
    E("s_nop 1")
    for k in range(3):
        E(f"ds_write_b128 v39, {R4(48+4*k)} offset:{1024*k}")
    post(1)
    E("s_mul_i32 s70, s69, 12288")
    E(f"s_add_u32 s70, s70, {S_KT}")
    E("v_lshlrev_b32 v32, 5, v20")
    E("v_add_u32 v32, s70, v32")
    E("v_lshl_add_u32 v44, v21, 11, v32")
    E("v_add_u32 v44, 4096, v44")
    E("v_add_u32 v45, 512, v44")
    E("v_add_u32 v46, 1024, v44")
    E("v_add_u32 v47, 1536, v44")
    E("v_lshlrev_b32 v22, 4, v21")
    E("v_lshrrev_b64 v[60:61], v22, s[74:75]")
    E("v_and_b32 v60, 0xffff, v60")
    E("v_lshl_add_u32 v35, v60, 2, v32")
    E("s_lshl_b32 s71, s61, 9")
    E("v_add_u32 v35, s71, v35")
    E("v_lshrrev_b64 v[60:61], v22, s[76:77]")
    E("v_and_b32 v60, 0xffff, v60")
    E("v_lshl_add_u32 v36, v60, 2, v35")
    E("v_lshrrev_b64 v[62:63], v22, s[78:79]")
    E("v_and_b32 v62, 0xffff, v62")
    E("v_lshl_add_u32 v37, v62, 2, v35")
    E("v_lshl_add_u32 v38, v62, 2, v36")
    E("s_mul_i32 s70, s69, 6144")
    E(f"s_add_u32 s70, s70, {S_TR}")
    E("v_lshl_add_u32 v39, v1, 4, s70")
    E("s_lshl_b32 s71, s61, 10")
    E("v_add_u32 v40, s71, v39")
    E("s_lshl_b32 s71, s61, 9")
    E("v_lshl_add_u32 v60, v1, 3, s71")
    E("s_mul_i32 s70, s69, 12288")
    E(f"s_add_u32 s70, s70, {S_KT}")
    for rr in range(2):
        for e in range(0, 8, 2):
            E(f"v_add_u32 v62, {e + 1024*rr}, v60")
            E(f"v_add_u32 v63, {e + 1 + 1024*rr}, v60")
            E("v_cvt_f32_u32 v62, v62")
            E("v_cvt_f32_u32 v63, v63")
            E("v_cvt_pk_bf16_f32 v62, v62, v63")
            E("v_and_b32 v63, s43, v62")
            E("v_lshlrev_b32 v62, 16, v62")
            E("v_cvt_u32_f32 v62, v62")
            E("v_cvt_u32_f32 v63, v63")
            E(f"v_lshl_add_u32 v{64+8*rr+e}, v62, 2, s70")
            E(f"v_lshl_add_u32 v{65+8*rr+e}, v63, 2, s70")
    E(f"s_mul_i32 s70, s69, {XROW}")
    E(f"s_add_u32 s70, s70, {XBASE + 32}")
    E("v_lshl_add_u32 v61, v60, 1, s70")
    RSTAMP(1)
    waitf(1, 0, 4, 96)
    RSTAMP(2)
    srcoff = [0, 3072]
    for k in range(2):
        E(f"ds_read_b128 {R4(96+4*k)}, v40 offset:{srcoff[k]}")
    for k in range(2):
        E(f"ds_read_b128 {R4(112+4*k)}, v39 offset:{srcoff[k] + 2048}")
    for (b, dst, w) in [(96, 35, 2), (112, 44, 0)]:
        E(f"s_waitcnt lgkmcnt({w})")
        for e in range(4):
            E(f"v_add_f32 v{b+e}, v{b+e}, v{b+4+e}")
    for (b, dst) in [(96, 35), (112, 44)]:
        for e in range(4):
            E(f"ds_write_b32 v{dst+e}, v{b+e}")
    post(2)
    RSTAMP(4)
    waitf(2, 0, 4, 96)
    RSTAMP(6)
    for e in range(16):
        E(f"ds_read_b32 v{96+e}, v{64+e}")
    for rr in range(2):
        for e in range(0, 8, 2):
            src = 96 + 8 * rr + e
            E(f"s_waitcnt lgkmcnt({14 - 8*rr - e})")
            E(f"v_cvt_pk_bf16_f32 v{112+8*rr+e//2}, v{src}, v{src+1}")
            E(f"v_lshlrev_b32 v62, 16, v{112+8*rr+e//2}")
            E(f"v_and_b32 v63, s43, v{112+8*rr+e//2}")
            E(f"v_sub_f32 v62, v{src}, v62")
            E(f"v_sub_f32 v63, v{src+1}, v63")
            E(f"v_cvt_pk_bf16_f32 v{116+8*rr+e//2}, v62, v63")
    for rr in range(2):
        E(f"ds_write_b128 v61, {R4(112+8*rr)} offset:{2048*rr}")
        E(f"ds_write_b128 v61, {R4(116+8*rr)} offset:{2*XROW + 2048*rr}")
    post(3)
    RSTAMP(7)
    STAMP(4)
    E("s_branch K_csetup")
    L("K_bwave")
    post(1)
    STAMP(3)
    E("s_cmp_lg_u32 s3, 5")
    E("s_cbranch_scc1 K_norec")
    waitf(1, 4, 8, 144)
    E(f"ds_read_b64 v[144:145], v225 offset:{SYN + 256}")
    E("v_mov_b32 v146, s56")
    E("v_mov_b32 v147, s57")
    E("s_waitcnt lgkmcnt(0)")
    E("s_mov_b64 exec, 3")
    E(f"buffer_store_dwordx4 v[144:147], v227, s[{SRD_WS}:{SRD_WS+3}], s8 offen sc1")
    E("s_mov_b64 exec, -1")
    L("K_norec")
    if not ALLPOLL:
        E("s_cmp_lg_u32 s3, 4")
        E("s_cbranch_scc1 K_pwait")
    E("s_mov_b32 s70, 0")
    L("K_poll")
    E(f"buffer_load_dwordx2 v[112:113], v226, s[{SRD_WS}:{SRD_WS+3}], s7 offen sc1")
    E("s_waitcnt vmcnt(0)")
    E("v_xor_b32 v112, s56, v112")
    E("v_xor_b32 v113, s57, v113")
    E("v_or_b32 v112, v112, v113")
    E("v_cmp_ne_u32 vcc, 0, v112")
    E("s_add_u32 s70, s70, 1")
    E("s_cmp_eq_u64 vcc, 0")
    E("s_cbranch_scc1 K_pok")
    E(f"s_sleep {PSLEEP}")
    E("s_cmp_lt_u32 s70, 0x40000")
    E("s_cbranch_scc1 K_poll")
    L("K_pok")
    post(5)
    E("s_branch K_pdone")
    L("K_pwait")
    E(f"ds_read_b32 v93, v30 offset:{32*5 + 16}")
    E("s_waitcnt lgkmcnt(0)")
    E("v_readfirstlane_b32 s70, v93")
    E("s_cmp_eq_u32 s70, 1")
    E("s_cbranch_scc1 K_pdone")
    E("s_sleep 1")
    E("s_branch K_pwait")
    L("K_pdone")
    STAMP(4)
    for p in range(4):
        E(f"buffer_load_dwordx4 {R4(96+4*p)}, v9, s[{SRD_WS}:{SRD_WS+3}], s6 offen offset:{1024*p} sc1")
    for k in range(5):
        E(f"v_mov_b32 v{16+k}, v{228+k}")
    for p in range(4):
        E(f"s_waitcnt vmcnt({3-p})")
        E(f"ds_write_b128 v224, {R4(96+4*p)} offset:{64*p}")
    post(4)
    E(f"s_setprio {CBPRIO}")
    E("s_branch K_convB")
    L("K_csetup")
    vB, vA, vPM, vPC, vF = 16, 17, 18, 19, 20
    E("s_lshl_b32 s70, s3, 1")
    E(f"s_mul_i32 s70, s70, {ZROW}")
    E(f"s_add_u32 s70, s70, {ZBASE + 8}")
    E(f"v_lshlrev_b32 v{vB}, 3, v4")
    E(f"v_lshl_add_u32 v{vB}, v5, 4, v{vB}")
    E(f"v_add_u32 v{vB}, s70, v{vB}")
    E("v_and_b32 v22, 3, v1")
    E("v_bfe_u32 v23, v1, 2, 2")
    E("v_sub_u32 v22, v22, v23")
    E("v_lshlrev_b32 v22, 3, v22")
    E("v_lshlrev_b32 v23, 6, v5")
    E("v_sub_u32 v22, v22, v23")
    E("s_lshl_b32 s70, s68, 2")
    E("s_add_u32 s70, s70, s69")
    E(f"s_mul_i32 s70, s70, {XROW}")
    E(f"s_add_u32 s70, s70, {XBASE + 224}")
    E(f"v_add_u32 v{vA}, s70, v22")
    E("s_cmp_eq_u32 s68, 0")
    E(f"s_mov_b32 s71, {PB}")
    E(f"s_cselect_b32 s71, {PA}, s71")
    E(f"s_mul_i32 s70, s67, {PMS}")
    E("s_add_u32 s70, s70, s71")
    E("s_add_u32 s72, s70, 16")
    E(f"v_lshl_add_u32 v{vPM}, v1, 4, s72")
    E(f"s_mul_i32 s72, s67, {PCS}")
    E("s_add_u32 s72, s72, s71")
    E(f"s_add_u32 s72, s72, {4*PMS}")
    E("s_add_u32 s73, s72, 16")
    E(f"v_lshl_add_u32 v{vPC}, v1, 2, s73")
    E("s_lshl_b32 s73, s3, 2")
    E(f"s_add_u32 s73, s73, {FLG}")
    E(f"v_mov_b32 v{vF}, s73")
    E("v_mov_b32 v22, s70")
    E("v_mov_b32 v23, s72")
    if DRY > 1:
        E("s_cmp_lg_u32 s5, 0")
        E("s_cbranch_scc1 K_areal")
    RSTAMP(8)
    waitf(3, 0, 4, 24)
    RSTAMP(9)
    E("v_mov_b32 v24, 0")
    E("v_mov_b32 v25, 0")
    E("v_mov_b32 v26, 0")
    E("v_mov_b32 v27, 0")
    E("ds_write_b128 v22, v[24:27]")
    E("ds_write_b128 v23, v[24:27]")
    waitf(4, 4, 8, 24)
    E("s_setprio 0")
    STAMP(5)

    def Bf(pp, jj):
        return 64 + 64 * pp + 4 * jj
    def acc(pp, q):
        return 192 + 32 * pp + 4 * q
    def conv(nx):
        ring = 8 // nx
        def Af(n, x):
            return 32 + 4 * ((n % ring) * nx + x)
        queue = []
        def rdA(n):
            for x in range(nx):
                a = Af(n, x)
                off = 256 * n + x * 2 * XROW
                E(f"ds_read_b64_tr_b16 v[{a}:{a+1}], v{vA} offset:{off+32}")
                E(f"ds_read_b64_tr_b16 v[{a+2}:{a+3}], v{vA} offset:{off}")
                queue.extend([("A", n), ("A", n)])
        def rdB(pp, jj):
            b = Bf(pp, jj)
            E(f"ds_read_b64 v[{b}:{b+1}], v{vB} offset:{pp*ZROW + 64*jj}")
            E(f"ds_read_b64 v[{b+2}:{b+3}], v{vB} offset:{pp*ZROW + 64*jj + 8}")
            queue.extend([("B", pp, jj), ("B", pp, jj)])
        def need(keys):
            last = -1
            for idx, k in enumerate(queue):
                if k in keys:
                    last = idx
            if last >= 0:
                n_after = len(queue) - 1 - last
                assert n_after <= 15
                E(f"s_waitcnt lgkmcnt({n_after})")
                del queue[:last + 1]
        def mf(pp, q, n, x, first=False):
            jj = 2 * q - n + 1
            c = "0" if first else R4(acc(pp, q))
            E(f"v_mfma_f32_16x16x32_bf16 {R4(acc(pp,q))}, {R4(Af(n,x))}, {R4(Bf(pp,jj))}, {c}")
        def writeout(q):
            a0, a1 = acc(0, q), acc(1, q)
            E(f"v_add_f32 v{a0+1}, v{a0+1}, v{a1}")
            E(f"v_add_f32 v{a0+2}, v{a0+2}, v{a1+1}")
            E(f"v_add_f32 v{a0+3}, v{a0+3}, v{a1+2}")
            E(f"ds_write_b32 v{vPC}, v{a1+3} offset:{256*q}")
            E(f"ds_write_b128 v{vPM}, {R4(a0)} offset:{1024*q}")
            E(f"ds_write_b32 v{vF}, v29 offset:{32*q}")
            queue.extend([("W",), ("W",), ("W",)])
        rdA(1)
        rdB(0, 0)
        rdA(0)
        rdB(0, 1)
        rdB(1, 0)
        for q in range(8):
            for pp in range(2):
                if pp == 0:
                    nxt = [(1, 2 * q + 1)] + ([(0, 2 * q + 2)] if q < 7 else [])
                else:
                    nxt = [(0, 2 * q + 3), (1, 2 * q + 2)] if q < 7 else []
                need({("A", 1), ("B", pp, 2 * q)})
                for x in range(nx):
                    mf(pp, q, 1, x, first=(x == 0))
                if nxt:
                    rdB(*nxt[0])
                elif pp == 1:
                    rdA(2)
                need({("A", 0), ("B", pp, 2 * q + 1)})
                for x in range(nx):
                    mf(pp, q, 0, x)
                if len(nxt) > 1:
                    rdB(*nxt[1])
                elif pp == 1:
                    rdA(3)
        if nx == 1:
            sched = {2: [4], 3: [5], 4: [6], 5: [7], 6: [8], 7: [9], 8: [10, 11], 9: [12, 13], 10: [14, 15]}
        else:
            sched = {n: [n + 2] for n in range(2, 14)}
        for n in range(2, 16):
            need({("A", n)})
            q0 = n >> 1
            k = 0
            for q in range(q0, 8):
                for pp in range(2):
                    for x in range(nx):
                        mf(pp, q, n, x)
                    k += 1
                    if k == 1:
                        for m in sched.get(n, []):
                            rdA(m)
                if n % 2 == 0 and q == min(q0 + 1, 7):
                    if n == 14:
                        E("s_nop 3")
                    writeout(q0 - 1)
        E("s_nop 7")
        writeout(7)
    conv(2)
    STAMP(6)
    E("s_mov_b32 s73, 7")
    E("s_branch K_fin")
    L("K_convB")
    waitf(0, 0, 4, 24)
    waitf(4, 4, 8, 24)
    E(f"buffer_load_dwordx4 v[12:15], v9, s[{SRD_WS}:{SRD_WS+3}], s60 offen sc1")
    E(f"buffer_load_dwordx4 v[24:27], v9, s[{SRD_WS}:{SRD_WS+3}], s60 offen offset:1024 sc1")
    STAMP(5)
    conv(1)
    STAMP(6)
    E("s_mov_b32 s70, 0")
    L("K_gpoll")
    E("s_waitcnt vmcnt(0)")
    E("v_xor_b32 v14, s56, v14")
    E("v_xor_b32 v15, s57, v15")
    E("v_xor_b32 v26, s56, v26")
    E("v_xor_b32 v27, s57, v27")
    E("v_or_b32 v14, v14, v15")
    E("v_or_b32 v26, v26, v27")
    E("v_or_b32 v14, v14, v26")
    E("v_cmp_ne_u32 vcc, 0, v14")
    E("s_add_u32 s70, s70, 1")
    E("s_cmp_eq_u64 vcc, 0")
    E("s_cbranch_scc1 K_gok")
    E("s_cmp_ge_u32 s70, 0x40000")
    E("s_cbranch_scc1 K_gok")
    E("s_sleep 8")
    E(f"buffer_load_dwordx4 v[12:15], v9, s[{SRD_WS}:{SRD_WS+3}], s60 offen sc1")
    E(f"buffer_load_dwordx4 v[24:27], v9, s[{SRD_WS}:{SRD_WS+3}], s60 offen offset:1024 sc1")
    E("s_branch K_gpoll")
    L("K_gok")
    for (src, dst) in [(12, 32), (24, 36)]:
        for hh in range(2):
            E(f"v_lshlrev_b32 v{dst+2*hh}, 16, v{src+hh}")
            E(f"v_and_b32 v{dst+2*hh+1}, s43, v{src+hh}")
        for e in range(4):
            E(f"v_sub_f32 v40, 1.0, v{dst+e}")
            E(f"v_cvt_pk_bf16_f32 v{dst+e}, v{dst+e}, v40")
    E("ds_write_b128 v10, v[32:35]")
    E("ds_write_b128 v10, v[36:39] offset:1024")
    post(6)
    E("s_mov_b32 s73, 0")
    if FINPRIO:
        E(f"s_setprio {FINPRIO}")
    L("K_fin")
    E("v_subrev_u32 v16, 16, v1")
    E("v_add_u32 v17, 47, v1")
    E("v_cmp_eq_u32 vcc, 0, v1")
    E("s_nop 1")
    E("v_cndmask_b32 v17, v17, -1, vcc")
    E("v_cmp_gt_u32 vcc, 16, v1")
    E("s_lshl_b32 s74, s73, 6")
    E("s_nop 0")
    E("v_cndmask_b32 v16, v16, v17, vcc")
    E("v_add_u32 v16, s74, v16")
    E("v_add_u32 v22, s74, v1")
    E("v_add_u32 v6, s74, v6")
    E("s_lshl_b32 s70, s67, 2")
    E(f"s_add_u32 s70, s70, {PB + 16}")
    E("v_lshl_add_u32 v18, v22, 4, s70")
    E("s_add_u32 s70, s67, 2")
    E("s_and_b32 s70, s70, 3")
    E("s_lshl_b32 s70, s70, 2")
    E(f"s_add_u32 s70, s70, {PB + 16 + PMS}")
    E("s_cmp_lt_u32 s67, 2")
    E("s_cselect_b64 vcc, -1, 0")
    E("v_cndmask_b32 v17, v22, v16, vcc")
    E("v_lshl_add_u32 v19, v17, 4, s70")
    E("s_lshr_b32 s70, s67, 1")
    E(f"s_mul_i32 s70, s70, {PCS}")
    E(f"s_add_u32 s70, s70, {PB + 4*PMS + 16}")
    E("v_lshl_add_u32 v20, v16, 2, s70")
    E("s_and_b32 s70, s67, 1")
    E("s_cmp_eq_u32 s70, 0")
    E("s_cselect_b64 vcc, -1, 0")
    E("s_cselect_b32 s75, 256, 0")
    E(f"v_mov_b32 v17, {PB + 4*PMS}")
    E("v_cndmask_b32 v20, v17, v20, vcc")
    E(f"s_mul_i32 s70, s67, {ZROW}")
    E("v_lshl_add_u32 v21, v6, 1, s70")
    E("s_lshl_b32 s70, s67, 10")
    E("v_lshl_add_u32 v22, v6, 12, s70")
    E("s_lshl_b32 s70, s67, 2")
    E(f"s_add_u32 s70, s70, {GB}")
    E("v_lshl_add_u32 v7, v6, 4, s70")
    E("s_lshl_b32 s70, s73, 5")
    E(f"s_add_u32 s70, s70, {FLG}")
    E("v_mov_b32 v23, s70")
    E("s_lshl_b32 s72, s64, 2")
    E("s_lshl_b32 s76, s23, 16")
    E("s_and_b32 s77, s23, s43")
    E("s_lshl_b32 s78, s42, 16")
    E("s_and_b32 s79, s42, s43")
    E("s_sub_u32 s74, 8, s68")
    waitf(6, 4, 8, 32)
    L("K_hloop")
    for r in range(48, 52):
        E(f"v_mov_b32 v{r}, 0")
    for k in range(4):
        E(f"ds_read_u16_d16_hi v{48+k}, v21 offset:{ZBASE + 4*k*ZROW + 128}")
    E("ds_read_b32 v8, v7")
    L("K_hpoll")
    E("ds_read_b128 v[32:35], v23")
    E("ds_read_b128 v[36:39], v23 offset:16")
    E("s_waitcnt lgkmcnt(0)")
    for k in range(0, 8, 2):
        E(f"v_and_b32 v{32+k}, v{32+k}, v{33+k}")
    E("v_and_b32 v32, v32, v34")
    E("v_and_b32 v36, v36, v38")
    E("v_and_b32 v32, v32, v36")
    E("s_nop 0")
    E("v_readfirstlane_b32 s70, v32")
    E("s_cmp_eq_u32 s70, 1")
    E("s_cbranch_scc1 K_go")
    E("s_sleep 3")
    E("s_branch K_hpoll")
    L("K_go")
    for k in range(4):
        X, c = k >> 1, k & 1
        base = PSTRIDE if X == 0 else 0
        E(f"ds_read_b32 v{32+k}, v18 offset:{base + 2*c*PMS}")
        E(f"ds_read_b32 v{36+k}, v19 offset:{base + 2*c*PMS}")
        E(f"ds_read_b32 v{40+k}, v20 offset:{base + 2*c*PCS}")
    def rnd(a, b):
        E(f"v_cvt_pk_bf16_f32 v{a}, v{a}, v{b}")
        E(f"v_and_b32 v{b}, s43, v{a}")
        E(f"v_lshlrev_b32 v{a}, 16, v{a}")
    yA0, yA1, yB0, yB1 = 32, 33, 34, 35
    u0, u1, k0, k1 = 48, 49, 50, 51
    t = 52
    E(f"v_mul_f32 v{t}, s76, v{u0}")
    E(f"v_mul_f32 v{t+1}, s77, v{u1}")
    E(f"v_mul_f32 v{t+2}, s78, v{k0}")
    E(f"v_mul_f32 v{t+3}, s79, v{k1}")
    rnd(t, t + 1)
    rnd(t + 2, t + 3)
    E(f"v_lshlrev_b32 v{t+4}, 16, v8")
    E(f"v_and_b32 v{t+5}, s43, v8")
    E("v_add_u32 v18, 1024, v18")
    E("v_add_u32 v19, 1024, v19")
    E("v_add_u32 v20, s75, v20")
    E("v_add_u32 v21, 128, v21")
    E("v_add_u32 v23, 32, v23")
    E("v_add_u32 v7, 1024, v7")
    for k in range(4):
        E(f"s_waitcnt lgkmcnt({9-3*k})")
        E(f"v_add_f32 v{32+k}, v{32+k}, v{36+k}")
        E(f"v_add_f32 v{32+k}, v{32+k}, v{40+k}")
    rnd(yA0, yA1)
    rnd(yB0, yB1)
    E(f"v_add_f32 v{yA0}, v{yA0}, v{t}")
    E(f"v_add_f32 v{yA1}, v{yA1}, v{t+1}")
    E(f"v_add_f32 v{yB0}, v{yB0}, v{t+2}")
    E(f"v_add_f32 v{yB1}, v{yB1}, v{t+3}")
    rnd(yA0, yA1)
    rnd(yB0, yB1)
    E(f"v_mul_f32 v{yB0}, v{u0}, v{yB0}")
    E(f"v_mul_f32 v{yB1}, v{u1}, v{yB1}")
    rnd(yB0, yB1)
    E(f"v_mul_f32 v{yA0}, v{t+4}, v{yA0}")
    E(f"v_mul_f32 v{yA1}, v{t+4}, v{yA1}")
    E(f"v_mul_f32 v{yB0}, v{t+5}, v{yB0}")
    E(f"v_mul_f32 v{yB1}, v{t+5}, v{yB1}")
    rnd(yA0, yA1)
    rnd(yB0, yB1)
    E(f"v_add_f32 v{yA0}, v{yA0}, v{yB0}")
    E(f"v_add_f32 v{yA1}, v{yA1}, v{yB1}")
    E(f"v_cvt_pk_bf16_f32 v{yA0}, v{yA0}, v{yA1}")
    E(f"buffer_store_dword v{yA0}, v22, s[{SRD_OUT}:{SRD_OUT+3}], s72 offen")
    E("v_add_u32 v22, 0x40000, v22")
    E("s_add_u32 s73, s73, 1")
    E("s_cmp_lt_u32 s73, s74")
    E("s_cbranch_scc1 K_hloop")
    STAMP(7)
    if DBG: E("s_waitcnt vmcnt(0)")
    STAMP(8)
    if "--pro" in sys.argv:
        E("s_waitcnt lgkmcnt(0)")
        for i in range(3, 8): E(f"s_mov_b32 s{80+2*i}, s{1+i}")
    DUMP(10, SRD_WS)
    L("K_end")
    E("s_endpgm")
    sg = 102 if DBG else 80
    return f""".amdhsa_kernel {name}
  .amdhsa_next_free_vgpr 256
  .amdhsa_next_free_sgpr {sg}
  .amdhsa_accum_offset 256
  .amdhsa_group_segment_fixed_size 0
  .amdhsa_kernarg_size 152
  .amdhsa_user_sgpr_count 2
  .amdhsa_user_sgpr_kernarg_segment_ptr 1
  .amdhsa_system_sgpr_workgroup_id_x 1
  .amdhsa_float_denorm_mode_32 3
.end_amdhsa_kernel"""

def main():
    hdr = HEADER.rstrip("\n")
    pre = [hdr,
           f"; @launch grid=(256,1,1) block=(512,1,1) lds={LDS_SIZE}",
           '.amdgcn_target "amdgcn-amd-amdhsa--gfx950"',
           ".text"]
    k = gen()
    txt = "\n".join(pre + out) + '\n.section .rodata,"a"\n.p2align 6\n' + k + "\n"
    args = [a for a in sys.argv[1:] if not a.startswith("--")]
    path = args[0] if args else "cdna_kernels/%s.s" % NAME
    open(path, "w").write(txt)

main()
```

```python
import sys

NAME = "gated_mix__ssm_conv_s4__ssm_conv_h3__prompt"
HEADER = open("cdna_kernels/%s.s.ref" % NAME).read().split("; Override launch")[0]
DBG = "--dbg" in sys.argv
def opt(name, default):
    for a in sys.argv:
        if a.startswith("--" + name + "="):
            return int(a.split("=")[1])
    return default
NA = 8
NB = 8 - NA
FINPRIO = opt("finprio", 2)
PSLEEP = opt("psleep", 8)
TOUCH = opt("touch", 0)
LATE = opt("late", 3)
DRY = opt("dry", 0)
KLDS = opt("klds", 1)
TSH = opt("tsh", 16)
ZSC = ["sc1", "sc0 sc1", "sc1 nt"][opt("zsc", 0)]
ALLPOLL = opt("allpoll", 0)
CBPRIO = opt("cbprio", 2)
APRIO = opt("aprio", 2)
POLLSC = ["sc1", "sc0 sc1", "sc1 nt"][opt("pollsc", 1)]

out = []
def E(s=""):
    out.append("    " + s)
def L(s):
    out.append(s + ":")

WS_Z = 0
WS_G = 4 << 20
WS_F = WS_G + 8192
WS_SIZE = (4 << 20) + 16384
WS_DBG = 16 << 20
if DBG:
    WS_SIZE = 32 << 20

ZROW = 1152
ZBASE = 0
XBASE = 16 * ZROW
XROW = 4128
GB = XBASE + 6 * XROW
FLG = GB + 8192
SYN = FLG + 256
PMS = 8192 + 16
PCS = 2048 + 16
PB = SYN + 288
PA = PB + 4 * PMS + 4 * PCS
PSTRIDE = PA - PB
S_KT = PA
S_P = S_KT + 24576
S_K = S_P + 8192
S_TR = S_K + 9216
LDS_SIZE = S_TR + 8 * 3072
assert LDS_SIZE <= 163840 and PA + PSTRIDE <= LDS_SIZE
def PMa(X, w4):
    return (PA if X == 0 else PB) + w4 * PMS
def PCa(X, w4):
    return (PA if X == 0 else PB) + 4 * PMS + w4 * PCS

TD = "--tiledbg" in sys.argv
RD = "--reddbg" in sys.argv
def RSTAMP(i):
    if DBG and RD:
        E(f"s_memtime s[{80+2*i}:{81+2*i}]")
def TSTAMP(i):
    if DBG and TD:
        E(f"s_memtime s[{80+2*i}:{81+2*i}]")
def STAMP(i):
    if TD and i in (3, 4, 5, 6, 7): return
    if RD and i in (1, 2, 4, 6, 7, 8, 9): return
    if DBG:
        E(f"s_memtime s[{80+2*i}:{81+2*i}]")
def DUMP(n, srdreg):
    if DBG:
        E("s_waitcnt lgkmcnt(0)")
        E("s_mov_b64 exec, 1")
        E("s_lshl_b32 s100, s2, 4")
        E("s_add_u32 s100, s100, s3")
        E("s_lshl_b32 s100, s100, 6")
        E(f"s_add_u32 s100, s100, {WS_DBG}")
        for i in range(n):
            E(f"v_mov_b32 v2, s{80+2*i}")
            E(f"v_mov_b32 v3, {4*i}")
            E(f"buffer_store_dword v2, v3, s[{srdreg}:{srdreg+3}], s100 offen")
            E("s_nop 1")

def srd(sd, sp, nbytes):
    E(f"s_mov_b32 s{sd}, s{sp}")
    E(f"s_and_b32 s{sd+1}, s{sp+1}, 0xffff")
    E(f"s_mov_b32 s{sd+2}, {hex(nbytes)}")
    E(f"s_mov_b32 s{sd+3}, 0x00020000")
def R4(r):
    return f"v[{r}:{r+3}]"
SRD_WS, SRD_OUT, SRD_DBGB, SRD_A, SRD_B = 44, 48, 52, 56, 60

lblc = [0]
def post(kind):
    E(f"ds_write_b32 v28, v29 offset:{32*kind}")
def waitf(kind, lo, hi, t0=24):
    lblc[0] += 1
    n = lblc[0]
    if DRY > 1:
        E("s_cmp_lg_u32 s5, 0")
        E(f"s_cbranch_scc1 W{n}_d")
    L(f"W{n}_p")
    if hi - lo == 4:
        E(f"ds_read_b128 v[{t0}:{t0+3}], v30 offset:{32*kind + 4*lo}")
        E("s_waitcnt lgkmcnt(0)")
        E(f"v_and_b32 v{t0}, v{t0}, v{t0+1}")
        E(f"v_and_b32 v{t0+2}, v{t0+2}, v{t0+3}")
        E(f"v_and_b32 v{t0}, v{t0}, v{t0+2}")
    else:
        E(f"ds_read_b128 v[{t0}:{t0+3}], v30 offset:{32*kind}")
        E(f"ds_read_b128 v[{t0+4}:{t0+7}], v30 offset:{32*kind + 16}")
        E("s_waitcnt lgkmcnt(0)")
        for k in range(0, 8, 2):
            E(f"v_and_b32 v{t0+k}, v{t0+k}, v{t0+k+1}")
        E(f"v_and_b32 v{t0}, v{t0}, v{t0+2}")
        E(f"v_and_b32 v{t0+4}, v{t0+4}, v{t0+6}")
        E(f"v_and_b32 v{t0}, v{t0}, v{t0+4}")
    E("s_nop 0")
    E(f"v_readfirstlane_b32 s4, v{t0}")
    E("s_cmp_eq_u32 s4, 1")
    E(f"s_cbranch_scc1 W{n}_d")
    E("s_sleep 1")
    E(f"s_branch W{n}_p")
    L(f"W{n}_d")

def preloadA(nx):
    for n in range(16):
        for x in range(nx):
            a = 64 + 4 * (n * nx + x)
            off = 256 * n + x * 2 * XROW
            E(f"ds_read_b64_tr_b16 v[{a}:{a+1}], v17 offset:{off+32}")
            E(f"ds_read_b64_tr_b16 v[{a+2}:{a+3}], v17 offset:{off}")

def gen():
    name = NAME + "_kernel"
    out.append(f".globl {name}\n.p2align 8\n.type {name},@function")
    L(name)
    E("s_cmp_ge_u32 s2, 256")
    E("s_cbranch_scc1 K_end")
    STAMP(0)
    E("s_setprio 3")
    E("s_load_dwordx16 s[4:19], s[0:1], 0")
    E("s_load_dwordx2 s[20:21], s[0:1], 64")
    E("s_load_dwordx8 s[24:31], s[0:1], 80")
    E("s_load_dwordx8 s[32:39], s[0:1], 112")
    E("s_load_dwordx2 s[40:41], s[0:1], 144")
    E("v_lshrrev_b32 v1, 6, v0")
    E("s_nop 0")
    E("v_readfirstlane_b32 s3, v1")
    E("v_and_b32 v1, 63, v0")
    E("s_and_b32 s64, s2, 7")
    E("s_lshl_b32 s65, s64, 2")
    E("s_lshl_b32 s64, s64, 5")
    E("s_lshr_b32 s66, s2, 3")
    E("s_add_u32 s64, s64, s66")
    E("s_and_b32 s66, s66, 3")
    E("s_add_u32 s65, s65, s66")
    E("s_lshr_b32 s66, s2, 5")
    E("s_and_b32 s67, s3, 3")
    E("s_lshr_b32 s68, s3, 2")
    E("s_bfe_u32 s69, s3, 0x10001")
    E("v_mov_b32 v12, 0")
    E("v_mov_b32 v13, 0")
    E("v_mov_b32 v14, 0")
    E("v_mov_b32 v15, 0")
    E("v_and_b32 v2, 31, v1")
    E("v_lshlrev_b32 v2, 4, v2")
    E(f"ds_write_b128 v2, v[12:15] offset:{FLG}")
    E(f"ds_write_b128 v2, v[12:15] offset:{FLG + 32}")
    E("s_lshl_b32 s70, s3, 2")
    E(f"s_add_u32 s70, s70, {SYN}")
    E("v_mov_b32 v28, s70")
    E("v_mov_b32 v29, 1")
    E("v_mov_b32 v95, 0")
    E(f"v_mov_b32 v30, {SYN}")
    E("s_lshl_b32 s70, s65, 6")
    E("s_add_u32 s70, s70, s67")
    E("s_lshl_b32 s70, s70, 10")
    E("s_lshl_b32 s71, s66, 7")
    E("s_add_u32 s70, s70, s71")
    E("v_lshrrev_b32 v2, 3, v1")
    E("v_and_b32 v3, 7, v1")
    E("v_lshlrev_b32 v4, 12, v2")
    E("v_lshl_add_u32 v4, v3, 4, v4")
    E("v_add_u32 v4, s70, v4")
    E("v_subrev_u32 v5, 1024, v4")
    E("v_subrev_u32 v6, 2048, v4")
    E("v_subrev_u32 v7, 3072, v4")
    E("s_lshl_b32 s71, s66, 9")
    E("v_lshl_add_u32 v8, v3, 6, s71")
    E("s_lshl_b32 s72, s65, 6")
    E("s_lshl_b32 s71, s66, 3")
    E("s_add_u32 s72, s72, s71")
    E("s_lshl_b32 s71, s67, 1")
    E("s_add_u32 s72, s72, s71")
    E("s_lshl_b32 s73, s72, 10")
    E("v_lshlrev_b32 v9, 4, v1")
    E("s_and_b32 s74, s3, 1")
    E(f"s_mul_i32 s75, s74, {8*NA}")
    E(f"s_mul_i32 s76, s74, {8*NB}")
    E(f"s_add_u32 s76, s76, {16*NA}")
    E("s_cmp_eq_u32 s68, 0")
    E("s_cselect_b32 s75, s75, s76")
    E("s_lshl_b32 s70, s64, 1")
    E("s_add_u32 s70, s70, s69")
    E("s_lshl_b32 s70, s70, 7")
    E("s_add_u32 s70, s70, s75")
    E("s_lshl_b32 s70, s70, 1")
    E("v_lshl_add_u32 v11, v1, 1, s70")
    if "--pro" in sys.argv: STAMP(3)
    E("s_waitcnt lgkmcnt(0)")
    if "--pro" in sys.argv: STAMP(4)
    E("s_add_u32 s70, s2, s3")
    E("s_cmp_lg_u32 s70, 0")
    E("s_cbranch_scc1 K_nononce")
    E("s_memrealtime s[70:71]")
    srd(SRD_DBGB, 38, 256)
    E("s_waitcnt lgkmcnt(0)")
    E("s_or_b32 s70, s70, 1")
    E("v_mov_b32 v100, s70")
    E("v_mov_b32 v101, s71")
    E("s_mov_b64 exec, 1")
    E(f"buffer_store_dwordx2 v[100:101], v95, s[{SRD_DBGB}:{SRD_DBGB+3}], 0 offen sc1")
    E("s_mov_b64 exec, -1")
    L("K_nononce")
    E("s_barrier")
    E("s_cmp_eq_u32 s68, 0")
    E("s_cbranch_scc1 K_noTL")
    srd(SRD_A, 24, 2 << 20)
    srd(SRD_B, 26, 2 << 20)
    E("s_mov_b32 s70, 0x8000")
    E("v_lshlrev_b32 v5, 10, v2")
    E("v_lshl_add_u32 v5, v3, 4, v5")
    E("s_lshl_b32 s71, s65, 6")
    E("s_lshl_b32 s74, s67, 3")
    E("s_add_u32 s71, s71, s74")
    E("s_sub_u32 s71, s71, 8")
    E("s_lshl_b32 s71, s71, 10")
    E("s_lshl_b32 s74, s66, 7")
    E("s_add_u32 s71, s71, s74")
    E("v_add_u32 v5, s71, v5")
    E("v_add_u32 v6, s70, v5")
    E("v_add_u32 v7, s70, v6")
    E("s_lshl_b32 s74, s67, 10")
    E(f"s_add_u32 s74, s74, {S_K}")
    E("s_mov_b32 m0, s74")
    E("s_add_u32 s74, s74, 4096")
    E(f"buffer_load_dwordx4 v5, s[{SRD_A}:{SRD_A+3}], 0 offen lds")
    E("s_mov_b32 m0, s74")
    E("s_add_u32 s74, s74, 4096")
    E(f"buffer_load_dwordx4 v6, s[{SRD_A}:{SRD_A+3}], 0 offen lds")
    E("s_cmp_lg_u32 s67, 0")
    E("s_cbranch_scc1 K_nok3")
    E("s_mov_b32 m0, s74")
    E("s_nop 0")
    E(f"buffer_load_dwordx4 v7, s[{SRD_A}:{SRD_A+3}], 0 offen lds")
    L("K_nok3")
    E(f"buffer_load_dwordx4 v[96:99], v4, s[{SRD_B}:{SRD_B+3}], 0 offen")
    srd(SRD_WS, 28, 4096)
    srd(SRD_OUT, 4, 2 << 20)
    for i in range(4):
        E(f"buffer_load_dwordx4 v[{40+4*i}:{43+4*i}], v8, s[{SRD_WS}:{SRD_WS+3}], 0 offen offset:{16*i}")
    E(f"buffer_load_dwordx4 v[32:35], v4, s[{SRD_OUT}:{SRD_OUT+3}], 0 offen")
    E("v_add_u32 v4, s70, v4")
    E(f"buffer_load_dwordx4 v[144:147], v4, s[{SRD_B}:{SRD_B+3}], 0 offen")
    E(f"buffer_load_dwordx4 v[148:151], v4, s[{SRD_OUT}:{SRD_OUT+3}], 0 offen")
    E(f"buffer_load_dwordx4 v[56:59], v9, s[{SRD_OUT}:{SRD_OUT+3}], s73 offen")
    E(f"buffer_load_dwordx4 v[152:155], v9, s[{SRD_OUT}:{SRD_OUT+3}], s73 offen offset:1024")
    srd(SRD_A, 34, 1024)
    E(f"buffer_load_dwordx4 v[60:63], v9, s[{SRD_A}:{SRD_A+3}], 0 offen")
    E("s_branch K_noPL")
    L("K_noTL")
    for i, sp in enumerate([6, 8, 10, 12, 14, 16]):
        sd = SRD_A if i % 2 == 0 else SRD_B
        srd(sd, sp, 131072)
        E(f"buffer_load_ushort v{84+i}, v11, s[{sd}:{sd+3}], 0 offen")
    if TOUCH:
        E(f"v_lshlrev_b32 v200, {TSH}, v1")
        E("s_cmp_eq_u32 s3, 0")
        E("s_cbranch_scc0 K_tc1")
        srd(SRD_A, 40, WS_SIZE)
        E(f"buffer_load_dword v201, v200, s[{SRD_A}:{SRD_A+3}], 0 offen")
        E(f"s_mov_b32 s70, {WS_G}")
        E(f"buffer_load_dword v202, v95, s[{SRD_A}:{SRD_A+3}], s70 offen")
        E("s_branch K_tc4")
        L("K_tc1")
        E("s_cmp_eq_u32 s3, 1")
        E("s_cbranch_scc0 K_tc2")
        srd(SRD_A, 36, 2 << 20)
        E(f"buffer_load_dword v201, v200, s[{SRD_A}:{SRD_A+3}], 0 offen")
        srd(SRD_B, 38, 256)
        E(f"buffer_load_dword v202, v95, s[{SRD_B}:{SRD_B+3}], 0 offen")
        E("s_branch K_tc4")
        L("K_tc2")
        E("s_cmp_eq_u32 s3, 2")
        E("s_cbranch_scc0 K_tc3")
        srd(SRD_A, 4, 2 << 20)
        E(f"buffer_load_dword v201, v200, s[{SRD_A}:{SRD_A+3}], 0 offen")
        srd(SRD_B, 24, 2 << 20)
        E(f"buffer_load_dword v202, v200, s[{SRD_B}:{SRD_B+3}], 0 offen")
        E("s_branch K_tc4")
        L("K_tc3")
        srd(SRD_A, 26, 2 << 20)
        E(f"buffer_load_dword v201, v200, s[{SRD_A}:{SRD_A+3}], 0 offen")
        srd(SRD_B, 34, 1024)
        E(f"buffer_load_dword v202, v95, s[{SRD_B}:{SRD_B+3}], 0 offen")
        L("K_tc4")
    L("K_noPL")
    srd(SRD_A, 30, 2 << 20)
    E("s_lshl_b32 s74, s64, 2")
    if "--pro" in sys.argv: STAMP(6)
    E("s_load_dword s22, s[18:19], s74")
    E("s_load_dword s23, s[20:21], s74")
    E("s_load_dword s42, s[32:33], s74")
    srd(SRD_WS, 40, WS_SIZE)
    srd(SRD_OUT, 36, 2 << 20)
    srd(SRD_DBGB, 38, 256)
    E("s_mov_b32 s43, 0xffff0000")
    E("s_mov_b32 s5, 0")
    E("s_and_b32 s61, s3, 1")
    if "--pro" in sys.argv:
        STAMP(7)
        E("s_waitcnt lgkmcnt(0)")
        for i in range(3, 8): E(f"s_mov_b32 s{1+i}, s{80+2*i}")
    E("s_cmp_eq_u32 s68, 0")
    E("s_cbranch_scc1 K_kgen")
    E("s_mul_i32 s70, s3, 3072")
    E(f"s_add_u32 s70, s70, {S_TR}")
    E("v_mul_u32_u24 v64, 144, v2")
    E("v_lshl_add_u32 v64, v3, 4, v64")
    E("v_add_u32 v64, s70, v64")
    E("v_lshrrev_b32 v66, 4, v1")
    E("v_and_b32 v67, 1, v66")
    E("v_lshrrev_b32 v66, 1, v66")
    E("v_bfe_u32 v68, v1, 2, 2")
    E("v_and_b32 v69, 3, v1")
    E("v_mul_u32_u24 v65, 1152, v67")
    E("v_mul_u32_u24 v68, 144, v68")
    E("v_add_u32 v65, v65, v68")
    E("v_lshl_add_u32 v65, v66, 5, v65")
    E("v_lshl_add_u32 v65, v69, 3, v65")
    E("v_add_u32 v65, s70, v65")
    E("v_and_b32 v68, 15, v1")
    E("v_lshl_add_u32 v68, v66, 4, v68")
    E("v_lshrrev_b32 v69, 1, v68")
    E("v_and_b32 v68, 1, v68")
    E("v_lshlrev_b32 v69, 14, v69")
    E("v_lshl_add_u32 v69, v68, 4, v69")
    E("v_lshl_add_u32 v69, v67, 5, v69")
    E("s_lshl_b32 s70, s66, 19")
    E("s_lshl_b32 s71, s65, 9")
    E("s_add_u32 s70, s70, s71")
    E("s_lshl_b32 s71, s67, 7")
    E("s_add_u32 s70, s70, s71")
    E("s_add_u32 s71, s70, 0x40000")
    E("s_mov_b32 s62, 0")
    E("s_mov_b32 s76, 0x00003f80")
    E("s_mov_b32 s77, 0x3f800000")
    E("s_mov_b32 s78, 0x0000ffff")
    E("s_mov_b32 s79, 0x3f803f80")
    if DRY:
        E("s_mov_b32 s5, 1")
        E("s_mov_b64 exec, 0")
        E("s_branch K_tmask")
        L("K_breal")
        E("s_mov_b32 s5, 0")
        E("s_mov_b64 exec, -1")
        E("s_mov_b32 s62, 0")
    E("v_and_b32 v224, 3, v1")
    E("v_bfe_u32 v225, v1, 3, 2")
    E("v_lshl_add_u32 v224, v224, 2, v225")
    E(f"v_mul_u32_u24 v224, {ZROW}, v224")
    E("v_bfe_u32 v225, v1, 2, 1")
    E("v_lshl_add_u32 v224, v225, 4, v224")
    E("v_lshrrev_b32 v225, 5, v1")
    E("v_lshl_add_u32 v224, v225, 5, v224")
    E("s_lshl_b32 s74, s67, 8")
    E(f"s_add_u32 s74, s74, {ZBASE + 128}")
    E("v_add_u32 v224, s74, v224")
    E("s_lshl_b32 s6, s64, 14")
    E("s_lshl_b32 s74, s67, 12")
    E("s_add_u32 s6, s6, s74")
    E("s_lshl_b32 s74, s67, 11")
    E(f"v_add_u32 v10, {GB}, v9")
    E("v_add_u32 v10, s74, v10")
    E(f"s_add_u32 s60, s74, {WS_G}")
    E("v_and_b32 v226, 31, v1")
    E("v_lshlrev_b32 v226, 5, v226")
    E("s_and_b32 s7, s2, 7")
    E("s_lshl_b32 s7, s7, 10")
    E(f"s_add_u32 s7, s7, {WS_F}")
    E("v_and_b32 v227, 1, v1")
    E("v_lshlrev_b32 v225, 3, v227")
    E("v_lshlrev_b32 v227, 4, v227")
    E("s_lshl_b32 s8, s65, 3")
    E("s_add_u32 s8, s8, s66")
    E("s_lshl_b32 s8, s8, 5")
    E(f"s_add_u32 s8, s8, {WS_G}")
    E("s_lshl_b32 s9, s66, 5")
    E("s_add_u32 s9, s9, s65")
    E("s_lshl_b32 s9, s9, 5")
    E(f"s_add_u32 s9, s9, {WS_F}")
    E("v_mov_b32 v100, 0")
    E("v_mov_b32 v101, 0")
    E("v_mov_b32 v102, 0")
    E("v_mov_b32 v103, 0")
    E("v_bfe_u32 v104, v1, 3, 2")
    E(f"v_mul_u32_u24 v104, {ZROW}, v104")
    E("v_and_b32 v105, 7, v1")
    E("v_lshl_add_u32 v104, v105, 4, v104")
    E(f"s_mul_i32 s74, s67, {4*ZROW}")
    E("v_add_u32 v104, s74, v104")
    E("ds_write_b128 v104, v[100:103]")
    E("v_min_u32 v104, 11, v1")
    E("v_lshrrev_b32 v105, 1, v104")
    E(f"v_mul_u32_u24 v105, {XROW}, v105")
    E("v_and_b32 v104, 1, v104")
    E("v_lshl_add_u32 v104, v104, 4, v105")
    E(f"ds_write_b128 v104, v[100:103] offset:{XBASE}")
    E(f"s_mul_i32 s74, s67, {PMS}")
    E(f"s_add_u32 s74, s74, {PB}")
    E("v_mov_b32 v104, s74")
    E("ds_write_b128 v104, v[100:103]")
    E("s_add_u32 s74, s74, 16")
    E("v_lshl_add_u32 v230, v1, 4, s74")
    E(f"s_mul_i32 s74, s67, {PCS}")
    E(f"s_add_u32 s74, s74, {PB + 4*PMS}")
    E("v_mov_b32 v105, s74")
    E("ds_write_b128 v105, v[100:103]")
    E("s_add_u32 s74, s74, 16")
    E("v_lshl_add_u32 v231, v1, 2, s74")
    E("v_and_b32 v4, 15, v1")
    E("v_lshrrev_b32 v5, 4, v1")
    E("v_lshlrev_b32 v6, 2, v4")
    E("v_add_u32 v6, v6, v5")
    E("s_lshl_b32 s74, s3, 1")
    E(f"s_mul_i32 s74, s74, {ZROW}")
    E(f"s_add_u32 s74, s74, {ZBASE + 8}")
    E("v_lshlrev_b32 v228, 3, v4")
    E("v_lshl_add_u32 v228, v5, 4, v228")
    E("v_add_u32 v228, s74, v228")
    E("v_and_b32 v104, 3, v1")
    E("v_bfe_u32 v105, v1, 2, 2")
    E("v_sub_u32 v104, v104, v105")
    E("v_lshlrev_b32 v104, 3, v104")
    E("v_lshlrev_b32 v105, 6, v5")
    E("v_sub_u32 v104, v104, v105")
    E("s_add_u32 s74, s69, 4")
    E(f"s_mul_i32 s74, s74, {XROW}")
    E(f"s_add_u32 s74, s74, {XBASE + 224}")
    E("v_add_u32 v229, s74, v104")
    E("s_lshl_b32 s74, s3, 2")
    E(f"s_add_u32 s74, s74, {FLG}")
    E("v_mov_b32 v232, s74")
    E("v_lshlrev_b32 v70, 9, v2")
    E("v_lshl_add_u32 v70, v3, 4, v70")
    E("s_lshl_b32 s74, s67, 7")
    E(f"s_add_u32 s74, s74, {S_K + 1024 - 384}")
    E("v_add_u32 v70, s74, v70")
    E("s_waitcnt vmcnt(11)")
    post(7)
    E("s_waitcnt vmcnt(6)")
    STAMP(1)
    L("K_tmask")
    for t in range(4):
        for i in range(4):
            r0 = 40 + 4 * i + (t >> 1)
            r1 = 40 + 4 * i + 2 + (t >> 1)
            d = 160 + (t * 4 + i) * 2
            if t & 1:
                E(f"v_lshrrev_b32 v{d}, 16, v{r0}")
                E(f"v_and_b32 v{d+1}, s43, v{r1}")
            else:
                E(f"v_and_b32 v{d}, s78, v{r0}")
                E(f"v_lshlrev_b32 v{d+1}, 16, v{r1}")
    waitf(7, 4, 8, 72)
    TSTAMP(3)
    L("K_tloop")
    for t in range(4):
        E(f"ds_read_b128 {R4(12+4*t)}, v70 offset:{384 - 128*t}")
    E("v_add_u32 v70, 4096, v70")
    E("s_waitcnt lgkmcnt(0)")
    for t in range(4):
        for i in range(4):
            kr = 12 + 4 * t + i
            d = 160 + (t * 4 + i) * 2
            E(f"v_dot2_f32_bf16 v{208+2*i}, v{kr}, v{d}, 0")
            E(f"v_dot2_f32_bf16 v{209+2*i}, v{kr}, v{d+1}, 0")
        E("s_nop 0")
        for i in range(4):
            E(f"v_cvt_pk_bf16_f32 v{192+4*t+i}, v{208+2*i}, v{209+2*i}")
    cur = 192 + 12
    for t in (2, 1, 0):
        for i in range(4):
            E(f"v_lshlrev_b32 v{208+2*i}, 16, v{cur+i}")
            E(f"v_and_b32 v{209+2*i}, s43, v{cur+i}")
        for i in range(4):
            E(f"v_dot2_f32_bf16 v{208+2*i}, v{192+4*t+i}, s76, v{208+2*i}")
            E(f"v_dot2_f32_bf16 v{209+2*i}, v{192+4*t+i}, s77, v{209+2*i}")
        E("s_nop 0")
        for i in range(4):
            E(f"v_cvt_pk_bf16_f32 v{cur+i}, v{208+2*i}, v{209+2*i}")
    for i in range(4):
        E(f"v_and_b32 v{216+2*i}, s78, v{96+i}")
        E(f"v_and_b32 v{217+2*i}, s43, v{96+i}")
    for i in range(4):
        E(f"v_dot2_f32_bf16 v{208+2*i}, v{cur+i}, v{216+2*i}, 0")
        E(f"v_dot2_f32_bf16 v{209+2*i}, v{cur+i}, v{217+2*i}, 0")
    E("s_nop 0")
    for i in range(4):
        E(f"v_cvt_pk_bf16_f32 v{36+i}, v{208+2*i}, v{209+2*i}")
    if DRY:
        E("s_cmp_lg_u32 s5, 0")
        E("s_cbranch_scc1 K_gmask")
    E("ds_write_b128 v64, v[36:39] offset:1152")
    E("s_cmp_eq_u32 s62, 0")
    E("s_cbranch_scc0 K_tw1")
    E("s_waitcnt vmcnt(5)")
    L("K_tw1")
    E("ds_write_b128 v64, v[32:35]")
    E("s_waitcnt lgkmcnt(0)")
    E("ds_read_b64_tr_b16 v[76:77], v65")
    E("ds_read_b64_tr_b16 v[78:79], v65 offset:576")
    E("ds_read_b64_tr_b16 v[80:81], v65 offset:64")
    E("ds_read_b64_tr_b16 v[82:83], v65 offset:640")
    E("s_waitcnt lgkmcnt(2)")
    E(f"buffer_store_dwordx4 v[76:79], v69, s[{SRD_WS}:{SRD_WS+3}], s70 offen {ZSC}")
    E("s_waitcnt lgkmcnt(0)")
    E(f"buffer_store_dwordx4 v[80:83], v69, s[{SRD_WS}:{SRD_WS+3}], s71 offen {ZSC}")
    E("s_cmp_eq_u32 s62, 1")
    E("s_cbranch_scc1 K_tdone")
    E("s_mov_b32 s62, 1")
    E("s_add_u32 s70, s70, 64")
    E("s_add_u32 s71, s71, 64")
    TSTAMP(4)
    E("s_waitcnt vmcnt(5)")
    TSTAMP(5)
    for i in range(4):
        E(f"v_mov_b32 v{96+i}, v{144+i}")
        E(f"v_mov_b32 v{32+i}, v{148+i}")
    E("s_branch K_tloop")
    L("K_tdone")
    STAMP(2)
    E("s_waitcnt vmcnt(0)")
    post(0)
    L("K_nwait")
    E(f"ds_read_b64 v[92:93], v30 offset:272")
    E("s_waitcnt lgkmcnt(0)")
    E("v_readfirstlane_b32 s56, v92")
    E("v_readfirstlane_b32 s57, v93")
    E("s_cmp_lg_u32 s56, 0")
    E("s_cbranch_scc1 K_nok")
    E("s_sleep 1")
    E("s_branch K_nwait")
    L("K_nok")
    E("s_cmp_lg_u32 s3, 4")
    E("s_cbranch_scc1 K_nopub")
    waitf(0, 4, 8, 144)
    E("s_mov_b64 exec, 1")
    E(f"buffer_store_dwordx2 v[92:93], v227, s[{SRD_WS}:{SRD_WS+3}], s9 offen sc1")
    E("s_mov_b64 exec, -1")
    STAMP(9)
    L("K_nopub")
    E("s_mov_b32 s62, 0")
    L("K_gmask")
    for i in range(4):
        E(f"v_and_b32 v{216+2*i}, s78, v{60+i}")
        E(f"v_and_b32 v{217+2*i}, s43, v{60+i}")
    L("K_gloop")
    for i in range(4):
        E(f"v_dot2_f32_bf16 v{208+2*i}, v{56+i}, v{216+2*i}, 0")
        E(f"v_dot2_f32_bf16 v{209+2*i}, v{56+i}, v{217+2*i}, 0")
    E("s_nop 0")
    for i in range(4):
        E(f"v_cvt_pk_bf16_f32 v{192+i}, v{208+2*i}, v{209+2*i}")
    for i in range(4):
        E(f"v_dot2_f32_bf16 v{208+i}, v{192+i}, s79, 0")
    E("s_nop 2")
    E("v_add_f32 v208, v208, v209")
    E("v_add_f32 v210, v210, v211")
    E("v_add_f32 v74, v208, v210")
    for dpp in ["row_shr:1", "row_shr:2", "row_shr:4", "row_shr:8"]:
        E("s_nop 1")
        E(f"v_add_f32_dpp v74, v74, v74 {dpp} row_mask:0xf bank_mask:0xf bound_ctrl:0")
    E("s_nop 1")
    E("v_add_f32_dpp v74, v74, v74 row_bcast:15 row_mask:0xa bank_mask:0xf")
    E("s_nop 1")
    E("v_add_f32_dpp v74, v74, v74 row_bcast:31 row_mask:0xc bank_mask:0xf")
    E("s_nop 1")
    E("v_cvt_pk_bf16_f32 v74, v74, v74")
    E("v_lshlrev_b32 v74, 16, v74")
    E("v_mul_f32 v74, 0xbfb8aa3b, v74")
    E("v_exp_f32 v74, v74")
    E("s_nop 0")
    E("v_add_f32 v74, 1.0, v74")
    E("v_rcp_f32 v74, v74")
    E("s_nop 0")
    E("v_cvt_pk_bf16_f32 v74, v74, v74")
    E("s_lshl_b32 s72, s67, 1")
    E("s_add_u32 s72, s72, s62")
    E("s_lshl_b32 s72, s72, 1")
    E(f"s_add_u32 s72, s72, {SYN + 256}")
    E("v_mov_b32 v75, s72")
    if DRY:
        E("s_cmp_lg_u32 s5, 0")
        E("s_cbranch_scc1 K_breal")
    E("v_cmp_eq_u32 vcc, 63, v1")
    E("s_and_saveexec_b64 s[74:75], vcc")
    E("ds_write_b16 v75, v74")
    E("s_mov_b64 exec, s[74:75]")
    E("s_cmp_eq_u32 s62, 1")
    E("s_cbranch_scc1 K_bwave")
    E("s_mov_b32 s62, 1")
    for i in range(4):
        E(f"v_mov_b32 v{56+i}, v{152+i}")
    E("s_branch K_gloop")
    L("K_kgen")
    E(f"s_setprio {APRIO}")
    STAMP(2)
    E("v_and_b32 v20, 15, v1")
    E("v_lshrrev_b32 v21, 4, v1")
    E("s_mov_b32 s74, 0x00040000")
    E("s_mov_b32 s75, 0x02000100")
    E("s_mov_b32 s76, 0x00010001")
    E("s_mov_b32 s77, 0x00040002")
    E("s_mov_b32 s78, 0x00020002")
    E("s_mov_b32 s79, 0x01000004")
    E("v_lshrrev_b32 v22, 2, v20")
    E("v_lshlrev_b32 v22, 4, v22")
    E("v_lshrrev_b64 v[32:33], v22, s[74:75]")
    E("v_and_b32 v32, 0xffff, v32")
    E("v_lshrrev_b64 v[34:35], v22, s[76:77]")
    E("v_and_b32 v34, 0xffff, v34")
    E("v_and_b32 v23, 1, v20")
    E("v_mad_u32_u24 v32, v23, v34, v32")
    E("v_lshrrev_b64 v[34:35], v22, s[78:79]")
    E("v_and_b32 v34, 0xffff, v34")
    E("v_bfe_u32 v23, v20, 1, 1")
    E("v_mad_u32_u24 v32, v23, v34, v32")
    E("v_cvt_f32_u32 v24, v32")
    E("v_lshrrev_b32 v33, 7, v32")
    E("v_and_b32 v32, 127, v32")
    E("v_cvt_f32_u32 v16, v33")
    E("v_cvt_f32_u32 v17, v32")
    E("v_add_u32 v32, 8, v20")
    E("v_cvt_f32_u32 v18, v32")
    E("v_mul_f32 v26, 0x43000000, v18")
    E("v_lshlrev_b32 v22, 3, v20")
    E("v_cvt_f32_u32 v27, v22")
    if DRY > 1:
        E("s_mov_b32 s5, 1")
        E("s_mov_b64 exec, 0")
        E("s_branch K_dA")
        L("K_areal")
        E("s_mov_b32 s5, 0")
        E("s_mov_b64 exec, -1")
    E("s_waitcnt lgkmcnt(0)")
    E("s_lshl_b32 s70, s22, 16")
    E("s_and_b32 s22, s22, s43")
    E("s_cmp_eq_u32 s69, 0")
    E("s_cselect_b32 s22, s70, s22")
    E("v_mov_b32 v40, 0x3fb8aa3b")
    E("v_mul_f32 v41, s22, v40")
    E("v_exp_f32 v41, v41")
    E("s_nop 0")
    E("v_cvt_pk_bf16_f32 v41, v41, v41")
    E("v_lshlrev_b32 v41, 16, v41")
    E(f"s_waitcnt vmcnt({2 if TOUCH else 0})")
    L("K_dA")
    for i in range(6):
        E(f"v_lshlrev_b32 v{84+i}, 16, v{84+i}")
    E("v_mul_f32 v84, v41, v84")
    E("v_mul_f32 v85, v41, v85")
    E("v_mul_f32 v86, v41, v86")
    E("v_mul_f32 v87, v41, v87")
    E("v_mul_f32 v44, v40, v84")
    E("v_mul_f32 v45, 0.15915494, v85")
    E("v_rndne_f32 v46, v45")
    E("v_sub_f32 v45, v45, v46")
    E("v_mul_f32 v46, 0x43000000, v45")
    E("v_rndne_f32 v47, v46")
    E("v_sub_f32 v46, v46, v47")
    E("v_mul_f32 v84, 0x43000000, v44")
    E("v_exp_f32 v84, v84")
    E("v_cos_f32 v47, v46")
    E("v_sin_f32 v85, v46")
    E("v_mul_f32 v80, v88, v86")
    E("v_fma_f32 v80, -v89, v87, v80")
    E("v_mul_f32 v81, v88, v87")
    E("v_fma_f32 v81, v89, v86, v81")
    E("v_mul_f32 v47, v84, v47")
    E("v_mul_f32 v82, v84, v85")
    E("s_lshl_b32 s70, s3, 11")
    E(f"s_add_u32 s70, s70, {S_P}")
    E("v_lshl_add_u32 v42, v1, 5, s70")
    E("ds_write_b128 v42, v[44:47]")
    E("ds_write_b128 v42, v[80:83] offset:16")
    E("v_lshl_add_u32 v43, v21, 6, s70")
    for r in range(48, 60):
        E(f"v_mov_b32 v{r}, 0")
    E("s_waitcnt lgkmcnt(0)")
    for k in range(4):
        E(f"ds_read_b128 {R4(60+4*k)}, v43 offset:{16*k}")
    E("s_mov_b32 s62, 0")
    E(f"s_mov_b32 s63, {NA}")
    if DRY > 1:
        E("s_cmp_lg_u32 s5, 0")
        E("s_cselect_b32 s63, 1, s63")
    L("K_loop")
    E("s_waitcnt lgkmcnt(0)")
    TT = [[96, 100, 104, 108], [136, 140, 144, 148]]
    for nn in range(2):
        zr, zi, w128 = 60 + 8 * nn, 61 + 8 * nn, 62 + 8 * nn
        T = TT[nn]
        E(f"v_mul_f32 v{T[3]}, v{zr}, v27")
        E(f"v_mul_f32 v{T[3]+1}, v{zi}, v27")
        E(f"v_mul_f32 v{T[0]}, v{zr}, v24")
        E(f"v_mul_f32 v{T[0]+1}, v{zi}, v17")
        E(f"v_mul_f32 v{T[2]}, v{zr}, v26")
        E(f"v_mul_f32 v{T[2]+1}, v{w128}, v18")
        E(f"v_fma_f32 v{T[0]+1}, v{w128}, v16, v{T[0]+1}")
        for k in range(4):
            E(f"v_mov_b32 v{76+4*nn+k}, v{63+8*nn+k}")
    E("v_add_u32 v43, 256, v43")
    for k in range(4):
        E(f"ds_read_b128 {R4(60+4*k)}, v43 offset:{16*k}")
    for nn in range(2):
        er, cbr, cbi, ei = 76 + 4 * nn, 77 + 4 * nn, 78 + 4 * nn, 79 + 4 * nn
        T = TT[nn]
        for t in [T[3], T[0], T[2]]:
            E(f"v_exp_f32 v{t}, v{t}")
            E(f"v_cos_f32 v{t+2}, v{t+1}")
            E(f"v_sin_f32 v{t+3}, v{t+1}")
        t = T[3]
        E(f"v_mul_f32 v{t+2}, v{t}, v{t+2}")
        E(f"v_mul_f32 v{t+3}, v{t}, v{t+3}")
        E(f"v_mul_f32 v{t}, v{cbr}, v{t+2}")
        E(f"v_mul_f32 v{t+1}, v{cbr}, v{t+3}")
        E(f"v_fma_f32 v{t}, -v{cbi}, v{t+3}, v{t}")
        E(f"v_fma_f32 v{t+3}, -v{cbi}, v{t+2}, -v{t+1}")
        E(f"v_mov_b32 v{t+2}, v{t}")
        for t in [T[0], T[2]]:
            E(f"v_mul_f32 v{t+2}, v{t}, v{t+2}")
            E(f"v_mul_f32 v{t+3}, v{t}, v{t+3}")
        p, q = T[0], T[1]
        E(f"v_mul_f32 v{q+2}, v{p+2}, v{er}")
        E(f"v_mul_f32 v{q+3}, v{p+2}, v{ei}")
        E(f"v_fma_f32 v{q+2}, -v{p+3}, v{ei}, v{q+2}")
        E(f"v_fma_f32 v{q+3}, v{p+3}, v{er}, v{q+3}")
        for k in range(4):
            t = T[k]
            hi = (112 + 2 * k + nn) if k < 3 else (124 + nn)
            lo = (118 + 2 * k + nn) if k < 3 else (126 + nn)
            E(f"v_cvt_pk_bf16_f32 v{hi}, v{t+2}, v{t+3}")
            E(f"v_lshlrev_b32 v{t}, 16, v{hi}")
            E(f"v_and_b32 v{t+1}, s43, v{hi}")
            E(f"v_sub_f32 v{t}, v{t+2}, v{t}")
            E(f"v_sub_f32 v{t+1}, v{t+3}, v{t+1}")
            E(f"v_cvt_pk_bf16_f32 v{lo}, v{t}, v{t+1}")
    E("s_add_u32 s62, s62, 1")
    E(f"s_cmp_eq_u32 s62, {LATE}")
    for k in range(3):
        a_ = 48 + 4 * k
        E(f"v_mfma_f32_16x16x16_bf16 {R4(a_)}, v[{112+2*k}:{113+2*k}], v[124:125], {R4(a_)}")
        E(f"v_mfma_f32_16x16x16_bf16 {R4(a_)}, v[{112+2*k}:{113+2*k}], v[126:127], {R4(a_)}")
        E(f"v_mfma_f32_16x16x16_bf16 {R4(a_)}, v[{118+2*k}:{119+2*k}], v[124:125], {R4(a_)}")
    E("s_cbranch_scc0 K_nost")
    E("s_lshl_b32 s70, s64, 13")
    E("s_lshl_b32 s71, s3, 11")
    E("s_add_u32 s70, s70, s71")
    E(f"s_mul_i32 s71, s69, {XROW}")
    E("s_lshl_b32 s72, s61, 11")
    E("s_add_u32 s71, s71, s72")
    E(f"s_add_u32 s71, s71, {XBASE + 4*XROW + 32}")
    E("s_mov_b32 m0, s71")
    E("s_nop 0")
    E(f"buffer_load_dwordx4 v9, s[{SRD_A}:{SRD_A+3}], s70 offen lds")
    E(f"buffer_load_dwordx4 v9, s[{SRD_A}:{SRD_A+3}], s70 offen offset:1024 lds")
    L("K_nost")
    E("s_cmp_lg_u32 s3, 0")
    E("s_cbranch_scc1 K_non")
    E("s_cmp_eq_u32 s62, 1")
    E("s_cbranch_scc0 K_non1")
    E(f"buffer_load_dwordx2 v[92:93], v95, s[{SRD_DBGB}:{SRD_DBGB+3}], 0 offen sc1")
    L("K_non1")
    E("s_cmp_eq_u32 s62, 2")
    E("s_cbranch_scc0 K_non")
    E("s_mov_b32 s70, 0")
    L("K_npoll")
    E("s_waitcnt vmcnt(0)")
    E("v_readfirstlane_b32 s71, v92")
    E("s_add_u32 s70, s70, 1")
    E("s_cmp_lg_u32 s71, 0")
    E("s_cbranch_scc1 K_ngot")
    E("s_sleep 4")
    E(f"buffer_load_dwordx2 v[92:93], v95, s[{SRD_DBGB}:{SRD_DBGB+3}], 0 offen sc1")
    E("s_cmp_lt_u32 s70, 0x40000")
    E("s_cbranch_scc1 K_npoll")
    E("s_waitcnt vmcnt(0)")
    E("v_mov_b32 v92, 1")
    L("K_ngot")
    E("ds_write_b64 v30, v[92:93] offset:272")
    L("K_non")
    E(f"s_cmp_eq_u32 s62, {LATE+3}")
    E("s_cbranch_scc0 K_nost2")
    E("s_waitcnt vmcnt(0)")
    post(0)
    L("K_nost2")
    E("s_cmp_lt_u32 s62, s63")
    E("s_cbranch_scc1 K_loop")
    E("s_waitcnt lgkmcnt(0)")
    STAMP(3)
    E("s_mul_i32 s70, s3, 3072")
    E(f"s_add_u32 s70, s70, {S_TR}")
    E("v_lshl_add_u32 v39, v1, 4, s70")
    E("v_and_b32 v4, 15, v1")
    E("v_lshrrev_b32 v5, 4, v1")
    E("v_lshlrev_b32 v6, 2, v4")
    E("v_add_u32 v6, v6, v5")
    E("s_nop 1")
    for k in range(3):
        E(f"ds_write_b128 v39, {R4(48+4*k)} offset:{1024*k}")
    post(1)
    E("s_mul_i32 s70, s69, 12288")
    E(f"s_add_u32 s70, s70, {S_KT}")
    E("v_lshlrev_b32 v32, 5, v20")
    E("v_add_u32 v32, s70, v32")
    E("v_lshl_add_u32 v44, v21, 11, v32")
    E("v_add_u32 v44, 4096, v44")
    E("v_add_u32 v45, 512, v44")
    E("v_add_u32 v46, 1024, v44")
    E("v_add_u32 v47, 1536, v44")
    E("v_lshlrev_b32 v22, 4, v21")
    E("v_lshrrev_b64 v[60:61], v22, s[74:75]")
    E("v_and_b32 v60, 0xffff, v60")
    E("v_lshl_add_u32 v35, v60, 2, v32")
    E("s_lshl_b32 s71, s61, 9")
    E("v_add_u32 v35, s71, v35")
    E("v_lshrrev_b64 v[60:61], v22, s[76:77]")
    E("v_and_b32 v60, 0xffff, v60")
    E("v_lshl_add_u32 v36, v60, 2, v35")
    E("v_lshrrev_b64 v[62:63], v22, s[78:79]")
    E("v_and_b32 v62, 0xffff, v62")
    E("v_lshl_add_u32 v37, v62, 2, v35")
    E("v_lshl_add_u32 v38, v62, 2, v36")
    E("s_mul_i32 s70, s69, 6144")
    E(f"s_add_u32 s70, s70, {S_TR}")
    E("v_lshl_add_u32 v39, v1, 4, s70")
    E("s_lshl_b32 s71, s61, 10")
    E("v_add_u32 v40, s71, v39")
    E("s_lshl_b32 s71, s61, 9")
    E("v_lshl_add_u32 v60, v1, 3, s71")
    E("s_mul_i32 s70, s69, 12288")
    E(f"s_add_u32 s70, s70, {S_KT}")
    for rr in range(2):
        for e in range(0, 8, 2):
            E(f"v_add_u32 v62, {e + 1024*rr}, v60")
            E(f"v_add_u32 v63, {e + 1 + 1024*rr}, v60")
            E("v_cvt_f32_u32 v62, v62")
            E("v_cvt_f32_u32 v63, v63")
            E("v_cvt_pk_bf16_f32 v62, v62, v63")
            E("v_and_b32 v63, s43, v62")
            E("v_lshlrev_b32 v62, 16, v62")
            E("v_cvt_u32_f32 v62, v62")
            E("v_cvt_u32_f32 v63, v63")
            E(f"v_lshl_add_u32 v{64+8*rr+e}, v62, 2, s70")
            E(f"v_lshl_add_u32 v{65+8*rr+e}, v63, 2, s70")
    E(f"s_mul_i32 s70, s69, {XROW}")
    E(f"s_add_u32 s70, s70, {XBASE + 32}")
    E("v_lshl_add_u32 v61, v60, 1, s70")
    RSTAMP(1)
    waitf(1, 0, 4, 96)
    RSTAMP(2)
    srcoff = [0, 3072]
    for k in range(2):
        E(f"ds_read_b128 {R4(96+4*k)}, v40 offset:{srcoff[k]}")
    for k in range(2):
        E(f"ds_read_b128 {R4(112+4*k)}, v39 offset:{srcoff[k] + 2048}")
    for (b, dst, w) in [(96, 35, 2), (112, 44, 0)]:
        E(f"s_waitcnt lgkmcnt({w})")
        for e in range(4):
            E(f"v_add_f32 v{b+e}, v{b+e}, v{b+4+e}")
    for (b, dst) in [(96, 35), (112, 44)]:
        for e in range(4):
            E(f"ds_write_b32 v{dst+e}, v{b+e}")
    post(2)
    RSTAMP(4)
    waitf(2, 0, 4, 96)
    RSTAMP(6)
    for e in range(16):
        E(f"ds_read_b32 v{96+e}, v{64+e}")
    for rr in range(2):
        for e in range(0, 8, 2):
            src = 96 + 8 * rr + e
            E(f"s_waitcnt lgkmcnt({14 - 8*rr - e})")
            E(f"v_cvt_pk_bf16_f32 v{112+8*rr+e//2}, v{src}, v{src+1}")
            E(f"v_lshlrev_b32 v62, 16, v{112+8*rr+e//2}")
            E(f"v_and_b32 v63, s43, v{112+8*rr+e//2}")
            E(f"v_sub_f32 v62, v{src}, v62")
            E(f"v_sub_f32 v63, v{src+1}, v63")
            E(f"v_cvt_pk_bf16_f32 v{116+8*rr+e//2}, v62, v63")
    for rr in range(2):
        E(f"ds_write_b128 v61, {R4(112+8*rr)} offset:{2048*rr}")
        E(f"ds_write_b128 v61, {R4(116+8*rr)} offset:{2*XROW + 2048*rr}")
    post(3)
    RSTAMP(7)
    STAMP(4)
    E("s_branch K_csetup")
    L("K_bwave")
    post(1)
    STAMP(3)
    E("s_cmp_lg_u32 s3, 5")
    E("s_cbranch_scc1 K_norec")
    waitf(1, 4, 8, 144)
    E(f"ds_read_b64 v[144:145], v225 offset:{SYN + 256}")
    E("v_mov_b32 v146, s56")
    E("v_mov_b32 v147, s57")
    E("s_waitcnt lgkmcnt(0)")
    E("s_mov_b64 exec, 3")
    E(f"buffer_store_dwordx4 v[144:147], v227, s[{SRD_WS}:{SRD_WS+3}], s8 offen sc1")
    E("s_mov_b64 exec, -1")
    L("K_norec")
    if not ALLPOLL:
        E("s_cmp_lg_u32 s3, 4")
        E("s_cbranch_scc1 K_pwait")
    E("s_mov_b32 s70, 0")
    L("K_poll")
    E(f"buffer_load_dwordx2 v[112:113], v226, s[{SRD_WS}:{SRD_WS+3}], s7 offen sc1")
    E("s_waitcnt vmcnt(0)")
    E("v_xor_b32 v112, s56, v112")
    E("v_xor_b32 v113, s57, v113")
    E("v_or_b32 v112, v112, v113")
    E("v_cmp_ne_u32 vcc, 0, v112")
    E("s_add_u32 s70, s70, 1")
    E("s_cmp_eq_u64 vcc, 0")
    E("s_cbranch_scc1 K_pok")
    E(f"s_sleep {PSLEEP}")
    E("s_cmp_lt_u32 s70, 0x40000")
    E("s_cbranch_scc1 K_poll")
    L("K_pok")
    post(5)
    E("s_branch K_pdone")
    L("K_pwait")
    E(f"ds_read_b32 v93, v30 offset:{32*5 + 16}")
    E("s_waitcnt lgkmcnt(0)")
    E("v_readfirstlane_b32 s70, v93")
    E("s_cmp_eq_u32 s70, 1")
    E("s_cbranch_scc1 K_pdone")
    E("s_sleep 1")
    E("s_branch K_pwait")
    L("K_pdone")
    STAMP(4)
    for p in range(4):
        E(f"buffer_load_dwordx4 {R4(192+4*p)}, v9, s[{SRD_WS}:{SRD_WS+3}], s6 offen offset:{1024*p} sc1")
    for k in range(5):
        E(f"v_mov_b32 v{16+k}, v{228+k}")
    waitf(0, 0, 4, 24)
    preloadA(1)
    for p in range(4):
        E(f"s_waitcnt vmcnt({3-p})")
        E(f"ds_write_b128 v224, {R4(192+4*p)} offset:{64*p}")
    post(4)
    E(f"s_setprio {CBPRIO}")
    E("s_branch K_convB")
    L("K_csetup")
    vB, vA, vPM, vPC, vF = 16, 17, 18, 19, 20
    E("s_lshl_b32 s70, s3, 1")
    E(f"s_mul_i32 s70, s70, {ZROW}")
    E(f"s_add_u32 s70, s70, {ZBASE + 8}")
    E(f"v_lshlrev_b32 v{vB}, 3, v4")
    E(f"v_lshl_add_u32 v{vB}, v5, 4, v{vB}")
    E(f"v_add_u32 v{vB}, s70, v{vB}")
    E("v_and_b32 v22, 3, v1")
    E("v_bfe_u32 v23, v1, 2, 2")
    E("v_sub_u32 v22, v22, v23")
    E("v_lshlrev_b32 v22, 3, v22")
    E("v_lshlrev_b32 v23, 6, v5")
    E("v_sub_u32 v22, v22, v23")
    E("s_lshl_b32 s70, s68, 2")
    E("s_add_u32 s70, s70, s69")
    E(f"s_mul_i32 s70, s70, {XROW}")
    E(f"s_add_u32 s70, s70, {XBASE + 224}")
    E(f"v_add_u32 v{vA}, s70, v22")
    E("s_cmp_eq_u32 s68, 0")
    E(f"s_mov_b32 s71, {PB}")
    E(f"s_cselect_b32 s71, {PA}, s71")
    E(f"s_mul_i32 s70, s67, {PMS}")
    E("s_add_u32 s70, s70, s71")
    E("s_add_u32 s72, s70, 16")
    E(f"v_lshl_add_u32 v{vPM}, v1, 4, s72")
    E(f"s_mul_i32 s72, s67, {PCS}")
    E("s_add_u32 s72, s72, s71")
    E(f"s_add_u32 s72, s72, {4*PMS}")
    E("s_add_u32 s73, s72, 16")
    E(f"v_lshl_add_u32 v{vPC}, v1, 2, s73")
    E("s_lshl_b32 s73, s3, 2")
    E(f"s_add_u32 s73, s73, {FLG}")
    E(f"v_mov_b32 v{vF}, s73")
    E("v_mov_b32 v22, s70")
    E("v_mov_b32 v23, s72")
    if DRY > 1:
        E("s_cmp_lg_u32 s5, 0")
        E("s_cbranch_scc1 K_areal")
    RSTAMP(8)
    waitf(3, 0, 4, 24)
    RSTAMP(9)
    E("v_mov_b32 v24, 0")
    E("v_mov_b32 v25, 0")
    E("v_mov_b32 v26, 0")
    E("v_mov_b32 v27, 0")
    E("ds_write_b128 v22, v[24:27]")
    E("ds_write_b128 v23, v[24:27]")
    waitf(7, 4, 8, 24)
    preloadA(2)
    waitf(4, 4, 8, 24)
    E("s_setprio 0")
    STAMP(5)

    def acc(pp, q):
        return 192 + 32 * pp + 4 * q
    def Bf(pp, jj):
        return 32 + 4 * ((jj % 4) * 2 + pp)
    def conv(nx):
        def Af(n, x):
            return 64 + 4 * (n * nx + x)
        queue = []
        def rdB(jj):
            for pp in range(2):
                b = Bf(pp, jj)
                E(f"ds_read_b64 v[{b}:{b+1}], v{vB} offset:{pp*ZROW + 64*jj}")
                E(f"ds_read_b64 v[{b+2}:{b+3}], v{vB} offset:{pp*ZROW + 64*jj + 8}")
                queue.extend([("B", jj, pp), ("B", jj, pp)])
        def need(keys):
            last = -1
            for idx, k in enumerate(queue):
                if k in keys:
                    last = idx
            if last >= 0:
                n_after = min(len(queue) - 1 - last, 15)
                E(f"s_waitcnt lgkmcnt({n_after})")
                del queue[:len(queue) - n_after]
        def mf(pp, q, jj, x, first=False):
            n = 2 * q - jj + 1
            c = "0" if first else R4(acc(pp, q))
            E(f"v_mfma_f32_16x16x32_bf16 {R4(acc(pp,q))}, {R4(Af(n,x))}, {R4(Bf(pp,jj))}, {c}")
        def writeout(q):
            a0, a1 = acc(0, q), acc(1, q)
            E(f"v_add_f32 v{a0+1}, v{a0+1}, v{a1}")
            E(f"v_add_f32 v{a0+2}, v{a0+2}, v{a1+1}")
            E(f"v_add_f32 v{a0+3}, v{a0+3}, v{a1+2}")
            E(f"ds_write_b32 v{vPC}, v{a1+3} offset:{256*q}")
            E(f"ds_write_b128 v{vPM}, {R4(a0)} offset:{1024*q}")
            E(f"ds_write_b32 v{vF}, v29 offset:{32*q}")
            queue.extend([("W",), ("W",), ("W",)])
        rdB(0); rdB(1); rdB(2)
        for jj in range(16):
            q0 = jj >> 1
            k = 0
            for q in range(q0, 8):
                for pp in range(2):
                    if q == q0:
                        need({("B", jj, pp)})
                    for x in range(nx):
                        mf(pp, q, jj, x, first=(jj == 0 and x == 0))
                k += 1
                if k == 1 and jj + 3 < 16:
                    rdB(jj + 3)
                if jj % 2 == 0 and jj >= 2 and q == min(q0 + 1, 7):
                    if jj == 14:
                        E("s_nop 3")
                    writeout(q0 - 1)
        E("s_nop 7")
        writeout(7)
    conv(2)
    STAMP(6)
    E("s_mov_b32 s73, 7")
    E("s_branch K_fin")
    L("K_convB")
    waitf(4, 4, 8, 24)
    E(f"buffer_load_dwordx4 v[12:15], v9, s[{SRD_WS}:{SRD_WS+3}], s60 offen sc1")
    E(f"buffer_load_dwordx4 v[24:27], v9, s[{SRD_WS}:{SRD_WS+3}], s60 offen offset:1024 sc1")
    STAMP(5)
    conv(1)
    STAMP(6)
    E("s_mov_b32 s70, 0")
    L("K_gpoll")
    E("s_waitcnt vmcnt(0)")
    E("v_xor_b32 v14, s56, v14")
    E("v_xor_b32 v15, s57, v15")
    E("v_xor_b32 v26, s56, v26")
    E("v_xor_b32 v27, s57, v27")
    E("v_or_b32 v14, v14, v15")
    E("v_or_b32 v26, v26, v27")
    E("v_or_b32 v14, v14, v26")
    E("v_cmp_ne_u32 vcc, 0, v14")
    E("s_add_u32 s70, s70, 1")
    E("s_cmp_eq_u64 vcc, 0")
    E("s_cbranch_scc1 K_gok")
    E("s_cmp_ge_u32 s70, 0x40000")
    E("s_cbranch_scc1 K_gok")
    E("s_sleep 8")
    E(f"buffer_load_dwordx4 v[12:15], v9, s[{SRD_WS}:{SRD_WS+3}], s60 offen sc1")
    E(f"buffer_load_dwordx4 v[24:27], v9, s[{SRD_WS}:{SRD_WS+3}], s60 offen offset:1024 sc1")
    E("s_branch K_gpoll")
    L("K_gok")
    for (src, dst) in [(12, 32), (24, 36)]:
        for hh in range(2):
            E(f"v_lshlrev_b32 v{dst+2*hh}, 16, v{src+hh}")
            E(f"v_and_b32 v{dst+2*hh+1}, s43, v{src+hh}")
        for e in range(4):
            E(f"v_sub_f32 v40, 1.0, v{dst+e}")
            E(f"v_cvt_pk_bf16_f32 v{dst+e}, v{dst+e}, v40")
    E("ds_write_b128 v10, v[32:35]")
    E("ds_write_b128 v10, v[36:39] offset:1024")
    post(6)
    E("s_mov_b32 s73, 0")
    if FINPRIO:
        E(f"s_setprio {FINPRIO}")
    L("K_fin")
    E("v_subrev_u32 v16, 16, v1")
    E("v_add_u32 v17, 47, v1")
    E("v_cmp_eq_u32 vcc, 0, v1")
    E("s_nop 1")
    E("v_cndmask_b32 v17, v17, -1, vcc")
    E("v_cmp_gt_u32 vcc, 16, v1")
    E("s_lshl_b32 s74, s73, 6")
    E("s_nop 0")
    E("v_cndmask_b32 v16, v16, v17, vcc")
    E("v_add_u32 v16, s74, v16")
    E("v_add_u32 v22, s74, v1")
    E("v_add_u32 v6, s74, v6")
    E("s_lshl_b32 s70, s67, 2")
    E(f"s_add_u32 s70, s70, {PB + 16}")
    E("v_lshl_add_u32 v18, v22, 4, s70")
    E("s_add_u32 s70, s67, 2")
    E("s_and_b32 s70, s70, 3")
    E("s_lshl_b32 s70, s70, 2")
    E(f"s_add_u32 s70, s70, {PB + 16 + PMS}")
    E("s_cmp_lt_u32 s67, 2")
    E("s_cselect_b64 vcc, -1, 0")
    E("v_cndmask_b32 v17, v22, v16, vcc")
    E("v_lshl_add_u32 v19, v17, 4, s70")
    E("s_lshr_b32 s70, s67, 1")
    E(f"s_mul_i32 s70, s70, {PCS}")
    E(f"s_add_u32 s70, s70, {PB + 4*PMS + 16}")
    E("v_lshl_add_u32 v20, v16, 2, s70")
    E("s_and_b32 s70, s67, 1")
    E("s_cmp_eq_u32 s70, 0")
    E("s_cselect_b64 vcc, -1, 0")
    E("s_cselect_b32 s75, 256, 0")
    E(f"v_mov_b32 v17, {PB + 4*PMS}")
    E("v_cndmask_b32 v20, v17, v20, vcc")
    E(f"s_mul_i32 s70, s67, {ZROW}")
    E("v_lshl_add_u32 v21, v6, 1, s70")
    E("s_lshl_b32 s70, s67, 10")
    E("v_lshl_add_u32 v22, v6, 12, s70")
    E("s_lshl_b32 s70, s67, 2")
    E(f"s_add_u32 s70, s70, {GB}")
    E("v_lshl_add_u32 v7, v6, 4, s70")
    E("s_lshl_b32 s70, s73, 5")
    E(f"s_add_u32 s70, s70, {FLG}")
    E("v_mov_b32 v23, s70")
    E("s_lshl_b32 s72, s64, 2")
    E("s_lshl_b32 s76, s23, 16")
    E("s_and_b32 s77, s23, s43")
    E("s_lshl_b32 s78, s42, 16")
    E("s_and_b32 s79, s42, s43")
    E("s_sub_u32 s74, 8, s68")
    waitf(6, 4, 8, 32)
    L("K_hloop")
    for r in range(48, 52):
        E(f"v_mov_b32 v{r}, 0")
    for k in range(4):
        E(f"ds_read_u16_d16_hi v{48+k}, v21 offset:{ZBASE + 4*k*ZROW + 128}")
    E("ds_read_b32 v8, v7")
    L("K_hpoll")
    E("ds_read_b128 v[32:35], v23")
    E("ds_read_b128 v[36:39], v23 offset:16")
    E("s_waitcnt lgkmcnt(0)")
    for k in range(0, 8, 2):
        E(f"v_and_b32 v{32+k}, v{32+k}, v{33+k}")
    E("v_and_b32 v32, v32, v34")
    E("v_and_b32 v36, v36, v38")
    E("v_and_b32 v32, v32, v36")
    E("s_nop 0")
    E("v_readfirstlane_b32 s70, v32")
    E("s_cmp_eq_u32 s70, 1")
    E("s_cbranch_scc1 K_go")
    E("s_sleep 3")
    E("s_branch K_hpoll")
    L("K_go")
    for k in range(4):
        X, c = k >> 1, k & 1
        base = PSTRIDE if X == 0 else 0
        E(f"ds_read_b32 v{32+k}, v18 offset:{base + 2*c*PMS}")
        E(f"ds_read_b32 v{36+k}, v19 offset:{base + 2*c*PMS}")
        E(f"ds_read_b32 v{40+k}, v20 offset:{base + 2*c*PCS}")
    def rnd(a, b):
        E(f"v_cvt_pk_bf16_f32 v{a}, v{a}, v{b}")
        E(f"v_and_b32 v{b}, s43, v{a}")
        E(f"v_lshlrev_b32 v{a}, 16, v{a}")
    yA0, yA1, yB0, yB1 = 32, 33, 34, 35
    u0, u1, k0, k1 = 48, 49, 50, 51
    t = 52
    E(f"v_mul_f32 v{t}, s76, v{u0}")
    E(f"v_mul_f32 v{t+1}, s77, v{u1}")
    E(f"v_mul_f32 v{t+2}, s78, v{k0}")
    E(f"v_mul_f32 v{t+3}, s79, v{k1}")
    rnd(t, t + 1)
    rnd(t + 2, t + 3)
    E(f"v_lshlrev_b32 v{t+4}, 16, v8")
    E(f"v_and_b32 v{t+5}, s43, v8")
    E("v_add_u32 v18, 1024, v18")
    E("v_add_u32 v19, 1024, v19")
    E("v_add_u32 v20, s75, v20")
    E("v_add_u32 v21, 128, v21")
    E("v_add_u32 v23, 32, v23")
    E("v_add_u32 v7, 1024, v7")
    for k in range(4):
        E(f"s_waitcnt lgkmcnt({9-3*k})")
        E(f"v_add_f32 v{32+k}, v{32+k}, v{36+k}")
        E(f"v_add_f32 v{32+k}, v{32+k}, v{40+k}")
    rnd(yA0, yA1)
    rnd(yB0, yB1)
    E(f"v_add_f32 v{yA0}, v{yA0}, v{t}")
    E(f"v_add_f32 v{yA1}, v{yA1}, v{t+1}")
    E(f"v_add_f32 v{yB0}, v{yB0}, v{t+2}")
    E(f"v_add_f32 v{yB1}, v{yB1}, v{t+3}")
    rnd(yA0, yA1)
    rnd(yB0, yB1)
    E(f"v_mul_f32 v{yB0}, v{u0}, v{yB0}")
    E(f"v_mul_f32 v{yB1}, v{u1}, v{yB1}")
    rnd(yB0, yB1)
    E(f"v_mul_f32 v{yA0}, v{t+4}, v{yA0}")
    E(f"v_mul_f32 v{yA1}, v{t+4}, v{yA1}")
    E(f"v_mul_f32 v{yB0}, v{t+5}, v{yB0}")
    E(f"v_mul_f32 v{yB1}, v{t+5}, v{yB1}")
    rnd(yA0, yA1)
    rnd(yB0, yB1)
    E(f"v_add_f32 v{yA0}, v{yA0}, v{yB0}")
    E(f"v_add_f32 v{yA1}, v{yA1}, v{yB1}")
    E(f"v_cvt_pk_bf16_f32 v{yA0}, v{yA0}, v{yA1}")
    E(f"buffer_store_dword v{yA0}, v22, s[{SRD_OUT}:{SRD_OUT+3}], s72 offen")
    E("v_add_u32 v22, 0x40000, v22")
    E("s_add_u32 s73, s73, 1")
    E("s_cmp_lt_u32 s73, s74")
    E("s_cbranch_scc1 K_hloop")
    STAMP(7)
    if DBG: E("s_waitcnt vmcnt(0)")
    STAMP(8)
    if "--pro" in sys.argv:
        E("s_waitcnt lgkmcnt(0)")
        for i in range(3, 8): E(f"s_mov_b32 s{80+2*i}, s{1+i}")
    DUMP(10, SRD_WS)
    L("K_end")
    E("s_endpgm")
    sg = 102 if DBG else 80
    return f""".amdhsa_kernel {name}
  .amdhsa_next_free_vgpr 256
  .amdhsa_next_free_sgpr {sg}
  .amdhsa_accum_offset 256
  .amdhsa_group_segment_fixed_size 0
  .amdhsa_kernarg_size 152
  .amdhsa_user_sgpr_count 2
  .amdhsa_user_sgpr_kernarg_segment_ptr 1
  .amdhsa_system_sgpr_workgroup_id_x 1
  .amdhsa_float_denorm_mode_32 3
.end_amdhsa_kernel"""

def main():
    hdr = HEADER.rstrip("\n")
    pre = [hdr,
           f"; @launch grid=(256,1,1) block=(512,1,1) lds={LDS_SIZE}",
           '.amdgcn_target "amdgcn-amd-amdhsa--gfx950"',
           ".text"]
    k = gen()
    txt = "\n".join(pre + out) + '\n.section .rodata,"a"\n.p2align 6\n' + k + "\n"
    args = [a for a in sys.argv[1:] if not a.startswith("--")]
    path = args[0] if args else "cdna_kernels/%s.s" % NAME
    open(path, "w").write(txt)

main()
```

```python
import sys

NAME = "gated_mix__ssm_conv_s4__ssm_conv_h3__prompt"
HEADER = open("cdna_kernels/%s.s.ref" % NAME).read().split("; Override launch")[0]
DBG = "--dbg" in sys.argv
def opt(name, default):
    for a in sys.argv:
        if a.startswith("--" + name + "="):
            return int(a.split("=")[1])
    return default
NA = 8
NB = 8 - NA
FINPRIO = opt("finprio", 2)
PSLEEP = opt("psleep", 8)
TOUCH = opt("touch", 0)
LATE = opt("late", 3)
DRY = opt("dry", 0)
KLDS = opt("klds", 1)
TSH = opt("tsh", 16)
ZSC = ["sc1", "sc0 sc1", "sc1 nt"][opt("zsc", 0)]
ALLPOLL = opt("allpoll", 0)
CBPRIO = opt("cbprio", 2)
APRIO = opt("aprio", 2)
POLLSC = ["sc1", "sc0 sc1", "sc1 nt"][opt("pollsc", 1)]

out = []
def E(s=""):
    out.append("    " + s)
def L(s):
    out.append(s + ":")

WS_Z = 0
WS_G = 4 << 20
WS_F = WS_G + 8192
WS_SIZE = (4 << 20) + 16384
WS_DBG = 16 << 20
if DBG:
    WS_SIZE = 32 << 20

ZROW = 1152
ZBASE = 0
XBASE = 16 * ZROW
XROW = 4128
GB = XBASE + 6 * XROW
FLG = GB + 8192
SYN = FLG + 256
PMS = 8192 + 16
PCS = 2048 + 16
PB = SYN + 288
PA = PB + 4 * PMS + 4 * PCS
PSTRIDE = PA - PB
S_KT = PA
S_P = S_KT + 24576
S_K = S_P + 8192
S_TR = S_K + 9216
LDS_SIZE = S_TR + 8 * 3072
assert LDS_SIZE <= 163840 and PA + PSTRIDE <= LDS_SIZE
def PMa(X, w4):
    return (PA if X == 0 else PB) + w4 * PMS
def PCa(X, w4):
    return (PA if X == 0 else PB) + 4 * PMS + w4 * PCS

TD = "--tiledbg" in sys.argv
RD = "--reddbg" in sys.argv
def RSTAMP(i):
    if DBG and RD:
        E(f"s_memtime s[{80+2*i}:{81+2*i}]")
def TSTAMP(i):
    if DBG and TD:
        E(f"s_memtime s[{80+2*i}:{81+2*i}]")
def STAMP(i):
    if TD and i in (3, 4, 5, 6, 7): return
    if RD and i in (1, 2, 4, 6, 7, 8, 9): return
    if DBG:
        E(f"s_memtime s[{80+2*i}:{81+2*i}]")
def DUMP(n, srdreg):
    if DBG:
        E("s_waitcnt lgkmcnt(0)")
        E("s_mov_b64 exec, 1")
        E("s_lshl_b32 s100, s2, 4")
        E("s_add_u32 s100, s100, s3")
        E("s_lshl_b32 s100, s100, 6")
        E(f"s_add_u32 s100, s100, {WS_DBG}")
        for i in range(n):
            E(f"v_mov_b32 v2, s{80+2*i}")
            E(f"v_mov_b32 v3, {4*i}")
            E(f"buffer_store_dword v2, v3, s[{srdreg}:{srdreg+3}], s100 offen")
            E("s_nop 1")

def srd(sd, sp, nbytes):
    E(f"s_mov_b32 s{sd}, s{sp}")
    E(f"s_and_b32 s{sd+1}, s{sp+1}, 0xffff")
    E(f"s_mov_b32 s{sd+2}, {hex(nbytes)}")
    E(f"s_mov_b32 s{sd+3}, 0x00020000")
def R4(r):
    return f"v[{r}:{r+3}]"
SRD_WS, SRD_OUT, SRD_DBGB, SRD_A, SRD_B = 44, 48, 52, 56, 60

lblc = [0]
def post(kind):
    E(f"ds_write_b32 v28, v29 offset:{32*kind}")
def waitf(kind, lo, hi, t0=24):
    lblc[0] += 1
    n = lblc[0]
    if DRY > 1:
        E("s_cmp_lg_u32 s5, 0")
        E(f"s_cbranch_scc1 W{n}_d")
    L(f"W{n}_p")
    if hi - lo == 4:
        E(f"ds_read_b128 v[{t0}:{t0+3}], v30 offset:{32*kind + 4*lo}")
        E("s_waitcnt lgkmcnt(0)")
        E(f"v_and_b32 v{t0}, v{t0}, v{t0+1}")
        E(f"v_and_b32 v{t0+2}, v{t0+2}, v{t0+3}")
        E(f"v_and_b32 v{t0}, v{t0}, v{t0+2}")
    else:
        E(f"ds_read_b128 v[{t0}:{t0+3}], v30 offset:{32*kind}")
        E(f"ds_read_b128 v[{t0+4}:{t0+7}], v30 offset:{32*kind + 16}")
        E("s_waitcnt lgkmcnt(0)")
        for k in range(0, 8, 2):
            E(f"v_and_b32 v{t0+k}, v{t0+k}, v{t0+k+1}")
        E(f"v_and_b32 v{t0}, v{t0}, v{t0+2}")
        E(f"v_and_b32 v{t0+4}, v{t0+4}, v{t0+6}")
        E(f"v_and_b32 v{t0}, v{t0}, v{t0+4}")
    E("s_nop 0")
    E(f"v_readfirstlane_b32 s4, v{t0}")
    E("s_cmp_eq_u32 s4, 1")
    E(f"s_cbranch_scc1 W{n}_d")
    E("s_sleep 1")
    E(f"s_branch W{n}_p")
    L(f"W{n}_d")

def preloadA(nx):
    for n in range(16):
        for x in range(nx):
            a = 64 + 4 * (n * nx + x)
            off = 256 * n + x * 2 * XROW
            E(f"ds_read_b64_tr_b16 v[{a}:{a+1}], v17 offset:{off+32}")
            E(f"ds_read_b64_tr_b16 v[{a+2}:{a+3}], v17 offset:{off}")

def finsetup(q0):
    E(f"s_mov_b32 s73, {q0}")
    E("v_subrev_u32 v24, 16, v1")
    E("v_add_u32 v25, 47, v1")
    E("v_cmp_eq_u32 vcc, 0, v1")
    E("s_nop 1")
    E("v_cndmask_b32 v25, v25, -1, vcc")
    E("v_cmp_gt_u32 vcc, 16, v1")
    E("s_lshl_b32 s74, s73, 6")
    E("s_nop 0")
    E("v_cndmask_b32 v24, v24, v25, vcc")
    E("v_add_u32 v24, s74, v24")
    E("v_add_u32 v26, s74, v1")
    E("v_add_u32 v6, s74, v6")
    E("s_lshl_b32 s70, s67, 2")
    E(f"s_add_u32 s70, s70, {PB + 16}")
    E("v_lshl_add_u32 v2, v26, 4, s70")
    E("s_add_u32 s70, s67, 2")
    E("s_and_b32 s70, s70, 3")
    E("s_lshl_b32 s70, s70, 2")
    E(f"s_add_u32 s70, s70, {PB + 16 + PMS}")
    E("s_cmp_lt_u32 s67, 2")
    E("s_cselect_b64 vcc, -1, 0")
    E("v_cndmask_b32 v25, v26, v24, vcc")
    E("v_lshl_add_u32 v3, v25, 4, s70")
    E("s_lshr_b32 s70, s67, 1")
    E(f"s_mul_i32 s70, s70, {PCS}")
    E(f"s_add_u32 s70, s70, {PB + 4*PMS + 16}")
    E("v_lshl_add_u32 v11, v24, 2, s70")
    E("s_and_b32 s70, s67, 1")
    E("s_cmp_eq_u32 s70, 0")
    E("s_cselect_b64 vcc, -1, 0")
    E("s_cselect_b32 s75, 256, 0")
    E(f"v_mov_b32 v25, {PB + 4*PMS}")
    E("v_cndmask_b32 v11, v25, v11, vcc")
    E(f"s_mul_i32 s70, s67, {ZROW}")
    E("v_lshl_add_u32 v21, v6, 1, s70")
    E("s_lshl_b32 s70, s67, 10")
    E("v_lshl_add_u32 v22, v6, 12, s70")
    E("s_lshl_b32 s70, s67, 2")
    E(f"s_add_u32 s70, s70, {GB}")
    E("v_lshl_add_u32 v7, v6, 4, s70")
    E("s_lshl_b32 s70, s73, 5")
    E(f"s_add_u32 s70, s70, {FLG}")
    E("v_mov_b32 v23, s70")
    E("s_lshl_b32 s72, s64, 2")
    E("s_lshl_b32 s76, s23, 16")
    E("s_and_b32 s77, s23, s43")
    E("s_lshl_b32 s78, s42, 16")
    E("s_and_b32 s79, s42, s43")
    E("s_sub_u32 s74, 8, s68")

def gen():
    name = NAME + "_kernel"
    out.append(f".globl {name}\n.p2align 8\n.type {name},@function")
    L(name)
    E("s_cmp_ge_u32 s2, 256")
    E("s_cbranch_scc1 K_end")
    STAMP(0)
    E("s_setprio 3")
    E("s_load_dwordx16 s[4:19], s[0:1], 0")
    E("s_load_dwordx2 s[20:21], s[0:1], 64")
    E("s_load_dwordx8 s[24:31], s[0:1], 80")
    E("s_load_dwordx8 s[32:39], s[0:1], 112")
    E("s_load_dwordx2 s[40:41], s[0:1], 144")
    E("v_lshrrev_b32 v1, 6, v0")
    E("s_nop 0")
    E("v_readfirstlane_b32 s3, v1")
    E("v_and_b32 v1, 63, v0")
    E("s_and_b32 s64, s2, 7")
    E("s_lshl_b32 s65, s64, 2")
    E("s_lshl_b32 s64, s64, 5")
    E("s_lshr_b32 s66, s2, 3")
    E("s_add_u32 s64, s64, s66")
    E("s_and_b32 s66, s66, 3")
    E("s_add_u32 s65, s65, s66")
    E("s_lshr_b32 s66, s2, 5")
    E("s_and_b32 s67, s3, 3")
    E("s_lshr_b32 s68, s3, 2")
    E("s_bfe_u32 s69, s3, 0x10001")
    E("v_mov_b32 v12, 0")
    E("v_mov_b32 v13, 0")
    E("v_mov_b32 v14, 0")
    E("v_mov_b32 v15, 0")
    E("v_and_b32 v2, 31, v1")
    E("v_lshlrev_b32 v2, 4, v2")
    E(f"ds_write_b128 v2, v[12:15] offset:{FLG}")
    E(f"ds_write_b128 v2, v[12:15] offset:{FLG + 32}")
    E("s_lshl_b32 s70, s3, 2")
    E(f"s_add_u32 s70, s70, {SYN}")
    E("v_mov_b32 v28, s70")
    E("v_mov_b32 v29, 1")
    E("v_mov_b32 v95, 0")
    E(f"v_mov_b32 v30, {SYN}")
    E("s_lshl_b32 s70, s65, 6")
    E("s_add_u32 s70, s70, s67")
    E("s_lshl_b32 s70, s70, 10")
    E("s_lshl_b32 s71, s66, 7")
    E("s_add_u32 s70, s70, s71")
    E("v_lshrrev_b32 v2, 3, v1")
    E("v_and_b32 v3, 7, v1")
    E("v_lshlrev_b32 v4, 12, v2")
    E("v_lshl_add_u32 v4, v3, 4, v4")
    E("v_add_u32 v4, s70, v4")
    E("v_subrev_u32 v5, 1024, v4")
    E("v_subrev_u32 v6, 2048, v4")
    E("v_subrev_u32 v7, 3072, v4")
    E("s_lshl_b32 s71, s66, 9")
    E("v_lshl_add_u32 v8, v3, 6, s71")
    E("s_lshl_b32 s72, s65, 6")
    E("s_lshl_b32 s71, s66, 3")
    E("s_add_u32 s72, s72, s71")
    E("s_lshl_b32 s71, s67, 1")
    E("s_add_u32 s72, s72, s71")
    E("s_lshl_b32 s73, s72, 10")
    E("v_lshlrev_b32 v9, 4, v1")
    E("s_and_b32 s74, s3, 1")
    E(f"s_mul_i32 s75, s74, {8*NA}")
    E(f"s_mul_i32 s76, s74, {8*NB}")
    E(f"s_add_u32 s76, s76, {16*NA}")
    E("s_cmp_eq_u32 s68, 0")
    E("s_cselect_b32 s75, s75, s76")
    E("s_lshl_b32 s70, s64, 1")
    E("s_add_u32 s70, s70, s69")
    E("s_lshl_b32 s70, s70, 7")
    E("s_add_u32 s70, s70, s75")
    E("s_lshl_b32 s70, s70, 1")
    E("v_lshl_add_u32 v11, v1, 1, s70")
    if "--pro" in sys.argv: STAMP(3)
    E("s_waitcnt lgkmcnt(0)")
    if "--pro" in sys.argv: STAMP(4)
    E("s_add_u32 s70, s2, s3")
    E("s_cmp_lg_u32 s70, 0")
    E("s_cbranch_scc1 K_nononce")
    E("s_memrealtime s[70:71]")
    srd(SRD_DBGB, 38, 256)
    E("s_waitcnt lgkmcnt(0)")
    E("s_or_b32 s70, s70, 1")
    E("v_mov_b32 v100, s70")
    E("v_mov_b32 v101, s71")
    E("s_mov_b64 exec, 1")
    E(f"buffer_store_dwordx2 v[100:101], v95, s[{SRD_DBGB}:{SRD_DBGB+3}], 0 offen sc1")
    E("s_mov_b64 exec, -1")
    L("K_nononce")
    E("s_barrier")
    E("s_cmp_eq_u32 s68, 0")
    E("s_cbranch_scc1 K_noTL")
    srd(SRD_A, 24, 2 << 20)
    srd(SRD_B, 26, 2 << 20)
    E("s_mov_b32 s70, 0x8000")
    E("v_lshlrev_b32 v5, 10, v2")
    E("v_lshl_add_u32 v5, v3, 4, v5")
    E("s_lshl_b32 s71, s65, 6")
    E("s_lshl_b32 s74, s67, 3")
    E("s_add_u32 s71, s71, s74")
    E("s_sub_u32 s71, s71, 8")
    E("s_lshl_b32 s71, s71, 10")
    E("s_lshl_b32 s74, s66, 7")
    E("s_add_u32 s71, s71, s74")
    E("v_add_u32 v5, s71, v5")
    E("v_add_u32 v6, s70, v5")
    E("v_add_u32 v7, s70, v6")
    E("s_lshl_b32 s74, s67, 10")
    E(f"s_add_u32 s74, s74, {S_K}")
    E("s_mov_b32 m0, s74")
    E("s_add_u32 s74, s74, 4096")
    E(f"buffer_load_dwordx4 v5, s[{SRD_A}:{SRD_A+3}], 0 offen lds")
    E("s_mov_b32 m0, s74")
    E("s_add_u32 s74, s74, 4096")
    E(f"buffer_load_dwordx4 v6, s[{SRD_A}:{SRD_A+3}], 0 offen lds")
    E("s_cmp_lg_u32 s67, 0")
    E("s_cbranch_scc1 K_nok3")
    E("s_mov_b32 m0, s74")
    E("s_nop 0")
    E(f"buffer_load_dwordx4 v7, s[{SRD_A}:{SRD_A+3}], 0 offen lds")
    L("K_nok3")
    E(f"buffer_load_dwordx4 v[96:99], v4, s[{SRD_B}:{SRD_B+3}], 0 offen")
    srd(SRD_WS, 28, 4096)
    srd(SRD_OUT, 4, 2 << 20)
    for i in range(4):
        E(f"buffer_load_dwordx4 v[{40+4*i}:{43+4*i}], v8, s[{SRD_WS}:{SRD_WS+3}], 0 offen offset:{16*i}")
    E(f"buffer_load_dwordx4 v[32:35], v4, s[{SRD_OUT}:{SRD_OUT+3}], 0 offen")
    E("v_add_u32 v4, s70, v4")
    E(f"buffer_load_dwordx4 v[144:147], v4, s[{SRD_B}:{SRD_B+3}], 0 offen")
    E(f"buffer_load_dwordx4 v[148:151], v4, s[{SRD_OUT}:{SRD_OUT+3}], 0 offen")
    E(f"buffer_load_dwordx4 v[56:59], v9, s[{SRD_OUT}:{SRD_OUT+3}], s73 offen")
    E(f"buffer_load_dwordx4 v[152:155], v9, s[{SRD_OUT}:{SRD_OUT+3}], s73 offen offset:1024")
    srd(SRD_A, 34, 1024)
    E(f"buffer_load_dwordx4 v[60:63], v9, s[{SRD_A}:{SRD_A+3}], 0 offen")
    E("s_branch K_noPL")
    L("K_noTL")
    for i, sp in enumerate([6, 8, 10, 12, 14, 16]):
        sd = SRD_A if i % 2 == 0 else SRD_B
        srd(sd, sp, 131072)
        E(f"buffer_load_ushort v{84+i}, v11, s[{sd}:{sd+3}], 0 offen")
    if TOUCH:
        E(f"v_lshlrev_b32 v200, {TSH}, v1")
        E("s_cmp_eq_u32 s3, 0")
        E("s_cbranch_scc0 K_tc1")
        srd(SRD_A, 40, WS_SIZE)
        E(f"buffer_load_dword v201, v200, s[{SRD_A}:{SRD_A+3}], 0 offen")
        E(f"s_mov_b32 s70, {WS_G}")
        E(f"buffer_load_dword v202, v95, s[{SRD_A}:{SRD_A+3}], s70 offen")
        E("s_branch K_tc4")
        L("K_tc1")
        E("s_cmp_eq_u32 s3, 1")
        E("s_cbranch_scc0 K_tc2")
        srd(SRD_A, 36, 2 << 20)
        E(f"buffer_load_dword v201, v200, s[{SRD_A}:{SRD_A+3}], 0 offen")
        srd(SRD_B, 38, 256)
        E(f"buffer_load_dword v202, v95, s[{SRD_B}:{SRD_B+3}], 0 offen")
        E("s_branch K_tc4")
        L("K_tc2")
        E("s_cmp_eq_u32 s3, 2")
        E("s_cbranch_scc0 K_tc3")
        srd(SRD_A, 4, 2 << 20)
        E(f"buffer_load_dword v201, v200, s[{SRD_A}:{SRD_A+3}], 0 offen")
        srd(SRD_B, 24, 2 << 20)
        E(f"buffer_load_dword v202, v200, s[{SRD_B}:{SRD_B+3}], 0 offen")
        E("s_branch K_tc4")
        L("K_tc3")
        srd(SRD_A, 26, 2 << 20)
        E(f"buffer_load_dword v201, v200, s[{SRD_A}:{SRD_A+3}], 0 offen")
        srd(SRD_B, 34, 1024)
        E(f"buffer_load_dword v202, v95, s[{SRD_B}:{SRD_B+3}], 0 offen")
        L("K_tc4")
    L("K_noPL")
    srd(SRD_A, 30, 2 << 20)
    E("s_lshl_b32 s74, s64, 2")
    if "--pro" in sys.argv: STAMP(6)
    E("s_load_dword s22, s[18:19], s74")
    E("s_load_dword s23, s[20:21], s74")
    E("s_load_dword s42, s[32:33], s74")
    srd(SRD_WS, 40, WS_SIZE)
    srd(SRD_OUT, 36, 2 << 20)
    srd(SRD_DBGB, 38, 256)
    E("s_mov_b32 s43, 0xffff0000")
    E("s_mov_b32 s5, 0")
    E("s_and_b32 s61, s3, 1")
    if "--pro" in sys.argv:
        STAMP(7)
        E("s_waitcnt lgkmcnt(0)")
        for i in range(3, 8): E(f"s_mov_b32 s{1+i}, s{80+2*i}")
    E("s_cmp_eq_u32 s68, 0")
    E("s_cbranch_scc1 K_kgen")
    E("s_mul_i32 s70, s3, 3072")
    E(f"s_add_u32 s70, s70, {S_TR}")
    E("v_mul_u32_u24 v64, 144, v2")
    E("v_lshl_add_u32 v64, v3, 4, v64")
    E("v_add_u32 v64, s70, v64")
    E("v_lshrrev_b32 v66, 4, v1")
    E("v_and_b32 v67, 1, v66")
    E("v_lshrrev_b32 v66, 1, v66")
    E("v_bfe_u32 v68, v1, 2, 2")
    E("v_and_b32 v69, 3, v1")
    E("v_mul_u32_u24 v65, 1152, v67")
    E("v_mul_u32_u24 v68, 144, v68")
    E("v_add_u32 v65, v65, v68")
    E("v_lshl_add_u32 v65, v66, 5, v65")
    E("v_lshl_add_u32 v65, v69, 3, v65")
    E("v_add_u32 v65, s70, v65")
    E("v_and_b32 v68, 15, v1")
    E("v_lshl_add_u32 v68, v66, 4, v68")
    E("v_lshrrev_b32 v69, 1, v68")
    E("v_and_b32 v68, 1, v68")
    E("v_lshlrev_b32 v69, 14, v69")
    E("v_lshl_add_u32 v69, v68, 4, v69")
    E("v_lshl_add_u32 v69, v67, 5, v69")
    E("s_lshl_b32 s70, s66, 19")
    E("s_lshl_b32 s71, s65, 9")
    E("s_add_u32 s70, s70, s71")
    E("s_lshl_b32 s71, s67, 7")
    E("s_add_u32 s70, s70, s71")
    E("s_add_u32 s71, s70, 0x40000")
    E("s_mov_b32 s62, 0")
    E("s_mov_b32 s76, 0x00003f80")
    E("s_mov_b32 s77, 0x3f800000")
    E("s_mov_b32 s78, 0x0000ffff")
    E("s_mov_b32 s79, 0x3f803f80")
    if DRY:
        E("s_mov_b32 s5, 1")
        E("s_mov_b64 exec, 0")
        E("s_branch K_tmask")
        L("K_breal")
        E("s_mov_b32 s5, 0")
        E("s_mov_b64 exec, -1")
        E("s_mov_b32 s62, 0")
    E("v_and_b32 v224, 3, v1")
    E("v_bfe_u32 v225, v1, 3, 2")
    E("v_lshl_add_u32 v224, v224, 2, v225")
    E(f"v_mul_u32_u24 v224, {ZROW}, v224")
    E("v_bfe_u32 v225, v1, 2, 1")
    E("v_lshl_add_u32 v224, v225, 4, v224")
    E("v_lshrrev_b32 v225, 5, v1")
    E("v_lshl_add_u32 v224, v225, 5, v224")
    E("s_lshl_b32 s74, s67, 8")
    E(f"s_add_u32 s74, s74, {ZBASE + 128}")
    E("v_add_u32 v224, s74, v224")
    E("s_lshl_b32 s6, s64, 14")
    E("s_lshl_b32 s74, s67, 12")
    E("s_add_u32 s6, s6, s74")
    E("s_lshl_b32 s74, s67, 11")
    E(f"v_add_u32 v10, {GB}, v9")
    E("v_add_u32 v10, s74, v10")
    E(f"s_add_u32 s60, s74, {WS_G}")
    E("v_and_b32 v226, 31, v1")
    E("v_lshlrev_b32 v226, 5, v226")
    E("s_and_b32 s7, s2, 7")
    E("s_lshl_b32 s7, s7, 10")
    E(f"s_add_u32 s7, s7, {WS_F}")
    E("v_and_b32 v227, 1, v1")
    E("v_lshlrev_b32 v225, 3, v227")
    E("v_lshlrev_b32 v227, 4, v227")
    E("s_lshl_b32 s8, s65, 3")
    E("s_add_u32 s8, s8, s66")
    E("s_lshl_b32 s8, s8, 5")
    E(f"s_add_u32 s8, s8, {WS_G}")
    E("s_lshl_b32 s9, s66, 5")
    E("s_add_u32 s9, s9, s65")
    E("s_lshl_b32 s9, s9, 5")
    E(f"s_add_u32 s9, s9, {WS_F}")
    E("v_mov_b32 v100, 0")
    E("v_mov_b32 v101, 0")
    E("v_mov_b32 v102, 0")
    E("v_mov_b32 v103, 0")
    E("v_bfe_u32 v104, v1, 3, 2")
    E(f"v_mul_u32_u24 v104, {ZROW}, v104")
    E("v_and_b32 v105, 7, v1")
    E("v_lshl_add_u32 v104, v105, 4, v104")
    E(f"s_mul_i32 s74, s67, {4*ZROW}")
    E("v_add_u32 v104, s74, v104")
    E("ds_write_b128 v104, v[100:103]")
    E("v_min_u32 v104, 11, v1")
    E("v_lshrrev_b32 v105, 1, v104")
    E(f"v_mul_u32_u24 v105, {XROW}, v105")
    E("v_and_b32 v104, 1, v104")
    E("v_lshl_add_u32 v104, v104, 4, v105")
    E(f"ds_write_b128 v104, v[100:103] offset:{XBASE}")
    E(f"s_mul_i32 s74, s67, {PMS}")
    E(f"s_add_u32 s74, s74, {PB}")
    E("v_mov_b32 v104, s74")
    E("ds_write_b128 v104, v[100:103]")
    E("s_add_u32 s74, s74, 16")
    E("v_lshl_add_u32 v230, v1, 4, s74")
    E(f"s_mul_i32 s74, s67, {PCS}")
    E(f"s_add_u32 s74, s74, {PB + 4*PMS}")
    E("v_mov_b32 v105, s74")
    E("ds_write_b128 v105, v[100:103]")
    E("s_add_u32 s74, s74, 16")
    E("v_lshl_add_u32 v231, v1, 2, s74")
    E("v_and_b32 v4, 15, v1")
    E("v_lshrrev_b32 v5, 4, v1")
    E("v_lshlrev_b32 v6, 2, v4")
    E("v_add_u32 v6, v6, v5")
    E("s_lshl_b32 s74, s3, 1")
    E(f"s_mul_i32 s74, s74, {ZROW}")
    E(f"s_add_u32 s74, s74, {ZBASE + 8}")
    E("v_lshlrev_b32 v228, 3, v4")
    E("v_lshl_add_u32 v228, v5, 4, v228")
    E("v_add_u32 v228, s74, v228")
    E("v_and_b32 v104, 3, v1")
    E("v_bfe_u32 v105, v1, 2, 2")
    E("v_sub_u32 v104, v104, v105")
    E("v_lshlrev_b32 v104, 3, v104")
    E("v_lshlrev_b32 v105, 6, v5")
    E("v_sub_u32 v104, v104, v105")
    E("s_add_u32 s74, s69, 4")
    E(f"s_mul_i32 s74, s74, {XROW}")
    E(f"s_add_u32 s74, s74, {XBASE + 224}")
    E("v_add_u32 v229, s74, v104")
    E("s_lshl_b32 s74, s3, 2")
    E(f"s_add_u32 s74, s74, {FLG}")
    E("v_mov_b32 v232, s74")
    E("v_lshlrev_b32 v70, 9, v2")
    E("v_lshl_add_u32 v70, v3, 4, v70")
    E("s_lshl_b32 s74, s67, 7")
    E(f"s_add_u32 s74, s74, {S_K + 1024 - 384}")
    E("v_add_u32 v70, s74, v70")
    E("s_waitcnt vmcnt(11)")
    post(7)
    E("s_waitcnt vmcnt(6)")
    STAMP(1)
    L("K_tmask")
    for t in range(4):
        for i in range(4):
            r0 = 40 + 4 * i + (t >> 1)
            r1 = 40 + 4 * i + 2 + (t >> 1)
            d = 160 + (t * 4 + i) * 2
            if t & 1:
                E(f"v_lshrrev_b32 v{d}, 16, v{r0}")
                E(f"v_and_b32 v{d+1}, s43, v{r1}")
            else:
                E(f"v_and_b32 v{d}, s78, v{r0}")
                E(f"v_lshlrev_b32 v{d+1}, 16, v{r1}")
    waitf(7, 4, 8, 72)
    TSTAMP(3)
    L("K_tloop")
    for t in range(4):
        E(f"ds_read_b128 {R4(12+4*t)}, v70 offset:{384 - 128*t}")
    E("v_add_u32 v70, 4096, v70")
    E("s_waitcnt lgkmcnt(0)")
    for t in range(4):
        for i in range(4):
            kr = 12 + 4 * t + i
            d = 160 + (t * 4 + i) * 2
            E(f"v_dot2_f32_bf16 v{208+2*i}, v{kr}, v{d}, 0")
            E(f"v_dot2_f32_bf16 v{209+2*i}, v{kr}, v{d+1}, 0")
        E("s_nop 0")
        for i in range(4):
            E(f"v_cvt_pk_bf16_f32 v{192+4*t+i}, v{208+2*i}, v{209+2*i}")
    cur = 192 + 12
    for t in (2, 1, 0):
        for i in range(4):
            E(f"v_lshlrev_b32 v{208+2*i}, 16, v{cur+i}")
            E(f"v_and_b32 v{209+2*i}, s43, v{cur+i}")
        for i in range(4):
            E(f"v_dot2_f32_bf16 v{208+2*i}, v{192+4*t+i}, s76, v{208+2*i}")
            E(f"v_dot2_f32_bf16 v{209+2*i}, v{192+4*t+i}, s77, v{209+2*i}")
        E("s_nop 0")
        for i in range(4):
            E(f"v_cvt_pk_bf16_f32 v{cur+i}, v{208+2*i}, v{209+2*i}")
    for i in range(4):
        E(f"v_and_b32 v{216+2*i}, s78, v{96+i}")
        E(f"v_and_b32 v{217+2*i}, s43, v{96+i}")
    for i in range(4):
        E(f"v_dot2_f32_bf16 v{208+2*i}, v{cur+i}, v{216+2*i}, 0")
        E(f"v_dot2_f32_bf16 v{209+2*i}, v{cur+i}, v{217+2*i}, 0")
    E("s_nop 0")
    for i in range(4):
        E(f"v_cvt_pk_bf16_f32 v{36+i}, v{208+2*i}, v{209+2*i}")
    if DRY:
        E("s_cmp_lg_u32 s5, 0")
        E("s_cbranch_scc1 K_gmask")
    E("ds_write_b128 v64, v[36:39] offset:1152")
    E("s_cmp_eq_u32 s62, 0")
    E("s_cbranch_scc0 K_tw1")
    E("s_waitcnt vmcnt(5)")
    L("K_tw1")
    E("ds_write_b128 v64, v[32:35]")
    E("s_waitcnt lgkmcnt(0)")
    E("ds_read_b64_tr_b16 v[76:77], v65")
    E("ds_read_b64_tr_b16 v[78:79], v65 offset:576")
    E("ds_read_b64_tr_b16 v[80:81], v65 offset:64")
    E("ds_read_b64_tr_b16 v[82:83], v65 offset:640")
    E("s_waitcnt lgkmcnt(2)")
    E(f"buffer_store_dwordx4 v[76:79], v69, s[{SRD_WS}:{SRD_WS+3}], s70 offen {ZSC}")
    E("s_waitcnt lgkmcnt(0)")
    E(f"buffer_store_dwordx4 v[80:83], v69, s[{SRD_WS}:{SRD_WS+3}], s71 offen {ZSC}")
    E("s_cmp_eq_u32 s62, 1")
    E("s_cbranch_scc1 K_tdone")
    E("s_mov_b32 s62, 1")
    E("s_add_u32 s70, s70, 64")
    E("s_add_u32 s71, s71, 64")
    TSTAMP(4)
    E("s_waitcnt vmcnt(5)")
    TSTAMP(5)
    for i in range(4):
        E(f"v_mov_b32 v{96+i}, v{144+i}")
        E(f"v_mov_b32 v{32+i}, v{148+i}")
    E("s_branch K_tloop")
    L("K_tdone")
    STAMP(2)
    E("s_waitcnt vmcnt(0)")
    post(0)
    L("K_nwait")
    E(f"ds_read_b64 v[92:93], v30 offset:272")
    E("s_waitcnt lgkmcnt(0)")
    E("v_readfirstlane_b32 s56, v92")
    E("v_readfirstlane_b32 s57, v93")
    E("s_cmp_lg_u32 s56, 0")
    E("s_cbranch_scc1 K_nok")
    E("s_sleep 1")
    E("s_branch K_nwait")
    L("K_nok")
    E("s_cmp_lg_u32 s3, 4")
    E("s_cbranch_scc1 K_nopub")
    waitf(0, 4, 8, 144)
    E("s_mov_b64 exec, 1")
    E(f"buffer_store_dwordx2 v[92:93], v227, s[{SRD_WS}:{SRD_WS+3}], s9 offen sc1")
    E("s_mov_b64 exec, -1")
    STAMP(9)
    L("K_nopub")
    E("s_mov_b32 s62, 0")
    L("K_gmask")
    for i in range(4):
        E(f"v_and_b32 v{216+2*i}, s78, v{60+i}")
        E(f"v_and_b32 v{217+2*i}, s43, v{60+i}")
    L("K_gloop")
    for i in range(4):
        E(f"v_dot2_f32_bf16 v{208+2*i}, v{56+i}, v{216+2*i}, 0")
        E(f"v_dot2_f32_bf16 v{209+2*i}, v{56+i}, v{217+2*i}, 0")
    E("s_nop 0")
    for i in range(4):
        E(f"v_cvt_pk_bf16_f32 v{192+i}, v{208+2*i}, v{209+2*i}")
    for i in range(4):
        E(f"v_dot2_f32_bf16 v{208+i}, v{192+i}, s79, 0")
    E("s_nop 2")
    E("v_add_f32 v208, v208, v209")
    E("v_add_f32 v210, v210, v211")
    E("v_add_f32 v74, v208, v210")
    for dpp in ["row_shr:1", "row_shr:2", "row_shr:4", "row_shr:8"]:
        E("s_nop 1")
        E(f"v_add_f32_dpp v74, v74, v74 {dpp} row_mask:0xf bank_mask:0xf bound_ctrl:0")
    E("s_nop 1")
    E("v_add_f32_dpp v74, v74, v74 row_bcast:15 row_mask:0xa bank_mask:0xf")
    E("s_nop 1")
    E("v_add_f32_dpp v74, v74, v74 row_bcast:31 row_mask:0xc bank_mask:0xf")
    E("s_nop 1")
    E("v_cvt_pk_bf16_f32 v74, v74, v74")
    E("v_lshlrev_b32 v74, 16, v74")
    E("v_mul_f32 v74, 0xbfb8aa3b, v74")
    E("v_exp_f32 v74, v74")
    E("s_nop 0")
    E("v_add_f32 v74, 1.0, v74")
    E("v_rcp_f32 v74, v74")
    E("s_nop 0")
    E("v_cvt_pk_bf16_f32 v74, v74, v74")
    E("s_lshl_b32 s72, s67, 1")
    E("s_add_u32 s72, s72, s62")
    E("s_lshl_b32 s72, s72, 1")
    E(f"s_add_u32 s72, s72, {SYN + 256}")
    E("v_mov_b32 v75, s72")
    if DRY:
        E("s_cmp_lg_u32 s5, 0")
        E("s_cbranch_scc1 K_breal")
    E("v_cmp_eq_u32 vcc, 63, v1")
    E("s_and_saveexec_b64 s[74:75], vcc")
    E("ds_write_b16 v75, v74")
    E("s_mov_b64 exec, s[74:75]")
    E("s_cmp_eq_u32 s62, 1")
    E("s_cbranch_scc1 K_bwave")
    E("s_mov_b32 s62, 1")
    for i in range(4):
        E(f"v_mov_b32 v{56+i}, v{152+i}")
    E("s_branch K_gloop")
    L("K_kgen")
    E(f"s_setprio {APRIO}")
    STAMP(2)
    E("v_and_b32 v20, 15, v1")
    E("v_lshrrev_b32 v21, 4, v1")
    E("s_mov_b32 s74, 0x00040000")
    E("s_mov_b32 s75, 0x02000100")
    E("s_mov_b32 s76, 0x00010001")
    E("s_mov_b32 s77, 0x00040002")
    E("s_mov_b32 s78, 0x00020002")
    E("s_mov_b32 s79, 0x01000004")
    E("v_lshrrev_b32 v22, 2, v20")
    E("v_lshlrev_b32 v22, 4, v22")
    E("v_lshrrev_b64 v[32:33], v22, s[74:75]")
    E("v_and_b32 v32, 0xffff, v32")
    E("v_lshrrev_b64 v[34:35], v22, s[76:77]")
    E("v_and_b32 v34, 0xffff, v34")
    E("v_and_b32 v23, 1, v20")
    E("v_mad_u32_u24 v32, v23, v34, v32")
    E("v_lshrrev_b64 v[34:35], v22, s[78:79]")
    E("v_and_b32 v34, 0xffff, v34")
    E("v_bfe_u32 v23, v20, 1, 1")
    E("v_mad_u32_u24 v32, v23, v34, v32")
    E("v_cvt_f32_u32 v24, v32")
    E("v_lshrrev_b32 v33, 7, v32")
    E("v_and_b32 v32, 127, v32")
    E("v_cvt_f32_u32 v16, v33")
    E("v_cvt_f32_u32 v17, v32")
    E("v_add_u32 v32, 8, v20")
    E("v_cvt_f32_u32 v18, v32")
    E("v_mul_f32 v26, 0x43000000, v18")
    E("v_lshlrev_b32 v22, 3, v20")
    E("v_cvt_f32_u32 v27, v22")
    if DRY > 1:
        E("s_mov_b32 s5, 1")
        E("s_mov_b64 exec, 0")
        E("s_branch K_dA")
        L("K_areal")
        E("s_mov_b32 s5, 0")
        E("s_mov_b64 exec, -1")
    E("s_waitcnt lgkmcnt(0)")
    E("s_lshl_b32 s70, s22, 16")
    E("s_and_b32 s22, s22, s43")
    E("s_cmp_eq_u32 s69, 0")
    E("s_cselect_b32 s22, s70, s22")
    E("v_mov_b32 v40, 0x3fb8aa3b")
    E("v_mul_f32 v41, s22, v40")
    E("v_exp_f32 v41, v41")
    E("s_nop 0")
    E("v_cvt_pk_bf16_f32 v41, v41, v41")
    E("v_lshlrev_b32 v41, 16, v41")
    E(f"s_waitcnt vmcnt({2 if TOUCH else 0})")
    L("K_dA")
    for i in range(6):
        E(f"v_lshlrev_b32 v{84+i}, 16, v{84+i}")
    E("v_mul_f32 v84, v41, v84")
    E("v_mul_f32 v85, v41, v85")
    E("v_mul_f32 v86, v41, v86")
    E("v_mul_f32 v87, v41, v87")
    E("v_mul_f32 v44, v40, v84")
    E("v_mul_f32 v45, 0.15915494, v85")
    E("v_rndne_f32 v46, v45")
    E("v_sub_f32 v45, v45, v46")
    E("v_mul_f32 v46, 0x43000000, v45")
    E("v_rndne_f32 v47, v46")
    E("v_sub_f32 v46, v46, v47")
    E("v_mul_f32 v84, 0x43000000, v44")
    E("v_exp_f32 v84, v84")
    E("v_cos_f32 v47, v46")
    E("v_sin_f32 v85, v46")
    E("v_mul_f32 v80, v88, v86")
    E("v_fma_f32 v80, -v89, v87, v80")
    E("v_mul_f32 v81, v88, v87")
    E("v_fma_f32 v81, v89, v86, v81")
    E("v_mul_f32 v47, v84, v47")
    E("v_mul_f32 v82, v84, v85")
    E("s_lshl_b32 s70, s3, 11")
    E(f"s_add_u32 s70, s70, {S_P}")
    E("v_lshl_add_u32 v42, v1, 5, s70")
    E("ds_write_b128 v42, v[44:47]")
    E("ds_write_b128 v42, v[80:83] offset:16")
    E("v_lshl_add_u32 v43, v21, 6, s70")
    for r in range(48, 60):
        E(f"v_mov_b32 v{r}, 0")
    E("s_waitcnt lgkmcnt(0)")
    for k in range(4):
        E(f"ds_read_b128 {R4(60+4*k)}, v43 offset:{16*k}")
    E("s_mov_b32 s62, 0")
    E(f"s_mov_b32 s63, {NA}")
    if DRY > 1:
        E("s_cmp_lg_u32 s5, 0")
        E("s_cselect_b32 s63, 1, s63")
    L("K_loop")
    E("s_waitcnt lgkmcnt(0)")
    TT = [[96, 100, 104, 108], [136, 140, 144, 148]]
    for nn in range(2):
        zr, zi, w128 = 60 + 8 * nn, 61 + 8 * nn, 62 + 8 * nn
        T = TT[nn]
        E(f"v_mul_f32 v{T[3]}, v{zr}, v27")
        E(f"v_mul_f32 v{T[3]+1}, v{zi}, v27")
        E(f"v_mul_f32 v{T[0]}, v{zr}, v24")
        E(f"v_mul_f32 v{T[0]+1}, v{zi}, v17")
        E(f"v_mul_f32 v{T[2]}, v{zr}, v26")
        E(f"v_mul_f32 v{T[2]+1}, v{w128}, v18")
        E(f"v_fma_f32 v{T[0]+1}, v{w128}, v16, v{T[0]+1}")
        for k in range(4):
            E(f"v_mov_b32 v{76+4*nn+k}, v{63+8*nn+k}")
    E("v_add_u32 v43, 256, v43")
    for k in range(4):
        E(f"ds_read_b128 {R4(60+4*k)}, v43 offset:{16*k}")
    for nn in range(2):
        er, cbr, cbi, ei = 76 + 4 * nn, 77 + 4 * nn, 78 + 4 * nn, 79 + 4 * nn
        T = TT[nn]
        for t in [T[3], T[0], T[2]]:
            E(f"v_exp_f32 v{t}, v{t}")
            E(f"v_cos_f32 v{t+2}, v{t+1}")
            E(f"v_sin_f32 v{t+3}, v{t+1}")
        t = T[3]
        E(f"v_mul_f32 v{t+2}, v{t}, v{t+2}")
        E(f"v_mul_f32 v{t+3}, v{t}, v{t+3}")
        E(f"v_mul_f32 v{t}, v{cbr}, v{t+2}")
        E(f"v_mul_f32 v{t+1}, v{cbr}, v{t+3}")
        E(f"v_fma_f32 v{t}, -v{cbi}, v{t+3}, v{t}")
        E(f"v_fma_f32 v{t+3}, -v{cbi}, v{t+2}, -v{t+1}")
        E(f"v_mov_b32 v{t+2}, v{t}")
        for t in [T[0], T[2]]:
            E(f"v_mul_f32 v{t+2}, v{t}, v{t+2}")
            E(f"v_mul_f32 v{t+3}, v{t}, v{t+3}")
        p, q = T[0], T[1]
        E(f"v_mul_f32 v{q+2}, v{p+2}, v{er}")
        E(f"v_mul_f32 v{q+3}, v{p+2}, v{ei}")
        E(f"v_fma_f32 v{q+2}, -v{p+3}, v{ei}, v{q+2}")
        E(f"v_fma_f32 v{q+3}, v{p+3}, v{er}, v{q+3}")
        for k in range(4):
            t = T[k]
            hi = (112 + 2 * k + nn) if k < 3 else (124 + nn)
            lo = (118 + 2 * k + nn) if k < 3 else (126 + nn)
            E(f"v_cvt_pk_bf16_f32 v{hi}, v{t+2}, v{t+3}")
            E(f"v_lshlrev_b32 v{t}, 16, v{hi}")
            E(f"v_and_b32 v{t+1}, s43, v{hi}")
            E(f"v_sub_f32 v{t}, v{t+2}, v{t}")
            E(f"v_sub_f32 v{t+1}, v{t+3}, v{t+1}")
            E(f"v_cvt_pk_bf16_f32 v{lo}, v{t}, v{t+1}")
    E("s_add_u32 s62, s62, 1")
    E(f"s_cmp_eq_u32 s62, {LATE}")
    for k in range(3):
        a_ = 48 + 4 * k
        E(f"v_mfma_f32_16x16x16_bf16 {R4(a_)}, v[{112+2*k}:{113+2*k}], v[124:125], {R4(a_)}")
        E(f"v_mfma_f32_16x16x16_bf16 {R4(a_)}, v[{112+2*k}:{113+2*k}], v[126:127], {R4(a_)}")
        E(f"v_mfma_f32_16x16x16_bf16 {R4(a_)}, v[{118+2*k}:{119+2*k}], v[124:125], {R4(a_)}")
    E("s_cbranch_scc0 K_nost")
    E("s_lshl_b32 s70, s64, 13")
    E("s_lshl_b32 s71, s3, 11")
    E("s_add_u32 s70, s70, s71")
    E(f"s_mul_i32 s71, s69, {XROW}")
    E("s_lshl_b32 s72, s61, 11")
    E("s_add_u32 s71, s71, s72")
    E(f"s_add_u32 s71, s71, {XBASE + 4*XROW + 32}")
    E("s_mov_b32 m0, s71")
    E("s_nop 0")
    E(f"buffer_load_dwordx4 v9, s[{SRD_A}:{SRD_A+3}], s70 offen lds")
    E(f"buffer_load_dwordx4 v9, s[{SRD_A}:{SRD_A+3}], s70 offen offset:1024 lds")
    L("K_nost")
    E("s_cmp_lg_u32 s3, 0")
    E("s_cbranch_scc1 K_non")
    E("s_cmp_eq_u32 s62, 1")
    E("s_cbranch_scc0 K_non1")
    E(f"buffer_load_dwordx2 v[92:93], v95, s[{SRD_DBGB}:{SRD_DBGB+3}], 0 offen sc1")
    L("K_non1")
    E("s_cmp_eq_u32 s62, 2")
    E("s_cbranch_scc0 K_non")
    E("s_mov_b32 s70, 0")
    L("K_npoll")
    E("s_waitcnt vmcnt(0)")
    E("v_readfirstlane_b32 s71, v92")
    E("s_add_u32 s70, s70, 1")
    E("s_cmp_lg_u32 s71, 0")
    E("s_cbranch_scc1 K_ngot")
    E("s_sleep 4")
    E(f"buffer_load_dwordx2 v[92:93], v95, s[{SRD_DBGB}:{SRD_DBGB+3}], 0 offen sc1")
    E("s_cmp_lt_u32 s70, 0x40000")
    E("s_cbranch_scc1 K_npoll")
    E("s_waitcnt vmcnt(0)")
    E("v_mov_b32 v92, 1")
    L("K_ngot")
    E("ds_write_b64 v30, v[92:93] offset:272")
    L("K_non")
    E(f"s_cmp_eq_u32 s62, {LATE+3}")
    E("s_cbranch_scc0 K_nost2")
    E("s_waitcnt vmcnt(0)")
    post(0)
    L("K_nost2")
    E("s_cmp_lt_u32 s62, s63")
    E("s_cbranch_scc1 K_loop")
    E("s_waitcnt lgkmcnt(0)")
    STAMP(3)
    E("s_mul_i32 s70, s3, 3072")
    E(f"s_add_u32 s70, s70, {S_TR}")
    E("v_lshl_add_u32 v39, v1, 4, s70")
    E("v_and_b32 v4, 15, v1")
    E("v_lshrrev_b32 v5, 4, v1")
    E("v_lshlrev_b32 v6, 2, v4")
    E("v_add_u32 v6, v6, v5")
    E("s_nop 1")
    for k in range(3):
        E(f"ds_write_b128 v39, {R4(48+4*k)} offset:{1024*k}")
    post(1)
    E("s_mul_i32 s70, s69, 12288")
    E(f"s_add_u32 s70, s70, {S_KT}")
    E("v_lshlrev_b32 v32, 5, v20")
    E("v_add_u32 v32, s70, v32")
    E("v_lshl_add_u32 v44, v21, 11, v32")
    E("v_add_u32 v44, 4096, v44")
    E("v_add_u32 v45, 512, v44")
    E("v_add_u32 v46, 1024, v44")
    E("v_add_u32 v47, 1536, v44")
    E("v_lshlrev_b32 v22, 4, v21")
    E("v_lshrrev_b64 v[60:61], v22, s[74:75]")
    E("v_and_b32 v60, 0xffff, v60")
    E("v_lshl_add_u32 v35, v60, 2, v32")
    E("s_lshl_b32 s71, s61, 9")
    E("v_add_u32 v35, s71, v35")
    E("v_lshrrev_b64 v[60:61], v22, s[76:77]")
    E("v_and_b32 v60, 0xffff, v60")
    E("v_lshl_add_u32 v36, v60, 2, v35")
    E("v_lshrrev_b64 v[62:63], v22, s[78:79]")
    E("v_and_b32 v62, 0xffff, v62")
    E("v_lshl_add_u32 v37, v62, 2, v35")
    E("v_lshl_add_u32 v38, v62, 2, v36")
    E("s_mul_i32 s70, s69, 6144")
    E(f"s_add_u32 s70, s70, {S_TR}")
    E("v_lshl_add_u32 v39, v1, 4, s70")
    E("s_lshl_b32 s71, s61, 10")
    E("v_add_u32 v40, s71, v39")
    E("s_lshl_b32 s71, s61, 9")
    E("v_lshl_add_u32 v60, v1, 3, s71")
    E("s_mul_i32 s70, s69, 12288")
    E(f"s_add_u32 s70, s70, {S_KT}")
    for rr in range(2):
        for e in range(0, 8, 2):
            E(f"v_add_u32 v62, {e + 1024*rr}, v60")
            E(f"v_add_u32 v63, {e + 1 + 1024*rr}, v60")
            E("v_cvt_f32_u32 v62, v62")
            E("v_cvt_f32_u32 v63, v63")
            E("v_cvt_pk_bf16_f32 v62, v62, v63")
            E("v_and_b32 v63, s43, v62")
            E("v_lshlrev_b32 v62, 16, v62")
            E("v_cvt_u32_f32 v62, v62")
            E("v_cvt_u32_f32 v63, v63")
            E(f"v_lshl_add_u32 v{64+8*rr+e}, v62, 2, s70")
            E(f"v_lshl_add_u32 v{65+8*rr+e}, v63, 2, s70")
    E(f"s_mul_i32 s70, s69, {XROW}")
    E(f"s_add_u32 s70, s70, {XBASE + 32}")
    E("v_lshl_add_u32 v61, v60, 1, s70")
    RSTAMP(1)
    waitf(1, 0, 4, 96)
    RSTAMP(2)
    srcoff = [0, 3072]
    for k in range(2):
        E(f"ds_read_b128 {R4(96+4*k)}, v40 offset:{srcoff[k]}")
    for k in range(2):
        E(f"ds_read_b128 {R4(112+4*k)}, v39 offset:{srcoff[k] + 2048}")
    for (b, dst, w) in [(96, 35, 2), (112, 44, 0)]:
        E(f"s_waitcnt lgkmcnt({w})")
        for e in range(4):
            E(f"v_add_f32 v{b+e}, v{b+e}, v{b+4+e}")
    for (b, dst) in [(96, 35), (112, 44)]:
        for e in range(4):
            E(f"ds_write_b32 v{dst+e}, v{b+e}")
    post(2)
    RSTAMP(4)
    waitf(2, 0, 4, 96)
    RSTAMP(6)
    for e in range(16):
        E(f"ds_read_b32 v{96+e}, v{64+e}")
    for rr in range(2):
        for e in range(0, 8, 2):
            src = 96 + 8 * rr + e
            E(f"s_waitcnt lgkmcnt({14 - 8*rr - e})")
            E(f"v_cvt_pk_bf16_f32 v{112+8*rr+e//2}, v{src}, v{src+1}")
            E(f"v_lshlrev_b32 v62, 16, v{112+8*rr+e//2}")
            E(f"v_and_b32 v63, s43, v{112+8*rr+e//2}")
            E(f"v_sub_f32 v62, v{src}, v62")
            E(f"v_sub_f32 v63, v{src+1}, v63")
            E(f"v_cvt_pk_bf16_f32 v{116+8*rr+e//2}, v62, v63")
    for rr in range(2):
        E(f"ds_write_b128 v61, {R4(112+8*rr)} offset:{2048*rr}")
        E(f"ds_write_b128 v61, {R4(116+8*rr)} offset:{2*XROW + 2048*rr}")
    post(3)
    RSTAMP(7)
    STAMP(4)
    E("s_branch K_csetup")
    L("K_bwave")
    post(1)
    STAMP(3)
    E("s_cmp_lg_u32 s3, 5")
    E("s_cbranch_scc1 K_norec")
    waitf(1, 4, 8, 144)
    E(f"ds_read_b64 v[144:145], v225 offset:{SYN + 256}")
    E("v_mov_b32 v146, s56")
    E("v_mov_b32 v147, s57")
    E("s_waitcnt lgkmcnt(0)")
    E("s_mov_b64 exec, 3")
    E(f"buffer_store_dwordx4 v[144:147], v227, s[{SRD_WS}:{SRD_WS+3}], s8 offen sc1")
    E("s_mov_b64 exec, -1")
    L("K_norec")
    if not ALLPOLL:
        E("s_cmp_lg_u32 s3, 4")
        E("s_cbranch_scc1 K_pwait")
    E("s_mov_b32 s70, 0")
    L("K_poll")
    E(f"buffer_load_dwordx2 v[112:113], v226, s[{SRD_WS}:{SRD_WS+3}], s7 offen sc1")
    E("s_waitcnt vmcnt(0)")
    E("v_xor_b32 v112, s56, v112")
    E("v_xor_b32 v113, s57, v113")
    E("v_or_b32 v112, v112, v113")
    E("v_cmp_ne_u32 vcc, 0, v112")
    E("s_add_u32 s70, s70, 1")
    E("s_cmp_eq_u64 vcc, 0")
    E("s_cbranch_scc1 K_pok")
    E(f"s_sleep {PSLEEP}")
    E("s_cmp_lt_u32 s70, 0x40000")
    E("s_cbranch_scc1 K_poll")
    L("K_pok")
    post(5)
    E("s_branch K_pdone")
    L("K_pwait")
    E(f"ds_read_b32 v93, v30 offset:{32*5 + 16}")
    E("s_waitcnt lgkmcnt(0)")
    E("v_readfirstlane_b32 s70, v93")
    E("s_cmp_eq_u32 s70, 1")
    E("s_cbranch_scc1 K_pdone")
    E("s_sleep 1")
    E("s_branch K_pwait")
    L("K_pdone")
    STAMP(4)
    for p in range(4):
        E(f"buffer_load_dwordx4 {R4(192+4*p)}, v9, s[{SRD_WS}:{SRD_WS+3}], s6 offen offset:{1024*p} sc1")
    for k in range(5):
        E(f"v_mov_b32 v{16+k}, v{228+k}")
    finsetup(0)
    waitf(0, 0, 4, 24)
    preloadA(1)
    for p in range(4):
        E(f"s_waitcnt vmcnt({3-p})")
        E(f"ds_write_b128 v224, {R4(192+4*p)} offset:{64*p}")
    post(4)
    E(f"s_setprio {CBPRIO}")
    E("s_branch K_convB")
    L("K_csetup")
    vB, vA, vPM, vPC, vF = 16, 17, 18, 19, 20
    E("s_lshl_b32 s70, s3, 1")
    E(f"s_mul_i32 s70, s70, {ZROW}")
    E(f"s_add_u32 s70, s70, {ZBASE + 8}")
    E(f"v_lshlrev_b32 v{vB}, 3, v4")
    E(f"v_lshl_add_u32 v{vB}, v5, 4, v{vB}")
    E(f"v_add_u32 v{vB}, s70, v{vB}")
    E("v_and_b32 v22, 3, v1")
    E("v_bfe_u32 v23, v1, 2, 2")
    E("v_sub_u32 v22, v22, v23")
    E("v_lshlrev_b32 v22, 3, v22")
    E("v_lshlrev_b32 v23, 6, v5")
    E("v_sub_u32 v22, v22, v23")
    E("s_lshl_b32 s70, s68, 2")
    E("s_add_u32 s70, s70, s69")
    E(f"s_mul_i32 s70, s70, {XROW}")
    E(f"s_add_u32 s70, s70, {XBASE + 224}")
    E(f"v_add_u32 v{vA}, s70, v22")
    E("s_cmp_eq_u32 s68, 0")
    E(f"s_mov_b32 s71, {PB}")
    E(f"s_cselect_b32 s71, {PA}, s71")
    E(f"s_mul_i32 s70, s67, {PMS}")
    E("s_add_u32 s70, s70, s71")
    E("s_add_u32 s72, s70, 16")
    E(f"v_lshl_add_u32 v{vPM}, v1, 4, s72")
    E(f"s_mul_i32 s72, s67, {PCS}")
    E("s_add_u32 s72, s72, s71")
    E(f"s_add_u32 s72, s72, {4*PMS}")
    E("s_add_u32 s73, s72, 16")
    E(f"v_lshl_add_u32 v{vPC}, v1, 2, s73")
    E("s_lshl_b32 s73, s3, 2")
    E(f"s_add_u32 s73, s73, {FLG}")
    E(f"v_mov_b32 v{vF}, s73")
    E("v_mov_b32 v22, s70")
    E("v_mov_b32 v23, s72")
    if DRY > 1:
        E("s_cmp_lg_u32 s5, 0")
        E("s_cbranch_scc1 K_areal")
    RSTAMP(8)
    waitf(3, 0, 4, 24)
    RSTAMP(9)
    E("v_mov_b32 v24, 0")
    E("v_mov_b32 v25, 0")
    E("v_mov_b32 v26, 0")
    E("v_mov_b32 v27, 0")
    E("ds_write_b128 v22, v[24:27]")
    E("ds_write_b128 v23, v[24:27]")
    finsetup(7)
    waitf(7, 4, 8, 24)
    preloadA(2)
    waitf(4, 4, 8, 24)
    E("s_setprio 0")
    STAMP(5)

    def acc(pp, q):
        return 192 + 32 * pp + 4 * q
    def Bf(pp, jj):
        return 32 + 4 * ((jj % 4) * 2 + pp)
    def conv(nx):
        def Af(n, x):
            return 64 + 4 * (n * nx + x)
        queue = []
        def rdB(jj):
            for pp in range(2):
                b = Bf(pp, jj)
                E(f"ds_read_b64 v[{b}:{b+1}], v{vB} offset:{pp*ZROW + 64*jj}")
                E(f"ds_read_b64 v[{b+2}:{b+3}], v{vB} offset:{pp*ZROW + 64*jj + 8}")
                queue.extend([("B", jj, pp), ("B", jj, pp)])
        def need(keys):
            last = -1
            for idx, k in enumerate(queue):
                if k in keys:
                    last = idx
            if last >= 0:
                n_after = min(len(queue) - 1 - last, 15)
                E(f"s_waitcnt lgkmcnt({n_after})")
                del queue[:len(queue) - n_after]
        def mf(pp, q, jj, x, first=False):
            n = 2 * q - jj + 1
            c = "0" if first else R4(acc(pp, q))
            E(f"v_mfma_f32_16x16x32_bf16 {R4(acc(pp,q))}, {R4(Af(n,x))}, {R4(Bf(pp,jj))}, {c}")
        def writeout(q):
            a0, a1 = acc(0, q), acc(1, q)
            E(f"v_add_f32 v{a0+1}, v{a0+1}, v{a1}")
            E(f"v_add_f32 v{a0+2}, v{a0+2}, v{a1+1}")
            E(f"v_add_f32 v{a0+3}, v{a0+3}, v{a1+2}")
            E(f"ds_write_b32 v{vPC}, v{a1+3} offset:{256*q}")
            E(f"ds_write_b128 v{vPM}, {R4(a0)} offset:{1024*q}")
            E(f"ds_write_b32 v{vF}, v29 offset:{32*q}")
            queue.extend([("W",), ("W",), ("W",)])
        rdB(0); rdB(1); rdB(2)
        for jj in range(16):
            q0 = jj >> 1
            k = 0
            for q in range(q0, 8):
                for pp in range(2):
                    if q == q0:
                        need({("B", jj, pp)})
                    for x in range(nx):
                        mf(pp, q, jj, x, first=(jj == 0 and x == 0))
                k += 1
                if k == 1 and jj + 3 < 16:
                    rdB(jj + 3)
                if jj % 2 == 0 and jj >= 2 and q == min(q0 + 1, 7):
                    if jj == 14:
                        E("s_nop 3")
                    writeout(q0 - 1)
        E("s_nop 7")
        writeout(7)
    conv(2)
    STAMP(6)
    E("s_branch K_fin")
    L("K_convB")
    waitf(4, 4, 8, 24)
    E(f"buffer_load_dwordx4 v[12:15], v9, s[{SRD_WS}:{SRD_WS+3}], s60 offen sc1")
    E(f"buffer_load_dwordx4 v[24:27], v9, s[{SRD_WS}:{SRD_WS+3}], s60 offen offset:1024 sc1")
    STAMP(5)
    conv(1)
    STAMP(6)
    E("s_mov_b32 s70, 0")
    L("K_gpoll")
    E("s_waitcnt vmcnt(0)")
    E("v_xor_b32 v14, s56, v14")
    E("v_xor_b32 v15, s57, v15")
    E("v_xor_b32 v26, s56, v26")
    E("v_xor_b32 v27, s57, v27")
    E("v_or_b32 v14, v14, v15")
    E("v_or_b32 v26, v26, v27")
    E("v_or_b32 v14, v14, v26")
    E("v_cmp_ne_u32 vcc, 0, v14")
    E("s_add_u32 s70, s70, 1")
    E("s_cmp_eq_u64 vcc, 0")
    E("s_cbranch_scc1 K_gok")
    E("s_cmp_ge_u32 s70, 0x40000")
    E("s_cbranch_scc1 K_gok")
    E("s_sleep 8")
    E(f"buffer_load_dwordx4 v[12:15], v9, s[{SRD_WS}:{SRD_WS+3}], s60 offen sc1")
    E(f"buffer_load_dwordx4 v[24:27], v9, s[{SRD_WS}:{SRD_WS+3}], s60 offen offset:1024 sc1")
    E("s_branch K_gpoll")
    L("K_gok")
    for (src, dst) in [(12, 32), (24, 36)]:
        for hh in range(2):
            E(f"v_lshlrev_b32 v{dst+2*hh}, 16, v{src+hh}")
            E(f"v_and_b32 v{dst+2*hh+1}, s43, v{src+hh}")
        for e in range(4):
            E(f"v_sub_f32 v40, 1.0, v{dst+e}")
            E(f"v_cvt_pk_bf16_f32 v{dst+e}, v{dst+e}, v40")
    E("ds_write_b128 v10, v[32:35]")
    E("ds_write_b128 v10, v[36:39] offset:1024")
    post(6)
    if FINPRIO:
        E(f"s_setprio {FINPRIO}")
    L("K_fin")
    waitf(6, 4, 8, 32)
    L("K_hloop")
    for r in range(48, 52):
        E(f"v_mov_b32 v{r}, 0")
    for k in range(4):
        E(f"ds_read_u16_d16_hi v{48+k}, v21 offset:{ZBASE + 4*k*ZROW + 128}")
    E("ds_read_b32 v8, v7")
    L("K_hpoll")
    E("ds_read_b128 v[32:35], v23")
    E("ds_read_b128 v[36:39], v23 offset:16")
    E("s_waitcnt lgkmcnt(0)")
    for k in range(0, 8, 2):
        E(f"v_and_b32 v{32+k}, v{32+k}, v{33+k}")
    E("v_and_b32 v32, v32, v34")
    E("v_and_b32 v36, v36, v38")
    E("v_and_b32 v32, v32, v36")
    E("s_nop 0")
    E("v_readfirstlane_b32 s70, v32")
    E("s_cmp_eq_u32 s70, 1")
    E("s_cbranch_scc1 K_go")
    E("s_sleep 3")
    E("s_branch K_hpoll")
    L("K_go")
    for k in range(4):
        X, c = k >> 1, k & 1
        base = PSTRIDE if X == 0 else 0
        E(f"ds_read_b32 v{32+k}, v2 offset:{base + 2*c*PMS}")
        E(f"ds_read_b32 v{36+k}, v3 offset:{base + 2*c*PMS}")
        E(f"ds_read_b32 v{40+k}, v11 offset:{base + 2*c*PCS}")
    def rnd(a, b):
        E(f"v_cvt_pk_bf16_f32 v{a}, v{a}, v{b}")
        E(f"v_and_b32 v{b}, s43, v{a}")
        E(f"v_lshlrev_b32 v{a}, 16, v{a}")
    yA0, yA1, yB0, yB1 = 32, 33, 34, 35
    u0, u1, k0, k1 = 48, 49, 50, 51
    t = 52
    E(f"v_mul_f32 v{t}, s76, v{u0}")
    E(f"v_mul_f32 v{t+1}, s77, v{u1}")
    E(f"v_mul_f32 v{t+2}, s78, v{k0}")
    E(f"v_mul_f32 v{t+3}, s79, v{k1}")
    rnd(t, t + 1)
    rnd(t + 2, t + 3)
    E(f"v_lshlrev_b32 v{t+4}, 16, v8")
    E(f"v_and_b32 v{t+5}, s43, v8")
    E("v_add_u32 v2, 1024, v2")
    E("v_add_u32 v3, 1024, v3")
    E("v_add_u32 v11, s75, v11")
    E("v_add_u32 v21, 128, v21")
    E("v_add_u32 v23, 32, v23")
    E("v_add_u32 v7, 1024, v7")
    for k in range(4):
        E(f"s_waitcnt lgkmcnt({9-3*k})")
        E(f"v_add_f32 v{32+k}, v{32+k}, v{36+k}")
        E(f"v_add_f32 v{32+k}, v{32+k}, v{40+k}")
    rnd(yA0, yA1)
    rnd(yB0, yB1)
    E(f"v_add_f32 v{yA0}, v{yA0}, v{t}")
    E(f"v_add_f32 v{yA1}, v{yA1}, v{t+1}")
    E(f"v_add_f32 v{yB0}, v{yB0}, v{t+2}")
    E(f"v_add_f32 v{yB1}, v{yB1}, v{t+3}")
    rnd(yA0, yA1)
    rnd(yB0, yB1)
    E(f"v_mul_f32 v{yB0}, v{u0}, v{yB0}")
    E(f"v_mul_f32 v{yB1}, v{u1}, v{yB1}")
    rnd(yB0, yB1)
    E(f"v_mul_f32 v{yA0}, v{t+4}, v{yA0}")
    E(f"v_mul_f32 v{yA1}, v{t+4}, v{yA1}")
    E(f"v_mul_f32 v{yB0}, v{t+5}, v{yB0}")
    E(f"v_mul_f32 v{yB1}, v{t+5}, v{yB1}")
    rnd(yA0, yA1)
    rnd(yB0, yB1)
    E(f"v_add_f32 v{yA0}, v{yA0}, v{yB0}")
    E(f"v_add_f32 v{yA1}, v{yA1}, v{yB1}")
    E(f"v_cvt_pk_bf16_f32 v{yA0}, v{yA0}, v{yA1}")
    E(f"buffer_store_dword v{yA0}, v22, s[{SRD_OUT}:{SRD_OUT+3}], s72 offen")
    E("v_add_u32 v22, 0x40000, v22")
    E("s_add_u32 s73, s73, 1")
    E("s_cmp_lt_u32 s73, s74")
    E("s_cbranch_scc1 K_hloop")
    STAMP(7)
    if DBG: E("s_waitcnt vmcnt(0)")
    STAMP(8)
    if "--pro" in sys.argv:
        E("s_waitcnt lgkmcnt(0)")
        for i in range(3, 8): E(f"s_mov_b32 s{80+2*i}, s{1+i}")
    DUMP(10, SRD_WS)
    L("K_end")
    E("s_endpgm")
    sg = 102 if DBG else 80
    return f""".amdhsa_kernel {name}
  .amdhsa_next_free_vgpr 256
  .amdhsa_next_free_sgpr {sg}
  .amdhsa_accum_offset 256
  .amdhsa_group_segment_fixed_size 0
  .amdhsa_kernarg_size 152
  .amdhsa_user_sgpr_count 2
  .amdhsa_user_sgpr_kernarg_segment_ptr 1
  .amdhsa_system_sgpr_workgroup_id_x 1
  .amdhsa_float_denorm_mode_32 3
.end_amdhsa_kernel"""

def main():
    hdr = HEADER.rstrip("\n")
    pre = [hdr,
           f"; @launch grid=(256,1,1) block=(512,1,1) lds={LDS_SIZE}",
           '.amdgcn_target "amdgcn-amd-amdhsa--gfx950"',
           ".text"]
    k = gen()
    txt = "\n".join(pre + out) + '\n.section .rodata,"a"\n.p2align 6\n' + k + "\n"
    args = [a for a in sys.argv[1:] if not a.startswith("--")]
    path = args[0] if args else "cdna_kernels/%s.s" % NAME
    open(path, "w").write(txt)

main()
```

```python
import sys

NAME = "gated_mix__ssm_conv_s4__ssm_conv_h3__prompt"
HEADER = open("cdna_kernels/%s.s.ref" % NAME).read().split("; Override launch")[0]
DBG = "--dbg" in sys.argv
def opt(name, default):
    for a in sys.argv:
        if a.startswith("--" + name + "="):
            return int(a.split("=")[1])
    return default
NA = 8
NB = 8 - NA
FINPRIO = opt("finprio", 2)
PSLEEP = opt("psleep", 8)
TOUCH = opt("touch", 0)
LATE = opt("late", 3)
DRY = opt("dry", 0)
KLDS = opt("klds", 1)
TSH = opt("tsh", 16)
ZSC = ["sc1", "sc0 sc1", "sc1 nt"][opt("zsc", 0)]
ALLPOLL = opt("allpoll", 0)
CBPRIO = opt("cbprio", 2)
APRIO = opt("aprio", 2)
POLLSC = ["sc1", "sc0 sc1", "sc1 nt"][opt("pollsc", 1)]

out = []
def E(s=""):
    out.append("    " + s)
def L(s):
    out.append(s + ":")

WS_Z = 0
WS_G = 4 << 20
WS_F = WS_G + 8192
WS_SIZE = (4 << 20) + 16384
WS_DBG = 16 << 20
if DBG:
    WS_SIZE = 32 << 20

ZROW = 1152
ZBASE = 0
XBASE = 16 * ZROW
XROW = 4128
GB = XBASE + 6 * XROW
FLG = GB + 8192
SYN = FLG + 256
PMS = 8192 + 16
PCS = 2048 + 16
PB = SYN + 288
PA = PB + 4 * PMS + 4 * PCS
PSTRIDE = PA - PB
S_KT = PA
S_P = S_KT + 24576
S_K = S_P + 8192
S_TR = S_K + 9216
LDS_SIZE = S_TR + 8 * 3072
assert LDS_SIZE <= 163840 and PA + PSTRIDE <= LDS_SIZE
def PMa(X, w4):
    return (PA if X == 0 else PB) + w4 * PMS
def PCa(X, w4):
    return (PA if X == 0 else PB) + 4 * PMS + w4 * PCS

TD = "--tiledbg" in sys.argv
RD = "--reddbg" in sys.argv
def RSTAMP(i):
    if DBG and RD:
        E(f"s_memtime s[{80+2*i}:{81+2*i}]")
def TSTAMP(i):
    if DBG and TD:
        E(f"s_memtime s[{80+2*i}:{81+2*i}]")
def STAMP(i):
    if TD and i in (3, 4, 5, 6, 7): return
    if RD and i in (1, 2, 4, 6, 7, 8, 9): return
    if DBG:
        E(f"s_memtime s[{80+2*i}:{81+2*i}]")
def DUMP(n, srdreg):
    if DBG:
        E("s_waitcnt lgkmcnt(0)")
        E("s_mov_b64 exec, 1")
        E("s_lshl_b32 s100, s2, 4")
        E("s_add_u32 s100, s100, s3")
        E("s_lshl_b32 s100, s100, 6")
        E(f"s_add_u32 s100, s100, {WS_DBG}")
        for i in range(n):
            E(f"v_mov_b32 v2, s{80+2*i}")
            E(f"v_mov_b32 v3, {4*i}")
            E(f"buffer_store_dword v2, v3, s[{srdreg}:{srdreg+3}], s100 offen")
            E("s_nop 1")

def srd(sd, sp, nbytes):
    E(f"s_mov_b32 s{sd}, s{sp}")
    E(f"s_and_b32 s{sd+1}, s{sp+1}, 0xffff")
    E(f"s_mov_b32 s{sd+2}, {hex(nbytes)}")
    E(f"s_mov_b32 s{sd+3}, 0x00020000")
def R4(r):
    return f"v[{r}:{r+3}]"
SRD_WS, SRD_OUT, SRD_DBGB, SRD_A, SRD_B = 44, 48, 52, 56, 60

lblc = [0]
def post(kind):
    E(f"ds_write_b32 v28, v29 offset:{32*kind}")
def waitf(kind, lo, hi, t0=24):
    lblc[0] += 1
    n = lblc[0]
    if DRY > 1:
        E("s_cmp_lg_u32 s5, 0")
        E(f"s_cbranch_scc1 W{n}_d")
    L(f"W{n}_p")
    if hi - lo == 4:
        E(f"ds_read_b128 v[{t0}:{t0+3}], v30 offset:{32*kind + 4*lo}")
        E("s_waitcnt lgkmcnt(0)")
        E(f"v_and_b32 v{t0}, v{t0}, v{t0+1}")
        E(f"v_and_b32 v{t0+2}, v{t0+2}, v{t0+3}")
        E(f"v_and_b32 v{t0}, v{t0}, v{t0+2}")
    else:
        E(f"ds_read_b128 v[{t0}:{t0+3}], v30 offset:{32*kind}")
        E(f"ds_read_b128 v[{t0+4}:{t0+7}], v30 offset:{32*kind + 16}")
        E("s_waitcnt lgkmcnt(0)")
        for k in range(0, 8, 2):
            E(f"v_and_b32 v{t0+k}, v{t0+k}, v{t0+k+1}")
        E(f"v_and_b32 v{t0}, v{t0}, v{t0+2}")
        E(f"v_and_b32 v{t0+4}, v{t0+4}, v{t0+6}")
        E(f"v_and_b32 v{t0}, v{t0}, v{t0+4}")
    E("s_nop 0")
    E(f"v_readfirstlane_b32 s4, v{t0}")
    E("s_cmp_eq_u32 s4, 1")
    E(f"s_cbranch_scc1 W{n}_d")
    E("s_sleep 1")
    E(f"s_branch W{n}_p")
    L(f"W{n}_d")

def preloadA(nx):
    for n in range(16):
        for x in range(nx):
            a = 64 + 4 * (n * nx + x)
            off = 256 * n + x * 2 * XROW
            E(f"ds_read_b64_tr_b16 v[{a}:{a+1}], v17 offset:{off+32}")
            E(f"ds_read_b64_tr_b16 v[{a+2}:{a+3}], v17 offset:{off}")

def finsetup(q0):
    E(f"s_mov_b32 s73, {q0}")
    E("v_subrev_u32 v24, 16, v1")
    E("v_add_u32 v25, 47, v1")
    E("v_cmp_eq_u32 vcc, 0, v1")
    E("s_nop 1")
    E("v_cndmask_b32 v25, v25, -1, vcc")
    E("v_cmp_gt_u32 vcc, 16, v1")
    E("s_lshl_b32 s74, s73, 6")
    E("s_nop 0")
    E("v_cndmask_b32 v24, v24, v25, vcc")
    E("v_add_u32 v24, s74, v24")
    E("v_add_u32 v26, s74, v1")
    E("v_add_u32 v6, s74, v6")
    E("s_lshl_b32 s70, s67, 2")
    E(f"s_add_u32 s70, s70, {PB + 16}")
    E("v_lshl_add_u32 v2, v26, 4, s70")
    E("s_add_u32 s70, s67, 2")
    E("s_and_b32 s70, s70, 3")
    E("s_lshl_b32 s70, s70, 2")
    E(f"s_add_u32 s70, s70, {PB + 16 + PMS}")
    E("s_cmp_lt_u32 s67, 2")
    E("s_cselect_b64 vcc, -1, 0")
    E("v_cndmask_b32 v25, v26, v24, vcc")
    E("v_lshl_add_u32 v3, v25, 4, s70")
    E("s_lshr_b32 s70, s67, 1")
    E(f"s_mul_i32 s70, s70, {PCS}")
    E(f"s_add_u32 s70, s70, {PB + 4*PMS + 16}")
    E("v_lshl_add_u32 v11, v24, 2, s70")
    E("s_and_b32 s70, s67, 1")
    E("s_cmp_eq_u32 s70, 0")
    E("s_cselect_b64 vcc, -1, 0")
    E("s_cselect_b32 s75, 256, 0")
    E(f"v_mov_b32 v25, {PB + 4*PMS}")
    E("v_cndmask_b32 v11, v25, v11, vcc")
    E(f"s_mul_i32 s70, s67, {ZROW}")
    E("v_lshl_add_u32 v21, v6, 1, s70")
    E("s_lshl_b32 s70, s67, 10")
    E("v_lshl_add_u32 v22, v6, 12, s70")
    E("s_lshl_b32 s70, s67, 2")
    E(f"s_add_u32 s70, s70, {GB}")
    E("v_lshl_add_u32 v7, v6, 4, s70")
    E("s_lshl_b32 s70, s73, 5")
    E(f"s_add_u32 s70, s70, {FLG}")
    E("v_mov_b32 v23, s70")
    E("s_lshl_b32 s72, s64, 2")
    E("s_lshl_b32 s76, s23, 16")
    E("s_and_b32 s77, s23, s43")
    E("s_lshl_b32 s78, s42, 16")
    E("s_and_b32 s79, s42, s43")
    E("s_sub_u32 s74, 8, s68")

def gen():
    name = NAME + "_kernel"
    out.append(f".globl {name}\n.p2align 8\n.type {name},@function")
    L(name)
    E("s_cmp_ge_u32 s2, 256")
    E("s_cbranch_scc1 K_end")
    STAMP(0)
    E("s_setprio 3")
    E("s_load_dwordx16 s[4:19], s[0:1], 0")
    E("s_load_dwordx2 s[20:21], s[0:1], 64")
    E("s_load_dwordx8 s[24:31], s[0:1], 80")
    E("s_load_dwordx8 s[32:39], s[0:1], 112")
    E("s_load_dwordx2 s[40:41], s[0:1], 144")
    E("v_lshrrev_b32 v1, 6, v0")
    E("s_nop 0")
    E("v_readfirstlane_b32 s3, v1")
    E("v_and_b32 v1, 63, v0")
    E("s_and_b32 s64, s2, 7")
    E("s_lshl_b32 s65, s64, 2")
    E("s_lshl_b32 s64, s64, 5")
    E("s_lshr_b32 s66, s2, 3")
    E("s_add_u32 s64, s64, s66")
    E("s_and_b32 s66, s66, 3")
    E("s_add_u32 s65, s65, s66")
    E("s_lshr_b32 s66, s2, 5")
    E("s_and_b32 s67, s3, 3")
    E("s_lshr_b32 s68, s3, 2")
    E("s_bfe_u32 s69, s3, 0x10001")
    E("v_mov_b32 v12, 0")
    E("v_mov_b32 v13, 0")
    E("v_mov_b32 v14, 0")
    E("v_mov_b32 v15, 0")
    E("v_and_b32 v2, 31, v1")
    E("v_lshlrev_b32 v2, 4, v2")
    E(f"ds_write_b128 v2, v[12:15] offset:{FLG}")
    E(f"ds_write_b128 v2, v[12:15] offset:{FLG + 32}")
    E("s_lshl_b32 s70, s3, 2")
    E(f"s_add_u32 s70, s70, {SYN}")
    E("v_mov_b32 v28, s70")
    E("v_mov_b32 v29, 1")
    E("v_mov_b32 v95, 0")
    E(f"v_mov_b32 v30, {SYN}")
    E("s_lshl_b32 s70, s65, 6")
    E("s_add_u32 s70, s70, s67")
    E("s_lshl_b32 s70, s70, 10")
    E("s_lshl_b32 s71, s66, 7")
    E("s_add_u32 s70, s70, s71")
    E("v_lshrrev_b32 v2, 3, v1")
    E("v_and_b32 v3, 7, v1")
    E("v_lshlrev_b32 v4, 12, v2")
    E("v_lshl_add_u32 v4, v3, 4, v4")
    E("v_add_u32 v4, s70, v4")
    E("v_subrev_u32 v5, 1024, v4")
    E("v_subrev_u32 v6, 2048, v4")
    E("v_subrev_u32 v7, 3072, v4")
    E("s_lshl_b32 s71, s66, 9")
    E("v_lshl_add_u32 v8, v3, 6, s71")
    E("s_lshl_b32 s72, s65, 6")
    E("s_lshl_b32 s71, s66, 3")
    E("s_add_u32 s72, s72, s71")
    E("s_lshl_b32 s71, s67, 1")
    E("s_add_u32 s72, s72, s71")
    E("s_lshl_b32 s73, s72, 10")
    E("v_lshlrev_b32 v9, 4, v1")
    E("s_and_b32 s74, s3, 1")
    E(f"s_mul_i32 s75, s74, {8*NA}")
    E(f"s_mul_i32 s76, s74, {8*NB}")
    E(f"s_add_u32 s76, s76, {16*NA}")
    E("s_cmp_eq_u32 s68, 0")
    E("s_cselect_b32 s75, s75, s76")
    E("s_lshl_b32 s70, s64, 1")
    E("s_add_u32 s70, s70, s69")
    E("s_lshl_b32 s70, s70, 7")
    E("s_add_u32 s70, s70, s75")
    E("s_lshl_b32 s70, s70, 1")
    E("v_lshl_add_u32 v11, v1, 1, s70")
    if "--pro" in sys.argv: STAMP(3)
    E("s_waitcnt lgkmcnt(0)")
    if "--pro" in sys.argv: STAMP(4)
    E("s_add_u32 s70, s2, s3")
    E("s_cmp_lg_u32 s70, 0")
    E("s_cbranch_scc1 K_nononce")
    E("s_memrealtime s[70:71]")
    srd(SRD_DBGB, 38, 256)
    E("s_waitcnt lgkmcnt(0)")
    E("s_or_b32 s70, s70, 1")
    E("v_mov_b32 v100, s70")
    E("v_mov_b32 v101, s71")
    E("s_mov_b64 exec, 1")
    E(f"buffer_store_dwordx2 v[100:101], v95, s[{SRD_DBGB}:{SRD_DBGB+3}], 0 offen sc1")
    E("s_mov_b64 exec, -1")
    L("K_nononce")
    E("s_barrier")
    E("s_cmp_eq_u32 s68, 0")
    E("s_cbranch_scc1 K_noTL")
    srd(SRD_A, 24, 2 << 20)
    srd(SRD_B, 26, 2 << 20)
    E("s_mov_b32 s70, 0x8000")
    E("v_lshlrev_b32 v5, 10, v2")
    E("v_lshl_add_u32 v5, v3, 4, v5")
    E("s_lshl_b32 s71, s65, 6")
    E("s_lshl_b32 s74, s67, 3")
    E("s_add_u32 s71, s71, s74")
    E("s_sub_u32 s71, s71, 8")
    E("s_lshl_b32 s71, s71, 10")
    E("s_lshl_b32 s74, s66, 7")
    E("s_add_u32 s71, s71, s74")
    E("v_add_u32 v5, s71, v5")
    E("v_add_u32 v6, s70, v5")
    E("v_add_u32 v7, s70, v6")
    E("s_lshl_b32 s74, s67, 10")
    E(f"s_add_u32 s74, s74, {S_K}")
    E("s_mov_b32 m0, s74")
    E("s_add_u32 s74, s74, 4096")
    E(f"buffer_load_dwordx4 v5, s[{SRD_A}:{SRD_A+3}], 0 offen lds")
    E("s_mov_b32 m0, s74")
    E("s_add_u32 s74, s74, 4096")
    E(f"buffer_load_dwordx4 v6, s[{SRD_A}:{SRD_A+3}], 0 offen lds")
    E("s_cmp_lg_u32 s67, 0")
    E("s_cbranch_scc1 K_nok3")
    E("s_mov_b32 m0, s74")
    E("s_nop 0")
    E(f"buffer_load_dwordx4 v7, s[{SRD_A}:{SRD_A+3}], 0 offen lds")
    L("K_nok3")
    E(f"buffer_load_dwordx4 v[96:99], v4, s[{SRD_B}:{SRD_B+3}], 0 offen")
    srd(SRD_WS, 28, 4096)
    srd(SRD_OUT, 4, 2 << 20)
    for i in range(4):
        E(f"buffer_load_dwordx4 v[{40+4*i}:{43+4*i}], v8, s[{SRD_WS}:{SRD_WS+3}], 0 offen offset:{16*i}")
    E(f"buffer_load_dwordx4 v[32:35], v4, s[{SRD_OUT}:{SRD_OUT+3}], 0 offen")
    E("v_add_u32 v4, s70, v4")
    E(f"buffer_load_dwordx4 v[144:147], v4, s[{SRD_B}:{SRD_B+3}], 0 offen")
    E(f"buffer_load_dwordx4 v[148:151], v4, s[{SRD_OUT}:{SRD_OUT+3}], 0 offen")
    E(f"buffer_load_dwordx4 v[56:59], v9, s[{SRD_OUT}:{SRD_OUT+3}], s73 offen")
    E(f"buffer_load_dwordx4 v[152:155], v9, s[{SRD_OUT}:{SRD_OUT+3}], s73 offen offset:1024")
    srd(SRD_A, 34, 1024)
    E(f"buffer_load_dwordx4 v[60:63], v9, s[{SRD_A}:{SRD_A+3}], 0 offen")
    E("s_branch K_noPL")
    L("K_noTL")
    for i, sp in enumerate([6, 8, 10, 12, 14, 16]):
        sd = SRD_A if i % 2 == 0 else SRD_B
        srd(sd, sp, 131072)
        E(f"buffer_load_ushort v{84+i}, v11, s[{sd}:{sd+3}], 0 offen")
    if TOUCH:
        E(f"v_lshlrev_b32 v200, {TSH}, v1")
        E("s_cmp_eq_u32 s3, 0")
        E("s_cbranch_scc0 K_tc1")
        srd(SRD_A, 40, WS_SIZE)
        E(f"buffer_load_dword v201, v200, s[{SRD_A}:{SRD_A+3}], 0 offen")
        E(f"s_mov_b32 s70, {WS_G}")
        E(f"buffer_load_dword v202, v95, s[{SRD_A}:{SRD_A+3}], s70 offen")
        E("s_branch K_tc4")
        L("K_tc1")
        E("s_cmp_eq_u32 s3, 1")
        E("s_cbranch_scc0 K_tc2")
        srd(SRD_A, 36, 2 << 20)
        E(f"buffer_load_dword v201, v200, s[{SRD_A}:{SRD_A+3}], 0 offen")
        srd(SRD_B, 38, 256)
        E(f"buffer_load_dword v202, v95, s[{SRD_B}:{SRD_B+3}], 0 offen")
        E("s_branch K_tc4")
        L("K_tc2")
        E("s_cmp_eq_u32 s3, 2")
        E("s_cbranch_scc0 K_tc3")
        srd(SRD_A, 4, 2 << 20)
        E(f"buffer_load_dword v201, v200, s[{SRD_A}:{SRD_A+3}], 0 offen")
        srd(SRD_B, 24, 2 << 20)
        E(f"buffer_load_dword v202, v200, s[{SRD_B}:{SRD_B+3}], 0 offen")
        E("s_branch K_tc4")
        L("K_tc3")
        srd(SRD_A, 26, 2 << 20)
        E(f"buffer_load_dword v201, v200, s[{SRD_A}:{SRD_A+3}], 0 offen")
        srd(SRD_B, 34, 1024)
        E(f"buffer_load_dword v202, v95, s[{SRD_B}:{SRD_B+3}], 0 offen")
        L("K_tc4")
    L("K_noPL")
    srd(SRD_A, 30, 2 << 20)
    E("s_lshl_b32 s74, s64, 2")
    if "--pro" in sys.argv: STAMP(6)
    E("s_load_dword s22, s[18:19], s74")
    E("s_load_dword s23, s[20:21], s74")
    E("s_load_dword s42, s[32:33], s74")
    srd(SRD_WS, 40, WS_SIZE)
    srd(SRD_OUT, 36, 2 << 20)
    srd(SRD_DBGB, 38, 256)
    E("s_mov_b32 s43, 0xffff0000")
    E("s_mov_b32 s5, 0")
    E("s_and_b32 s61, s3, 1")
    if "--pro" in sys.argv:
        STAMP(7)
        E("s_waitcnt lgkmcnt(0)")
        for i in range(3, 8): E(f"s_mov_b32 s{1+i}, s{80+2*i}")
    E("s_cmp_eq_u32 s68, 0")
    E("s_cbranch_scc1 K_kgen")
    E("s_mul_i32 s70, s3, 3072")
    E(f"s_add_u32 s70, s70, {S_TR}")
    E("v_mul_u32_u24 v64, 144, v2")
    E("v_lshl_add_u32 v64, v3, 4, v64")
    E("v_add_u32 v64, s70, v64")
    E("v_lshrrev_b32 v66, 4, v1")
    E("v_and_b32 v67, 1, v66")
    E("v_lshrrev_b32 v66, 1, v66")
    E("v_bfe_u32 v68, v1, 2, 2")
    E("v_and_b32 v69, 3, v1")
    E("v_mul_u32_u24 v65, 1152, v67")
    E("v_mul_u32_u24 v68, 144, v68")
    E("v_add_u32 v65, v65, v68")
    E("v_lshl_add_u32 v65, v66, 5, v65")
    E("v_lshl_add_u32 v65, v69, 3, v65")
    E("v_add_u32 v65, s70, v65")
    E("v_and_b32 v68, 15, v1")
    E("v_lshl_add_u32 v68, v66, 4, v68")
    E("v_lshrrev_b32 v69, 2, v68")
    E("v_lshlrev_b32 v69, 15, v69")
    E("v_bfe_u32 v66, v68, 1, 1")
    E("v_lshl_add_u32 v69, v66, 6, v69")
    E("v_and_b32 v68, 1, v68")
    E("v_lshl_add_u32 v69, v68, 4, v69")
    E("v_lshl_add_u32 v69, v67, 5, v69")
    E("s_lshl_b32 s70, s66, 19")
    E("s_lshl_b32 s71, s65, 10")
    E("s_add_u32 s70, s70, s71")
    E("s_lshl_b32 s71, s67, 8")
    E("s_add_u32 s70, s70, s71")
    E("s_add_u32 s71, s70, 0x40000")
    E("s_mov_b32 s62, 0")
    E("s_mov_b32 s76, 0x00003f80")
    E("s_mov_b32 s77, 0x3f800000")
    E("s_mov_b32 s78, 0x0000ffff")
    E("s_mov_b32 s79, 0x3f803f80")
    if DRY:
        E("s_mov_b32 s5, 1")
        E("s_mov_b64 exec, 0")
        E("s_branch K_tmask")
        L("K_breal")
        E("s_mov_b32 s5, 0")
        E("s_mov_b64 exec, -1")
        E("s_mov_b32 s62, 0")
    E("v_and_b32 v224, 3, v1")
    E("v_bfe_u32 v225, v1, 3, 2")
    E("v_lshl_add_u32 v224, v224, 2, v225")
    E(f"v_mul_u32_u24 v224, {ZROW}, v224")
    E("v_bfe_u32 v225, v1, 2, 1")
    E("v_lshl_add_u32 v224, v225, 4, v224")
    E("v_lshrrev_b32 v225, 5, v1")
    E("v_lshl_add_u32 v224, v225, 5, v224")
    E("s_lshl_b32 s74, s67, 8")
    E(f"s_add_u32 s74, s74, {ZBASE + 128}")
    E("v_add_u32 v224, s74, v224")
    E("s_lshr_b32 s6, s64, 1")
    E("s_lshl_b32 s6, s6, 15")
    E("s_lshl_b32 s74, s67, 13")
    E("s_add_u32 s6, s6, s74")
    E("s_and_b32 s74, s64, 1")
    E("s_lshl_b32 s74, s74, 6")
    E("s_add_u32 s6, s6, s74")
    E("s_add_u32 s13, s6, 4096")
    E("v_lshrrev_b32 v233, 2, v1")
    E("v_lshlrev_b32 v233, 7, v233")
    E("v_and_b32 v225, 3, v1")
    E("v_lshl_add_u32 v233, v225, 4, v233")
    E("s_lshl_b32 s74, s67, 11")
    E(f"v_add_u32 v10, {GB}, v9")
    E("v_add_u32 v10, s74, v10")
    E(f"s_add_u32 s60, s74, {WS_G}")
    E("v_and_b32 v226, 31, v1")
    E("v_lshlrev_b32 v226, 5, v226")
    E("s_and_b32 s7, s2, 7")
    E("s_lshl_b32 s7, s7, 10")
    E(f"s_add_u32 s7, s7, {WS_F}")
    E("v_and_b32 v227, 1, v1")
    E("v_lshlrev_b32 v225, 3, v227")
    E("v_lshlrev_b32 v227, 4, v227")
    E("s_lshl_b32 s8, s65, 3")
    E("s_add_u32 s8, s8, s66")
    E("s_lshl_b32 s8, s8, 5")
    E(f"s_add_u32 s8, s8, {WS_G}")
    E("s_lshl_b32 s9, s66, 5")
    E("s_add_u32 s9, s9, s65")
    E("s_lshl_b32 s9, s9, 5")
    E(f"s_add_u32 s9, s9, {WS_F}")
    E("v_mov_b32 v100, 0")
    E("v_mov_b32 v101, 0")
    E("v_mov_b32 v102, 0")
    E("v_mov_b32 v103, 0")
    E("v_bfe_u32 v104, v1, 3, 2")
    E(f"v_mul_u32_u24 v104, {ZROW}, v104")
    E("v_and_b32 v105, 7, v1")
    E("v_lshl_add_u32 v104, v105, 4, v104")
    E(f"s_mul_i32 s74, s67, {4*ZROW}")
    E("v_add_u32 v104, s74, v104")
    E("ds_write_b128 v104, v[100:103]")
    E("v_min_u32 v104, 11, v1")
    E("v_lshrrev_b32 v105, 1, v104")
    E(f"v_mul_u32_u24 v105, {XROW}, v105")
    E("v_and_b32 v104, 1, v104")
    E("v_lshl_add_u32 v104, v104, 4, v105")
    E(f"ds_write_b128 v104, v[100:103] offset:{XBASE}")
    E(f"s_mul_i32 s74, s67, {PMS}")
    E(f"s_add_u32 s74, s74, {PB}")
    E("v_mov_b32 v104, s74")
    E("ds_write_b128 v104, v[100:103]")
    E("s_add_u32 s74, s74, 16")
    E("v_lshl_add_u32 v230, v1, 4, s74")
    E(f"s_mul_i32 s74, s67, {PCS}")
    E(f"s_add_u32 s74, s74, {PB + 4*PMS}")
    E("v_mov_b32 v105, s74")
    E("ds_write_b128 v105, v[100:103]")
    E("s_add_u32 s74, s74, 16")
    E("v_lshl_add_u32 v231, v1, 2, s74")
    E("v_and_b32 v4, 15, v1")
    E("v_lshrrev_b32 v5, 4, v1")
    E("v_lshlrev_b32 v6, 2, v4")
    E("v_add_u32 v6, v6, v5")
    E("s_lshl_b32 s74, s3, 1")
    E(f"s_mul_i32 s74, s74, {ZROW}")
    E(f"s_add_u32 s74, s74, {ZBASE + 8}")
    E("v_lshlrev_b32 v228, 3, v4")
    E("v_lshl_add_u32 v228, v5, 4, v228")
    E("v_add_u32 v228, s74, v228")
    E("v_and_b32 v104, 3, v1")
    E("v_bfe_u32 v105, v1, 2, 2")
    E("v_sub_u32 v104, v104, v105")
    E("v_lshlrev_b32 v104, 3, v104")
    E("v_lshlrev_b32 v105, 6, v5")
    E("v_sub_u32 v104, v104, v105")
    E("s_add_u32 s74, s69, 4")
    E(f"s_mul_i32 s74, s74, {XROW}")
    E(f"s_add_u32 s74, s74, {XBASE + 224}")
    E("v_add_u32 v229, s74, v104")
    E("s_lshl_b32 s74, s3, 2")
    E(f"s_add_u32 s74, s74, {FLG}")
    E("v_mov_b32 v232, s74")
    E("v_lshlrev_b32 v70, 9, v2")
    E("v_lshl_add_u32 v70, v3, 4, v70")
    E("s_lshl_b32 s74, s67, 7")
    E(f"s_add_u32 s74, s74, {S_K + 1024 - 384}")
    E("v_add_u32 v70, s74, v70")
    E("s_waitcnt vmcnt(11)")
    post(7)
    E("s_waitcnt vmcnt(6)")
    STAMP(1)
    L("K_tmask")
    for t in range(4):
        for i in range(4):
            r0 = 40 + 4 * i + (t >> 1)
            r1 = 40 + 4 * i + 2 + (t >> 1)
            d = 160 + (t * 4 + i) * 2
            if t & 1:
                E(f"v_lshrrev_b32 v{d}, 16, v{r0}")
                E(f"v_and_b32 v{d+1}, s43, v{r1}")
            else:
                E(f"v_and_b32 v{d}, s78, v{r0}")
                E(f"v_lshlrev_b32 v{d+1}, 16, v{r1}")
    waitf(7, 4, 8, 72)
    TSTAMP(3)
    L("K_tloop")
    for t in range(4):
        E(f"ds_read_b128 {R4(12+4*t)}, v70 offset:{384 - 128*t}")
    E("v_add_u32 v70, 4096, v70")
    E("s_waitcnt lgkmcnt(0)")
    for t in range(4):
        for i in range(4):
            kr = 12 + 4 * t + i
            d = 160 + (t * 4 + i) * 2
            E(f"v_dot2_f32_bf16 v{208+2*i}, v{kr}, v{d}, 0")
            E(f"v_dot2_f32_bf16 v{209+2*i}, v{kr}, v{d+1}, 0")
        E("s_nop 0")
        for i in range(4):
            E(f"v_cvt_pk_bf16_f32 v{192+4*t+i}, v{208+2*i}, v{209+2*i}")
    cur = 192 + 12
    for t in (2, 1, 0):
        for i in range(4):
            E(f"v_lshlrev_b32 v{208+2*i}, 16, v{cur+i}")
            E(f"v_and_b32 v{209+2*i}, s43, v{cur+i}")
        for i in range(4):
            E(f"v_dot2_f32_bf16 v{208+2*i}, v{192+4*t+i}, s76, v{208+2*i}")
            E(f"v_dot2_f32_bf16 v{209+2*i}, v{192+4*t+i}, s77, v{209+2*i}")
        E("s_nop 0")
        for i in range(4):
            E(f"v_cvt_pk_bf16_f32 v{cur+i}, v{208+2*i}, v{209+2*i}")
    for i in range(4):
        E(f"v_and_b32 v{216+2*i}, s78, v{96+i}")
        E(f"v_and_b32 v{217+2*i}, s43, v{96+i}")
    for i in range(4):
        E(f"v_dot2_f32_bf16 v{208+2*i}, v{cur+i}, v{216+2*i}, 0")
        E(f"v_dot2_f32_bf16 v{209+2*i}, v{cur+i}, v{217+2*i}, 0")
    E("s_nop 0")
    for i in range(4):
        E(f"v_cvt_pk_bf16_f32 v{36+i}, v{208+2*i}, v{209+2*i}")
    if DRY:
        E("s_cmp_lg_u32 s5, 0")
        E("s_cbranch_scc1 K_gmask")
    E("ds_write_b128 v64, v[36:39] offset:1152")
    E("s_cmp_eq_u32 s62, 0")
    E("s_cbranch_scc0 K_tw1")
    E("s_waitcnt vmcnt(5)")
    L("K_tw1")
    E("ds_write_b128 v64, v[32:35]")
    E("s_waitcnt lgkmcnt(0)")
    E("ds_read_b64_tr_b16 v[76:77], v65")
    E("ds_read_b64_tr_b16 v[78:79], v65 offset:576")
    E("ds_read_b64_tr_b16 v[80:81], v65 offset:64")
    E("ds_read_b64_tr_b16 v[82:83], v65 offset:640")
    E("s_waitcnt lgkmcnt(2)")
    E(f"buffer_store_dwordx4 v[76:79], v69, s[{SRD_WS}:{SRD_WS+3}], s70 offen {ZSC}")
    E("s_waitcnt lgkmcnt(0)")
    E(f"buffer_store_dwordx4 v[80:83], v69, s[{SRD_WS}:{SRD_WS+3}], s71 offen {ZSC}")
    E("s_cmp_eq_u32 s62, 1")
    E("s_cbranch_scc1 K_tdone")
    E("s_mov_b32 s62, 1")
    E("s_add_u32 s70, s70, 128")
    E("s_add_u32 s71, s71, 128")
    TSTAMP(4)
    E("s_waitcnt vmcnt(5)")
    TSTAMP(5)
    for i in range(4):
        E(f"v_mov_b32 v{96+i}, v{144+i}")
        E(f"v_mov_b32 v{32+i}, v{148+i}")
    E("s_branch K_tloop")
    L("K_tdone")
    STAMP(2)
    E("s_waitcnt vmcnt(0)")
    post(0)
    L("K_nwait")
    E(f"ds_read_b64 v[92:93], v30 offset:272")
    E("s_waitcnt lgkmcnt(0)")
    E("v_readfirstlane_b32 s56, v92")
    E("v_readfirstlane_b32 s57, v93")
    E("s_cmp_lg_u32 s56, 0")
    E("s_cbranch_scc1 K_nok")
    E("s_sleep 1")
    E("s_branch K_nwait")
    L("K_nok")
    E("s_cmp_lg_u32 s3, 4")
    E("s_cbranch_scc1 K_nopub")
    waitf(0, 4, 8, 144)
    E("s_mov_b64 exec, 1")
    E(f"buffer_store_dwordx2 v[92:93], v227, s[{SRD_WS}:{SRD_WS+3}], s9 offen sc1")
    E("s_mov_b64 exec, -1")
    STAMP(9)
    L("K_nopub")
    E("s_mov_b32 s62, 0")
    L("K_gmask")
    for i in range(4):
        E(f"v_and_b32 v{216+2*i}, s78, v{60+i}")
        E(f"v_and_b32 v{217+2*i}, s43, v{60+i}")
    L("K_gloop")
    for i in range(4):
        E(f"v_dot2_f32_bf16 v{208+2*i}, v{56+i}, v{216+2*i}, 0")
        E(f"v_dot2_f32_bf16 v{209+2*i}, v{56+i}, v{217+2*i}, 0")
    E("s_nop 0")
    for i in range(4):
        E(f"v_cvt_pk_bf16_f32 v{192+i}, v{208+2*i}, v{209+2*i}")
    for i in range(4):
        E(f"v_dot2_f32_bf16 v{208+i}, v{192+i}, s79, 0")
    E("s_nop 2")
    E("v_add_f32 v208, v208, v209")
    E("v_add_f32 v210, v210, v211")
    E("v_add_f32 v74, v208, v210")
    for dpp in ["row_shr:1", "row_shr:2", "row_shr:4", "row_shr:8"]:
        E("s_nop 1")
        E(f"v_add_f32_dpp v74, v74, v74 {dpp} row_mask:0xf bank_mask:0xf bound_ctrl:0")
    E("s_nop 1")
    E("v_add_f32_dpp v74, v74, v74 row_bcast:15 row_mask:0xa bank_mask:0xf")
    E("s_nop 1")
    E("v_add_f32_dpp v74, v74, v74 row_bcast:31 row_mask:0xc bank_mask:0xf")
    E("s_nop 1")
    E("v_cvt_pk_bf16_f32 v74, v74, v74")
    E("v_lshlrev_b32 v74, 16, v74")
    E("v_mul_f32 v74, 0xbfb8aa3b, v74")
    E("v_exp_f32 v74, v74")
    E("s_nop 0")
    E("v_add_f32 v74, 1.0, v74")
    E("v_rcp_f32 v74, v74")
    E("s_nop 0")
    E("v_cvt_pk_bf16_f32 v74, v74, v74")
    E("s_lshl_b32 s72, s67, 1")
    E("s_add_u32 s72, s72, s62")
    E("s_lshl_b32 s72, s72, 1")
    E(f"s_add_u32 s72, s72, {SYN + 256}")
    E("v_mov_b32 v75, s72")
    if DRY:
        E("s_cmp_lg_u32 s5, 0")
        E("s_cbranch_scc1 K_breal")
    E("v_cmp_eq_u32 vcc, 63, v1")
    E("s_and_saveexec_b64 s[74:75], vcc")
    E("ds_write_b16 v75, v74")
    E("s_mov_b64 exec, s[74:75]")
    E("s_cmp_eq_u32 s62, 1")
    E("s_cbranch_scc1 K_bwave")
    E("s_mov_b32 s62, 1")
    for i in range(4):
        E(f"v_mov_b32 v{56+i}, v{152+i}")
    E("s_branch K_gloop")
    L("K_kgen")
    E(f"s_setprio {APRIO}")
    STAMP(2)
    E("v_and_b32 v20, 15, v1")
    E("v_lshrrev_b32 v21, 4, v1")
    E("s_mov_b32 s74, 0x00040000")
    E("s_mov_b32 s75, 0x02000100")
    E("s_mov_b32 s76, 0x00010001")
    E("s_mov_b32 s77, 0x00040002")
    E("s_mov_b32 s78, 0x00020002")
    E("s_mov_b32 s79, 0x01000004")
    E("v_lshrrev_b32 v22, 2, v20")
    E("v_lshlrev_b32 v22, 4, v22")
    E("v_lshrrev_b64 v[32:33], v22, s[74:75]")
    E("v_and_b32 v32, 0xffff, v32")
    E("v_lshrrev_b64 v[34:35], v22, s[76:77]")
    E("v_and_b32 v34, 0xffff, v34")
    E("v_and_b32 v23, 1, v20")
    E("v_mad_u32_u24 v32, v23, v34, v32")
    E("v_lshrrev_b64 v[34:35], v22, s[78:79]")
    E("v_and_b32 v34, 0xffff, v34")
    E("v_bfe_u32 v23, v20, 1, 1")
    E("v_mad_u32_u24 v32, v23, v34, v32")
    E("v_cvt_f32_u32 v24, v32")
    E("v_lshrrev_b32 v33, 7, v32")
    E("v_and_b32 v32, 127, v32")
    E("v_cvt_f32_u32 v16, v33")
    E("v_cvt_f32_u32 v17, v32")
    E("v_add_u32 v32, 8, v20")
    E("v_cvt_f32_u32 v18, v32")
    E("v_mul_f32 v26, 0x43000000, v18")
    E("v_lshlrev_b32 v22, 3, v20")
    E("v_cvt_f32_u32 v27, v22")
    if DRY > 1:
        E("s_mov_b32 s5, 1")
        E("s_mov_b64 exec, 0")
        E("s_branch K_dA")
        L("K_areal")
        E("s_mov_b32 s5, 0")
        E("s_mov_b64 exec, -1")
    E("s_waitcnt lgkmcnt(0)")
    E("s_lshl_b32 s70, s22, 16")
    E("s_and_b32 s22, s22, s43")
    E("s_cmp_eq_u32 s69, 0")
    E("s_cselect_b32 s22, s70, s22")
    E("v_mov_b32 v40, 0x3fb8aa3b")
    E("v_mul_f32 v41, s22, v40")
    E("v_exp_f32 v41, v41")
    E("s_nop 0")
    E("v_cvt_pk_bf16_f32 v41, v41, v41")
    E("v_lshlrev_b32 v41, 16, v41")
    E(f"s_waitcnt vmcnt({2 if TOUCH else 0})")
    L("K_dA")
    for i in range(6):
        E(f"v_lshlrev_b32 v{84+i}, 16, v{84+i}")
    E("v_mul_f32 v84, v41, v84")
    E("v_mul_f32 v85, v41, v85")
    E("v_mul_f32 v86, v41, v86")
    E("v_mul_f32 v87, v41, v87")
    E("v_mul_f32 v44, v40, v84")
    E("v_mul_f32 v45, 0.15915494, v85")
    E("v_rndne_f32 v46, v45")
    E("v_sub_f32 v45, v45, v46")
    E("v_mul_f32 v46, 0x43000000, v45")
    E("v_rndne_f32 v47, v46")
    E("v_sub_f32 v46, v46, v47")
    E("v_mul_f32 v84, 0x43000000, v44")
    E("v_exp_f32 v84, v84")
    E("v_cos_f32 v47, v46")
    E("v_sin_f32 v85, v46")
    E("v_mul_f32 v80, v88, v86")
    E("v_fma_f32 v80, -v89, v87, v80")
    E("v_mul_f32 v81, v88, v87")
    E("v_fma_f32 v81, v89, v86, v81")
    E("v_mul_f32 v47, v84, v47")
    E("v_mul_f32 v82, v84, v85")
    E("s_lshl_b32 s70, s3, 11")
    E(f"s_add_u32 s70, s70, {S_P}")
    E("v_lshl_add_u32 v42, v1, 5, s70")
    E("ds_write_b128 v42, v[44:47]")
    E("ds_write_b128 v42, v[80:83] offset:16")
    E("v_lshl_add_u32 v43, v21, 6, s70")
    for r in range(48, 60):
        E(f"v_mov_b32 v{r}, 0")
    E("s_waitcnt lgkmcnt(0)")
    for k in range(4):
        E(f"ds_read_b128 {R4(60+4*k)}, v43 offset:{16*k}")
    E("s_mov_b32 s62, 0")
    E(f"s_mov_b32 s63, {NA}")
    if DRY > 1:
        E("s_cmp_lg_u32 s5, 0")
        E("s_cselect_b32 s63, 1, s63")
    L("K_loop")
    E("s_waitcnt lgkmcnt(0)")
    TT = [[96, 100, 104, 108], [136, 140, 144, 148]]
    for nn in range(2):
        zr, zi, w128 = 60 + 8 * nn, 61 + 8 * nn, 62 + 8 * nn
        T = TT[nn]
        E(f"v_mul_f32 v{T[3]}, v{zr}, v27")
        E(f"v_mul_f32 v{T[3]+1}, v{zi}, v27")
        E(f"v_mul_f32 v{T[0]}, v{zr}, v24")
        E(f"v_mul_f32 v{T[0]+1}, v{zi}, v17")
        E(f"v_mul_f32 v{T[2]}, v{zr}, v26")
        E(f"v_mul_f32 v{T[2]+1}, v{w128}, v18")
        E(f"v_fma_f32 v{T[0]+1}, v{w128}, v16, v{T[0]+1}")
        for k in range(4):
            E(f"v_mov_b32 v{76+4*nn+k}, v{63+8*nn+k}")
    E("v_add_u32 v43, 256, v43")
    for k in range(4):
        E(f"ds_read_b128 {R4(60+4*k)}, v43 offset:{16*k}")
    for nn in range(2):
        er, cbr, cbi, ei = 76 + 4 * nn, 77 + 4 * nn, 78 + 4 * nn, 79 + 4 * nn
        T = TT[nn]
        for t in [T[3], T[0], T[2]]:
            E(f"v_exp_f32 v{t}, v{t}")
            E(f"v_cos_f32 v{t+2}, v{t+1}")
            E(f"v_sin_f32 v{t+3}, v{t+1}")
        t = T[3]
        E(f"v_mul_f32 v{t+2}, v{t}, v{t+2}")
        E(f"v_mul_f32 v{t+3}, v{t}, v{t+3}")
        E(f"v_mul_f32 v{t}, v{cbr}, v{t+2}")
        E(f"v_mul_f32 v{t+1}, v{cbr}, v{t+3}")
        E(f"v_fma_f32 v{t}, -v{cbi}, v{t+3}, v{t}")
        E(f"v_fma_f32 v{t+3}, -v{cbi}, v{t+2}, -v{t+1}")
        E(f"v_mov_b32 v{t+2}, v{t}")
        for t in [T[0], T[2]]:
            E(f"v_mul_f32 v{t+2}, v{t}, v{t+2}")
            E(f"v_mul_f32 v{t+3}, v{t}, v{t+3}")
        p, q = T[0], T[1]
        E(f"v_mul_f32 v{q+2}, v{p+2}, v{er}")
        E(f"v_mul_f32 v{q+3}, v{p+2}, v{ei}")
        E(f"v_fma_f32 v{q+2}, -v{p+3}, v{ei}, v{q+2}")
        E(f"v_fma_f32 v{q+3}, v{p+3}, v{er}, v{q+3}")
        for k in range(4):
            t = T[k]
            hi = (112 + 2 * k + nn) if k < 3 else (124 + nn)
            lo = (118 + 2 * k + nn) if k < 3 else (126 + nn)
            E(f"v_cvt_pk_bf16_f32 v{hi}, v{t+2}, v{t+3}")
            E(f"v_lshlrev_b32 v{t}, 16, v{hi}")
            E(f"v_and_b32 v{t+1}, s43, v{hi}")
            E(f"v_sub_f32 v{t}, v{t+2}, v{t}")
            E(f"v_sub_f32 v{t+1}, v{t+3}, v{t+1}")
            E(f"v_cvt_pk_bf16_f32 v{lo}, v{t}, v{t+1}")
    E("s_add_u32 s62, s62, 1")
    E(f"s_cmp_eq_u32 s62, {LATE}")
    for k in range(3):
        a_ = 48 + 4 * k
        E(f"v_mfma_f32_16x16x16_bf16 {R4(a_)}, v[{112+2*k}:{113+2*k}], v[124:125], {R4(a_)}")
        E(f"v_mfma_f32_16x16x16_bf16 {R4(a_)}, v[{112+2*k}:{113+2*k}], v[126:127], {R4(a_)}")
        E(f"v_mfma_f32_16x16x16_bf16 {R4(a_)}, v[{118+2*k}:{119+2*k}], v[124:125], {R4(a_)}")
    E("s_cbranch_scc0 K_nost")
    E("s_lshl_b32 s70, s64, 13")
    E("s_lshl_b32 s71, s3, 11")
    E("s_add_u32 s70, s70, s71")
    E(f"s_mul_i32 s71, s69, {XROW}")
    E("s_lshl_b32 s72, s61, 11")
    E("s_add_u32 s71, s71, s72")
    E(f"s_add_u32 s71, s71, {XBASE + 4*XROW + 32}")
    E("s_mov_b32 m0, s71")
    E("s_nop 0")
    E(f"buffer_load_dwordx4 v9, s[{SRD_A}:{SRD_A+3}], s70 offen lds")
    E(f"buffer_load_dwordx4 v9, s[{SRD_A}:{SRD_A+3}], s70 offen offset:1024 lds")
    L("K_nost")
    E("s_cmp_lg_u32 s3, 0")
    E("s_cbranch_scc1 K_non")
    E("s_cmp_eq_u32 s62, 1")
    E("s_cbranch_scc0 K_non1")
    E(f"buffer_load_dwordx2 v[92:93], v95, s[{SRD_DBGB}:{SRD_DBGB+3}], 0 offen sc1")
    L("K_non1")
    E("s_cmp_eq_u32 s62, 2")
    E("s_cbranch_scc0 K_non")
    E("s_mov_b32 s70, 0")
    L("K_npoll")
    E("s_waitcnt vmcnt(0)")
    E("v_readfirstlane_b32 s71, v92")
    E("s_add_u32 s70, s70, 1")
    E("s_cmp_lg_u32 s71, 0")
    E("s_cbranch_scc1 K_ngot")
    E("s_sleep 4")
    E(f"buffer_load_dwordx2 v[92:93], v95, s[{SRD_DBGB}:{SRD_DBGB+3}], 0 offen sc1")
    E("s_cmp_lt_u32 s70, 0x40000")
    E("s_cbranch_scc1 K_npoll")
    E("s_waitcnt vmcnt(0)")
    E("v_mov_b32 v92, 1")
    L("K_ngot")
    E("ds_write_b64 v30, v[92:93] offset:272")
    L("K_non")
    E(f"s_cmp_eq_u32 s62, {LATE+3}")
    E("s_cbranch_scc0 K_nost2")
    E("s_waitcnt vmcnt(0)")
    post(0)
    L("K_nost2")
    E("s_cmp_lt_u32 s62, s63")
    E("s_cbranch_scc1 K_loop")
    E("s_waitcnt lgkmcnt(0)")
    STAMP(3)
    E("s_mul_i32 s70, s3, 3072")
    E(f"s_add_u32 s70, s70, {S_TR}")
    E("v_lshl_add_u32 v39, v1, 4, s70")
    E("v_and_b32 v4, 15, v1")
    E("v_lshrrev_b32 v5, 4, v1")
    E("v_lshlrev_b32 v6, 2, v4")
    E("v_add_u32 v6, v6, v5")
    E("s_nop 1")
    for k in range(3):
        E(f"ds_write_b128 v39, {R4(48+4*k)} offset:{1024*k}")
    post(1)
    E("s_mul_i32 s70, s69, 12288")
    E(f"s_add_u32 s70, s70, {S_KT}")
    E("v_lshlrev_b32 v32, 5, v20")
    E("v_add_u32 v32, s70, v32")
    E("v_lshl_add_u32 v44, v21, 11, v32")
    E("v_add_u32 v44, 4096, v44")
    E("v_add_u32 v45, 512, v44")
    E("v_add_u32 v46, 1024, v44")
    E("v_add_u32 v47, 1536, v44")
    E("v_lshlrev_b32 v22, 4, v21")
    E("v_lshrrev_b64 v[60:61], v22, s[74:75]")
    E("v_and_b32 v60, 0xffff, v60")
    E("v_lshl_add_u32 v35, v60, 2, v32")
    E("s_lshl_b32 s71, s61, 9")
    E("v_add_u32 v35, s71, v35")
    E("v_lshrrev_b64 v[60:61], v22, s[76:77]")
    E("v_and_b32 v60, 0xffff, v60")
    E("v_lshl_add_u32 v36, v60, 2, v35")
    E("v_lshrrev_b64 v[62:63], v22, s[78:79]")
    E("v_and_b32 v62, 0xffff, v62")
    E("v_lshl_add_u32 v37, v62, 2, v35")
    E("v_lshl_add_u32 v38, v62, 2, v36")
    E("s_mul_i32 s70, s69, 6144")
    E(f"s_add_u32 s70, s70, {S_TR}")
    E("v_lshl_add_u32 v39, v1, 4, s70")
    E("s_lshl_b32 s71, s61, 10")
    E("v_add_u32 v40, s71, v39")
    E("s_lshl_b32 s71, s61, 9")
    E("v_lshl_add_u32 v60, v1, 3, s71")
    E("s_mul_i32 s70, s69, 12288")
    E(f"s_add_u32 s70, s70, {S_KT}")
    for rr in range(2):
        for e in range(0, 8, 2):
            E(f"v_add_u32 v62, {e + 1024*rr}, v60")
            E(f"v_add_u32 v63, {e + 1 + 1024*rr}, v60")
            E("v_cvt_f32_u32 v62, v62")
            E("v_cvt_f32_u32 v63, v63")
            E("v_cvt_pk_bf16_f32 v62, v62, v63")
            E("v_and_b32 v63, s43, v62")
            E("v_lshlrev_b32 v62, 16, v62")
            E("v_cvt_u32_f32 v62, v62")
            E("v_cvt_u32_f32 v63, v63")
            E(f"v_lshl_add_u32 v{64+8*rr+e}, v62, 2, s70")
            E(f"v_lshl_add_u32 v{65+8*rr+e}, v63, 2, s70")
    E(f"s_mul_i32 s70, s69, {XROW}")
    E(f"s_add_u32 s70, s70, {XBASE + 32}")
    E("v_lshl_add_u32 v61, v60, 1, s70")
    RSTAMP(1)
    waitf(1, 0, 4, 96)
    RSTAMP(2)
    srcoff = [0, 3072]
    for k in range(2):
        E(f"ds_read_b128 {R4(96+4*k)}, v40 offset:{srcoff[k]}")
    for k in range(2):
        E(f"ds_read_b128 {R4(112+4*k)}, v39 offset:{srcoff[k] + 2048}")
    for (b, dst, w) in [(96, 35, 2), (112, 44, 0)]:
        E(f"s_waitcnt lgkmcnt({w})")
        for e in range(4):
            E(f"v_add_f32 v{b+e}, v{b+e}, v{b+4+e}")
    for (b, dst) in [(96, 35), (112, 44)]:
        for e in range(4):
            E(f"ds_write_b32 v{dst+e}, v{b+e}")
    post(2)
    RSTAMP(4)
    waitf(2, 0, 4, 96)
    RSTAMP(6)
    for e in range(16):
        E(f"ds_read_b32 v{96+e}, v{64+e}")
    for rr in range(2):
        for e in range(0, 8, 2):
            src = 96 + 8 * rr + e
            E(f"s_waitcnt lgkmcnt({14 - 8*rr - e})")
            E(f"v_cvt_pk_bf16_f32 v{112+8*rr+e//2}, v{src}, v{src+1}")
            E(f"v_lshlrev_b32 v62, 16, v{112+8*rr+e//2}")
            E(f"v_and_b32 v63, s43, v{112+8*rr+e//2}")
            E(f"v_sub_f32 v62, v{src}, v62")
            E(f"v_sub_f32 v63, v{src+1}, v63")
            E(f"v_cvt_pk_bf16_f32 v{116+8*rr+e//2}, v62, v63")
    for rr in range(2):
        E(f"ds_write_b128 v61, {R4(112+8*rr)} offset:{2048*rr}")
        E(f"ds_write_b128 v61, {R4(116+8*rr)} offset:{2*XROW + 2048*rr}")
    post(3)
    RSTAMP(7)
    STAMP(4)
    E("s_branch K_csetup")
    L("K_bwave")
    post(1)
    STAMP(3)
    E("s_cmp_lg_u32 s3, 5")
    E("s_cbranch_scc1 K_norec")
    waitf(1, 4, 8, 144)
    E(f"ds_read_b64 v[144:145], v225 offset:{SYN + 256}")
    E("v_mov_b32 v146, s56")
    E("v_mov_b32 v147, s57")
    E("s_waitcnt lgkmcnt(0)")
    E("s_mov_b64 exec, 3")
    E(f"buffer_store_dwordx4 v[144:147], v227, s[{SRD_WS}:{SRD_WS+3}], s8 offen sc1")
    E("s_mov_b64 exec, -1")
    L("K_norec")
    if not ALLPOLL:
        E("s_cmp_lg_u32 s3, 4")
        E("s_cbranch_scc1 K_pwait")
    E("s_mov_b32 s70, 0")
    L("K_poll")
    E(f"buffer_load_dwordx2 v[112:113], v226, s[{SRD_WS}:{SRD_WS+3}], s7 offen sc1")
    E("s_waitcnt vmcnt(0)")
    E("v_xor_b32 v112, s56, v112")
    E("v_xor_b32 v113, s57, v113")
    E("v_or_b32 v112, v112, v113")
    E("v_cmp_ne_u32 vcc, 0, v112")
    E("s_add_u32 s70, s70, 1")
    E("s_cmp_eq_u64 vcc, 0")
    E("s_cbranch_scc1 K_pok")
    E(f"s_sleep {PSLEEP}")
    E("s_cmp_lt_u32 s70, 0x40000")
    E("s_cbranch_scc1 K_poll")
    L("K_pok")
    post(5)
    E("s_branch K_pdone")
    L("K_pwait")
    E(f"ds_read_b32 v93, v30 offset:{32*5 + 16}")
    E("s_waitcnt lgkmcnt(0)")
    E("v_readfirstlane_b32 s70, v93")
    E("s_cmp_eq_u32 s70, 1")
    E("s_cbranch_scc1 K_pdone")
    E("s_sleep 1")
    E("s_branch K_pwait")
    L("K_pdone")
    STAMP(4)
    for p in range(4):
        E(f"buffer_load_dwordx4 {R4(192+4*p)}, v233, s[{SRD_WS}:{SRD_WS+3}], {'s6' if p < 2 else 's13'} offen offset:{2048*(p&1)} sc1")
    for k in range(5):
        E(f"v_mov_b32 v{16+k}, v{228+k}")
    finsetup(0)
    waitf(0, 0, 4, 24)
    preloadA(1)
    for p in range(4):
        E(f"s_waitcnt vmcnt({3-p})")
        E(f"ds_write_b128 v224, {R4(192+4*p)} offset:{64*p}")
    post(4)
    E(f"s_setprio {CBPRIO}")
    E("s_branch K_convB")
    L("K_csetup")
    vB, vA, vPM, vPC, vF = 16, 17, 18, 19, 20
    E("s_lshl_b32 s70, s3, 1")
    E(f"s_mul_i32 s70, s70, {ZROW}")
    E(f"s_add_u32 s70, s70, {ZBASE + 8}")
    E(f"v_lshlrev_b32 v{vB}, 3, v4")
    E(f"v_lshl_add_u32 v{vB}, v5, 4, v{vB}")
    E(f"v_add_u32 v{vB}, s70, v{vB}")
    E("v_and_b32 v22, 3, v1")
    E("v_bfe_u32 v23, v1, 2, 2")
    E("v_sub_u32 v22, v22, v23")
    E("v_lshlrev_b32 v22, 3, v22")
    E("v_lshlrev_b32 v23, 6, v5")
    E("v_sub_u32 v22, v22, v23")
    E("s_lshl_b32 s70, s68, 2")
    E("s_add_u32 s70, s70, s69")
    E(f"s_mul_i32 s70, s70, {XROW}")
    E(f"s_add_u32 s70, s70, {XBASE + 224}")
    E(f"v_add_u32 v{vA}, s70, v22")
    E("s_cmp_eq_u32 s68, 0")
    E(f"s_mov_b32 s71, {PB}")
    E(f"s_cselect_b32 s71, {PA}, s71")
    E(f"s_mul_i32 s70, s67, {PMS}")
    E("s_add_u32 s70, s70, s71")
    E("s_add_u32 s72, s70, 16")
    E(f"v_lshl_add_u32 v{vPM}, v1, 4, s72")
    E(f"s_mul_i32 s72, s67, {PCS}")
    E("s_add_u32 s72, s72, s71")
    E(f"s_add_u32 s72, s72, {4*PMS}")
    E("s_add_u32 s73, s72, 16")
    E(f"v_lshl_add_u32 v{vPC}, v1, 2, s73")
    E("s_lshl_b32 s73, s3, 2")
    E(f"s_add_u32 s73, s73, {FLG}")
    E(f"v_mov_b32 v{vF}, s73")
    E("v_mov_b32 v22, s70")
    E("v_mov_b32 v23, s72")
    if DRY > 1:
        E("s_cmp_lg_u32 s5, 0")
        E("s_cbranch_scc1 K_areal")
    RSTAMP(8)
    waitf(3, 0, 4, 24)
    RSTAMP(9)
    E("v_mov_b32 v24, 0")
    E("v_mov_b32 v25, 0")
    E("v_mov_b32 v26, 0")
    E("v_mov_b32 v27, 0")
    E("ds_write_b128 v22, v[24:27]")
    E("ds_write_b128 v23, v[24:27]")
    finsetup(7)
    waitf(7, 4, 8, 24)
    preloadA(2)
    waitf(4, 4, 8, 24)
    E("s_setprio 0")
    STAMP(5)

    def acc(pp, q):
        return 192 + 32 * pp + 4 * q
    def Bf(pp, jj):
        return 32 + 4 * ((jj % 4) * 2 + pp)
    def conv(nx):
        def Af(n, x):
            return 64 + 4 * (n * nx + x)
        queue = []
        def rdB(jj):
            for pp in range(2):
                b = Bf(pp, jj)
                E(f"ds_read_b64 v[{b}:{b+1}], v{vB} offset:{pp*ZROW + 64*jj}")
                E(f"ds_read_b64 v[{b+2}:{b+3}], v{vB} offset:{pp*ZROW + 64*jj + 8}")
                queue.extend([("B", jj, pp), ("B", jj, pp)])
        def need(keys):
            last = -1
            for idx, k in enumerate(queue):
                if k in keys:
                    last = idx
            if last >= 0:
                n_after = min(len(queue) - 1 - last, 15)
                E(f"s_waitcnt lgkmcnt({n_after})")
                del queue[:len(queue) - n_after]
        def mf(pp, q, jj, x, first=False):
            n = 2 * q - jj + 1
            c = "0" if first else R4(acc(pp, q))
            E(f"v_mfma_f32_16x16x32_bf16 {R4(acc(pp,q))}, {R4(Af(n,x))}, {R4(Bf(pp,jj))}, {c}")
        def writeout(q):
            a0, a1 = acc(0, q), acc(1, q)
            E(f"v_add_f32 v{a0+1}, v{a0+1}, v{a1}")
            E(f"v_add_f32 v{a0+2}, v{a0+2}, v{a1+1}")
            E(f"v_add_f32 v{a0+3}, v{a0+3}, v{a1+2}")
            E(f"ds_write_b32 v{vPC}, v{a1+3} offset:{256*q}")
            E(f"ds_write_b128 v{vPM}, {R4(a0)} offset:{1024*q}")
            E(f"ds_write_b32 v{vF}, v29 offset:{32*q}")
            queue.extend([("W",), ("W",), ("W",)])
        rdB(0); rdB(1); rdB(2)
        for jj in range(16):
            q0 = jj >> 1
            k = 0
            for q in range(q0, 8):
                for pp in range(2):
                    if q == q0:
                        need({("B", jj, pp)})
                    for x in range(nx):
                        mf(pp, q, jj, x, first=(jj == 0 and x == 0))
                k += 1
                if k == 1 and jj + 3 < 16:
                    rdB(jj + 3)
                if jj % 2 == 0 and jj >= 2 and q == min(q0 + 1, 7):
                    if jj == 14:
                        E("s_nop 3")
                    writeout(q0 - 1)
        E("s_nop 7")
        writeout(7)
    conv(2)
    STAMP(6)
    E("s_branch K_fin")
    L("K_convB")
    waitf(4, 4, 8, 24)
    E(f"buffer_load_dwordx4 v[12:15], v9, s[{SRD_WS}:{SRD_WS+3}], s60 offen sc1")
    E(f"buffer_load_dwordx4 v[24:27], v9, s[{SRD_WS}:{SRD_WS+3}], s60 offen offset:1024 sc1")
    STAMP(5)
    conv(1)
    STAMP(6)
    E("s_mov_b32 s70, 0")
    L("K_gpoll")
    E("s_waitcnt vmcnt(0)")
    E("v_xor_b32 v14, s56, v14")
    E("v_xor_b32 v15, s57, v15")
    E("v_xor_b32 v26, s56, v26")
    E("v_xor_b32 v27, s57, v27")
    E("v_or_b32 v14, v14, v15")
    E("v_or_b32 v26, v26, v27")
    E("v_or_b32 v14, v14, v26")
    E("v_cmp_ne_u32 vcc, 0, v14")
    E("s_add_u32 s70, s70, 1")
    E("s_cmp_eq_u64 vcc, 0")
    E("s_cbranch_scc1 K_gok")
    E("s_cmp_ge_u32 s70, 0x40000")
    E("s_cbranch_scc1 K_gok")
    E("s_sleep 8")
    E(f"buffer_load_dwordx4 v[12:15], v9, s[{SRD_WS}:{SRD_WS+3}], s60 offen sc1")
    E(f"buffer_load_dwordx4 v[24:27], v9, s[{SRD_WS}:{SRD_WS+3}], s60 offen offset:1024 sc1")
    E("s_branch K_gpoll")
    L("K_gok")
    for (src, dst) in [(12, 32), (24, 36)]:
        for hh in range(2):
            E(f"v_lshlrev_b32 v{dst+2*hh}, 16, v{src+hh}")
            E(f"v_and_b32 v{dst+2*hh+1}, s43, v{src+hh}")
        for e in range(4):
            E(f"v_sub_f32 v40, 1.0, v{dst+e}")
            E(f"v_cvt_pk_bf16_f32 v{dst+e}, v{dst+e}, v40")
    E("ds_write_b128 v10, v[32:35]")
    E("ds_write_b128 v10, v[36:39] offset:1024")
    post(6)
    if FINPRIO:
        E(f"s_setprio {FINPRIO}")
    L("K_fin")
    waitf(6, 4, 8, 32)
    L("K_hloop")
    for r in range(48, 52):
        E(f"v_mov_b32 v{r}, 0")
    for k in range(4):
        E(f"ds_read_u16_d16_hi v{48+k}, v21 offset:{ZBASE + 4*k*ZROW + 128}")
    E("ds_read_b32 v8, v7")
    L("K_hpoll")
    E("ds_read_b128 v[32:35], v23")
    E("ds_read_b128 v[36:39], v23 offset:16")
    E("s_waitcnt lgkmcnt(0)")
    for k in range(0, 8, 2):
        E(f"v_and_b32 v{32+k}, v{32+k}, v{33+k}")
    E("v_and_b32 v32, v32, v34")
    E("v_and_b32 v36, v36, v38")
    E("v_and_b32 v32, v32, v36")
    E("s_nop 0")
    E("v_readfirstlane_b32 s70, v32")
    E("s_cmp_eq_u32 s70, 1")
    E("s_cbranch_scc1 K_go")
    E("s_sleep 3")
    E("s_branch K_hpoll")
    L("K_go")
    for k in range(4):
        X, c = k >> 1, k & 1
        base = PSTRIDE if X == 0 else 0
        E(f"ds_read_b32 v{32+k}, v2 offset:{base + 2*c*PMS}")
        E(f"ds_read_b32 v{36+k}, v3 offset:{base + 2*c*PMS}")
        E(f"ds_read_b32 v{40+k}, v11 offset:{base + 2*c*PCS}")
    def rnd(a, b):
        E(f"v_cvt_pk_bf16_f32 v{a}, v{a}, v{b}")
        E(f"v_and_b32 v{b}, s43, v{a}")
        E(f"v_lshlrev_b32 v{a}, 16, v{a}")
    yA0, yA1, yB0, yB1 = 32, 33, 34, 35
    u0, u1, k0, k1 = 48, 49, 50, 51
    t = 52
    E(f"v_mul_f32 v{t}, s76, v{u0}")
    E(f"v_mul_f32 v{t+1}, s77, v{u1}")
    E(f"v_mul_f32 v{t+2}, s78, v{k0}")
    E(f"v_mul_f32 v{t+3}, s79, v{k1}")
    rnd(t, t + 1)
    rnd(t + 2, t + 3)
    E(f"v_lshlrev_b32 v{t+4}, 16, v8")
    E(f"v_and_b32 v{t+5}, s43, v8")
    E("v_add_u32 v2, 1024, v2")
    E("v_add_u32 v3, 1024, v3")
    E("v_add_u32 v11, s75, v11")
    E("v_add_u32 v21, 128, v21")
    E("v_add_u32 v23, 32, v23")
    E("v_add_u32 v7, 1024, v7")
    for k in range(4):
        E(f"s_waitcnt lgkmcnt({9-3*k})")
        E(f"v_add_f32 v{32+k}, v{32+k}, v{36+k}")
        E(f"v_add_f32 v{32+k}, v{32+k}, v{40+k}")
    rnd(yA0, yA1)
    rnd(yB0, yB1)
    E(f"v_add_f32 v{yA0}, v{yA0}, v{t}")
    E(f"v_add_f32 v{yA1}, v{yA1}, v{t+1}")
    E(f"v_add_f32 v{yB0}, v{yB0}, v{t+2}")
    E(f"v_add_f32 v{yB1}, v{yB1}, v{t+3}")
    rnd(yA0, yA1)
    rnd(yB0, yB1)
    E(f"v_mul_f32 v{yB0}, v{u0}, v{yB0}")
    E(f"v_mul_f32 v{yB1}, v{u1}, v{yB1}")
    rnd(yB0, yB1)
    E(f"v_mul_f32 v{yA0}, v{t+4}, v{yA0}")
    E(f"v_mul_f32 v{yA1}, v{t+4}, v{yA1}")
    E(f"v_mul_f32 v{yB0}, v{t+5}, v{yB0}")
    E(f"v_mul_f32 v{yB1}, v{t+5}, v{yB1}")
    rnd(yA0, yA1)
    rnd(yB0, yB1)
    E(f"v_add_f32 v{yA0}, v{yA0}, v{yB0}")
    E(f"v_add_f32 v{yA1}, v{yA1}, v{yB1}")
    E(f"v_cvt_pk_bf16_f32 v{yA0}, v{yA0}, v{yA1}")
    E(f"buffer_store_dword v{yA0}, v22, s[{SRD_OUT}:{SRD_OUT+3}], s72 offen")
    E("v_add_u32 v22, 0x40000, v22")
    E("s_add_u32 s73, s73, 1")
    E("s_cmp_lt_u32 s73, s74")
    E("s_cbranch_scc1 K_hloop")
    STAMP(7)
    if DBG: E("s_waitcnt vmcnt(0)")
    STAMP(8)
    if "--pro" in sys.argv:
        E("s_waitcnt lgkmcnt(0)")
        for i in range(3, 8): E(f"s_mov_b32 s{80+2*i}, s{1+i}")
    DUMP(10, SRD_WS)
    L("K_end")
    E("s_endpgm")
    sg = 102 if DBG else 80
    return f""".amdhsa_kernel {name}
  .amdhsa_next_free_vgpr 256
  .amdhsa_next_free_sgpr {sg}
  .amdhsa_accum_offset 256
  .amdhsa_group_segment_fixed_size 0
  .amdhsa_kernarg_size 152
  .amdhsa_user_sgpr_count 2
  .amdhsa_user_sgpr_kernarg_segment_ptr 1
  .amdhsa_system_sgpr_workgroup_id_x 1
  .amdhsa_float_denorm_mode_32 3
.end_amdhsa_kernel"""

def main():
    hdr = HEADER.rstrip("\n")
    pre = [hdr,
           f"; @launch grid=(256,1,1) block=(512,1,1) lds={LDS_SIZE}",
           '.amdgcn_target "amdgcn-amd-amdhsa--gfx950"',
           ".text"]
    k = gen()
    txt = "\n".join(pre + out) + '\n.section .rodata,"a"\n.p2align 6\n' + k + "\n"
    args = [a for a in sys.argv[1:] if not a.startswith("--")]
    path = args[0] if args else "cdna_kernels/%s.s" % NAME
    open(path, "w").write(txt)

main()
```

```python
import sys

NAME = "gated_mix__ssm_conv_s4__ssm_conv_h3__prompt"
HEADER = open("cdna_kernels/%s.s.ref" % NAME).read().split("; Override launch")[0]
DBG = "--dbg" in sys.argv
def opt(name, default):
    for a in sys.argv:
        if a.startswith("--" + name + "="):
            return int(a.split("=")[1])
    return default
NA = 8
NB = 8 - NA
FINPRIO = opt("finprio", 2)
PSLEEP = opt("psleep", 8)
TOUCH = opt("touch", 0)
LATE = opt("late", 3)
DRY = opt("dry", 0)
KLDS = opt("klds", 1)
TSH = opt("tsh", 16)
FS = opt("fs", 7)
ZSC = ["sc1", "sc0 sc1", "sc1 nt"][opt("zsc", 0)]
ALLPOLL = opt("allpoll", 0)
CBPRIO = opt("cbprio", 2)
APRIO = opt("aprio", 2)
POLLSC = ["sc1", "sc0 sc1", "sc1 nt"][opt("pollsc", 1)]

out = []
def E(s=""):
    out.append("    " + s)
def L(s):
    out.append(s + ":")

WS_Z = 0
WS_G = 4 << 20
WS_F = WS_G + 8192
WS_SIZE = (4 << 20) + 8192 + 32768
WS_DBG = 16 << 20
if DBG:
    WS_SIZE = 32 << 20

ZROW = 1152
ZBASE = 0
XBASE = 16 * ZROW
XROW = 4128
GB = XBASE + 6 * XROW
FLG = GB + 8192
SYN = FLG + 256
PMS = 8192 + 16
PCS = 2048 + 16
PB = SYN + 288
PA = PB + 4 * PMS + 4 * PCS
PSTRIDE = PA - PB
S_KT = PA
S_P = S_KT + 24576
S_K = S_P + 8192
S_TR = S_K + 9216
LDS_SIZE = S_TR + 8 * 3072
assert LDS_SIZE <= 163840 and PA + PSTRIDE <= LDS_SIZE
def PMa(X, w4):
    return (PA if X == 0 else PB) + w4 * PMS
def PCa(X, w4):
    return (PA if X == 0 else PB) + 4 * PMS + w4 * PCS

TD = "--tiledbg" in sys.argv
RD = "--reddbg" in sys.argv
def RSTAMP(i):
    if DBG and RD:
        E(f"s_memtime s[{80+2*i}:{81+2*i}]")
def TSTAMP(i):
    if DBG and TD:
        E(f"s_memtime s[{80+2*i}:{81+2*i}]")
def STAMP(i):
    if TD and i in (3, 4, 5, 6, 7): return
    if RD and i in (1, 2, 4, 6, 7, 8, 9): return
    if DBG:
        E(f"s_memtime s[{80+2*i}:{81+2*i}]")
def DUMP(n, srdreg):
    if DBG:
        E("s_waitcnt lgkmcnt(0)")
        E("s_mov_b64 exec, 1")
        E("s_lshl_b32 s100, s2, 4")
        E("s_add_u32 s100, s100, s3")
        E("s_lshl_b32 s100, s100, 6")
        E(f"s_add_u32 s100, s100, {WS_DBG}")
        for i in range(n):
            E(f"v_mov_b32 v2, s{80+2*i}")
            E(f"v_mov_b32 v3, {4*i}")
            E(f"buffer_store_dword v2, v3, s[{srdreg}:{srdreg+3}], s100 offen")
            E("s_nop 1")

def srd(sd, sp, nbytes):
    E(f"s_mov_b32 s{sd}, s{sp}")
    E(f"s_and_b32 s{sd+1}, s{sp+1}, 0xffff")
    E(f"s_mov_b32 s{sd+2}, {hex(nbytes)}")
    E(f"s_mov_b32 s{sd+3}, 0x00020000")
def R4(r):
    return f"v[{r}:{r+3}]"
SRD_WS, SRD_OUT, SRD_DBGB, SRD_A, SRD_B = 44, 48, 52, 56, 60

lblc = [0]
def post(kind):
    E(f"ds_write_b32 v28, v29 offset:{32*kind}")
def waitf(kind, lo, hi, t0=24):
    lblc[0] += 1
    n = lblc[0]
    if DRY > 1:
        E("s_cmp_lg_u32 s5, 0")
        E(f"s_cbranch_scc1 W{n}_d")
    L(f"W{n}_p")
    if hi - lo == 4:
        E(f"ds_read_b128 v[{t0}:{t0+3}], v30 offset:{32*kind + 4*lo}")
        E("s_waitcnt lgkmcnt(0)")
        E(f"v_and_b32 v{t0}, v{t0}, v{t0+1}")
        E(f"v_and_b32 v{t0+2}, v{t0+2}, v{t0+3}")
        E(f"v_and_b32 v{t0}, v{t0}, v{t0+2}")
    else:
        E(f"ds_read_b128 v[{t0}:{t0+3}], v30 offset:{32*kind}")
        E(f"ds_read_b128 v[{t0+4}:{t0+7}], v30 offset:{32*kind + 16}")
        E("s_waitcnt lgkmcnt(0)")
        for k in range(0, 8, 2):
            E(f"v_and_b32 v{t0+k}, v{t0+k}, v{t0+k+1}")
        E(f"v_and_b32 v{t0}, v{t0}, v{t0+2}")
        E(f"v_and_b32 v{t0+4}, v{t0+4}, v{t0+6}")
        E(f"v_and_b32 v{t0}, v{t0}, v{t0+4}")
    E("s_nop 0")
    E(f"v_readfirstlane_b32 s4, v{t0}")
    E("s_cmp_eq_u32 s4, 1")
    E(f"s_cbranch_scc1 W{n}_d")
    E("s_sleep 1")
    E(f"s_branch W{n}_p")
    L(f"W{n}_d")

def preloadA(nx):
    for n in range(16):
        for x in range(nx):
            a = 64 + 4 * (n * nx + x)
            off = 256 * n + x * 2 * XROW
            E(f"ds_read_b64_tr_b16 v[{a}:{a+1}], v17 offset:{off+32}")
            E(f"ds_read_b64_tr_b16 v[{a+2}:{a+3}], v17 offset:{off}")

def finsetup(q0):
    E(f"s_mov_b32 s73, {q0}")
    E("v_subrev_u32 v24, 16, v1")
    E("v_add_u32 v25, 47, v1")
    E("v_cmp_eq_u32 vcc, 0, v1")
    E("s_nop 1")
    E("v_cndmask_b32 v25, v25, -1, vcc")
    E("v_cmp_gt_u32 vcc, 16, v1")
    E("s_lshl_b32 s74, s73, 6")
    E("s_nop 0")
    E("v_cndmask_b32 v24, v24, v25, vcc")
    E("v_add_u32 v24, s74, v24")
    E("v_add_u32 v26, s74, v1")
    E("v_add_u32 v6, s74, v6")
    E("s_lshl_b32 s70, s67, 2")
    E(f"s_add_u32 s70, s70, {PB + 16}")
    E("v_lshl_add_u32 v2, v26, 4, s70")
    E("s_add_u32 s70, s67, 2")
    E("s_and_b32 s70, s70, 3")
    E("s_lshl_b32 s70, s70, 2")
    E(f"s_add_u32 s70, s70, {PB + 16 + PMS}")
    E("s_cmp_lt_u32 s67, 2")
    E("s_cselect_b64 vcc, -1, 0")
    E("v_cndmask_b32 v25, v26, v24, vcc")
    E("v_lshl_add_u32 v3, v25, 4, s70")
    E("s_lshr_b32 s70, s67, 1")
    E(f"s_mul_i32 s70, s70, {PCS}")
    E(f"s_add_u32 s70, s70, {PB + 4*PMS + 16}")
    E("v_lshl_add_u32 v11, v24, 2, s70")
    E("s_and_b32 s70, s67, 1")
    E("s_cmp_eq_u32 s70, 0")
    E("s_cselect_b64 vcc, -1, 0")
    E("s_cselect_b32 s75, 256, 0")
    E(f"v_mov_b32 v25, {PB + 4*PMS}")
    E("v_cndmask_b32 v11, v25, v11, vcc")
    E(f"s_mul_i32 s70, s67, {ZROW}")
    E("v_lshl_add_u32 v21, v6, 1, s70")
    E("s_lshl_b32 s70, s67, 10")
    E("v_lshl_add_u32 v22, v6, 12, s70")
    E("s_lshl_b32 s70, s67, 2")
    E(f"s_add_u32 s70, s70, {GB}")
    E("v_lshl_add_u32 v7, v6, 4, s70")
    E("s_lshl_b32 s70, s73, 5")
    E(f"s_add_u32 s70, s70, {FLG}")
    E("v_mov_b32 v23, s70")
    E("s_lshl_b32 s72, s64, 2")
    E("s_lshl_b32 s76, s23, 16")
    E("s_and_b32 s77, s23, s43")
    E("s_lshl_b32 s78, s42, 16")
    E("s_and_b32 s79, s42, s43")
    E("s_sub_u32 s74, 8, s68")

def gen():
    name = NAME + "_kernel"
    out.append(f".globl {name}\n.p2align 8\n.type {name},@function")
    L(name)
    E("s_cmp_ge_u32 s2, 256")
    E("s_cbranch_scc1 K_end")
    STAMP(0)
    E("s_setprio 3")
    E("s_load_dwordx16 s[4:19], s[0:1], 0")
    E("s_load_dwordx2 s[20:21], s[0:1], 64")
    E("s_load_dwordx8 s[24:31], s[0:1], 80")
    E("s_load_dwordx8 s[32:39], s[0:1], 112")
    E("s_load_dwordx2 s[40:41], s[0:1], 144")
    E("v_lshrrev_b32 v1, 6, v0")
    E("s_nop 0")
    E("v_readfirstlane_b32 s3, v1")
    E("v_and_b32 v1, 63, v0")
    E("s_and_b32 s64, s2, 7")
    E("s_lshl_b32 s65, s64, 2")
    E("s_lshl_b32 s64, s64, 5")
    E("s_lshr_b32 s66, s2, 3")
    E("s_add_u32 s64, s64, s66")
    E("s_and_b32 s66, s66, 3")
    E("s_add_u32 s65, s65, s66")
    E("s_lshr_b32 s66, s2, 5")
    E("s_and_b32 s67, s3, 3")
    E("s_lshr_b32 s68, s3, 2")
    E("s_bfe_u32 s69, s3, 0x10001")
    E("v_mov_b32 v12, 0")
    E("v_mov_b32 v13, 0")
    E("v_mov_b32 v14, 0")
    E("v_mov_b32 v15, 0")
    E("v_and_b32 v2, 31, v1")
    E("v_lshlrev_b32 v2, 4, v2")
    E(f"ds_write_b128 v2, v[12:15] offset:{FLG}")
    E(f"ds_write_b128 v2, v[12:15] offset:{FLG + 32}")
    E("s_lshl_b32 s70, s3, 2")
    E(f"s_add_u32 s70, s70, {SYN}")
    E("v_mov_b32 v28, s70")
    E("v_mov_b32 v29, 1")
    E("v_mov_b32 v95, 0")
    E(f"v_mov_b32 v30, {SYN}")
    E("s_lshl_b32 s70, s65, 6")
    E("s_add_u32 s70, s70, s67")
    E("s_lshl_b32 s70, s70, 10")
    E("s_lshl_b32 s71, s66, 7")
    E("s_add_u32 s70, s70, s71")
    E("v_lshrrev_b32 v2, 3, v1")
    E("v_and_b32 v3, 7, v1")
    E("v_lshlrev_b32 v4, 12, v2")
    E("v_lshl_add_u32 v4, v3, 4, v4")
    E("v_add_u32 v4, s70, v4")
    E("v_subrev_u32 v5, 1024, v4")
    E("v_subrev_u32 v6, 2048, v4")
    E("v_subrev_u32 v7, 3072, v4")
    E("s_lshl_b32 s71, s66, 9")
    E("v_lshl_add_u32 v8, v3, 6, s71")
    E("s_lshl_b32 s72, s65, 6")
    E("s_lshl_b32 s71, s66, 3")
    E("s_add_u32 s72, s72, s71")
    E("s_lshl_b32 s71, s67, 1")
    E("s_add_u32 s72, s72, s71")
    E("s_lshl_b32 s73, s72, 10")
    E("v_lshlrev_b32 v9, 4, v1")
    E("s_and_b32 s74, s3, 1")
    E(f"s_mul_i32 s75, s74, {8*NA}")
    E(f"s_mul_i32 s76, s74, {8*NB}")
    E(f"s_add_u32 s76, s76, {16*NA}")
    E("s_cmp_eq_u32 s68, 0")
    E("s_cselect_b32 s75, s75, s76")
    E("s_lshl_b32 s70, s64, 1")
    E("s_add_u32 s70, s70, s69")
    E("s_lshl_b32 s70, s70, 7")
    E("s_add_u32 s70, s70, s75")
    E("s_lshl_b32 s70, s70, 1")
    E("v_lshl_add_u32 v11, v1, 1, s70")
    if "--pro" in sys.argv: STAMP(3)
    E("s_waitcnt lgkmcnt(0)")
    if "--pro" in sys.argv: STAMP(4)
    E("s_add_u32 s70, s2, s3")
    E("s_cmp_lg_u32 s70, 0")
    E("s_cbranch_scc1 K_nononce")
    E("s_memrealtime s[70:71]")
    srd(SRD_DBGB, 38, 256)
    E("s_waitcnt lgkmcnt(0)")
    E("s_or_b32 s70, s70, 1")
    E("v_mov_b32 v100, s70")
    E("v_mov_b32 v101, s71")
    E("s_mov_b64 exec, 1")
    E(f"buffer_store_dwordx2 v[100:101], v95, s[{SRD_DBGB}:{SRD_DBGB+3}], 0 offen sc1")
    E("s_mov_b64 exec, -1")
    L("K_nononce")
    E("s_barrier")
    E("s_cmp_eq_u32 s68, 0")
    E("s_cbranch_scc1 K_noTL")
    srd(SRD_A, 24, 2 << 20)
    srd(SRD_B, 26, 2 << 20)
    E("s_mov_b32 s70, 0x8000")
    E("v_lshlrev_b32 v5, 10, v2")
    E("v_lshl_add_u32 v5, v3, 4, v5")
    E("s_lshl_b32 s71, s65, 6")
    E("s_lshl_b32 s74, s67, 3")
    E("s_add_u32 s71, s71, s74")
    E("s_sub_u32 s71, s71, 8")
    E("s_lshl_b32 s71, s71, 10")
    E("s_lshl_b32 s74, s66, 7")
    E("s_add_u32 s71, s71, s74")
    E("v_add_u32 v5, s71, v5")
    E("v_add_u32 v6, s70, v5")
    E("v_add_u32 v7, s70, v6")
    E("s_lshl_b32 s74, s67, 10")
    E(f"s_add_u32 s74, s74, {S_K}")
    E("s_mov_b32 m0, s74")
    E("s_add_u32 s74, s74, 4096")
    E(f"buffer_load_dwordx4 v5, s[{SRD_A}:{SRD_A+3}], 0 offen lds")
    E("s_mov_b32 m0, s74")
    E("s_add_u32 s74, s74, 4096")
    E(f"buffer_load_dwordx4 v6, s[{SRD_A}:{SRD_A+3}], 0 offen lds")
    E("s_cmp_lg_u32 s67, 0")
    E("s_cbranch_scc1 K_nok3")
    E("s_mov_b32 m0, s74")
    E("s_nop 0")
    E(f"buffer_load_dwordx4 v7, s[{SRD_A}:{SRD_A+3}], 0 offen lds")
    L("K_nok3")
    E(f"buffer_load_dwordx4 v[96:99], v4, s[{SRD_B}:{SRD_B+3}], 0 offen")
    srd(SRD_WS, 28, 4096)
    srd(SRD_OUT, 4, 2 << 20)
    for i in range(4):
        E(f"buffer_load_dwordx4 v[{40+4*i}:{43+4*i}], v8, s[{SRD_WS}:{SRD_WS+3}], 0 offen offset:{16*i}")
    E(f"buffer_load_dwordx4 v[32:35], v4, s[{SRD_OUT}:{SRD_OUT+3}], 0 offen")
    E("v_add_u32 v4, s70, v4")
    E(f"buffer_load_dwordx4 v[144:147], v4, s[{SRD_B}:{SRD_B+3}], 0 offen")
    E(f"buffer_load_dwordx4 v[148:151], v4, s[{SRD_OUT}:{SRD_OUT+3}], 0 offen")
    E(f"buffer_load_dwordx4 v[56:59], v9, s[{SRD_OUT}:{SRD_OUT+3}], s73 offen")
    E(f"buffer_load_dwordx4 v[152:155], v9, s[{SRD_OUT}:{SRD_OUT+3}], s73 offen offset:1024")
    srd(SRD_A, 34, 1024)
    E(f"buffer_load_dwordx4 v[60:63], v9, s[{SRD_A}:{SRD_A+3}], 0 offen")
    E("s_branch K_noPL")
    L("K_noTL")
    for i, sp in enumerate([6, 8, 10, 12, 14, 16]):
        sd = SRD_A if i % 2 == 0 else SRD_B
        srd(sd, sp, 131072)
        E(f"buffer_load_ushort v{84+i}, v11, s[{sd}:{sd+3}], 0 offen")
    if TOUCH:
        E(f"v_lshlrev_b32 v200, {TSH}, v1")
        E("s_cmp_eq_u32 s3, 0")
        E("s_cbranch_scc0 K_tc1")
        srd(SRD_A, 40, WS_SIZE)
        E(f"buffer_load_dword v201, v200, s[{SRD_A}:{SRD_A+3}], 0 offen")
        E(f"s_mov_b32 s70, {WS_G}")
        E(f"buffer_load_dword v202, v95, s[{SRD_A}:{SRD_A+3}], s70 offen")
        E("s_branch K_tc4")
        L("K_tc1")
        E("s_cmp_eq_u32 s3, 1")
        E("s_cbranch_scc0 K_tc2")
        srd(SRD_A, 36, 2 << 20)
        E(f"buffer_load_dword v201, v200, s[{SRD_A}:{SRD_A+3}], 0 offen")
        srd(SRD_B, 38, 256)
        E(f"buffer_load_dword v202, v95, s[{SRD_B}:{SRD_B+3}], 0 offen")
        E("s_branch K_tc4")
        L("K_tc2")
        E("s_cmp_eq_u32 s3, 2")
        E("s_cbranch_scc0 K_tc3")
        srd(SRD_A, 4, 2 << 20)
        E(f"buffer_load_dword v201, v200, s[{SRD_A}:{SRD_A+3}], 0 offen")
        srd(SRD_B, 24, 2 << 20)
        E(f"buffer_load_dword v202, v200, s[{SRD_B}:{SRD_B+3}], 0 offen")
        E("s_branch K_tc4")
        L("K_tc3")
        srd(SRD_A, 26, 2 << 20)
        E(f"buffer_load_dword v201, v200, s[{SRD_A}:{SRD_A+3}], 0 offen")
        srd(SRD_B, 34, 1024)
        E(f"buffer_load_dword v202, v95, s[{SRD_B}:{SRD_B+3}], 0 offen")
        L("K_tc4")
    L("K_noPL")
    srd(SRD_A, 30, 2 << 20)
    E("s_lshl_b32 s74, s64, 2")
    if "--pro" in sys.argv: STAMP(6)
    E("s_load_dword s22, s[18:19], s74")
    E("s_load_dword s23, s[20:21], s74")
    E("s_load_dword s42, s[32:33], s74")
    srd(SRD_WS, 40, WS_SIZE)
    srd(SRD_OUT, 36, 2 << 20)
    srd(SRD_DBGB, 38, 256)
    E("s_mov_b32 s43, 0xffff0000")
    E("s_mov_b32 s5, 0")
    E("s_and_b32 s61, s3, 1")
    if "--pro" in sys.argv:
        STAMP(7)
        E("s_waitcnt lgkmcnt(0)")
        for i in range(3, 8): E(f"s_mov_b32 s{1+i}, s{80+2*i}")
    E("s_cmp_eq_u32 s68, 0")
    E("s_cbranch_scc1 K_kgen")
    E("s_mul_i32 s70, s3, 3072")
    E(f"s_add_u32 s70, s70, {S_TR}")
    E("v_mul_u32_u24 v64, 144, v2")
    E("v_lshl_add_u32 v64, v3, 4, v64")
    E("v_add_u32 v64, s70, v64")
    E("v_lshrrev_b32 v66, 4, v1")
    E("v_and_b32 v67, 1, v66")
    E("v_lshrrev_b32 v66, 1, v66")
    E("v_bfe_u32 v68, v1, 2, 2")
    E("v_and_b32 v69, 3, v1")
    E("v_mul_u32_u24 v65, 1152, v67")
    E("v_mul_u32_u24 v68, 144, v68")
    E("v_add_u32 v65, v65, v68")
    E("v_lshl_add_u32 v65, v66, 5, v65")
    E("v_lshl_add_u32 v65, v69, 3, v65")
    E("v_add_u32 v65, s70, v65")
    E("v_and_b32 v68, 15, v1")
    E("v_lshl_add_u32 v68, v66, 4, v68")
    E("v_lshrrev_b32 v69, 2, v68")
    E("v_lshlrev_b32 v69, 15, v69")
    E("v_bfe_u32 v66, v68, 1, 1")
    E("v_lshl_add_u32 v69, v66, 6, v69")
    E("v_and_b32 v68, 1, v68")
    E("v_lshl_add_u32 v69, v68, 4, v69")
    E("v_lshl_add_u32 v69, v67, 5, v69")
    E("s_lshl_b32 s70, s66, 19")
    E("s_lshl_b32 s71, s65, 10")
    E("s_add_u32 s70, s70, s71")
    E("s_lshl_b32 s71, s67, 8")
    E("s_add_u32 s70, s70, s71")
    E("s_add_u32 s71, s70, 0x40000")
    E("s_mov_b32 s62, 0")
    E("s_mov_b32 s76, 0x00003f80")
    E("s_mov_b32 s77, 0x3f800000")
    E("s_mov_b32 s78, 0x0000ffff")
    E("s_mov_b32 s79, 0x3f803f80")
    if DRY:
        E("s_mov_b32 s5, 1")
        E("s_mov_b64 exec, 0")
        E("s_branch K_tmask")
        L("K_breal")
        E("s_mov_b32 s5, 0")
        E("s_mov_b64 exec, -1")
        E("s_mov_b32 s62, 0")
    E("v_and_b32 v224, 3, v1")
    E("v_bfe_u32 v225, v1, 3, 2")
    E("v_lshl_add_u32 v224, v224, 2, v225")
    E(f"v_mul_u32_u24 v224, {ZROW}, v224")
    E("v_bfe_u32 v225, v1, 2, 1")
    E("v_lshl_add_u32 v224, v225, 4, v224")
    E("v_lshrrev_b32 v225, 5, v1")
    E("v_lshl_add_u32 v224, v225, 5, v224")
    E("s_lshl_b32 s74, s67, 8")
    E(f"s_add_u32 s74, s74, {ZBASE + 128}")
    E("v_add_u32 v224, s74, v224")
    E("s_lshr_b32 s6, s64, 1")
    E("s_lshl_b32 s6, s6, 15")
    E("s_lshl_b32 s74, s67, 13")
    E("s_add_u32 s6, s6, s74")
    E("s_and_b32 s74, s64, 1")
    E("s_lshl_b32 s74, s74, 6")
    E("s_add_u32 s6, s6, s74")
    E("s_add_u32 s13, s6, 4096")
    E("v_lshrrev_b32 v233, 2, v1")
    E("v_lshlrev_b32 v233, 7, v233")
    E("v_and_b32 v225, 3, v1")
    E("v_lshl_add_u32 v233, v225, 4, v233")
    E("s_lshl_b32 s74, s67, 11")
    E(f"v_add_u32 v10, {GB}, v9")
    E("v_add_u32 v10, s74, v10")
    E(f"s_add_u32 s60, s74, {WS_G}")
    E("v_and_b32 v226, 31, v1")
    E(f"v_lshlrev_b32 v226, {FS}, v226")
    E("s_and_b32 s7, s2, 7")
    E(f"s_lshl_b32 s7, s7, {FS+5}")
    E(f"s_add_u32 s7, s7, {WS_F}")
    E("v_and_b32 v227, 1, v1")
    E("v_lshlrev_b32 v225, 3, v227")
    E("v_lshlrev_b32 v227, 4, v227")
    E("s_lshl_b32 s8, s65, 3")
    E("s_add_u32 s8, s8, s66")
    E("s_lshl_b32 s8, s8, 5")
    E(f"s_add_u32 s8, s8, {WS_G}")
    E("s_lshl_b32 s9, s66, 5")
    E("s_add_u32 s9, s9, s65")
    E(f"s_lshl_b32 s9, s9, {FS}")
    E(f"s_add_u32 s9, s9, {WS_F}")
    E("v_mov_b32 v100, 0")
    E("v_mov_b32 v101, 0")
    E("v_mov_b32 v102, 0")
    E("v_mov_b32 v103, 0")
    E("v_bfe_u32 v104, v1, 3, 2")
    E(f"v_mul_u32_u24 v104, {ZROW}, v104")
    E("v_and_b32 v105, 7, v1")
    E("v_lshl_add_u32 v104, v105, 4, v104")
    E(f"s_mul_i32 s74, s67, {4*ZROW}")
    E("v_add_u32 v104, s74, v104")
    E("ds_write_b128 v104, v[100:103]")
    E("v_min_u32 v104, 11, v1")
    E("v_lshrrev_b32 v105, 1, v104")
    E(f"v_mul_u32_u24 v105, {XROW}, v105")
    E("v_and_b32 v104, 1, v104")
    E("v_lshl_add_u32 v104, v104, 4, v105")
    E(f"ds_write_b128 v104, v[100:103] offset:{XBASE}")
    E(f"s_mul_i32 s74, s67, {PMS}")
    E(f"s_add_u32 s74, s74, {PB}")
    E("v_mov_b32 v104, s74")
    E("ds_write_b128 v104, v[100:103]")
    E("s_add_u32 s74, s74, 16")
    E("v_lshl_add_u32 v230, v1, 4, s74")
    E(f"s_mul_i32 s74, s67, {PCS}")
    E(f"s_add_u32 s74, s74, {PB + 4*PMS}")
    E("v_mov_b32 v105, s74")
    E("ds_write_b128 v105, v[100:103]")
    E("s_add_u32 s74, s74, 16")
    E("v_lshl_add_u32 v231, v1, 2, s74")
    E("v_and_b32 v4, 15, v1")
    E("v_lshrrev_b32 v5, 4, v1")
    E("v_lshlrev_b32 v6, 2, v4")
    E("v_add_u32 v6, v6, v5")
    E("s_lshl_b32 s74, s3, 1")
    E(f"s_mul_i32 s74, s74, {ZROW}")
    E(f"s_add_u32 s74, s74, {ZBASE + 8}")
    E("v_lshlrev_b32 v228, 3, v4")
    E("v_lshl_add_u32 v228, v5, 4, v228")
    E("v_add_u32 v228, s74, v228")
    E("v_and_b32 v104, 3, v1")
    E("v_bfe_u32 v105, v1, 2, 2")
    E("v_sub_u32 v104, v104, v105")
    E("v_lshlrev_b32 v104, 3, v104")
    E("v_lshlrev_b32 v105, 6, v5")
    E("v_sub_u32 v104, v104, v105")
    E("s_add_u32 s74, s69, 4")
    E(f"s_mul_i32 s74, s74, {XROW}")
    E(f"s_add_u32 s74, s74, {XBASE + 224}")
    E("v_add_u32 v229, s74, v104")
    E("s_lshl_b32 s74, s3, 2")
    E(f"s_add_u32 s74, s74, {FLG}")
    E("v_mov_b32 v232, s74")
    E("v_lshlrev_b32 v70, 9, v2")
    E("v_lshl_add_u32 v70, v3, 4, v70")
    E("s_lshl_b32 s74, s67, 7")
    E(f"s_add_u32 s74, s74, {S_K + 1024 - 384}")
    E("v_add_u32 v70, s74, v70")
    E("s_waitcnt vmcnt(11)")
    post(7)
    E("s_waitcnt vmcnt(6)")
    STAMP(1)
    L("K_tmask")
    for t in range(4):
        for i in range(4):
            r0 = 40 + 4 * i + (t >> 1)
            r1 = 40 + 4 * i + 2 + (t >> 1)
            d = 160 + (t * 4 + i) * 2
            if t & 1:
                E(f"v_lshrrev_b32 v{d}, 16, v{r0}")
                E(f"v_and_b32 v{d+1}, s43, v{r1}")
            else:
                E(f"v_and_b32 v{d}, s78, v{r0}")
                E(f"v_lshlrev_b32 v{d+1}, 16, v{r1}")
    waitf(7, 4, 8, 72)
    TSTAMP(3)
    L("K_tloop")
    for t in range(4):
        E(f"ds_read_b128 {R4(12+4*t)}, v70 offset:{384 - 128*t}")
    E("v_add_u32 v70, 4096, v70")
    E("s_waitcnt lgkmcnt(0)")
    for t in range(4):
        for i in range(4):
            kr = 12 + 4 * t + i
            d = 160 + (t * 4 + i) * 2
            E(f"v_dot2_f32_bf16 v{208+2*i}, v{kr}, v{d}, 0")
            E(f"v_dot2_f32_bf16 v{209+2*i}, v{kr}, v{d+1}, 0")
        E("s_nop 0")
        for i in range(4):
            E(f"v_cvt_pk_bf16_f32 v{192+4*t+i}, v{208+2*i}, v{209+2*i}")
    cur = 192 + 12
    for t in (2, 1, 0):
        for i in range(4):
            E(f"v_lshlrev_b32 v{208+2*i}, 16, v{cur+i}")
            E(f"v_and_b32 v{209+2*i}, s43, v{cur+i}")
        for i in range(4):
            E(f"v_dot2_f32_bf16 v{208+2*i}, v{192+4*t+i}, s76, v{208+2*i}")
            E(f"v_dot2_f32_bf16 v{209+2*i}, v{192+4*t+i}, s77, v{209+2*i}")
        E("s_nop 0")
        for i in range(4):
            E(f"v_cvt_pk_bf16_f32 v{cur+i}, v{208+2*i}, v{209+2*i}")
    for i in range(4):
        E(f"v_and_b32 v{216+2*i}, s78, v{96+i}")
        E(f"v_and_b32 v{217+2*i}, s43, v{96+i}")
    for i in range(4):
        E(f"v_dot2_f32_bf16 v{208+2*i}, v{cur+i}, v{216+2*i}, 0")
        E(f"v_dot2_f32_bf16 v{209+2*i}, v{cur+i}, v{217+2*i}, 0")
    E("s_nop 0")
    for i in range(4):
        E(f"v_cvt_pk_bf16_f32 v{36+i}, v{208+2*i}, v{209+2*i}")
    if DRY:
        E("s_cmp_lg_u32 s5, 0")
        E("s_cbranch_scc1 K_gmask")
    E("ds_write_b128 v64, v[36:39] offset:1152")
    E("s_cmp_eq_u32 s62, 0")
    E("s_cbranch_scc0 K_tw1")
    E("s_waitcnt vmcnt(5)")
    L("K_tw1")
    E("ds_write_b128 v64, v[32:35]")
    E("s_waitcnt lgkmcnt(0)")
    E("ds_read_b64_tr_b16 v[76:77], v65")
    E("ds_read_b64_tr_b16 v[78:79], v65 offset:576")
    E("ds_read_b64_tr_b16 v[80:81], v65 offset:64")
    E("ds_read_b64_tr_b16 v[82:83], v65 offset:640")
    E("s_waitcnt lgkmcnt(2)")
    E(f"buffer_store_dwordx4 v[76:79], v69, s[{SRD_WS}:{SRD_WS+3}], s70 offen {ZSC}")
    E("s_waitcnt lgkmcnt(0)")
    E(f"buffer_store_dwordx4 v[80:83], v69, s[{SRD_WS}:{SRD_WS+3}], s71 offen {ZSC}")
    E("s_cmp_eq_u32 s62, 1")
    E("s_cbranch_scc1 K_tdone")
    E("s_mov_b32 s62, 1")
    E("s_add_u32 s70, s70, 128")
    E("s_add_u32 s71, s71, 128")
    TSTAMP(4)
    E("s_waitcnt vmcnt(5)")
    TSTAMP(5)
    for i in range(4):
        E(f"v_mov_b32 v{96+i}, v{144+i}")
        E(f"v_mov_b32 v{32+i}, v{148+i}")
    E("s_branch K_tloop")
    L("K_tdone")
    STAMP(2)
    E("s_waitcnt vmcnt(0)")
    post(0)
    L("K_nwait")
    E(f"ds_read_b64 v[92:93], v30 offset:272")
    E("s_waitcnt lgkmcnt(0)")
    E("v_readfirstlane_b32 s56, v92")
    E("v_readfirstlane_b32 s57, v93")
    E("s_cmp_lg_u32 s56, 0")
    E("s_cbranch_scc1 K_nok")
    E("s_sleep 1")
    E("s_branch K_nwait")
    L("K_nok")
    E("s_cmp_lg_u32 s3, 4")
    E("s_cbranch_scc1 K_nopub")
    waitf(0, 4, 8, 144)
    E("s_mov_b64 exec, 1")
    E(f"buffer_store_dwordx2 v[92:93], v227, s[{SRD_WS}:{SRD_WS+3}], s9 offen sc1")
    E("s_mov_b64 exec, -1")
    STAMP(9)
    L("K_nopub")
    E("s_mov_b32 s62, 0")
    L("K_gmask")
    for i in range(4):
        E(f"v_and_b32 v{216+2*i}, s78, v{60+i}")
        E(f"v_and_b32 v{217+2*i}, s43, v{60+i}")
    L("K_gloop")
    for i in range(4):
        E(f"v_dot2_f32_bf16 v{208+2*i}, v{56+i}, v{216+2*i}, 0")
        E(f"v_dot2_f32_bf16 v{209+2*i}, v{56+i}, v{217+2*i}, 0")
    E("s_nop 0")
    for i in range(4):
        E(f"v_cvt_pk_bf16_f32 v{192+i}, v{208+2*i}, v{209+2*i}")
    for i in range(4):
        E(f"v_dot2_f32_bf16 v{208+i}, v{192+i}, s79, 0")
    E("s_nop 2")
    E("v_add_f32 v208, v208, v209")
    E("v_add_f32 v210, v210, v211")
    E("v_add_f32 v74, v208, v210")
    for dpp in ["row_shr:1", "row_shr:2", "row_shr:4", "row_shr:8"]:
        E("s_nop 1")
        E(f"v_add_f32_dpp v74, v74, v74 {dpp} row_mask:0xf bank_mask:0xf bound_ctrl:0")
    E("s_nop 1")
    E("v_add_f32_dpp v74, v74, v74 row_bcast:15 row_mask:0xa bank_mask:0xf")
    E("s_nop 1")
    E("v_add_f32_dpp v74, v74, v74 row_bcast:31 row_mask:0xc bank_mask:0xf")
    E("s_nop 1")
    E("v_cvt_pk_bf16_f32 v74, v74, v74")
    E("v_lshlrev_b32 v74, 16, v74")
    E("v_mul_f32 v74, 0xbfb8aa3b, v74")
    E("v_exp_f32 v74, v74")
    E("s_nop 0")
    E("v_add_f32 v74, 1.0, v74")
    E("v_rcp_f32 v74, v74")
    E("s_nop 0")
    E("v_cvt_pk_bf16_f32 v74, v74, v74")
    E("s_lshl_b32 s72, s67, 1")
    E("s_add_u32 s72, s72, s62")
    E("s_lshl_b32 s72, s72, 1")
    E(f"s_add_u32 s72, s72, {SYN + 256}")
    E("v_mov_b32 v75, s72")
    if DRY:
        E("s_cmp_lg_u32 s5, 0")
        E("s_cbranch_scc1 K_breal")
    E("v_cmp_eq_u32 vcc, 63, v1")
    E("s_and_saveexec_b64 s[74:75], vcc")
    E("ds_write_b16 v75, v74")
    E("s_mov_b64 exec, s[74:75]")
    E("s_cmp_eq_u32 s62, 1")
    E("s_cbranch_scc1 K_bwave")
    E("s_mov_b32 s62, 1")
    for i in range(4):
        E(f"v_mov_b32 v{56+i}, v{152+i}")
    E("s_branch K_gloop")
    L("K_kgen")
    E(f"s_setprio {APRIO}")
    STAMP(2)
    E("v_and_b32 v20, 15, v1")
    E("v_lshrrev_b32 v21, 4, v1")
    E("s_mov_b32 s74, 0x00040000")
    E("s_mov_b32 s75, 0x02000100")
    E("s_mov_b32 s76, 0x00010001")
    E("s_mov_b32 s77, 0x00040002")
    E("s_mov_b32 s78, 0x00020002")
    E("s_mov_b32 s79, 0x01000004")
    E("v_lshrrev_b32 v22, 2, v20")
    E("v_lshlrev_b32 v22, 4, v22")
    E("v_lshrrev_b64 v[32:33], v22, s[74:75]")
    E("v_and_b32 v32, 0xffff, v32")
    E("v_lshrrev_b64 v[34:35], v22, s[76:77]")
    E("v_and_b32 v34, 0xffff, v34")
    E("v_and_b32 v23, 1, v20")
    E("v_mad_u32_u24 v32, v23, v34, v32")
    E("v_lshrrev_b64 v[34:35], v22, s[78:79]")
    E("v_and_b32 v34, 0xffff, v34")
    E("v_bfe_u32 v23, v20, 1, 1")
    E("v_mad_u32_u24 v32, v23, v34, v32")
    E("v_cvt_f32_u32 v24, v32")
    E("v_lshrrev_b32 v33, 7, v32")
    E("v_and_b32 v32, 127, v32")
    E("v_cvt_f32_u32 v16, v33")
    E("v_cvt_f32_u32 v17, v32")
    E("v_add_u32 v32, 8, v20")
    E("v_cvt_f32_u32 v18, v32")
    E("v_mul_f32 v26, 0x43000000, v18")
    E("v_lshlrev_b32 v22, 3, v20")
    E("v_cvt_f32_u32 v27, v22")
    if DRY > 1:
        E("s_mov_b32 s5, 1")
        E("s_mov_b64 exec, 0")
        E("s_branch K_dA")
        L("K_areal")
        E("s_mov_b32 s5, 0")
        E("s_mov_b64 exec, -1")
    E("s_waitcnt lgkmcnt(0)")
    E("s_lshl_b32 s70, s22, 16")
    E("s_and_b32 s22, s22, s43")
    E("s_cmp_eq_u32 s69, 0")
    E("s_cselect_b32 s22, s70, s22")
    E("v_mov_b32 v40, 0x3fb8aa3b")
    E("v_mul_f32 v41, s22, v40")
    E("v_exp_f32 v41, v41")
    E("s_nop 0")
    E("v_cvt_pk_bf16_f32 v41, v41, v41")
    E("v_lshlrev_b32 v41, 16, v41")
    E(f"s_waitcnt vmcnt({2 if TOUCH else 0})")
    L("K_dA")
    for i in range(6):
        E(f"v_lshlrev_b32 v{84+i}, 16, v{84+i}")
    E("v_mul_f32 v84, v41, v84")
    E("v_mul_f32 v85, v41, v85")
    E("v_mul_f32 v86, v41, v86")
    E("v_mul_f32 v87, v41, v87")
    E("v_mul_f32 v44, v40, v84")
    E("v_mul_f32 v45, 0.15915494, v85")
    E("v_rndne_f32 v46, v45")
    E("v_sub_f32 v45, v45, v46")
    E("v_mul_f32 v46, 0x43000000, v45")
    E("v_rndne_f32 v47, v46")
    E("v_sub_f32 v46, v46, v47")
    E("v_mul_f32 v84, 0x43000000, v44")
    E("v_exp_f32 v84, v84")
    E("v_cos_f32 v47, v46")
    E("v_sin_f32 v85, v46")
    E("v_mul_f32 v80, v88, v86")
    E("v_fma_f32 v80, -v89, v87, v80")
    E("v_mul_f32 v81, v88, v87")
    E("v_fma_f32 v81, v89, v86, v81")
    E("v_mul_f32 v47, v84, v47")
    E("v_mul_f32 v82, v84, v85")
    E("s_lshl_b32 s70, s3, 11")
    E(f"s_add_u32 s70, s70, {S_P}")
    E("v_lshl_add_u32 v42, v1, 5, s70")
    E("ds_write_b128 v42, v[44:47]")
    E("ds_write_b128 v42, v[80:83] offset:16")
    E("v_lshl_add_u32 v43, v21, 6, s70")
    for r in range(48, 60):
        E(f"v_mov_b32 v{r}, 0")
    E("s_waitcnt lgkmcnt(0)")
    for k in range(4):
        E(f"ds_read_b128 {R4(60+4*k)}, v43 offset:{16*k}")
    E("s_mov_b32 s62, 0")
    E(f"s_mov_b32 s63, {NA}")
    if DRY > 1:
        E("s_cmp_lg_u32 s5, 0")
        E("s_cselect_b32 s63, 1, s63")
    L("K_loop")
    E("s_waitcnt lgkmcnt(0)")
    TT = [[96, 100, 104, 108], [136, 140, 144, 148]]
    for nn in range(2):
        zr, zi, w128 = 60 + 8 * nn, 61 + 8 * nn, 62 + 8 * nn
        T = TT[nn]
        E(f"v_mul_f32 v{T[3]}, v{zr}, v27")
        E(f"v_mul_f32 v{T[3]+1}, v{zi}, v27")
        E(f"v_mul_f32 v{T[0]}, v{zr}, v24")
        E(f"v_mul_f32 v{T[0]+1}, v{zi}, v17")
        E(f"v_mul_f32 v{T[2]}, v{zr}, v26")
        E(f"v_mul_f32 v{T[2]+1}, v{w128}, v18")
        E(f"v_fma_f32 v{T[0]+1}, v{w128}, v16, v{T[0]+1}")
        for k in range(4):
            E(f"v_mov_b32 v{76+4*nn+k}, v{63+8*nn+k}")
    E("v_add_u32 v43, 256, v43")
    for k in range(4):
        E(f"ds_read_b128 {R4(60+4*k)}, v43 offset:{16*k}")
    for nn in range(2):
        er, cbr, cbi, ei = 76 + 4 * nn, 77 + 4 * nn, 78 + 4 * nn, 79 + 4 * nn
        T = TT[nn]
        for t in [T[3], T[0], T[2]]:
            E(f"v_exp_f32 v{t}, v{t}")
            E(f"v_cos_f32 v{t+2}, v{t+1}")
            E(f"v_sin_f32 v{t+3}, v{t+1}")
        t = T[3]
        E(f"v_mul_f32 v{t+2}, v{t}, v{t+2}")
        E(f"v_mul_f32 v{t+3}, v{t}, v{t+3}")
        E(f"v_mul_f32 v{t}, v{cbr}, v{t+2}")
        E(f"v_mul_f32 v{t+1}, v{cbr}, v{t+3}")
        E(f"v_fma_f32 v{t}, -v{cbi}, v{t+3}, v{t}")
        E(f"v_fma_f32 v{t+3}, -v{cbi}, v{t+2}, -v{t+1}")
        E(f"v_mov_b32 v{t+2}, v{t}")
        for t in [T[0], T[2]]:
            E(f"v_mul_f32 v{t+2}, v{t}, v{t+2}")
            E(f"v_mul_f32 v{t+3}, v{t}, v{t+3}")
        p, q = T[0], T[1]
        E(f"v_mul_f32 v{q+2}, v{p+2}, v{er}")
        E(f"v_mul_f32 v{q+3}, v{p+2}, v{ei}")
        E(f"v_fma_f32 v{q+2}, -v{p+3}, v{ei}, v{q+2}")
        E(f"v_fma_f32 v{q+3}, v{p+3}, v{er}, v{q+3}")
        for k in range(4):
            t = T[k]
            hi = (112 + 2 * k + nn) if k < 3 else (124 + nn)
            lo = (118 + 2 * k + nn) if k < 3 else (126 + nn)
            E(f"v_cvt_pk_bf16_f32 v{hi}, v{t+2}, v{t+3}")
            E(f"v_lshlrev_b32 v{t}, 16, v{hi}")
            E(f"v_and_b32 v{t+1}, s43, v{hi}")
            E(f"v_sub_f32 v{t}, v{t+2}, v{t}")
            E(f"v_sub_f32 v{t+1}, v{t+3}, v{t+1}")
            E(f"v_cvt_pk_bf16_f32 v{lo}, v{t}, v{t+1}")
    E("s_add_u32 s62, s62, 1")
    E(f"s_cmp_eq_u32 s62, {LATE}")
    for k in range(3):
        a_ = 48 + 4 * k
        E(f"v_mfma_f32_16x16x16_bf16 {R4(a_)}, v[{112+2*k}:{113+2*k}], v[124:125], {R4(a_)}")
        E(f"v_mfma_f32_16x16x16_bf16 {R4(a_)}, v[{112+2*k}:{113+2*k}], v[126:127], {R4(a_)}")
        E(f"v_mfma_f32_16x16x16_bf16 {R4(a_)}, v[{118+2*k}:{119+2*k}], v[124:125], {R4(a_)}")
    E("s_cbranch_scc0 K_nost")
    E("s_lshl_b32 s70, s64, 13")
    E("s_lshl_b32 s71, s3, 11")
    E("s_add_u32 s70, s70, s71")
    E(f"s_mul_i32 s71, s69, {XROW}")
    E("s_lshl_b32 s72, s61, 11")
    E("s_add_u32 s71, s71, s72")
    E(f"s_add_u32 s71, s71, {XBASE + 4*XROW + 32}")
    E("s_mov_b32 m0, s71")
    E("s_nop 0")
    E(f"buffer_load_dwordx4 v9, s[{SRD_A}:{SRD_A+3}], s70 offen lds")
    E(f"buffer_load_dwordx4 v9, s[{SRD_A}:{SRD_A+3}], s70 offen offset:1024 lds")
    L("K_nost")
    E("s_cmp_lg_u32 s3, 0")
    E("s_cbranch_scc1 K_non")
    E("s_cmp_eq_u32 s62, 1")
    E("s_cbranch_scc0 K_non1")
    E(f"buffer_load_dwordx2 v[92:93], v95, s[{SRD_DBGB}:{SRD_DBGB+3}], 0 offen sc1")
    L("K_non1")
    E("s_cmp_eq_u32 s62, 2")
    E("s_cbranch_scc0 K_non")
    E("s_mov_b32 s70, 0")
    L("K_npoll")
    E("s_waitcnt vmcnt(0)")
    E("v_readfirstlane_b32 s71, v92")
    E("s_add_u32 s70, s70, 1")
    E("s_cmp_lg_u32 s71, 0")
    E("s_cbranch_scc1 K_ngot")
    E("s_sleep 4")
    E(f"buffer_load_dwordx2 v[92:93], v95, s[{SRD_DBGB}:{SRD_DBGB+3}], 0 offen sc1")
    E("s_cmp_lt_u32 s70, 0x40000")
    E("s_cbranch_scc1 K_npoll")
    E("s_waitcnt vmcnt(0)")
    E("v_mov_b32 v92, 1")
    L("K_ngot")
    E("ds_write_b64 v30, v[92:93] offset:272")
    L("K_non")
    E(f"s_cmp_eq_u32 s62, {LATE+3}")
    E("s_cbranch_scc0 K_nost2")
    E("s_waitcnt vmcnt(0)")
    post(0)
    L("K_nost2")
    E("s_cmp_lt_u32 s62, s63")
    E("s_cbranch_scc1 K_loop")
    E("s_waitcnt lgkmcnt(0)")
    STAMP(3)
    E("s_mul_i32 s70, s3, 3072")
    E(f"s_add_u32 s70, s70, {S_TR}")
    E("v_lshl_add_u32 v39, v1, 4, s70")
    E("v_and_b32 v4, 15, v1")
    E("v_lshrrev_b32 v5, 4, v1")
    E("v_lshlrev_b32 v6, 2, v4")
    E("v_add_u32 v6, v6, v5")
    E("s_nop 1")
    for k in range(3):
        E(f"ds_write_b128 v39, {R4(48+4*k)} offset:{1024*k}")
    post(1)
    E("s_mul_i32 s70, s69, 12288")
    E(f"s_add_u32 s70, s70, {S_KT}")
    E("v_lshlrev_b32 v32, 5, v20")
    E("v_add_u32 v32, s70, v32")
    E("v_lshl_add_u32 v44, v21, 11, v32")
    E("v_add_u32 v44, 4096, v44")
    E("v_add_u32 v45, 512, v44")
    E("v_add_u32 v46, 1024, v44")
    E("v_add_u32 v47, 1536, v44")
    E("v_lshlrev_b32 v22, 4, v21")
    E("v_lshrrev_b64 v[60:61], v22, s[74:75]")
    E("v_and_b32 v60, 0xffff, v60")
    E("v_lshl_add_u32 v35, v60, 2, v32")
    E("s_lshl_b32 s71, s61, 9")
    E("v_add_u32 v35, s71, v35")
    E("v_lshrrev_b64 v[60:61], v22, s[76:77]")
    E("v_and_b32 v60, 0xffff, v60")
    E("v_lshl_add_u32 v36, v60, 2, v35")
    E("v_lshrrev_b64 v[62:63], v22, s[78:79]")
    E("v_and_b32 v62, 0xffff, v62")
    E("v_lshl_add_u32 v37, v62, 2, v35")
    E("v_lshl_add_u32 v38, v62, 2, v36")
    E("s_mul_i32 s70, s69, 6144")
    E(f"s_add_u32 s70, s70, {S_TR}")
    E("v_lshl_add_u32 v39, v1, 4, s70")
    E("s_lshl_b32 s71, s61, 10")
    E("v_add_u32 v40, s71, v39")
    E("s_lshl_b32 s71, s61, 9")
    E("v_lshl_add_u32 v60, v1, 3, s71")
    E("s_mul_i32 s70, s69, 12288")
    E(f"s_add_u32 s70, s70, {S_KT}")
    for rr in range(2):
        for e in range(0, 8, 2):
            E(f"v_add_u32 v62, {e + 1024*rr}, v60")
            E(f"v_add_u32 v63, {e + 1 + 1024*rr}, v60")
            E("v_cvt_f32_u32 v62, v62")
            E("v_cvt_f32_u32 v63, v63")
            E("v_cvt_pk_bf16_f32 v62, v62, v63")
            E("v_and_b32 v63, s43, v62")
            E("v_lshlrev_b32 v62, 16, v62")
            E("v_cvt_u32_f32 v62, v62")
            E("v_cvt_u32_f32 v63, v63")
            E(f"v_lshl_add_u32 v{64+8*rr+e}, v62, 2, s70")
            E(f"v_lshl_add_u32 v{65+8*rr+e}, v63, 2, s70")
    E(f"s_mul_i32 s70, s69, {XROW}")
    E(f"s_add_u32 s70, s70, {XBASE + 32}")
    E("v_lshl_add_u32 v61, v60, 1, s70")
    RSTAMP(1)
    waitf(1, 0, 4, 96)
    RSTAMP(2)
    srcoff = [0, 3072]
    for k in range(2):
        E(f"ds_read_b128 {R4(96+4*k)}, v40 offset:{srcoff[k]}")
    for k in range(2):
        E(f"ds_read_b128 {R4(112+4*k)}, v39 offset:{srcoff[k] + 2048}")
    for (b, dst, w) in [(96, 35, 2), (112, 44, 0)]:
        E(f"s_waitcnt lgkmcnt({w})")
        for e in range(4):
            E(f"v_add_f32 v{b+e}, v{b+e}, v{b+4+e}")
    for (b, dst) in [(96, 35), (112, 44)]:
        for e in range(4):
            E(f"ds_write_b32 v{dst+e}, v{b+e}")
    post(2)
    RSTAMP(4)
    waitf(2, 0, 4, 96)
    RSTAMP(6)
    for e in range(16):
        E(f"ds_read_b32 v{96+e}, v{64+e}")
    for rr in range(2):
        for e in range(0, 8, 2):
            src = 96 + 8 * rr + e
            E(f"s_waitcnt lgkmcnt({14 - 8*rr - e})")
            E(f"v_cvt_pk_bf16_f32 v{112+8*rr+e//2}, v{src}, v{src+1}")
            E(f"v_lshlrev_b32 v62, 16, v{112+8*rr+e//2}")
            E(f"v_and_b32 v63, s43, v{112+8*rr+e//2}")
            E(f"v_sub_f32 v62, v{src}, v62")
            E(f"v_sub_f32 v63, v{src+1}, v63")
            E(f"v_cvt_pk_bf16_f32 v{116+8*rr+e//2}, v62, v63")
    for rr in range(2):
        E(f"ds_write_b128 v61, {R4(112+8*rr)} offset:{2048*rr}")
        E(f"ds_write_b128 v61, {R4(116+8*rr)} offset:{2*XROW + 2048*rr}")
    post(3)
    RSTAMP(7)
    STAMP(4)
    E("s_branch K_csetup")
    L("K_bwave")
    post(1)
    STAMP(3)
    E("s_cmp_lg_u32 s3, 5")
    E("s_cbranch_scc1 K_norec")
    waitf(1, 4, 8, 144)
    E(f"ds_read_b64 v[144:145], v225 offset:{SYN + 256}")
    E("v_mov_b32 v146, s56")
    E("v_mov_b32 v147, s57")
    E("s_waitcnt lgkmcnt(0)")
    E("s_mov_b64 exec, 3")
    E(f"buffer_store_dwordx4 v[144:147], v227, s[{SRD_WS}:{SRD_WS+3}], s8 offen sc1")
    E("s_mov_b64 exec, -1")
    L("K_norec")
    if not ALLPOLL:
        E("s_cmp_lg_u32 s3, 4")
        E("s_cbranch_scc1 K_pwait")
    E("s_mov_b32 s70, 0")
    L("K_poll")
    E(f"buffer_load_dwordx2 v[112:113], v226, s[{SRD_WS}:{SRD_WS+3}], s7 offen sc1")
    E("s_waitcnt vmcnt(0)")
    E("v_xor_b32 v112, s56, v112")
    E("v_xor_b32 v113, s57, v113")
    E("v_or_b32 v112, v112, v113")
    E("v_cmp_ne_u32 vcc, 0, v112")
    E("s_add_u32 s70, s70, 1")
    E("s_cmp_eq_u64 vcc, 0")
    E("s_cbranch_scc1 K_pok")
    E(f"s_sleep {PSLEEP}")
    E("s_cmp_lt_u32 s70, 0x40000")
    E("s_cbranch_scc1 K_poll")
    L("K_pok")
    post(5)
    E("s_branch K_pdone")
    L("K_pwait")
    E(f"ds_read_b32 v93, v30 offset:{32*5 + 16}")
    E("s_waitcnt lgkmcnt(0)")
    E("v_readfirstlane_b32 s70, v93")
    E("s_cmp_eq_u32 s70, 1")
    E("s_cbranch_scc1 K_pdone")
    E("s_sleep 1")
    E("s_branch K_pwait")
    L("K_pdone")
    STAMP(4)
    for p in range(4):
        E(f"buffer_load_dwordx4 {R4(192+4*p)}, v233, s[{SRD_WS}:{SRD_WS+3}], {'s6' if p < 2 else 's13'} offen offset:{2048*(p&1)} sc1")
    for k in range(5):
        E(f"v_mov_b32 v{16+k}, v{228+k}")
    finsetup(0)
    waitf(0, 0, 4, 24)
    preloadA(1)
    for p in range(4):
        E(f"s_waitcnt vmcnt({3-p})")
        E(f"ds_write_b128 v224, {R4(192+4*p)} offset:{64*p}")
    post(4)
    E(f"s_setprio {CBPRIO}")
    E("s_branch K_convB")
    L("K_csetup")
    vB, vA, vPM, vPC, vF = 16, 17, 18, 19, 20
    E("s_lshl_b32 s70, s3, 1")
    E(f"s_mul_i32 s70, s70, {ZROW}")
    E(f"s_add_u32 s70, s70, {ZBASE + 8}")
    E(f"v_lshlrev_b32 v{vB}, 3, v4")
    E(f"v_lshl_add_u32 v{vB}, v5, 4, v{vB}")
    E(f"v_add_u32 v{vB}, s70, v{vB}")
    E("v_and_b32 v22, 3, v1")
    E("v_bfe_u32 v23, v1, 2, 2")
    E("v_sub_u32 v22, v22, v23")
    E("v_lshlrev_b32 v22, 3, v22")
    E("v_lshlrev_b32 v23, 6, v5")
    E("v_sub_u32 v22, v22, v23")
    E("s_lshl_b32 s70, s68, 2")
    E("s_add_u32 s70, s70, s69")
    E(f"s_mul_i32 s70, s70, {XROW}")
    E(f"s_add_u32 s70, s70, {XBASE + 224}")
    E(f"v_add_u32 v{vA}, s70, v22")
    E("s_cmp_eq_u32 s68, 0")
    E(f"s_mov_b32 s71, {PB}")
    E(f"s_cselect_b32 s71, {PA}, s71")
    E(f"s_mul_i32 s70, s67, {PMS}")
    E("s_add_u32 s70, s70, s71")
    E("s_add_u32 s72, s70, 16")
    E(f"v_lshl_add_u32 v{vPM}, v1, 4, s72")
    E(f"s_mul_i32 s72, s67, {PCS}")
    E("s_add_u32 s72, s72, s71")
    E(f"s_add_u32 s72, s72, {4*PMS}")
    E("s_add_u32 s73, s72, 16")
    E(f"v_lshl_add_u32 v{vPC}, v1, 2, s73")
    E("s_lshl_b32 s73, s3, 2")
    E(f"s_add_u32 s73, s73, {FLG}")
    E(f"v_mov_b32 v{vF}, s73")
    E("v_mov_b32 v22, s70")
    E("v_mov_b32 v23, s72")
    if DRY > 1:
        E("s_cmp_lg_u32 s5, 0")
        E("s_cbranch_scc1 K_areal")
    RSTAMP(8)
    waitf(3, 0, 4, 24)
    RSTAMP(9)
    E("v_mov_b32 v24, 0")
    E("v_mov_b32 v25, 0")
    E("v_mov_b32 v26, 0")
    E("v_mov_b32 v27, 0")
    E("ds_write_b128 v22, v[24:27]")
    E("ds_write_b128 v23, v[24:27]")
    finsetup(7)
    waitf(7, 4, 8, 24)
    preloadA(2)
    waitf(4, 4, 8, 24)
    E("s_setprio 0")
    STAMP(5)

    def acc(pp, q):
        return 192 + 32 * pp + 4 * q
    def Bf(pp, jj):
        return 32 + 4 * ((jj % 4) * 2 + pp)
    def conv(nx):
        def Af(n, x):
            return 64 + 4 * (n * nx + x)
        queue = []
        def rdB(jj):
            for pp in range(2):
                b = Bf(pp, jj)
                E(f"ds_read_b64 v[{b}:{b+1}], v{vB} offset:{pp*ZROW + 64*jj}")
                E(f"ds_read_b64 v[{b+2}:{b+3}], v{vB} offset:{pp*ZROW + 64*jj + 8}")
                queue.extend([("B", jj, pp), ("B", jj, pp)])
        def need(keys):
            last = -1
            for idx, k in enumerate(queue):
                if k in keys:
                    last = idx
            if last >= 0:
                n_after = min(len(queue) - 1 - last, 15)
                E(f"s_waitcnt lgkmcnt({n_after})")
                del queue[:len(queue) - n_after]
        def mf(pp, q, jj, x, first=False):
            n = 2 * q - jj + 1
            c = "0" if first else R4(acc(pp, q))
            E(f"v_mfma_f32_16x16x32_bf16 {R4(acc(pp,q))}, {R4(Af(n,x))}, {R4(Bf(pp,jj))}, {c}")
        def writeout(q):
            a0, a1 = acc(0, q), acc(1, q)
            E(f"v_add_f32 v{a0+1}, v{a0+1}, v{a1}")
            E(f"v_add_f32 v{a0+2}, v{a0+2}, v{a1+1}")
            E(f"v_add_f32 v{a0+3}, v{a0+3}, v{a1+2}")
            E(f"ds_write_b32 v{vPC}, v{a1+3} offset:{256*q}")
            E(f"ds_write_b128 v{vPM}, {R4(a0)} offset:{1024*q}")
            E(f"ds_write_b32 v{vF}, v29 offset:{32*q}")
            queue.extend([("W",), ("W",), ("W",)])
        rdB(0); rdB(1); rdB(2)
        for jj in range(16):
            q0 = jj >> 1
            k = 0
            for q in range(q0, 8):
                for pp in range(2):
                    if q == q0:
                        need({("B", jj, pp)})
                    for x in range(nx):
                        mf(pp, q, jj, x, first=(jj == 0 and x == 0))
                k += 1
                if k == 1 and jj + 3 < 16:
                    rdB(jj + 3)
                if jj % 2 == 0 and jj >= 2 and q == min(q0 + 1, 7):
                    if jj == 14:
                        E("s_nop 3")
                    writeout(q0 - 1)
        E("s_nop 7")
        writeout(7)
    conv(2)
    STAMP(6)
    E("s_branch K_fin")
    L("K_convB")
    waitf(4, 4, 8, 24)
    E(f"buffer_load_dwordx4 v[12:15], v9, s[{SRD_WS}:{SRD_WS+3}], s60 offen sc1")
    E(f"buffer_load_dwordx4 v[24:27], v9, s[{SRD_WS}:{SRD_WS+3}], s60 offen offset:1024 sc1")
    STAMP(5)
    conv(1)
    STAMP(6)
    E("s_mov_b32 s70, 0")
    L("K_gpoll")
    E("s_waitcnt vmcnt(0)")
    E("v_xor_b32 v14, s56, v14")
    E("v_xor_b32 v15, s57, v15")
    E("v_xor_b32 v26, s56, v26")
    E("v_xor_b32 v27, s57, v27")
    E("v_or_b32 v14, v14, v15")
    E("v_or_b32 v26, v26, v27")
    E("v_or_b32 v14, v14, v26")
    E("v_cmp_ne_u32 vcc, 0, v14")
    E("s_add_u32 s70, s70, 1")
    E("s_cmp_eq_u64 vcc, 0")
    E("s_cbranch_scc1 K_gok")
    E("s_cmp_ge_u32 s70, 0x40000")
    E("s_cbranch_scc1 K_gok")
    E("s_sleep 8")
    E(f"buffer_load_dwordx4 v[12:15], v9, s[{SRD_WS}:{SRD_WS+3}], s60 offen sc1")
    E(f"buffer_load_dwordx4 v[24:27], v9, s[{SRD_WS}:{SRD_WS+3}], s60 offen offset:1024 sc1")
    E("s_branch K_gpoll")
    L("K_gok")
    for (src, dst) in [(12, 32), (24, 36)]:
        for hh in range(2):
            E(f"v_lshlrev_b32 v{dst+2*hh}, 16, v{src+hh}")
            E(f"v_and_b32 v{dst+2*hh+1}, s43, v{src+hh}")
        for e in range(4):
            E(f"v_sub_f32 v40, 1.0, v{dst+e}")
            E(f"v_cvt_pk_bf16_f32 v{dst+e}, v{dst+e}, v40")
    E("ds_write_b128 v10, v[32:35]")
    E("ds_write_b128 v10, v[36:39] offset:1024")
    post(6)
    if FINPRIO:
        E(f"s_setprio {FINPRIO}")
    L("K_fin")
    waitf(6, 4, 8, 32)
    L("K_hloop")
    for r in range(48, 52):
        E(f"v_mov_b32 v{r}, 0")
    for k in range(4):
        E(f"ds_read_u16_d16_hi v{48+k}, v21 offset:{ZBASE + 4*k*ZROW + 128}")
    E("ds_read_b32 v8, v7")
    L("K_hpoll")
    E("ds_read_b128 v[32:35], v23")
    E("ds_read_b128 v[36:39], v23 offset:16")
    E("s_waitcnt lgkmcnt(0)")
    for k in range(0, 8, 2):
        E(f"v_and_b32 v{32+k}, v{32+k}, v{33+k}")
    E("v_and_b32 v32, v32, v34")
    E("v_and_b32 v36, v36, v38")
    E("v_and_b32 v32, v32, v36")
    E("s_nop 0")
    E("v_readfirstlane_b32 s70, v32")
    E("s_cmp_eq_u32 s70, 1")
    E("s_cbranch_scc1 K_go")
    E("s_sleep 3")
    E("s_branch K_hpoll")
    L("K_go")
    for k in range(4):
        X, c = k >> 1, k & 1
        base = PSTRIDE if X == 0 else 0
        E(f"ds_read_b32 v{32+k}, v2 offset:{base + 2*c*PMS}")
        E(f"ds_read_b32 v{36+k}, v3 offset:{base + 2*c*PMS}")
        E(f"ds_read_b32 v{40+k}, v11 offset:{base + 2*c*PCS}")
    def rnd(a, b):
        E(f"v_cvt_pk_bf16_f32 v{a}, v{a}, v{b}")
        E(f"v_and_b32 v{b}, s43, v{a}")
        E(f"v_lshlrev_b32 v{a}, 16, v{a}")
    yA0, yA1, yB0, yB1 = 32, 33, 34, 35
    u0, u1, k0, k1 = 48, 49, 50, 51
    t = 52
    E(f"v_mul_f32 v{t}, s76, v{u0}")
    E(f"v_mul_f32 v{t+1}, s77, v{u1}")
    E(f"v_mul_f32 v{t+2}, s78, v{k0}")
    E(f"v_mul_f32 v{t+3}, s79, v{k1}")
    rnd(t, t + 1)
    rnd(t + 2, t + 3)
    E(f"v_lshlrev_b32 v{t+4}, 16, v8")
    E(f"v_and_b32 v{t+5}, s43, v8")
    E("v_add_u32 v2, 1024, v2")
    E("v_add_u32 v3, 1024, v3")
    E("v_add_u32 v11, s75, v11")
    E("v_add_u32 v21, 128, v21")
    E("v_add_u32 v23, 32, v23")
    E("v_add_u32 v7, 1024, v7")
    for k in range(4):
        E(f"s_waitcnt lgkmcnt({9-3*k})")
        E(f"v_add_f32 v{32+k}, v{32+k}, v{36+k}")
        E(f"v_add_f32 v{32+k}, v{32+k}, v{40+k}")
    rnd(yA0, yA1)
    rnd(yB0, yB1)
    E(f"v_add_f32 v{yA0}, v{yA0}, v{t}")
    E(f"v_add_f32 v{yA1}, v{yA1}, v{t+1}")
    E(f"v_add_f32 v{yB0}, v{yB0}, v{t+2}")
    E(f"v_add_f32 v{yB1}, v{yB1}, v{t+3}")
    rnd(yA0, yA1)
    rnd(yB0, yB1)
    E(f"v_mul_f32 v{yB0}, v{u0}, v{yB0}")
    E(f"v_mul_f32 v{yB1}, v{u1}, v{yB1}")
    rnd(yB0, yB1)
    E(f"v_mul_f32 v{yA0}, v{t+4}, v{yA0}")
    E(f"v_mul_f32 v{yA1}, v{t+4}, v{yA1}")
    E(f"v_mul_f32 v{yB0}, v{t+5}, v{yB0}")
    E(f"v_mul_f32 v{yB1}, v{t+5}, v{yB1}")
    rnd(yA0, yA1)
    rnd(yB0, yB1)
    E(f"v_add_f32 v{yA0}, v{yA0}, v{yB0}")
    E(f"v_add_f32 v{yA1}, v{yA1}, v{yB1}")
    E(f"v_cvt_pk_bf16_f32 v{yA0}, v{yA0}, v{yA1}")
    E(f"buffer_store_dword v{yA0}, v22, s[{SRD_OUT}:{SRD_OUT+3}], s72 offen")
    E("v_add_u32 v22, 0x40000, v22")
    E("s_add_u32 s73, s73, 1")
    E("s_cmp_lt_u32 s73, s74")
    E("s_cbranch_scc1 K_hloop")
    STAMP(7)
    if DBG: E("s_waitcnt vmcnt(0)")
    STAMP(8)
    if "--pro" in sys.argv:
        E("s_waitcnt lgkmcnt(0)")
        for i in range(3, 8): E(f"s_mov_b32 s{80+2*i}, s{1+i}")
    DUMP(10, SRD_WS)
    L("K_end")
    E("s_endpgm")
    sg = 102 if DBG else 80
    return f""".amdhsa_kernel {name}
  .amdhsa_next_free_vgpr 256
  .amdhsa_next_free_sgpr {sg}
  .amdhsa_accum_offset 256
  .amdhsa_group_segment_fixed_size 0
  .amdhsa_kernarg_size 152
  .amdhsa_user_sgpr_count 2
  .amdhsa_user_sgpr_kernarg_segment_ptr 1
  .amdhsa_system_sgpr_workgroup_id_x 1
  .amdhsa_float_denorm_mode_32 3
.end_amdhsa_kernel"""

def main():
    hdr = HEADER.rstrip("\n")
    pre = [hdr,
           f"; @launch grid=(256,1,1) block=(512,1,1) lds={LDS_SIZE}",
           '.amdgcn_target "amdgcn-amd-amdhsa--gfx950"',
           ".text"]
    k = gen()
    txt = "\n".join(pre + out) + '\n.section .rodata,"a"\n.p2align 6\n' + k + "\n"
    args = [a for a in sys.argv[1:] if not a.startswith("--")]
    path = args[0] if args else "cdna_kernels/%s.s" % NAME
    open(path, "w").write(txt)

main()
```

```python
import sys

NAME = "gated_mix__ssm_conv_s4__ssm_conv_h3__prompt"
HEADER = open("cdna_kernels/%s.s.ref" % NAME).read().split("; Override launch")[0]
DBG = "--dbg" in sys.argv
def opt(name, default):
    for a in sys.argv:
        if a.startswith("--" + name + "="):
            return int(a.split("=")[1])
    return default
NA = 8
NB = 8 - NA
FINPRIO = opt("finprio", 2)
PSLEEP = opt("psleep", 8)
TOUCH = opt("touch", 0)
LATE = opt("late", 3)
DRY = opt("dry", 0)
KLDS = opt("klds", 1)
TSH = opt("tsh", 16)
ZSC = ["sc1", "sc0 sc1", "sc1 nt"][opt("zsc", 0)]
ALLPOLL = opt("allpoll", 0)
CBPRIO = opt("cbprio", 2)
APRIO = opt("aprio", 2)
POLLSC = ["sc1", "sc0 sc1", "sc1 nt"][opt("pollsc", 1)]

out = []
def E(s=""):
    out.append("    " + s)
def L(s):
    out.append(s + ":")

WS_Z = 0
WS_G = 4 << 20
WS_F = WS_G + 8192
WS_SIZE = (4 << 20) + 16384
WS_DBG = 16 << 20
if DBG:
    WS_SIZE = 32 << 20

ZROW = 1152
ZBASE = 0
XBASE = 16 * ZROW
XROW = 4128
GB = XBASE + 6 * XROW
FLG = GB + 8192
SYN = FLG + 256
PMS = 8192 + 16
PCS = 2048 + 16
PB = SYN + 288
PA = PB + 4 * PMS + 4 * PCS
PSTRIDE = PA - PB
S_KT = PA
S_P = S_KT + 24576
S_K = S_P + 8192
S_TR = S_K + 9216
LDS_SIZE = S_TR + 8 * 3072
assert LDS_SIZE <= 163840 and PA + PSTRIDE <= LDS_SIZE
def PMa(X, w4):
    return (PA if X == 0 else PB) + w4 * PMS
def PCa(X, w4):
    return (PA if X == 0 else PB) + 4 * PMS + w4 * PCS

TD = "--tiledbg" in sys.argv
RD = "--reddbg" in sys.argv
def RSTAMP(i):
    if DBG and RD:
        E(f"s_memtime s[{80+2*i}:{81+2*i}]")
def TSTAMP(i):
    if DBG and TD:
        E(f"s_memtime s[{80+2*i}:{81+2*i}]")
def STAMP(i):
    if TD and i in (3, 4, 5, 6, 7): return
    if RD and i in (1, 2, 4, 6, 7, 8, 9): return
    if DBG:
        E(f"s_memtime s[{80+2*i}:{81+2*i}]")
def DUMP(n, srdreg):
    if DBG:
        E("s_waitcnt lgkmcnt(0)")
        E("s_mov_b64 exec, 1")
        E("s_lshl_b32 s100, s2, 4")
        E("s_add_u32 s100, s100, s3")
        E("s_lshl_b32 s100, s100, 6")
        E(f"s_add_u32 s100, s100, {WS_DBG}")
        for i in range(n):
            E(f"v_mov_b32 v2, s{80+2*i}")
            E(f"v_mov_b32 v3, {4*i}")
            E(f"buffer_store_dword v2, v3, s[{srdreg}:{srdreg+3}], s100 offen")
            E("s_nop 1")

def srd(sd, sp, nbytes):
    E(f"s_mov_b32 s{sd}, s{sp}")
    E(f"s_and_b32 s{sd+1}, s{sp+1}, 0xffff")
    E(f"s_mov_b32 s{sd+2}, {hex(nbytes)}")
    E(f"s_mov_b32 s{sd+3}, 0x00020000")
def R4(r):
    return f"v[{r}:{r+3}]"
SRD_WS, SRD_OUT, SRD_DBGB, SRD_A, SRD_B = 44, 48, 52, 56, 60

lblc = [0]
def post(kind):
    E(f"ds_write_b32 v28, v29 offset:{32*kind}")
def waitf(kind, lo, hi, t0=24):
    lblc[0] += 1
    n = lblc[0]
    if DRY > 1:
        E("s_cmp_lg_u32 s5, 0")
        E(f"s_cbranch_scc1 W{n}_d")
    L(f"W{n}_p")
    if hi - lo == 4:
        E(f"ds_read_b128 v[{t0}:{t0+3}], v30 offset:{32*kind + 4*lo}")
        E("s_waitcnt lgkmcnt(0)")
        E(f"v_and_b32 v{t0}, v{t0}, v{t0+1}")
        E(f"v_and_b32 v{t0+2}, v{t0+2}, v{t0+3}")
        E(f"v_and_b32 v{t0}, v{t0}, v{t0+2}")
    else:
        E(f"ds_read_b128 v[{t0}:{t0+3}], v30 offset:{32*kind}")
        E(f"ds_read_b128 v[{t0+4}:{t0+7}], v30 offset:{32*kind + 16}")
        E("s_waitcnt lgkmcnt(0)")
        for k in range(0, 8, 2):
            E(f"v_and_b32 v{t0+k}, v{t0+k}, v{t0+k+1}")
        E(f"v_and_b32 v{t0}, v{t0}, v{t0+2}")
        E(f"v_and_b32 v{t0+4}, v{t0+4}, v{t0+6}")
        E(f"v_and_b32 v{t0}, v{t0}, v{t0+4}")
    E("s_nop 0")
    E(f"v_readfirstlane_b32 s4, v{t0}")
    E("s_cmp_eq_u32 s4, 1")
    E(f"s_cbranch_scc1 W{n}_d")
    E("s_sleep 1")
    E(f"s_branch W{n}_p")
    L(f"W{n}_d")

def preloadA(nx):
    for n in range(16):
        for x in range(nx):
            a = 64 + 4 * (n * nx + x)
            off = 256 * n + x * 2 * XROW
            E(f"ds_read_b64_tr_b16 v[{a}:{a+1}], v17 offset:{off+32}")
            E(f"ds_read_b64_tr_b16 v[{a+2}:{a+3}], v17 offset:{off}")

def finsetup(q0):
    E(f"s_mov_b32 s73, {q0}")
    E("v_subrev_u32 v24, 16, v1")
    E("v_add_u32 v25, 47, v1")
    E("v_cmp_eq_u32 vcc, 0, v1")
    E("s_nop 1")
    E("v_cndmask_b32 v25, v25, -1, vcc")
    E("v_cmp_gt_u32 vcc, 16, v1")
    E("s_lshl_b32 s74, s73, 6")
    E("s_nop 0")
    E("v_cndmask_b32 v24, v24, v25, vcc")
    E("v_add_u32 v24, s74, v24")
    E("v_add_u32 v26, s74, v1")
    E("v_add_u32 v6, s74, v6")
    E("s_lshl_b32 s70, s67, 2")
    E(f"s_add_u32 s70, s70, {PB + 16}")
    E("v_lshl_add_u32 v2, v26, 4, s70")
    E("s_add_u32 s70, s67, 2")
    E("s_and_b32 s70, s70, 3")
    E("s_lshl_b32 s70, s70, 2")
    E(f"s_add_u32 s70, s70, {PB + 16 + PMS}")
    E("s_cmp_lt_u32 s67, 2")
    E("s_cselect_b64 vcc, -1, 0")
    E("v_cndmask_b32 v25, v26, v24, vcc")
    E("v_lshl_add_u32 v3, v25, 4, s70")
    E("s_lshr_b32 s70, s67, 1")
    E(f"s_mul_i32 s70, s70, {PCS}")
    E(f"s_add_u32 s70, s70, {PB + 4*PMS + 16}")
    E("v_lshl_add_u32 v11, v24, 2, s70")
    E("s_and_b32 s70, s67, 1")
    E("s_cmp_eq_u32 s70, 0")
    E("s_cselect_b64 vcc, -1, 0")
    E("s_cselect_b32 s75, 256, 0")
    E(f"v_mov_b32 v25, {PB + 4*PMS}")
    E("v_cndmask_b32 v11, v25, v11, vcc")
    E(f"s_mul_i32 s70, s67, {ZROW}")
    E("v_lshl_add_u32 v21, v6, 1, s70")
    E("s_lshl_b32 s70, s67, 10")
    E("v_lshl_add_u32 v22, v6, 12, s70")
    E("s_lshl_b32 s70, s67, 2")
    E(f"s_add_u32 s70, s70, {GB}")
    E("v_lshl_add_u32 v7, v6, 4, s70")
    E("s_lshl_b32 s70, s73, 5")
    E(f"s_add_u32 s70, s70, {FLG}")
    E("v_mov_b32 v23, s70")
    E("s_lshl_b32 s72, s64, 2")
    E("s_lshl_b32 s76, s23, 16")
    E("s_and_b32 s77, s23, s43")
    E("s_lshl_b32 s78, s42, 16")
    E("s_and_b32 s79, s42, s43")
    E("s_sub_u32 s74, 8, s68")

def gen():
    name = NAME + "_kernel"
    out.append(f".globl {name}\n.p2align 8\n.type {name},@function")
    L(name)
    E("s_cmp_ge_u32 s2, 256")
    E("s_cbranch_scc1 K_end")
    STAMP(0)
    E("s_setprio 3")
    E("s_load_dwordx16 s[4:19], s[0:1], 0")
    E("s_load_dwordx2 s[20:21], s[0:1], 64")
    E("s_load_dwordx8 s[24:31], s[0:1], 80")
    E("s_load_dwordx8 s[32:39], s[0:1], 112")
    E("s_load_dwordx2 s[40:41], s[0:1], 144")
    E("v_lshrrev_b32 v1, 6, v0")
    E("s_nop 0")
    E("v_readfirstlane_b32 s3, v1")
    E("v_and_b32 v1, 63, v0")
    E("s_and_b32 s64, s2, 7")
    E("s_lshl_b32 s65, s64, 2")
    E("s_lshl_b32 s64, s64, 5")
    E("s_lshr_b32 s66, s2, 3")
    E("s_add_u32 s64, s64, s66")
    E("s_and_b32 s66, s66, 3")
    E("s_add_u32 s65, s65, s66")
    E("s_lshr_b32 s66, s2, 5")
    E("s_and_b32 s67, s3, 3")
    E("s_lshr_b32 s68, s3, 2")
    E("s_bfe_u32 s69, s3, 0x10001")
    E("v_mov_b32 v12, 0")
    E("v_mov_b32 v13, 0")
    E("v_mov_b32 v14, 0")
    E("v_mov_b32 v15, 0")
    E("v_and_b32 v2, 31, v1")
    E("v_lshlrev_b32 v2, 4, v2")
    E(f"ds_write_b128 v2, v[12:15] offset:{FLG}")
    E(f"ds_write_b128 v2, v[12:15] offset:{FLG + 32}")
    E("s_lshl_b32 s70, s3, 2")
    E(f"s_add_u32 s70, s70, {SYN}")
    E("v_mov_b32 v28, s70")
    E("v_mov_b32 v29, 1")
    E("v_mov_b32 v95, 0")
    E(f"v_mov_b32 v30, {SYN}")
    E("s_lshl_b32 s70, s65, 6")
    E("s_add_u32 s70, s70, s67")
    E("s_lshl_b32 s70, s70, 10")
    E("s_lshl_b32 s71, s66, 7")
    E("s_add_u32 s70, s70, s71")
    E("v_lshrrev_b32 v2, 3, v1")
    E("v_and_b32 v3, 7, v1")
    E("v_lshlrev_b32 v4, 12, v2")
    E("v_lshl_add_u32 v4, v3, 4, v4")
    E("v_add_u32 v4, s70, v4")
    E("v_subrev_u32 v5, 1024, v4")
    E("v_subrev_u32 v6, 2048, v4")
    E("v_subrev_u32 v7, 3072, v4")
    E("s_lshl_b32 s71, s66, 9")
    E("v_lshl_add_u32 v8, v3, 6, s71")
    E("s_lshl_b32 s72, s65, 6")
    E("s_lshl_b32 s71, s66, 3")
    E("s_add_u32 s72, s72, s71")
    E("s_lshl_b32 s71, s67, 1")
    E("s_add_u32 s72, s72, s71")
    E("s_lshl_b32 s73, s72, 10")
    E("v_lshlrev_b32 v9, 4, v1")
    E("s_and_b32 s74, s3, 1")
    E(f"s_mul_i32 s75, s74, {8*NA}")
    E(f"s_mul_i32 s76, s74, {8*NB}")
    E(f"s_add_u32 s76, s76, {16*NA}")
    E("s_cmp_eq_u32 s68, 0")
    E("s_cselect_b32 s75, s75, s76")
    E("s_lshl_b32 s70, s64, 1")
    E("s_add_u32 s70, s70, s69")
    E("s_lshl_b32 s70, s70, 7")
    E("s_add_u32 s70, s70, s75")
    E("s_lshl_b32 s70, s70, 1")
    E("v_lshl_add_u32 v11, v1, 1, s70")
    if "--pro" in sys.argv: STAMP(3)
    E("s_waitcnt lgkmcnt(0)")
    if "--pro" in sys.argv: STAMP(4)
    E("s_add_u32 s70, s2, s3")
    E("s_cmp_lg_u32 s70, 0")
    E("s_cbranch_scc1 K_nononce")
    E("s_memrealtime s[70:71]")
    srd(SRD_DBGB, 38, 256)
    E("s_waitcnt lgkmcnt(0)")
    E("s_or_b32 s70, s70, 1")
    E("v_mov_b32 v100, s70")
    E("v_mov_b32 v101, s71")
    E("s_mov_b64 exec, 1")
    E(f"buffer_store_dwordx2 v[100:101], v95, s[{SRD_DBGB}:{SRD_DBGB+3}], 0 offen sc1")
    E("s_mov_b64 exec, -1")
    L("K_nononce")
    E("s_barrier")
    E("s_cmp_eq_u32 s68, 0")
    E("s_cbranch_scc1 K_noTL")
    srd(SRD_A, 24, 2 << 20)
    srd(SRD_B, 26, 2 << 20)
    E("s_mov_b32 s70, 0x8000")
    E("v_lshlrev_b32 v5, 10, v2")
    E("v_lshl_add_u32 v5, v3, 4, v5")
    E("s_lshl_b32 s71, s65, 6")
    E("s_lshl_b32 s74, s67, 3")
    E("s_add_u32 s71, s71, s74")
    E("s_sub_u32 s71, s71, 8")
    E("s_lshl_b32 s71, s71, 10")
    E("s_lshl_b32 s74, s66, 7")
    E("s_add_u32 s71, s71, s74")
    E("v_add_u32 v5, s71, v5")
    E("v_add_u32 v6, s70, v5")
    E("v_add_u32 v7, s70, v6")
    E("s_lshl_b32 s74, s67, 10")
    E(f"s_add_u32 s74, s74, {S_K}")
    E("s_mov_b32 m0, s74")
    E("s_add_u32 s74, s74, 4096")
    E(f"buffer_load_dwordx4 v5, s[{SRD_A}:{SRD_A+3}], 0 offen lds")
    E("s_mov_b32 m0, s74")
    E("s_add_u32 s74, s74, 4096")
    E(f"buffer_load_dwordx4 v6, s[{SRD_A}:{SRD_A+3}], 0 offen lds")
    E("s_cmp_lg_u32 s67, 0")
    E("s_cbranch_scc1 K_nok3")
    E("s_mov_b32 m0, s74")
    E("s_nop 0")
    E(f"buffer_load_dwordx4 v7, s[{SRD_A}:{SRD_A+3}], 0 offen lds")
    L("K_nok3")
    E(f"buffer_load_dwordx4 v[96:99], v4, s[{SRD_B}:{SRD_B+3}], 0 offen")
    srd(SRD_WS, 28, 4096)
    srd(SRD_OUT, 4, 2 << 20)
    srd(24, 4, 2 << 20)
    srd(12, 34, 1024)
    for i in range(4):
        E(f"buffer_load_dwordx4 v[{40+4*i}:{43+4*i}], v8, s[{SRD_WS}:{SRD_WS+3}], 0 offen offset:{16*i}")
    E(f"buffer_load_dwordx4 v[32:35], v4, s[{SRD_OUT}:{SRD_OUT+3}], 0 offen")
    E("v_add_u32 v4, s70, v4")
    E(f"buffer_load_dwordx4 v[144:147], v4, s[{SRD_B}:{SRD_B+3}], 0 offen")
    E(f"buffer_load_dwordx4 v[148:151], v4, s[{SRD_OUT}:{SRD_OUT+3}], 0 offen")
    E("s_mov_b32 s16, s73")
    E("s_branch K_noPL")
    L("K_noTL")
    for i, sp in enumerate([6, 8, 10, 12, 14, 16]):
        sd = SRD_A if i % 2 == 0 else SRD_B
        srd(sd, sp, 131072)
        E(f"buffer_load_ushort v{84+i}, v11, s[{sd}:{sd+3}], 0 offen")
    if TOUCH:
        E(f"v_lshlrev_b32 v200, {TSH}, v1")
        E("s_cmp_eq_u32 s3, 0")
        E("s_cbranch_scc0 K_tc1")
        srd(SRD_A, 40, WS_SIZE)
        E(f"buffer_load_dword v201, v200, s[{SRD_A}:{SRD_A+3}], 0 offen")
        E(f"s_mov_b32 s70, {WS_G}")
        E(f"buffer_load_dword v202, v95, s[{SRD_A}:{SRD_A+3}], s70 offen")
        E("s_branch K_tc4")
        L("K_tc1")
        E("s_cmp_eq_u32 s3, 1")
        E("s_cbranch_scc0 K_tc2")
        srd(SRD_A, 36, 2 << 20)
        E(f"buffer_load_dword v201, v200, s[{SRD_A}:{SRD_A+3}], 0 offen")
        srd(SRD_B, 38, 256)
        E(f"buffer_load_dword v202, v95, s[{SRD_B}:{SRD_B+3}], 0 offen")
        E("s_branch K_tc4")
        L("K_tc2")
        E("s_cmp_eq_u32 s3, 2")
        E("s_cbranch_scc0 K_tc3")
        srd(SRD_A, 4, 2 << 20)
        E(f"buffer_load_dword v201, v200, s[{SRD_A}:{SRD_A+3}], 0 offen")
        srd(SRD_B, 24, 2 << 20)
        E(f"buffer_load_dword v202, v200, s[{SRD_B}:{SRD_B+3}], 0 offen")
        E("s_branch K_tc4")
        L("K_tc3")
        srd(SRD_A, 26, 2 << 20)
        E(f"buffer_load_dword v201, v200, s[{SRD_A}:{SRD_A+3}], 0 offen")
        srd(SRD_B, 34, 1024)
        E(f"buffer_load_dword v202, v95, s[{SRD_B}:{SRD_B+3}], 0 offen")
        L("K_tc4")
    L("K_noPL")
    srd(SRD_A, 30, 2 << 20)
    E("s_lshl_b32 s74, s64, 2")
    if "--pro" in sys.argv: STAMP(6)
    E("s_load_dword s22, s[18:19], s74")
    E("s_load_dword s23, s[20:21], s74")
    E("s_load_dword s42, s[32:33], s74")
    srd(SRD_WS, 40, WS_SIZE)
    srd(SRD_OUT, 36, 2 << 20)
    srd(SRD_DBGB, 38, 256)
    E("s_mov_b32 s43, 0xffff0000")
    E("s_mov_b32 s5, 0")
    E("s_and_b32 s61, s3, 1")
    if "--pro" in sys.argv:
        STAMP(7)
        E("s_waitcnt lgkmcnt(0)")
        for i in range(3, 8): E(f"s_mov_b32 s{1+i}, s{80+2*i}")
    E("s_cmp_eq_u32 s68, 0")
    E("s_cbranch_scc1 K_kgen")
    E("s_mul_i32 s70, s3, 3072")
    E(f"s_add_u32 s70, s70, {S_TR}")
    E("v_mul_u32_u24 v64, 144, v2")
    E("v_lshl_add_u32 v64, v3, 4, v64")
    E("v_add_u32 v64, s70, v64")
    E("v_lshrrev_b32 v66, 4, v1")
    E("v_and_b32 v67, 1, v66")
    E("v_lshrrev_b32 v66, 1, v66")
    E("v_bfe_u32 v68, v1, 2, 2")
    E("v_and_b32 v69, 3, v1")
    E("v_mul_u32_u24 v65, 1152, v67")
    E("v_mul_u32_u24 v68, 144, v68")
    E("v_add_u32 v65, v65, v68")
    E("v_lshl_add_u32 v65, v66, 5, v65")
    E("v_lshl_add_u32 v65, v69, 3, v65")
    E("v_add_u32 v65, s70, v65")
    E("v_and_b32 v68, 15, v1")
    E("v_lshl_add_u32 v68, v66, 4, v68")
    E("v_lshrrev_b32 v69, 2, v68")
    E("v_lshlrev_b32 v69, 15, v69")
    E("v_bfe_u32 v66, v68, 1, 1")
    E("v_lshl_add_u32 v69, v66, 6, v69")
    E("v_and_b32 v68, 1, v68")
    E("v_lshl_add_u32 v69, v68, 4, v69")
    E("v_lshl_add_u32 v69, v67, 5, v69")
    E("s_lshl_b32 s70, s66, 19")
    E("s_lshl_b32 s71, s65, 10")
    E("s_add_u32 s70, s70, s71")
    E("s_lshl_b32 s71, s67, 8")
    E("s_add_u32 s70, s70, s71")
    E("s_add_u32 s71, s70, 0x40000")
    E("s_mov_b32 s62, 0")
    E("s_mov_b32 s76, 0x00003f80")
    E("s_mov_b32 s77, 0x3f800000")
    E("s_mov_b32 s78, 0x0000ffff")
    E("s_mov_b32 s79, 0x3f803f80")
    if DRY:
        E("s_mov_b32 s5, 1")
        E("s_mov_b64 exec, 0")
        E("s_branch K_tmask")
        L("K_breal")
        E("s_mov_b32 s5, 0")
        E("s_mov_b64 exec, -1")
        E("s_mov_b32 s62, 0")
    E("v_and_b32 v224, 3, v1")
    E("v_bfe_u32 v225, v1, 3, 2")
    E("v_lshl_add_u32 v224, v224, 2, v225")
    E(f"v_mul_u32_u24 v224, {ZROW}, v224")
    E("v_bfe_u32 v225, v1, 2, 1")
    E("v_lshl_add_u32 v224, v225, 4, v224")
    E("v_lshrrev_b32 v225, 5, v1")
    E("v_lshl_add_u32 v224, v225, 5, v224")
    E("s_lshl_b32 s74, s67, 8")
    E(f"s_add_u32 s74, s74, {ZBASE + 128}")
    E("v_add_u32 v224, s74, v224")
    E("s_lshr_b32 s6, s64, 1")
    E("s_lshl_b32 s6, s6, 15")
    E("s_lshl_b32 s74, s67, 13")
    E("s_add_u32 s6, s6, s74")
    E("s_and_b32 s74, s64, 1")
    E("s_lshl_b32 s74, s74, 6")
    E("s_add_u32 s6, s6, s74")
    E("s_add_u32 s17, s6, 4096")
    E("v_lshrrev_b32 v233, 2, v1")
    E("v_lshlrev_b32 v233, 7, v233")
    E("v_and_b32 v225, 3, v1")
    E("v_lshl_add_u32 v233, v225, 4, v233")
    E("s_lshl_b32 s74, s67, 11")
    E(f"v_add_u32 v10, {GB}, v9")
    E("v_add_u32 v10, s74, v10")
    E(f"s_add_u32 s60, s74, {WS_G}")
    E("v_and_b32 v226, 31, v1")
    E("v_lshlrev_b32 v226, 5, v226")
    E("s_and_b32 s7, s2, 7")
    E("s_lshl_b32 s7, s7, 10")
    E(f"s_add_u32 s7, s7, {WS_F}")
    E("v_and_b32 v227, 1, v1")
    E("v_lshlrev_b32 v225, 3, v227")
    E("v_lshlrev_b32 v227, 4, v227")
    E("s_lshl_b32 s8, s65, 3")
    E("s_add_u32 s8, s8, s66")
    E("s_lshl_b32 s8, s8, 5")
    E(f"s_add_u32 s8, s8, {WS_G}")
    E("s_lshl_b32 s9, s66, 5")
    E("s_add_u32 s9, s9, s65")
    E("s_lshl_b32 s9, s9, 5")
    E(f"s_add_u32 s9, s9, {WS_F}")
    E("v_mov_b32 v100, 0")
    E("v_mov_b32 v101, 0")
    E("v_mov_b32 v102, 0")
    E("v_mov_b32 v103, 0")
    E("v_bfe_u32 v104, v1, 3, 2")
    E(f"v_mul_u32_u24 v104, {ZROW}, v104")
    E("v_and_b32 v105, 7, v1")
    E("v_lshl_add_u32 v104, v105, 4, v104")
    E(f"s_mul_i32 s74, s67, {4*ZROW}")
    E("v_add_u32 v104, s74, v104")
    E("ds_write_b128 v104, v[100:103]")
    E("v_min_u32 v104, 11, v1")
    E("v_lshrrev_b32 v105, 1, v104")
    E(f"v_mul_u32_u24 v105, {XROW}, v105")
    E("v_and_b32 v104, 1, v104")
    E("v_lshl_add_u32 v104, v104, 4, v105")
    E(f"ds_write_b128 v104, v[100:103] offset:{XBASE}")
    E(f"s_mul_i32 s74, s67, {PMS}")
    E(f"s_add_u32 s74, s74, {PB}")
    E("v_mov_b32 v104, s74")
    E("ds_write_b128 v104, v[100:103]")
    E("s_add_u32 s74, s74, 16")
    E("v_lshl_add_u32 v230, v1, 4, s74")
    E(f"s_mul_i32 s74, s67, {PCS}")
    E(f"s_add_u32 s74, s74, {PB + 4*PMS}")
    E("v_mov_b32 v105, s74")
    E("ds_write_b128 v105, v[100:103]")
    E("s_add_u32 s74, s74, 16")
    E("v_lshl_add_u32 v231, v1, 2, s74")
    E("v_and_b32 v4, 15, v1")
    E("v_lshrrev_b32 v5, 4, v1")
    E("v_lshlrev_b32 v6, 2, v4")
    E("v_add_u32 v6, v6, v5")
    E("s_lshl_b32 s74, s3, 1")
    E(f"s_mul_i32 s74, s74, {ZROW}")
    E(f"s_add_u32 s74, s74, {ZBASE + 8}")
    E("v_lshlrev_b32 v228, 3, v4")
    E("v_lshl_add_u32 v228, v5, 4, v228")
    E("v_add_u32 v228, s74, v228")
    E("v_and_b32 v104, 3, v1")
    E("v_bfe_u32 v105, v1, 2, 2")
    E("v_sub_u32 v104, v104, v105")
    E("v_lshlrev_b32 v104, 3, v104")
    E("v_lshlrev_b32 v105, 6, v5")
    E("v_sub_u32 v104, v104, v105")
    E("s_add_u32 s74, s69, 4")
    E(f"s_mul_i32 s74, s74, {XROW}")
    E(f"s_add_u32 s74, s74, {XBASE + 224}")
    E("v_add_u32 v229, s74, v104")
    E("s_lshl_b32 s74, s3, 2")
    E(f"s_add_u32 s74, s74, {FLG}")
    E("v_mov_b32 v232, s74")
    E("v_lshlrev_b32 v70, 9, v2")
    E("v_lshl_add_u32 v70, v3, 4, v70")
    E("s_lshl_b32 s74, s67, 7")
    E(f"s_add_u32 s74, s74, {S_K + 1024 - 384}")
    E("v_add_u32 v70, s74, v70")
    E("s_waitcnt vmcnt(8)")
    post(7)
    E("s_waitcnt vmcnt(3)")
    STAMP(1)
    L("K_tmask")
    for t in range(4):
        for i in range(4):
            r0 = 40 + 4 * i + (t >> 1)
            r1 = 40 + 4 * i + 2 + (t >> 1)
            d = 160 + (t * 4 + i) * 2
            if t & 1:
                E(f"v_lshrrev_b32 v{d}, 16, v{r0}")
                E(f"v_and_b32 v{d+1}, s43, v{r1}")
            else:
                E(f"v_and_b32 v{d}, s78, v{r0}")
                E(f"v_lshlrev_b32 v{d+1}, 16, v{r1}")
    waitf(7, 4, 8, 72)
    TSTAMP(3)
    L("K_tloop")
    for t in range(4):
        E(f"ds_read_b128 {R4(12+4*t)}, v70 offset:{384 - 128*t}")
    E("v_add_u32 v70, 4096, v70")
    E("s_waitcnt lgkmcnt(0)")
    for t in range(4):
        for i in range(4):
            kr = 12 + 4 * t + i
            d = 160 + (t * 4 + i) * 2
            E(f"v_dot2_f32_bf16 v{208+2*i}, v{kr}, v{d}, 0")
            E(f"v_dot2_f32_bf16 v{209+2*i}, v{kr}, v{d+1}, 0")
        E("s_nop 0")
        for i in range(4):
            E(f"v_cvt_pk_bf16_f32 v{192+4*t+i}, v{208+2*i}, v{209+2*i}")
    cur = 192 + 12
    for t in (2, 1, 0):
        for i in range(4):
            E(f"v_lshlrev_b32 v{208+2*i}, 16, v{cur+i}")
            E(f"v_and_b32 v{209+2*i}, s43, v{cur+i}")
        for i in range(4):
            E(f"v_dot2_f32_bf16 v{208+2*i}, v{192+4*t+i}, s76, v{208+2*i}")
            E(f"v_dot2_f32_bf16 v{209+2*i}, v{192+4*t+i}, s77, v{209+2*i}")
        E("s_nop 0")
        for i in range(4):
            E(f"v_cvt_pk_bf16_f32 v{cur+i}, v{208+2*i}, v{209+2*i}")
    for i in range(4):
        E(f"v_and_b32 v{216+2*i}, s78, v{96+i}")
        E(f"v_and_b32 v{217+2*i}, s43, v{96+i}")
    for i in range(4):
        E(f"v_dot2_f32_bf16 v{208+2*i}, v{cur+i}, v{216+2*i}, 0")
        E(f"v_dot2_f32_bf16 v{209+2*i}, v{cur+i}, v{217+2*i}, 0")
    E("s_nop 0")
    for i in range(4):
        E(f"v_cvt_pk_bf16_f32 v{36+i}, v{208+2*i}, v{209+2*i}")
    if DRY:
        E("s_cmp_lg_u32 s5, 0")
        E("s_cbranch_scc1 K_gmask")
    E("ds_write_b128 v64, v[36:39] offset:1152")
    E("s_cmp_eq_u32 s62, 0")
    E("s_cbranch_scc0 K_tw1")
    E("s_waitcnt vmcnt(2)")
    L("K_tw1")
    E("ds_write_b128 v64, v[32:35]")
    E("s_waitcnt lgkmcnt(0)")
    E("ds_read_b64_tr_b16 v[76:77], v65")
    E("ds_read_b64_tr_b16 v[78:79], v65 offset:576")
    E("ds_read_b64_tr_b16 v[80:81], v65 offset:64")
    E("ds_read_b64_tr_b16 v[82:83], v65 offset:640")
    E("s_waitcnt lgkmcnt(2)")
    E(f"buffer_store_dwordx4 v[76:79], v69, s[{SRD_WS}:{SRD_WS+3}], s70 offen {ZSC}")
    E("s_waitcnt lgkmcnt(0)")
    E(f"buffer_store_dwordx4 v[80:83], v69, s[{SRD_WS}:{SRD_WS+3}], s71 offen {ZSC}")
    E("s_cmp_eq_u32 s62, 1")
    E("s_cbranch_scc1 K_tdone")
    E("s_mov_b32 s62, 1")
    E("s_add_u32 s70, s70, 128")
    E("s_add_u32 s71, s71, 128")
    TSTAMP(4)
    E("s_waitcnt vmcnt(2)")
    TSTAMP(5)
    for i in range(4):
        E(f"v_mov_b32 v{96+i}, v{144+i}")
        E(f"v_mov_b32 v{32+i}, v{148+i}")
    E("s_branch K_tloop")
    L("K_tdone")
    STAMP(2)
    E("buffer_load_dwordx4 v[56:59], v9, s[24:27], s16 offen")
    E("buffer_load_dwordx4 v[152:155], v9, s[24:27], s16 offen offset:1024")
    E("buffer_load_dwordx4 v[60:63], v9, s[12:15], 0 offen")
    E("s_waitcnt vmcnt(3)")
    post(0)
    L("K_nwait")
    E(f"ds_read_b64 v[92:93], v30 offset:272")
    E("s_waitcnt lgkmcnt(0)")
    E("v_readfirstlane_b32 s56, v92")
    E("v_readfirstlane_b32 s57, v93")
    E("s_cmp_lg_u32 s56, 0")
    E("s_cbranch_scc1 K_nok")
    E("s_sleep 1")
    E("s_branch K_nwait")
    L("K_nok")
    E("s_cmp_lg_u32 s3, 4")
    E("s_cbranch_scc1 K_nopub")
    waitf(0, 4, 8, 144)
    E("s_mov_b64 exec, 1")
    E(f"buffer_store_dwordx2 v[92:93], v227, s[{SRD_WS}:{SRD_WS+3}], s9 offen sc1")
    E("s_mov_b64 exec, -1")
    STAMP(9)
    E("s_waitcnt vmcnt(1)")
    E("s_branch K_nopub2")
    L("K_nopub")
    E("s_waitcnt vmcnt(0)")
    L("K_nopub2")
    E("s_mov_b32 s62, 0")
    L("K_gmask")
    for i in range(4):
        E(f"v_and_b32 v{216+2*i}, s78, v{60+i}")
        E(f"v_and_b32 v{217+2*i}, s43, v{60+i}")
    L("K_gloop")
    for i in range(4):
        E(f"v_dot2_f32_bf16 v{208+2*i}, v{56+i}, v{216+2*i}, 0")
        E(f"v_dot2_f32_bf16 v{209+2*i}, v{56+i}, v{217+2*i}, 0")
    E("s_nop 0")
    for i in range(4):
        E(f"v_cvt_pk_bf16_f32 v{192+i}, v{208+2*i}, v{209+2*i}")
    for i in range(4):
        E(f"v_dot2_f32_bf16 v{208+i}, v{192+i}, s79, 0")
    E("s_nop 2")
    E("v_add_f32 v208, v208, v209")
    E("v_add_f32 v210, v210, v211")
    E("v_add_f32 v74, v208, v210")
    for dpp in ["row_shr:1", "row_shr:2", "row_shr:4", "row_shr:8"]:
        E("s_nop 1")
        E(f"v_add_f32_dpp v74, v74, v74 {dpp} row_mask:0xf bank_mask:0xf bound_ctrl:0")
    E("s_nop 1")
    E("v_add_f32_dpp v74, v74, v74 row_bcast:15 row_mask:0xa bank_mask:0xf")
    E("s_nop 1")
    E("v_add_f32_dpp v74, v74, v74 row_bcast:31 row_mask:0xc bank_mask:0xf")
    E("s_nop 1")
    E("v_cvt_pk_bf16_f32 v74, v74, v74")
    E("v_lshlrev_b32 v74, 16, v74")
    E("v_mul_f32 v74, 0xbfb8aa3b, v74")
    E("v_exp_f32 v74, v74")
    E("s_nop 0")
    E("v_add_f32 v74, 1.0, v74")
    E("v_rcp_f32 v74, v74")
    E("s_nop 0")
    E("v_cvt_pk_bf16_f32 v74, v74, v74")
    E("s_lshl_b32 s72, s67, 1")
    E("s_add_u32 s72, s72, s62")
    E("s_lshl_b32 s72, s72, 1")
    E(f"s_add_u32 s72, s72, {SYN + 256}")
    E("v_mov_b32 v75, s72")
    if DRY:
        E("s_cmp_lg_u32 s5, 0")
        E("s_cbranch_scc1 K_breal")
    E("v_cmp_eq_u32 vcc, 63, v1")
    E("s_and_saveexec_b64 s[74:75], vcc")
    E("ds_write_b16 v75, v74")
    E("s_mov_b64 exec, s[74:75]")
    E("s_cmp_eq_u32 s62, 1")
    E("s_cbranch_scc1 K_bwave")
    E("s_mov_b32 s62, 1")
    for i in range(4):
        E(f"v_mov_b32 v{56+i}, v{152+i}")
    E("s_branch K_gloop")
    L("K_kgen")
    E(f"s_setprio {APRIO}")
    STAMP(2)
    E("v_and_b32 v20, 15, v1")
    E("v_lshrrev_b32 v21, 4, v1")
    E("s_mov_b32 s74, 0x00040000")
    E("s_mov_b32 s75, 0x02000100")
    E("s_mov_b32 s76, 0x00010001")
    E("s_mov_b32 s77, 0x00040002")
    E("s_mov_b32 s78, 0x00020002")
    E("s_mov_b32 s79, 0x01000004")
    E("v_lshrrev_b32 v22, 2, v20")
    E("v_lshlrev_b32 v22, 4, v22")
    E("v_lshrrev_b64 v[32:33], v22, s[74:75]")
    E("v_and_b32 v32, 0xffff, v32")
    E("v_lshrrev_b64 v[34:35], v22, s[76:77]")
    E("v_and_b32 v34, 0xffff, v34")
    E("v_and_b32 v23, 1, v20")
    E("v_mad_u32_u24 v32, v23, v34, v32")
    E("v_lshrrev_b64 v[34:35], v22, s[78:79]")
    E("v_and_b32 v34, 0xffff, v34")
    E("v_bfe_u32 v23, v20, 1, 1")
    E("v_mad_u32_u24 v32, v23, v34, v32")
    E("v_cvt_f32_u32 v24, v32")
    E("v_lshrrev_b32 v33, 7, v32")
    E("v_and_b32 v32, 127, v32")
    E("v_cvt_f32_u32 v16, v33")
    E("v_cvt_f32_u32 v17, v32")
    E("v_add_u32 v32, 8, v20")
    E("v_cvt_f32_u32 v18, v32")
    E("v_mul_f32 v26, 0x43000000, v18")
    E("v_lshlrev_b32 v22, 3, v20")
    E("v_cvt_f32_u32 v27, v22")
    if DRY > 1:
        E("s_mov_b32 s5, 1")
        E("s_mov_b64 exec, 0")
        E("s_branch K_dA")
        L("K_areal")
        E("s_mov_b32 s5, 0")
        E("s_mov_b64 exec, -1")
    E("s_waitcnt lgkmcnt(0)")
    E("s_lshl_b32 s70, s22, 16")
    E("s_and_b32 s22, s22, s43")
    E("s_cmp_eq_u32 s69, 0")
    E("s_cselect_b32 s22, s70, s22")
    E("v_mov_b32 v40, 0x3fb8aa3b")
    E("v_mul_f32 v41, s22, v40")
    E("v_exp_f32 v41, v41")
    E("s_nop 0")
    E("v_cvt_pk_bf16_f32 v41, v41, v41")
    E("v_lshlrev_b32 v41, 16, v41")
    E(f"s_waitcnt vmcnt({2 if TOUCH else 0})")
    L("K_dA")
    for i in range(6):
        E(f"v_lshlrev_b32 v{84+i}, 16, v{84+i}")
    E("v_mul_f32 v84, v41, v84")
    E("v_mul_f32 v85, v41, v85")
    E("v_mul_f32 v86, v41, v86")
    E("v_mul_f32 v87, v41, v87")
    E("v_mul_f32 v44, v40, v84")
    E("v_mul_f32 v45, 0.15915494, v85")
    E("v_rndne_f32 v46, v45")
    E("v_sub_f32 v45, v45, v46")
    E("v_mul_f32 v46, 0x43000000, v45")
    E("v_rndne_f32 v47, v46")
    E("v_sub_f32 v46, v46, v47")
    E("v_mul_f32 v84, 0x43000000, v44")
    E("v_exp_f32 v84, v84")
    E("v_cos_f32 v47, v46")
    E("v_sin_f32 v85, v46")
    E("v_mul_f32 v80, v88, v86")
    E("v_fma_f32 v80, -v89, v87, v80")
    E("v_mul_f32 v81, v88, v87")
    E("v_fma_f32 v81, v89, v86, v81")
    E("v_mul_f32 v47, v84, v47")
    E("v_mul_f32 v82, v84, v85")
    E("s_lshl_b32 s70, s3, 11")
    E(f"s_add_u32 s70, s70, {S_P}")
    E("v_lshl_add_u32 v42, v1, 5, s70")
    E("ds_write_b128 v42, v[44:47]")
    E("ds_write_b128 v42, v[80:83] offset:16")
    E("v_lshl_add_u32 v43, v21, 6, s70")
    for r in range(48, 60):
        E(f"v_mov_b32 v{r}, 0")
    E("s_waitcnt lgkmcnt(0)")
    for k in range(4):
        E(f"ds_read_b128 {R4(60+4*k)}, v43 offset:{16*k}")
    E("s_mov_b32 s62, 0")
    E(f"s_mov_b32 s63, {NA}")
    if DRY > 1:
        E("s_cmp_lg_u32 s5, 0")
        E("s_cselect_b32 s63, 1, s63")
    L("K_loop")
    E("s_waitcnt lgkmcnt(0)")
    TT = [[96, 100, 104, 108], [136, 140, 144, 148]]
    for nn in range(2):
        zr, zi, w128 = 60 + 8 * nn, 61 + 8 * nn, 62 + 8 * nn
        T = TT[nn]
        E(f"v_mul_f32 v{T[3]}, v{zr}, v27")
        E(f"v_mul_f32 v{T[3]+1}, v{zi}, v27")
        E(f"v_mul_f32 v{T[0]}, v{zr}, v24")
        E(f"v_mul_f32 v{T[0]+1}, v{zi}, v17")
        E(f"v_mul_f32 v{T[2]}, v{zr}, v26")
        E(f"v_mul_f32 v{T[2]+1}, v{w128}, v18")
        E(f"v_fma_f32 v{T[0]+1}, v{w128}, v16, v{T[0]+1}")
        for k in range(4):
            E(f"v_mov_b32 v{76+4*nn+k}, v{63+8*nn+k}")
    E("v_add_u32 v43, 256, v43")
    for k in range(4):
        E(f"ds_read_b128 {R4(60+4*k)}, v43 offset:{16*k}")
    for nn in range(2):
        er, cbr, cbi, ei = 76 + 4 * nn, 77 + 4 * nn, 78 + 4 * nn, 79 + 4 * nn
        T = TT[nn]
        for t in [T[3], T[0], T[2]]:
            E(f"v_exp_f32 v{t}, v{t}")
            E(f"v_cos_f32 v{t+2}, v{t+1}")
            E(f"v_sin_f32 v{t+3}, v{t+1}")
        t = T[3]
        E(f"v_mul_f32 v{t+2}, v{t}, v{t+2}")
        E(f"v_mul_f32 v{t+3}, v{t}, v{t+3}")
        E(f"v_mul_f32 v{t}, v{cbr}, v{t+2}")
        E(f"v_mul_f32 v{t+1}, v{cbr}, v{t+3}")
        E(f"v_fma_f32 v{t}, -v{cbi}, v{t+3}, v{t}")
        E(f"v_fma_f32 v{t+3}, -v{cbi}, v{t+2}, -v{t+1}")
        E(f"v_mov_b32 v{t+2}, v{t}")
        for t in [T[0], T[2]]:
            E(f"v_mul_f32 v{t+2}, v{t}, v{t+2}")
            E(f"v_mul_f32 v{t+3}, v{t}, v{t+3}")
        p, q = T[0], T[1]
        E(f"v_mul_f32 v{q+2}, v{p+2}, v{er}")
        E(f"v_mul_f32 v{q+3}, v{p+2}, v{ei}")
        E(f"v_fma_f32 v{q+2}, -v{p+3}, v{ei}, v{q+2}")
        E(f"v_fma_f32 v{q+3}, v{p+3}, v{er}, v{q+3}")
        for k in range(4):
            t = T[k]
            hi = (112 + 2 * k + nn) if k < 3 else (124 + nn)
            lo = (118 + 2 * k + nn) if k < 3 else (126 + nn)
            E(f"v_cvt_pk_bf16_f32 v{hi}, v{t+2}, v{t+3}")
            E(f"v_lshlrev_b32 v{t}, 16, v{hi}")
            E(f"v_and_b32 v{t+1}, s43, v{hi}")
            E(f"v_sub_f32 v{t}, v{t+2}, v{t}")
            E(f"v_sub_f32 v{t+1}, v{t+3}, v{t+1}")
            E(f"v_cvt_pk_bf16_f32 v{lo}, v{t}, v{t+1}")
    E("s_add_u32 s62, s62, 1")
    E(f"s_cmp_eq_u32 s62, {LATE}")
    for k in range(3):
        a_ = 48 + 4 * k
        E(f"v_mfma_f32_16x16x16_bf16 {R4(a_)}, v[{112+2*k}:{113+2*k}], v[124:125], {R4(a_)}")
        E(f"v_mfma_f32_16x16x16_bf16 {R4(a_)}, v[{112+2*k}:{113+2*k}], v[126:127], {R4(a_)}")
        E(f"v_mfma_f32_16x16x16_bf16 {R4(a_)}, v[{118+2*k}:{119+2*k}], v[124:125], {R4(a_)}")
    E("s_cbranch_scc0 K_nost")
    E("s_lshl_b32 s70, s64, 13")
    E("s_lshl_b32 s71, s3, 11")
    E("s_add_u32 s70, s70, s71")
    E(f"s_mul_i32 s71, s69, {XROW}")
    E("s_lshl_b32 s72, s61, 11")
    E("s_add_u32 s71, s71, s72")
    E(f"s_add_u32 s71, s71, {XBASE + 4*XROW + 32}")
    E("s_mov_b32 m0, s71")
    E("s_nop 0")
    E(f"buffer_load_dwordx4 v9, s[{SRD_A}:{SRD_A+3}], s70 offen lds")
    E(f"buffer_load_dwordx4 v9, s[{SRD_A}:{SRD_A+3}], s70 offen offset:1024 lds")
    L("K_nost")
    E("s_cmp_lg_u32 s3, 0")
    E("s_cbranch_scc1 K_non")
    E("s_cmp_eq_u32 s62, 1")
    E("s_cbranch_scc0 K_non1")
    E(f"buffer_load_dwordx2 v[92:93], v95, s[{SRD_DBGB}:{SRD_DBGB+3}], 0 offen sc1")
    L("K_non1")
    E("s_cmp_eq_u32 s62, 2")
    E("s_cbranch_scc0 K_non")
    E("s_mov_b32 s70, 0")
    L("K_npoll")
    E("s_waitcnt vmcnt(0)")
    E("v_readfirstlane_b32 s71, v92")
    E("s_add_u32 s70, s70, 1")
    E("s_cmp_lg_u32 s71, 0")
    E("s_cbranch_scc1 K_ngot")
    E("s_sleep 4")
    E(f"buffer_load_dwordx2 v[92:93], v95, s[{SRD_DBGB}:{SRD_DBGB+3}], 0 offen sc1")
    E("s_cmp_lt_u32 s70, 0x40000")
    E("s_cbranch_scc1 K_npoll")
    E("s_waitcnt vmcnt(0)")
    E("v_mov_b32 v92, 1")
    L("K_ngot")
    E("ds_write_b64 v30, v[92:93] offset:272")
    L("K_non")
    E(f"s_cmp_eq_u32 s62, {LATE+3}")
    E("s_cbranch_scc0 K_nost2")
    E("s_waitcnt vmcnt(0)")
    post(0)
    L("K_nost2")
    E("s_cmp_lt_u32 s62, s63")
    E("s_cbranch_scc1 K_loop")
    E("s_waitcnt lgkmcnt(0)")
    STAMP(3)
    E("s_mul_i32 s70, s3, 3072")
    E(f"s_add_u32 s70, s70, {S_TR}")
    E("v_lshl_add_u32 v39, v1, 4, s70")
    E("v_and_b32 v4, 15, v1")
    E("v_lshrrev_b32 v5, 4, v1")
    E("v_lshlrev_b32 v6, 2, v4")
    E("v_add_u32 v6, v6, v5")
    E("s_nop 1")
    for k in range(3):
        E(f"ds_write_b128 v39, {R4(48+4*k)} offset:{1024*k}")
    post(1)
    E("s_mul_i32 s70, s69, 12288")
    E(f"s_add_u32 s70, s70, {S_KT}")
    E("v_lshlrev_b32 v32, 5, v20")
    E("v_add_u32 v32, s70, v32")
    E("v_lshl_add_u32 v44, v21, 11, v32")
    E("v_add_u32 v44, 4096, v44")
    E("v_add_u32 v45, 512, v44")
    E("v_add_u32 v46, 1024, v44")
    E("v_add_u32 v47, 1536, v44")
    E("v_lshlrev_b32 v22, 4, v21")
    E("v_lshrrev_b64 v[60:61], v22, s[74:75]")
    E("v_and_b32 v60, 0xffff, v60")
    E("v_lshl_add_u32 v35, v60, 2, v32")
    E("s_lshl_b32 s71, s61, 9")
    E("v_add_u32 v35, s71, v35")
    E("v_lshrrev_b64 v[60:61], v22, s[76:77]")
    E("v_and_b32 v60, 0xffff, v60")
    E("v_lshl_add_u32 v36, v60, 2, v35")
    E("v_lshrrev_b64 v[62:63], v22, s[78:79]")
    E("v_and_b32 v62, 0xffff, v62")
    E("v_lshl_add_u32 v37, v62, 2, v35")
    E("v_lshl_add_u32 v38, v62, 2, v36")
    E("s_mul_i32 s70, s69, 6144")
    E(f"s_add_u32 s70, s70, {S_TR}")
    E("v_lshl_add_u32 v39, v1, 4, s70")
    E("s_lshl_b32 s71, s61, 10")
    E("v_add_u32 v40, s71, v39")
    E("s_lshl_b32 s71, s61, 9")
    E("v_lshl_add_u32 v60, v1, 3, s71")
    E("s_mul_i32 s70, s69, 12288")
    E(f"s_add_u32 s70, s70, {S_KT}")
    for rr in range(2):
        for e in range(0, 8, 2):
            E(f"v_add_u32 v62, {e + 1024*rr}, v60")
            E(f"v_add_u32 v63, {e + 1 + 1024*rr}, v60")
            E("v_cvt_f32_u32 v62, v62")
            E("v_cvt_f32_u32 v63, v63")
            E("v_cvt_pk_bf16_f32 v62, v62, v63")
            E("v_and_b32 v63, s43, v62")
            E("v_lshlrev_b32 v62, 16, v62")
            E("v_cvt_u32_f32 v62, v62")
            E("v_cvt_u32_f32 v63, v63")
            E(f"v_lshl_add_u32 v{64+8*rr+e}, v62, 2, s70")
            E(f"v_lshl_add_u32 v{65+8*rr+e}, v63, 2, s70")
    E(f"s_mul_i32 s70, s69, {XROW}")
    E(f"s_add_u32 s70, s70, {XBASE + 32}")
    E("v_lshl_add_u32 v61, v60, 1, s70")
    RSTAMP(1)
    waitf(1, 0, 4, 96)
    RSTAMP(2)
    srcoff = [0, 3072]
    for k in range(2):
        E(f"ds_read_b128 {R4(96+4*k)}, v40 offset:{srcoff[k]}")
    for k in range(2):
        E(f"ds_read_b128 {R4(112+4*k)}, v39 offset:{srcoff[k] + 2048}")
    for (b, dst, w) in [(96, 35, 2), (112, 44, 0)]:
        E(f"s_waitcnt lgkmcnt({w})")
        for e in range(4):
            E(f"v_add_f32 v{b+e}, v{b+e}, v{b+4+e}")
    for (b, dst) in [(96, 35), (112, 44)]:
        for e in range(4):
            E(f"ds_write_b32 v{dst+e}, v{b+e}")
    post(2)
    RSTAMP(4)
    waitf(2, 0, 4, 96)
    RSTAMP(6)
    for e in range(16):
        E(f"ds_read_b32 v{96+e}, v{64+e}")
    for rr in range(2):
        for e in range(0, 8, 2):
            src = 96 + 8 * rr + e
            E(f"s_waitcnt lgkmcnt({14 - 8*rr - e})")
            E(f"v_cvt_pk_bf16_f32 v{112+8*rr+e//2}, v{src}, v{src+1}")
            E(f"v_lshlrev_b32 v62, 16, v{112+8*rr+e//2}")
            E(f"v_and_b32 v63, s43, v{112+8*rr+e//2}")
            E(f"v_sub_f32 v62, v{src}, v62")
            E(f"v_sub_f32 v63, v{src+1}, v63")
            E(f"v_cvt_pk_bf16_f32 v{116+8*rr+e//2}, v62, v63")
    for rr in range(2):
        E(f"ds_write_b128 v61, {R4(112+8*rr)} offset:{2048*rr}")
        E(f"ds_write_b128 v61, {R4(116+8*rr)} offset:{2*XROW + 2048*rr}")
    post(3)
    RSTAMP(7)
    STAMP(4)
    E("s_branch K_csetup")
    L("K_bwave")
    post(1)
    STAMP(3)
    E("s_cmp_lg_u32 s3, 5")
    E("s_cbranch_scc1 K_norec")
    waitf(1, 4, 8, 144)
    E(f"ds_read_b64 v[144:145], v225 offset:{SYN + 256}")
    E("v_mov_b32 v146, s56")
    E("v_mov_b32 v147, s57")
    E("s_waitcnt lgkmcnt(0)")
    E("s_mov_b64 exec, 3")
    E(f"buffer_store_dwordx4 v[144:147], v227, s[{SRD_WS}:{SRD_WS+3}], s8 offen sc1")
    E("s_mov_b64 exec, -1")
    L("K_norec")
    if not ALLPOLL:
        E("s_cmp_lg_u32 s3, 4")
        E("s_cbranch_scc1 K_pwait")
    E("s_mov_b32 s70, 0")
    L("K_poll")
    E(f"buffer_load_dwordx2 v[112:113], v226, s[{SRD_WS}:{SRD_WS+3}], s7 offen sc1")
    E("s_waitcnt vmcnt(0)")
    E("v_xor_b32 v112, s56, v112")
    E("v_xor_b32 v113, s57, v113")
    E("v_or_b32 v112, v112, v113")
    E("v_cmp_ne_u32 vcc, 0, v112")
    E("s_add_u32 s70, s70, 1")
    E("s_cmp_eq_u64 vcc, 0")
    E("s_cbranch_scc1 K_pok")
    E(f"s_sleep {PSLEEP}")
    E("s_cmp_lt_u32 s70, 0x40000")
    E("s_cbranch_scc1 K_poll")
    L("K_pok")
    post(5)
    E("s_branch K_pdone")
    L("K_pwait")
    E(f"ds_read_b32 v93, v30 offset:{32*5 + 16}")
    E("s_waitcnt lgkmcnt(0)")
    E("v_readfirstlane_b32 s70, v93")
    E("s_cmp_eq_u32 s70, 1")
    E("s_cbranch_scc1 K_pdone")
    E("s_sleep 1")
    E("s_branch K_pwait")
    L("K_pdone")
    STAMP(4)
    for p in range(4):
        E(f"buffer_load_dwordx4 {R4(192+4*p)}, v233, s[{SRD_WS}:{SRD_WS+3}], {'s6' if p < 2 else 's17'} offen offset:{2048*(p&1)} sc1")
    for k in range(5):
        E(f"v_mov_b32 v{16+k}, v{228+k}")
    finsetup(0)
    waitf(0, 0, 4, 24)
    preloadA(1)
    for p in range(4):
        E(f"s_waitcnt vmcnt({3-p})")
        E(f"ds_write_b128 v224, {R4(192+4*p)} offset:{64*p}")
    post(4)
    E(f"s_setprio {CBPRIO}")
    E("s_branch K_convB")
    L("K_csetup")
    vB, vA, vPM, vPC, vF = 16, 17, 18, 19, 20
    E("s_lshl_b32 s70, s3, 1")
    E(f"s_mul_i32 s70, s70, {ZROW}")
    E(f"s_add_u32 s70, s70, {ZBASE + 8}")
    E(f"v_lshlrev_b32 v{vB}, 3, v4")
    E(f"v_lshl_add_u32 v{vB}, v5, 4, v{vB}")
    E(f"v_add_u32 v{vB}, s70, v{vB}")
    E("v_and_b32 v22, 3, v1")
    E("v_bfe_u32 v23, v1, 2, 2")
    E("v_sub_u32 v22, v22, v23")
    E("v_lshlrev_b32 v22, 3, v22")
    E("v_lshlrev_b32 v23, 6, v5")
    E("v_sub_u32 v22, v22, v23")
    E("s_lshl_b32 s70, s68, 2")
    E("s_add_u32 s70, s70, s69")
    E(f"s_mul_i32 s70, s70, {XROW}")
    E(f"s_add_u32 s70, s70, {XBASE + 224}")
    E(f"v_add_u32 v{vA}, s70, v22")
    E("s_cmp_eq_u32 s68, 0")
    E(f"s_mov_b32 s71, {PB}")
    E(f"s_cselect_b32 s71, {PA}, s71")
    E(f"s_mul_i32 s70, s67, {PMS}")
    E("s_add_u32 s70, s70, s71")
    E("s_add_u32 s72, s70, 16")
    E(f"v_lshl_add_u32 v{vPM}, v1, 4, s72")
    E(f"s_mul_i32 s72, s67, {PCS}")
    E("s_add_u32 s72, s72, s71")
    E(f"s_add_u32 s72, s72, {4*PMS}")
    E("s_add_u32 s73, s72, 16")
    E(f"v_lshl_add_u32 v{vPC}, v1, 2, s73")
    E("s_lshl_b32 s73, s3, 2")
    E(f"s_add_u32 s73, s73, {FLG}")
    E(f"v_mov_b32 v{vF}, s73")
    E("v_mov_b32 v22, s70")
    E("v_mov_b32 v23, s72")
    if DRY > 1:
        E("s_cmp_lg_u32 s5, 0")
        E("s_cbranch_scc1 K_areal")
    RSTAMP(8)
    waitf(3, 0, 4, 24)
    RSTAMP(9)
    E("v_mov_b32 v24, 0")
    E("v_mov_b32 v25, 0")
    E("v_mov_b32 v26, 0")
    E("v_mov_b32 v27, 0")
    E("ds_write_b128 v22, v[24:27]")
    E("ds_write_b128 v23, v[24:27]")
    finsetup(7)
    waitf(7, 4, 8, 24)
    preloadA(2)
    waitf(4, 4, 8, 24)
    E("s_setprio 0")
    STAMP(5)

    def acc(pp, q):
        return 192 + 32 * pp + 4 * q
    def Bf(pp, jj):
        return 32 + 4 * ((jj % 4) * 2 + pp)
    def conv(nx):
        def Af(n, x):
            return 64 + 4 * (n * nx + x)
        queue = []
        def rdB(jj):
            for pp in range(2):
                b = Bf(pp, jj)
                E(f"ds_read_b64 v[{b}:{b+1}], v{vB} offset:{pp*ZROW + 64*jj}")
                E(f"ds_read_b64 v[{b+2}:{b+3}], v{vB} offset:{pp*ZROW + 64*jj + 8}")
                queue.extend([("B", jj, pp), ("B", jj, pp)])
        def need(keys):
            last = -1
            for idx, k in enumerate(queue):
                if k in keys:
                    last = idx
            if last >= 0:
                n_after = min(len(queue) - 1 - last, 15)
                E(f"s_waitcnt lgkmcnt({n_after})")
                del queue[:len(queue) - n_after]
        def mf(pp, q, jj, x, first=False):
            n = 2 * q - jj + 1
            c = "0" if first else R4(acc(pp, q))
            E(f"v_mfma_f32_16x16x32_bf16 {R4(acc(pp,q))}, {R4(Af(n,x))}, {R4(Bf(pp,jj))}, {c}")
        def writeout(q):
            a0, a1 = acc(0, q), acc(1, q)
            E(f"v_add_f32 v{a0+1}, v{a0+1}, v{a1}")
            E(f"v_add_f32 v{a0+2}, v{a0+2}, v{a1+1}")
            E(f"v_add_f32 v{a0+3}, v{a0+3}, v{a1+2}")
            E(f"ds_write_b32 v{vPC}, v{a1+3} offset:{256*q}")
            E(f"ds_write_b128 v{vPM}, {R4(a0)} offset:{1024*q}")
            E(f"ds_write_b32 v{vF}, v29 offset:{32*q}")
            queue.extend([("W",), ("W",), ("W",)])
        rdB(0); rdB(1); rdB(2)
        for jj in range(16):
            q0 = jj >> 1
            k = 0
            for q in range(q0, 8):
                for pp in range(2):
                    if q == q0:
                        need({("B", jj, pp)})
                    for x in range(nx):
                        mf(pp, q, jj, x, first=(jj == 0 and x == 0))
                k += 1
                if k == 1 and jj + 3 < 16:
                    rdB(jj + 3)
                if jj % 2 == 0 and jj >= 2 and q == min(q0 + 1, 7):
                    if jj == 14:
                        E("s_nop 3")
                    writeout(q0 - 1)
        E("s_nop 7")
        writeout(7)
    conv(2)
    STAMP(6)
    E("s_branch K_fin")
    L("K_convB")
    waitf(4, 4, 8, 24)
    E(f"buffer_load_dwordx4 v[12:15], v9, s[{SRD_WS}:{SRD_WS+3}], s60 offen sc1")
    E(f"buffer_load_dwordx4 v[24:27], v9, s[{SRD_WS}:{SRD_WS+3}], s60 offen offset:1024 sc1")
    STAMP(5)
    conv(1)
    STAMP(6)
    E("s_mov_b32 s70, 0")
    L("K_gpoll")
    E("s_waitcnt vmcnt(0)")
    E("v_xor_b32 v14, s56, v14")
    E("v_xor_b32 v15, s57, v15")
    E("v_xor_b32 v26, s56, v26")
    E("v_xor_b32 v27, s57, v27")
    E("v_or_b32 v14, v14, v15")
    E("v_or_b32 v26, v26, v27")
    E("v_or_b32 v14, v14, v26")
    E("v_cmp_ne_u32 vcc, 0, v14")
    E("s_add_u32 s70, s70, 1")
    E("s_cmp_eq_u64 vcc, 0")
    E("s_cbranch_scc1 K_gok")
    E("s_cmp_ge_u32 s70, 0x40000")
    E("s_cbranch_scc1 K_gok")
    E("s_sleep 8")
    E(f"buffer_load_dwordx4 v[12:15], v9, s[{SRD_WS}:{SRD_WS+3}], s60 offen sc1")
    E(f"buffer_load_dwordx4 v[24:27], v9, s[{SRD_WS}:{SRD_WS+3}], s60 offen offset:1024 sc1")
    E("s_branch K_gpoll")
    L("K_gok")
    for (src, dst) in [(12, 32), (24, 36)]:
        for hh in range(2):
            E(f"v_lshlrev_b32 v{dst+2*hh}, 16, v{src+hh}")
            E(f"v_and_b32 v{dst+2*hh+1}, s43, v{src+hh}")
        for e in range(4):
            E(f"v_sub_f32 v40, 1.0, v{dst+e}")
            E(f"v_cvt_pk_bf16_f32 v{dst+e}, v{dst+e}, v40")
    E("ds_write_b128 v10, v[32:35]")
    E("ds_write_b128 v10, v[36:39] offset:1024")
    post(6)
    if FINPRIO:
        E(f"s_setprio {FINPRIO}")
    L("K_fin")
    waitf(6, 4, 8, 32)
    L("K_hloop")
    for r in range(48, 52):
        E(f"v_mov_b32 v{r}, 0")
    for k in range(4):
        E(f"ds_read_u16_d16_hi v{48+k}, v21 offset:{ZBASE + 4*k*ZROW + 128}")
    E("ds_read_b32 v8, v7")
    L("K_hpoll")
    E("ds_read_b128 v[32:35], v23")
    E("ds_read_b128 v[36:39], v23 offset:16")
    E("s_waitcnt lgkmcnt(0)")
    for k in range(0, 8, 2):
        E(f"v_and_b32 v{32+k}, v{32+k}, v{33+k}")
    E("v_and_b32 v32, v32, v34")
    E("v_and_b32 v36, v36, v38")
    E("v_and_b32 v32, v32, v36")
    E("s_nop 0")
    E("v_readfirstlane_b32 s70, v32")
    E("s_cmp_eq_u32 s70, 1")
    E("s_cbranch_scc1 K_go")
    E("s_sleep 3")
    E("s_branch K_hpoll")
    L("K_go")
    for k in range(4):
        X, c = k >> 1, k & 1
        base = PSTRIDE if X == 0 else 0
        E(f"ds_read_b32 v{32+k}, v2 offset:{base + 2*c*PMS}")
        E(f"ds_read_b32 v{36+k}, v3 offset:{base + 2*c*PMS}")
        E(f"ds_read_b32 v{40+k}, v11 offset:{base + 2*c*PCS}")
    def rnd(a, b):
        E(f"v_cvt_pk_bf16_f32 v{a}, v{a}, v{b}")
        E(f"v_and_b32 v{b}, s43, v{a}")
        E(f"v_lshlrev_b32 v{a}, 16, v{a}")
    yA0, yA1, yB0, yB1 = 32, 33, 34, 35
    u0, u1, k0, k1 = 48, 49, 50, 51
    t = 52
    E(f"v_mul_f32 v{t}, s76, v{u0}")
    E(f"v_mul_f32 v{t+1}, s77, v{u1}")
    E(f"v_mul_f32 v{t+2}, s78, v{k0}")
    E(f"v_mul_f32 v{t+3}, s79, v{k1}")
    rnd(t, t + 1)
    rnd(t + 2, t + 3)
    E(f"v_lshlrev_b32 v{t+4}, 16, v8")
    E(f"v_and_b32 v{t+5}, s43, v8")
    E("v_add_u32 v2, 1024, v2")
    E("v_add_u32 v3, 1024, v3")
    E("v_add_u32 v11, s75, v11")
    E("v_add_u32 v21, 128, v21")
    E("v_add_u32 v23, 32, v23")
    E("v_add_u32 v7, 1024, v7")
    for k in range(4):
        E(f"s_waitcnt lgkmcnt({9-3*k})")
        E(f"v_add_f32 v{32+k}, v{32+k}, v{36+k}")
        E(f"v_add_f32 v{32+k}, v{32+k}, v{40+k}")
    rnd(yA0, yA1)
    rnd(yB0, yB1)
    E(f"v_add_f32 v{yA0}, v{yA0}, v{t}")
    E(f"v_add_f32 v{yA1}, v{yA1}, v{t+1}")
    E(f"v_add_f32 v{yB0}, v{yB0}, v{t+2}")
    E(f"v_add_f32 v{yB1}, v{yB1}, v{t+3}")
    rnd(yA0, yA1)
    rnd(yB0, yB1)
    E(f"v_mul_f32 v{yB0}, v{u0}, v{yB0}")
    E(f"v_mul_f32 v{yB1}, v{u1}, v{yB1}")
    rnd(yB0, yB1)
    E(f"v_mul_f32 v{yA0}, v{t+4}, v{yA0}")
    E(f"v_mul_f32 v{yA1}, v{t+4}, v{yA1}")
    E(f"v_mul_f32 v{yB0}, v{t+5}, v{yB0}")
    E(f"v_mul_f32 v{yB1}, v{t+5}, v{yB1}")
    rnd(yA0, yA1)
    rnd(yB0, yB1)
    E(f"v_add_f32 v{yA0}, v{yA0}, v{yB0}")
    E(f"v_add_f32 v{yA1}, v{yA1}, v{yB1}")
    E(f"v_cvt_pk_bf16_f32 v{yA0}, v{yA0}, v{yA1}")
    E(f"buffer_store_dword v{yA0}, v22, s[{SRD_OUT}:{SRD_OUT+3}], s72 offen")
    E("v_add_u32 v22, 0x40000, v22")
    E("s_add_u32 s73, s73, 1")
    E("s_cmp_lt_u32 s73, s74")
    E("s_cbranch_scc1 K_hloop")
    STAMP(7)
    if DBG: E("s_waitcnt vmcnt(0)")
    STAMP(8)
    if "--pro" in sys.argv:
        E("s_waitcnt lgkmcnt(0)")
        for i in range(3, 8): E(f"s_mov_b32 s{80+2*i}, s{1+i}")
    DUMP(10, SRD_WS)
    L("K_end")
    E("s_endpgm")
    sg = 102 if DBG else 80
    return f""".amdhsa_kernel {name}
  .amdhsa_next_free_vgpr 256
  .amdhsa_next_free_sgpr {sg}
  .amdhsa_accum_offset 256
  .amdhsa_group_segment_fixed_size 0
  .amdhsa_kernarg_size 152
  .amdhsa_user_sgpr_count 2
  .amdhsa_user_sgpr_kernarg_segment_ptr 1
  .amdhsa_system_sgpr_workgroup_id_x 1
  .amdhsa_float_denorm_mode_32 3
.end_amdhsa_kernel"""

def main():
    hdr = HEADER.rstrip("\n")
    pre = [hdr,
           f"; @launch grid=(256,1,1) block=(512,1,1) lds={LDS_SIZE}",
           '.amdgcn_target "amdgcn-amd-amdhsa--gfx950"',
           ".text"]
    k = gen()
    txt = "\n".join(pre + out) + '\n.section .rodata,"a"\n.p2align 6\n' + k + "\n"
    args = [a for a in sys.argv[1:] if not a.startswith("--")]
    path = args[0] if args else "cdna_kernels/%s.s" % NAME
    open(path, "w").write(txt)

main()
```

```python
import sys

NAME = "gated_mix__ssm_conv_s4__ssm_conv_h3__prompt"
HEADER = open("cdna_kernels/%s.s.ref" % NAME).read().split("; Override launch")[0]
DBG = "--dbg" in sys.argv
def opt(name, default):
    for a in sys.argv:
        if a.startswith("--" + name + "="):
            return int(a.split("=")[1])
    return default
NA = 8
NB = 8 - NA
FINPRIO = opt("finprio", 2)
PSLEEP = opt("psleep", 8)
TOUCH = opt("touch", 0)
LATE = opt("late", 3)
DRY = opt("dry", 0)
KLDS = opt("klds", 1)
TSH = opt("tsh", 16)
ZSC = ["sc1", "sc0 sc1", "sc1 nt"][opt("zsc", 0)]
ALLPOLL = opt("allpoll", 0)
CBPRIO = opt("cbprio", 2)
APRIO = opt("aprio", 2)
POLLSC = ["sc1", "sc0 sc1", "sc1 nt"][opt("pollsc", 1)]

out = []
def E(s=""):
    out.append("    " + s)
def L(s):
    out.append(s + ":")

WS_Z = 0
WS_G = 4 << 20
WS_F = WS_G + 8192
WS_F2 = WS_F + 8192
WS_SIZE = (4 << 20) + 24576
WS_DBG = 16 << 20
if DBG:
    WS_SIZE = 32 << 20

ZROW = 1152
ZBASE = 0
XBASE = 16 * ZROW
XROW = 4128
GB = XBASE + 6 * XROW
FLG = GB + 8192
SYN = FLG + 256
PMS = 8192 + 16
PCS = 2048 + 16
PB = SYN + 288
PA = PB + 4 * PMS + 4 * PCS
PSTRIDE = PA - PB
S_KT = PA
S_P = S_KT + 24576
S_K = S_P + 8192
S_TR = S_K + 9216
LDS_SIZE = S_TR + 8 * 3072
assert LDS_SIZE <= 163840 and PA + PSTRIDE <= LDS_SIZE
def PMa(X, w4):
    return (PA if X == 0 else PB) + w4 * PMS
def PCa(X, w4):
    return (PA if X == 0 else PB) + 4 * PMS + w4 * PCS

TD = "--tiledbg" in sys.argv
RD = "--reddbg" in sys.argv
def RSTAMP(i):
    if DBG and RD:
        E(f"s_memtime s[{80+2*i}:{81+2*i}]")
def TSTAMP(i):
    if DBG and TD:
        E(f"s_memtime s[{80+2*i}:{81+2*i}]")
def STAMP(i):
    if TD and i in (3, 4, 5, 6, 7): return
    if RD and i in (1, 2, 4, 6, 7, 8, 9): return
    if DBG:
        E(f"s_memtime s[{80+2*i}:{81+2*i}]")
def DUMP(n, srdreg):
    if DBG:
        E("s_waitcnt lgkmcnt(0)")
        E("s_mov_b64 exec, 1")
        E("s_lshl_b32 s100, s2, 4")
        E("s_add_u32 s100, s100, s3")
        E("s_lshl_b32 s100, s100, 6")
        E(f"s_add_u32 s100, s100, {WS_DBG}")
        for i in range(n):
            E(f"v_mov_b32 v2, s{80+2*i}")
            E(f"v_mov_b32 v3, {4*i}")
            E(f"buffer_store_dword v2, v3, s[{srdreg}:{srdreg+3}], s100 offen")
            E("s_nop 1")

def srd(sd, sp, nbytes):
    E(f"s_mov_b32 s{sd}, s{sp}")
    E(f"s_and_b32 s{sd+1}, s{sp+1}, 0xffff")
    E(f"s_mov_b32 s{sd+2}, {hex(nbytes)}")
    E(f"s_mov_b32 s{sd+3}, 0x00020000")
def R4(r):
    return f"v[{r}:{r+3}]"
SRD_WS, SRD_OUT, SRD_DBGB, SRD_A, SRD_B = 44, 48, 52, 56, 60

lblc = [0]
def post(kind):
    E(f"ds_write_b32 v28, v29 offset:{32*kind}")
def waitf(kind, lo, hi, t0=24):
    lblc[0] += 1
    n = lblc[0]
    if DRY > 1:
        E("s_cmp_lg_u32 s5, 0")
        E(f"s_cbranch_scc1 W{n}_d")
    L(f"W{n}_p")
    if hi - lo == 4:
        E(f"ds_read_b128 v[{t0}:{t0+3}], v30 offset:{32*kind + 4*lo}")
        E("s_waitcnt lgkmcnt(0)")
        E(f"v_and_b32 v{t0}, v{t0}, v{t0+1}")
        E(f"v_and_b32 v{t0+2}, v{t0+2}, v{t0+3}")
        E(f"v_and_b32 v{t0}, v{t0}, v{t0+2}")
    else:
        E(f"ds_read_b128 v[{t0}:{t0+3}], v30 offset:{32*kind}")
        E(f"ds_read_b128 v[{t0+4}:{t0+7}], v30 offset:{32*kind + 16}")
        E("s_waitcnt lgkmcnt(0)")
        for k in range(0, 8, 2):
            E(f"v_and_b32 v{t0+k}, v{t0+k}, v{t0+k+1}")
        E(f"v_and_b32 v{t0}, v{t0}, v{t0+2}")
        E(f"v_and_b32 v{t0+4}, v{t0+4}, v{t0+6}")
        E(f"v_and_b32 v{t0}, v{t0}, v{t0+4}")
    E("s_nop 0")
    E(f"v_readfirstlane_b32 s4, v{t0}")
    E("s_cmp_eq_u32 s4, 1")
    E(f"s_cbranch_scc1 W{n}_d")
    E("s_sleep 1")
    E(f"s_branch W{n}_p")
    L(f"W{n}_d")

def preloadA(nx):
    for n in range(16):
        for x in range(nx):
            a = 64 + 4 * (n * nx + x)
            off = 256 * n + x * 2 * XROW
            E(f"ds_read_b64_tr_b16 v[{a}:{a+1}], v17 offset:{off+32}")
            E(f"ds_read_b64_tr_b16 v[{a+2}:{a+3}], v17 offset:{off}")

def finsetup(q0):
    E(f"s_mov_b32 s73, {q0}")
    E("v_subrev_u32 v24, 16, v1")
    E("v_add_u32 v25, 47, v1")
    E("v_cmp_eq_u32 vcc, 0, v1")
    E("s_nop 1")
    E("v_cndmask_b32 v25, v25, -1, vcc")
    E("v_cmp_gt_u32 vcc, 16, v1")
    E("s_lshl_b32 s74, s73, 6")
    E("s_nop 0")
    E("v_cndmask_b32 v24, v24, v25, vcc")
    E("v_add_u32 v24, s74, v24")
    E("v_add_u32 v26, s74, v1")
    E("v_add_u32 v6, s74, v6")
    E("s_lshl_b32 s70, s67, 2")
    E(f"s_add_u32 s70, s70, {PB + 16}")
    E("v_lshl_add_u32 v2, v26, 4, s70")
    E("s_add_u32 s70, s67, 2")
    E("s_and_b32 s70, s70, 3")
    E("s_lshl_b32 s70, s70, 2")
    E(f"s_add_u32 s70, s70, {PB + 16 + PMS}")
    E("s_cmp_lt_u32 s67, 2")
    E("s_cselect_b64 vcc, -1, 0")
    E("v_cndmask_b32 v25, v26, v24, vcc")
    E("v_lshl_add_u32 v3, v25, 4, s70")
    E("s_lshr_b32 s70, s67, 1")
    E(f"s_mul_i32 s70, s70, {PCS}")
    E(f"s_add_u32 s70, s70, {PB + 4*PMS + 16}")
    E("v_lshl_add_u32 v11, v24, 2, s70")
    E("s_and_b32 s70, s67, 1")
    E("s_cmp_eq_u32 s70, 0")
    E("s_cselect_b64 vcc, -1, 0")
    E("s_cselect_b32 s75, 256, 0")
    E(f"v_mov_b32 v25, {PB + 4*PMS}")
    E("v_cndmask_b32 v11, v25, v11, vcc")
    E(f"s_mul_i32 s70, s67, {ZROW}")
    E("v_lshl_add_u32 v21, v6, 1, s70")
    E("s_lshl_b32 s70, s67, 10")
    E("v_lshl_add_u32 v22, v6, 12, s70")
    E("s_lshl_b32 s70, s67, 2")
    E(f"s_add_u32 s70, s70, {GB}")
    E("v_lshl_add_u32 v7, v6, 4, s70")
    E("s_lshl_b32 s70, s73, 5")
    E(f"s_add_u32 s70, s70, {FLG}")
    E("v_mov_b32 v23, s70")
    E("s_lshl_b32 s72, s64, 2")
    E("s_lshl_b32 s76, s23, 16")
    E("s_and_b32 s77, s23, s43")
    E("s_lshl_b32 s78, s42, 16")
    E("s_and_b32 s79, s42, s43")
    E("s_sub_u32 s74, 8, s68")

def zaddr(arr, vl, vg):
    E(f"v_and_b32 v{vl}, 1, v1")
    E("v_bfe_u32 v225, v1, 2, 2")
    E(f"v_lshl_add_u32 v{vl}, v{vl}, 2, v225")
    E(f"v_mul_u32_u24 v{vl}, {ZROW}, v{vl}")
    E("v_bfe_u32 v225, v1, 1, 1")
    E(f"v_lshl_add_u32 v{vl}, v225, 4, v{vl}")
    E("v_lshrrev_b32 v225, 4, v1")
    E(f"v_lshl_add_u32 v{vl}, v225, 5, v{vl}")
    E("s_lshl_b32 s74, s67, 8")
    E(f"s_add_u32 s74, s74, {ZBASE + 128 + arr*8*ZROW}")
    E(f"v_add_u32 v{vl}, s74, v{vl}")
    E(f"v_lshrrev_b32 v{vg}, 1, v1")
    E(f"v_lshlrev_b32 v{vg}, 7, v{vg}")
    E("v_and_b32 v225, 1, v1")
    E(f"v_lshl_add_u32 v{vg}, v225, 4, v{vg}")
    E("s_lshr_b32 s6, s64, 2")
    E("s_lshl_b32 s6, s6, 15")
    E("s_lshl_b32 s74, s67, 13")
    E("s_add_u32 s6, s6, s74")
    E("s_and_b32 s74, s64, 3")
    E("s_lshl_b32 s74, s74, 5")
    E("s_add_u32 s6, s6, s74")
    if arr: E("s_add_u32 s6, s6, 0x200000")
    E("s_add_u32 s13, s6, 4096")

def gen():
    name = NAME + "_kernel"
    out.append(f".globl {name}\n.p2align 8\n.type {name},@function")
    L(name)
    E("s_cmp_ge_u32 s2, 256")
    E("s_cbranch_scc1 K_end")
    STAMP(0)
    E("s_setprio 3")
    E("s_load_dwordx16 s[4:19], s[0:1], 0")
    E("s_load_dwordx2 s[20:21], s[0:1], 64")
    E("s_load_dwordx8 s[24:31], s[0:1], 80")
    E("s_load_dwordx8 s[32:39], s[0:1], 112")
    E("s_load_dwordx2 s[40:41], s[0:1], 144")
    E("v_lshrrev_b32 v1, 6, v0")
    E("s_nop 0")
    E("v_readfirstlane_b32 s3, v1")
    E("v_and_b32 v1, 63, v0")
    E("s_and_b32 s64, s2, 7")
    E("s_lshl_b32 s65, s64, 2")
    E("s_lshl_b32 s64, s64, 5")
    E("s_lshr_b32 s66, s2, 3")
    E("s_add_u32 s64, s64, s66")
    E("s_and_b32 s66, s66, 3")
    E("s_add_u32 s65, s65, s66")
    E("s_lshr_b32 s66, s2, 5")
    E("s_and_b32 s67, s3, 3")
    E("s_lshr_b32 s68, s3, 2")
    E("s_bfe_u32 s69, s3, 0x10001")
    E("v_mov_b32 v12, 0")
    E("v_mov_b32 v13, 0")
    E("v_mov_b32 v14, 0")
    E("v_mov_b32 v15, 0")
    E("v_and_b32 v2, 31, v1")
    E("v_lshlrev_b32 v2, 4, v2")
    E(f"ds_write_b128 v2, v[12:15] offset:{FLG}")
    E(f"ds_write_b128 v2, v[12:15] offset:{FLG + 32}")
    E("s_lshl_b32 s70, s3, 2")
    E(f"s_add_u32 s70, s70, {SYN}")
    E("v_mov_b32 v28, s70")
    E("v_mov_b32 v29, 1")
    E("v_mov_b32 v95, 0")
    E(f"v_mov_b32 v30, {SYN}")
    E("s_lshl_b32 s70, s65, 6")
    E("s_add_u32 s70, s70, s67")
    E("s_lshl_b32 s70, s70, 10")
    E("s_lshl_b32 s71, s66, 7")
    E("s_add_u32 s70, s70, s71")
    E("v_lshrrev_b32 v2, 3, v1")
    E("v_and_b32 v3, 7, v1")
    E("v_lshlrev_b32 v4, 12, v2")
    E("v_lshl_add_u32 v4, v3, 4, v4")
    E("v_add_u32 v4, s70, v4")
    E("v_subrev_u32 v5, 1024, v4")
    E("v_subrev_u32 v6, 2048, v4")
    E("v_subrev_u32 v7, 3072, v4")
    E("s_lshl_b32 s71, s66, 9")
    E("v_lshl_add_u32 v8, v3, 6, s71")
    E("s_lshl_b32 s72, s65, 6")
    E("s_lshl_b32 s71, s66, 3")
    E("s_add_u32 s72, s72, s71")
    E("s_lshl_b32 s71, s67, 1")
    E("s_add_u32 s72, s72, s71")
    E("s_lshl_b32 s73, s72, 10")
    E("v_lshlrev_b32 v9, 4, v1")
    E("s_and_b32 s74, s3, 1")
    E(f"s_mul_i32 s75, s74, {8*NA}")
    E(f"s_mul_i32 s76, s74, {8*NB}")
    E(f"s_add_u32 s76, s76, {16*NA}")
    E("s_cmp_eq_u32 s68, 0")
    E("s_cselect_b32 s75, s75, s76")
    E("s_lshl_b32 s70, s64, 1")
    E("s_add_u32 s70, s70, s69")
    E("s_lshl_b32 s70, s70, 7")
    E("s_add_u32 s70, s70, s75")
    E("s_lshl_b32 s70, s70, 1")
    E("v_lshl_add_u32 v11, v1, 1, s70")
    if "--pro" in sys.argv: STAMP(3)
    E("s_waitcnt lgkmcnt(0)")
    if "--pro" in sys.argv: STAMP(4)
    E("s_add_u32 s70, s2, s3")
    E("s_cmp_lg_u32 s70, 0")
    E("s_cbranch_scc1 K_nononce")
    E("s_memrealtime s[70:71]")
    srd(SRD_DBGB, 38, 256)
    E("s_waitcnt lgkmcnt(0)")
    E("s_or_b32 s70, s70, 1")
    E("v_mov_b32 v100, s70")
    E("v_mov_b32 v101, s71")
    E("s_mov_b64 exec, 1")
    E(f"buffer_store_dwordx2 v[100:101], v95, s[{SRD_DBGB}:{SRD_DBGB+3}], 0 offen sc1")
    E("s_mov_b64 exec, -1")
    L("K_nononce")
    E("s_barrier")
    E("s_cmp_eq_u32 s68, 0")
    E("s_cbranch_scc1 K_noTL")
    srd(SRD_OUT, 4, 2 << 20)
    E("s_mov_b32 s70, 0x8000")
    E(f"buffer_load_dwordx4 v[32:35], v4, s[{SRD_OUT}:{SRD_OUT+3}], 0 offen")
    E(f"buffer_load_dwordx4 v[148:151], v4, s[{SRD_OUT}:{SRD_OUT+3}], s70 offen")
    srd(SRD_A, 24, 2 << 20)
    srd(SRD_B, 26, 2 << 20)
    E("v_lshlrev_b32 v5, 10, v2")
    E("v_lshl_add_u32 v5, v3, 4, v5")
    E("s_lshl_b32 s71, s65, 6")
    E("s_lshl_b32 s74, s67, 3")
    E("s_add_u32 s71, s71, s74")
    E("s_sub_u32 s71, s71, 8")
    E("s_lshl_b32 s71, s71, 10")
    E("s_lshl_b32 s74, s66, 7")
    E("s_add_u32 s71, s71, s74")
    E("v_add_u32 v5, s71, v5")
    E("v_add_u32 v6, s70, v5")
    E("v_add_u32 v7, s70, v6")
    E("s_lshl_b32 s74, s67, 10")
    E(f"s_add_u32 s74, s74, {S_K}")
    E("s_mov_b32 m0, s74")
    E("s_add_u32 s74, s74, 4096")
    E(f"buffer_load_dwordx4 v5, s[{SRD_A}:{SRD_A+3}], 0 offen lds")
    E("s_mov_b32 m0, s74")
    E("s_add_u32 s74, s74, 4096")
    E(f"buffer_load_dwordx4 v6, s[{SRD_A}:{SRD_A+3}], 0 offen lds")
    E("s_cmp_lg_u32 s67, 0")
    E("s_cbranch_scc1 K_nok3")
    E("s_mov_b32 m0, s74")
    E("s_nop 0")
    E(f"buffer_load_dwordx4 v7, s[{SRD_A}:{SRD_A+3}], 0 offen lds")
    L("K_nok3")
    E(f"buffer_load_dwordx4 v[96:99], v4, s[{SRD_B}:{SRD_B+3}], 0 offen")
    srd(SRD_WS, 28, 4096)
    for i in range(4):
        E(f"buffer_load_dwordx4 v[{40+4*i}:{43+4*i}], v8, s[{SRD_WS}:{SRD_WS+3}], 0 offen offset:{16*i}")
    E(f"buffer_load_dwordx4 v[144:147], v4, s[{SRD_B}:{SRD_B+3}], s70 offen")
    E(f"buffer_load_dwordx4 v[56:59], v9, s[{SRD_OUT}:{SRD_OUT+3}], s73 offen")
    E(f"buffer_load_dwordx4 v[152:155], v9, s[{SRD_OUT}:{SRD_OUT+3}], s73 offen offset:1024")
    srd(SRD_A, 34, 1024)
    E(f"buffer_load_dwordx4 v[60:63], v9, s[{SRD_A}:{SRD_A+3}], 0 offen")
    E("s_branch K_noPL")
    L("K_noTL")
    for i, sp in enumerate([6, 8, 10, 12, 14, 16]):
        sd = SRD_A if i % 2 == 0 else SRD_B
        srd(sd, sp, 131072)
        E(f"buffer_load_ushort v{84+i}, v11, s[{sd}:{sd+3}], 0 offen")
    if TOUCH:
        E(f"v_lshlrev_b32 v200, {TSH}, v1")
        E("s_cmp_eq_u32 s3, 0")
        E("s_cbranch_scc0 K_tc1")
        srd(SRD_A, 40, WS_SIZE)
        E(f"buffer_load_dword v201, v200, s[{SRD_A}:{SRD_A+3}], 0 offen")
        E(f"s_mov_b32 s70, {WS_G}")
        E(f"buffer_load_dword v202, v95, s[{SRD_A}:{SRD_A+3}], s70 offen")
        E("s_branch K_tc4")
        L("K_tc1")
        E("s_cmp_eq_u32 s3, 1")
        E("s_cbranch_scc0 K_tc2")
        srd(SRD_A, 36, 2 << 20)
        E(f"buffer_load_dword v201, v200, s[{SRD_A}:{SRD_A+3}], 0 offen")
        srd(SRD_B, 38, 256)
        E(f"buffer_load_dword v202, v95, s[{SRD_B}:{SRD_B+3}], 0 offen")
        E("s_branch K_tc4")
        L("K_tc2")
        E("s_cmp_eq_u32 s3, 2")
        E("s_cbranch_scc0 K_tc3")
        srd(SRD_A, 4, 2 << 20)
        E(f"buffer_load_dword v201, v200, s[{SRD_A}:{SRD_A+3}], 0 offen")
        srd(SRD_B, 24, 2 << 20)
        E(f"buffer_load_dword v202, v200, s[{SRD_B}:{SRD_B+3}], 0 offen")
        E("s_branch K_tc4")
        L("K_tc3")
        srd(SRD_A, 26, 2 << 20)
        E(f"buffer_load_dword v201, v200, s[{SRD_A}:{SRD_A+3}], 0 offen")
        srd(SRD_B, 34, 1024)
        E(f"buffer_load_dword v202, v95, s[{SRD_B}:{SRD_B+3}], 0 offen")
        L("K_tc4")
    L("K_noPL")
    srd(SRD_A, 30, 2 << 20)
    E("s_lshl_b32 s74, s64, 2")
    if "--pro" in sys.argv: STAMP(6)
    E("s_load_dword s22, s[18:19], s74")
    E("s_load_dword s23, s[20:21], s74")
    E("s_load_dword s42, s[32:33], s74")
    srd(SRD_WS, 40, WS_SIZE)
    srd(SRD_OUT, 36, 2 << 20)
    srd(SRD_DBGB, 38, 256)
    E("s_mov_b32 s43, 0xffff0000")
    E("s_mov_b32 s5, 0")
    E("s_and_b32 s61, s3, 1")
    if "--pro" in sys.argv:
        STAMP(7)
        E("s_waitcnt lgkmcnt(0)")
        for i in range(3, 8): E(f"s_mov_b32 s{1+i}, s{80+2*i}")
    E("s_cmp_eq_u32 s68, 0")
    E("s_cbranch_scc1 K_kgen")
    E("s_mul_i32 s70, s3, 3072")
    E(f"s_add_u32 s70, s70, {S_TR}")
    E("v_mul_u32_u24 v64, 144, v2")
    E("v_lshl_add_u32 v64, v3, 4, v64")
    E("v_add_u32 v64, s70, v64")
    E("v_lshrrev_b32 v66, 4, v1")
    E("v_bfe_u32 v68, v1, 2, 2")
    E("v_and_b32 v69, 3, v1")
    E("v_mul_u32_u24 v65, 144, v68")
    E("v_lshl_add_u32 v65, v66, 5, v65")
    E("v_lshl_add_u32 v65, v69, 3, v65")
    E("v_add_u32 v65, s70, v65")
    E("v_lshrrev_b32 v69, 3, v1")
    E("v_lshlrev_b32 v69, 15, v69")
    E("v_and_b32 v68, 7, v1")
    E("v_lshl_add_u32 v69, v68, 4, v69")
    E("s_lshl_b32 s70, s66, 18")
    E("s_lshl_b32 s71, s65, 10")
    E("s_add_u32 s70, s70, s71")
    E("s_lshl_b32 s71, s67, 8")
    E("s_add_u32 s70, s70, s71")
    E("s_add_u32 s71, s70, 0x200000")
    E("s_mov_b32 s62, 0")
    E("s_mov_b32 s76, 0x00003f80")
    E("s_mov_b32 s77, 0x3f800000")
    E("s_mov_b32 s78, 0x0000ffff")
    E("s_mov_b32 s79, 0x3f803f80")
    if DRY:
        E("s_mov_b32 s5, 1")
        E("s_mov_b64 exec, 0")
        E("s_branch K_tmask")
        L("K_breal")
        E("s_mov_b32 s5, 0")
        E("s_mov_b64 exec, -1")
        E("s_mov_b32 s62, 0")
    zaddr(1, 224, 233)
    E("s_lshl_b32 s74, s67, 11")
    E(f"v_add_u32 v10, {GB}, v9")
    E("v_add_u32 v10, s74, v10")
    E(f"s_add_u32 s60, s74, {WS_G}")
    E("v_and_b32 v226, 31, v1")
    E("v_lshlrev_b32 v226, 5, v226")
    E("s_and_b32 s7, s2, 7")
    E("s_lshl_b32 s7, s7, 10")
    E(f"s_add_u32 s7, s7, {WS_F}")
    E("v_and_b32 v227, 1, v1")
    E("v_lshlrev_b32 v225, 3, v227")
    E("v_lshlrev_b32 v227, 4, v227")
    E("s_lshl_b32 s8, s65, 3")
    E("s_add_u32 s8, s8, s66")
    E("s_lshl_b32 s8, s8, 5")
    E(f"s_add_u32 s8, s8, {WS_G}")
    E("s_lshl_b32 s9, s66, 5")
    E("s_add_u32 s9, s9, s65")
    E("s_lshl_b32 s9, s9, 5")
    E(f"s_add_u32 s9, s9, {WS_F}")
    E("v_mov_b32 v100, 0")
    E("v_mov_b32 v101, 0")
    E("v_mov_b32 v102, 0")
    E("v_mov_b32 v103, 0")
    E("v_bfe_u32 v104, v1, 3, 2")
    E(f"v_mul_u32_u24 v104, {ZROW}, v104")
    E("v_and_b32 v105, 7, v1")
    E("v_lshl_add_u32 v104, v105, 4, v104")
    E(f"s_mul_i32 s74, s67, {4*ZROW}")
    E("v_add_u32 v104, s74, v104")
    E("ds_write_b128 v104, v[100:103]")
    E("v_min_u32 v104, 11, v1")
    E("v_lshrrev_b32 v105, 1, v104")
    E(f"v_mul_u32_u24 v105, {XROW}, v105")
    E("v_and_b32 v104, 1, v104")
    E("v_lshl_add_u32 v104, v104, 4, v105")
    E(f"ds_write_b128 v104, v[100:103] offset:{XBASE}")
    E(f"s_mul_i32 s74, s67, {PMS}")
    E(f"s_add_u32 s74, s74, {PB}")
    E("v_mov_b32 v104, s74")
    E("ds_write_b128 v104, v[100:103]")
    E("s_add_u32 s74, s74, 16")
    E("v_lshl_add_u32 v230, v1, 4, s74")
    E(f"s_mul_i32 s74, s67, {PCS}")
    E(f"s_add_u32 s74, s74, {PB + 4*PMS}")
    E("v_mov_b32 v105, s74")
    E("ds_write_b128 v105, v[100:103]")
    E("s_add_u32 s74, s74, 16")
    E("v_lshl_add_u32 v231, v1, 2, s74")
    E("v_and_b32 v4, 15, v1")
    E("v_lshrrev_b32 v5, 4, v1")
    E("v_lshlrev_b32 v6, 2, v4")
    E("v_add_u32 v6, v6, v5")
    E("s_lshl_b32 s74, s3, 1")
    E(f"s_mul_i32 s74, s74, {ZROW}")
    E(f"s_add_u32 s74, s74, {ZBASE + 8}")
    E("v_lshlrev_b32 v228, 3, v4")
    E("v_lshl_add_u32 v228, v5, 4, v228")
    E("v_add_u32 v228, s74, v228")
    E("v_and_b32 v104, 3, v1")
    E("v_bfe_u32 v105, v1, 2, 2")
    E("v_sub_u32 v104, v104, v105")
    E("v_lshlrev_b32 v104, 3, v104")
    E("v_lshlrev_b32 v105, 6, v5")
    E("v_sub_u32 v104, v104, v105")
    E("s_add_u32 s74, s69, 4")
    E(f"s_mul_i32 s74, s74, {XROW}")
    E(f"s_add_u32 s74, s74, {XBASE + 224}")
    E("v_add_u32 v229, s74, v104")
    E("s_lshl_b32 s74, s3, 2")
    E(f"s_add_u32 s74, s74, {FLG}")
    E("v_mov_b32 v232, s74")
    E("v_lshlrev_b32 v70, 9, v2")
    E("v_lshl_add_u32 v70, v3, 4, v70")
    E("s_lshl_b32 s74, s67, 7")
    E(f"s_add_u32 s74, s74, {S_K + 1024 - 384}")
    E("v_add_u32 v70, s74, v70")
    E("s_waitcnt vmcnt(11)")
    E("ds_write_b128 v64, v[32:35]")
    E("ds_write_b128 v64, v[148:151] offset:1152")
    E("s_waitcnt lgkmcnt(0)")
    E("ds_read_b64_tr_b16 v[76:77], v65")
    E("ds_read_b64_tr_b16 v[78:79], v65 offset:576")
    E("ds_read_b64_tr_b16 v[80:81], v65 offset:1152")
    E("ds_read_b64_tr_b16 v[82:83], v65 offset:1728")
    E("s_waitcnt lgkmcnt(2)")
    E(f"buffer_store_dwordx4 v[76:79], v69, s[{SRD_WS}:{SRD_WS+3}], s70 offen sc1")
    E("s_waitcnt lgkmcnt(0)")
    E(f"buffer_store_dwordx4 v[80:83], v69, s[{SRD_WS}:{SRD_WS+3}], s70 offen offset:128 sc1")
    E("s_waitcnt vmcnt(11)")
    post(7)
    E("s_waitcnt vmcnt(6)")
    STAMP(1)
    L("K_tmask")
    for t in range(4):
        for i in range(4):
            r0 = 40 + 4 * i + (t >> 1)
            r1 = 40 + 4 * i + 2 + (t >> 1)
            d = 160 + (t * 4 + i) * 2
            if t & 1:
                E(f"v_lshrrev_b32 v{d}, 16, v{r0}")
                E(f"v_and_b32 v{d+1}, s43, v{r1}")
            else:
                E(f"v_and_b32 v{d}, s78, v{r0}")
                E(f"v_lshlrev_b32 v{d+1}, 16, v{r1}")
    waitf(7, 4, 8, 72)
    TSTAMP(3)
    L("K_tloop")
    for t in range(4):
        E(f"ds_read_b128 {R4(12+4*t)}, v70 offset:{384 - 128*t}")
    E("v_add_u32 v70, 4096, v70")
    E("s_waitcnt lgkmcnt(0)")
    for t in range(4):
        for i in range(4):
            kr = 12 + 4 * t + i
            d = 160 + (t * 4 + i) * 2
            E(f"v_dot2_f32_bf16 v{208+2*i}, v{kr}, v{d}, 0")
            E(f"v_dot2_f32_bf16 v{209+2*i}, v{kr}, v{d+1}, 0")
        E("s_nop 0")
        for i in range(4):
            E(f"v_cvt_pk_bf16_f32 v{192+4*t+i}, v{208+2*i}, v{209+2*i}")
    cur = 192 + 12
    for t in (2, 1, 0):
        for i in range(4):
            E(f"v_lshlrev_b32 v{208+2*i}, 16, v{cur+i}")
            E(f"v_and_b32 v{209+2*i}, s43, v{cur+i}")
        for i in range(4):
            E(f"v_dot2_f32_bf16 v{208+2*i}, v{192+4*t+i}, s76, v{208+2*i}")
            E(f"v_dot2_f32_bf16 v{209+2*i}, v{192+4*t+i}, s77, v{209+2*i}")
        E("s_nop 0")
        for i in range(4):
            E(f"v_cvt_pk_bf16_f32 v{cur+i}, v{208+2*i}, v{209+2*i}")
    for i in range(4):
        E(f"v_and_b32 v{216+2*i}, s78, v{96+i}")
        E(f"v_and_b32 v{217+2*i}, s43, v{96+i}")
    for i in range(4):
        E(f"v_dot2_f32_bf16 v{208+2*i}, v{cur+i}, v{216+2*i}, 0")
        E(f"v_dot2_f32_bf16 v{209+2*i}, v{cur+i}, v{217+2*i}, 0")
    E("s_nop 0")
    for i in range(4):
        E(f"v_cvt_pk_bf16_f32 v{36+i}, v{208+2*i}, v{209+2*i}")
    if DRY:
        E("s_cmp_lg_u32 s5, 0")
        E("s_cbranch_scc1 K_gmask")
    E("ds_write_b128 v64, v[36:39]")
    E("s_waitcnt lgkmcnt(0)")
    E("ds_read_b64_tr_b16 v[76:77], v65")
    E("ds_read_b64_tr_b16 v[78:79], v65 offset:576")
    E("s_waitcnt lgkmcnt(0)")
    E(f"buffer_store_dwordx4 v[76:79], v69, s[{SRD_WS}:{SRD_WS+3}], s71 offen sc1")
    E("s_cmp_eq_u32 s62, 1")
    E("s_cbranch_scc1 K_tdone")
    E("s_mov_b32 s62, 1")
    E("s_add_u32 s71, s71, 128")
    E("s_waitcnt vmcnt(6)")
    for i in range(4):
        E(f"v_mov_b32 v{96+i}, v{144+i}")
    E("s_branch K_tloop")
    L("K_tdone")
    STAMP(2)
    E("s_waitcnt vmcnt(2)")
    post(2)
    L("K_nwait")
    E(f"ds_read_b64 v[92:93], v30 offset:272")
    E("s_waitcnt lgkmcnt(0)")
    E("v_readfirstlane_b32 s56, v92")
    E("v_readfirstlane_b32 s57, v93")
    E("s_cmp_lg_u32 s56, 0")
    E("s_cbranch_scc1 K_nok")
    E("s_sleep 1")
    E("s_branch K_nwait")
    L("K_nok")
    E("s_cmp_lg_u32 s3, 6")
    E("s_cbranch_scc1 K_nopubU")
    waitf(2, 4, 8, 144)
    E("s_add_u32 s70, s9, 8192")
    E("s_mov_b64 exec, 1")
    E(f"buffer_store_dwordx2 v[92:93], v227, s[{SRD_WS}:{SRD_WS+3}], s70 offen sc1")
    E("s_mov_b64 exec, -1")
    L("K_nopubU")
    E("s_mov_b32 s62, 0")
    L("K_gmask")
    for i in range(4):
        E(f"v_and_b32 v{216+2*i}, s78, v{60+i}")
        E(f"v_and_b32 v{217+2*i}, s43, v{60+i}")
    L("K_gloop")
    for i in range(4):
        E(f"v_dot2_f32_bf16 v{208+2*i}, v{56+i}, v{216+2*i}, 0")
        E(f"v_dot2_f32_bf16 v{209+2*i}, v{56+i}, v{217+2*i}, 0")
    E("s_nop 0")
    for i in range(4):
        E(f"v_cvt_pk_bf16_f32 v{192+i}, v{208+2*i}, v{209+2*i}")
    for i in range(4):
        E(f"v_dot2_f32_bf16 v{208+i}, v{192+i}, s79, 0")
    E("s_nop 2")
    E("v_add_f32 v208, v208, v209")
    E("v_add_f32 v210, v210, v211")
    E("v_add_f32 v74, v208, v210")
    for dpp in ["row_shr:1", "row_shr:2", "row_shr:4", "row_shr:8"]:
        E("s_nop 1")
        E(f"v_add_f32_dpp v74, v74, v74 {dpp} row_mask:0xf bank_mask:0xf bound_ctrl:0")
    E("s_nop 1")
    E("v_add_f32_dpp v74, v74, v74 row_bcast:15 row_mask:0xa bank_mask:0xf")
    E("s_nop 1")
    E("v_add_f32_dpp v74, v74, v74 row_bcast:31 row_mask:0xc bank_mask:0xf")
    E("s_nop 1")
    E("v_cvt_pk_bf16_f32 v74, v74, v74")
    E("v_lshlrev_b32 v74, 16, v74")
    E("v_mul_f32 v74, 0xbfb8aa3b, v74")
    E("v_exp_f32 v74, v74")
    E("s_nop 0")
    E("v_add_f32 v74, 1.0, v74")
    E("v_rcp_f32 v74, v74")
    E("s_nop 0")
    E("v_cvt_pk_bf16_f32 v74, v74, v74")
    E("s_lshl_b32 s72, s67, 1")
    E("s_add_u32 s72, s72, s62")
    E("s_lshl_b32 s72, s72, 1")
    E(f"s_add_u32 s72, s72, {SYN + 256}")
    E("v_mov_b32 v75, s72")
    if DRY:
        E("s_cmp_lg_u32 s5, 0")
        E("s_cbranch_scc1 K_breal")
    E("v_cmp_eq_u32 vcc, 63, v1")
    E("s_and_saveexec_b64 s[74:75], vcc")
    E("ds_write_b16 v75, v74")
    E("s_mov_b64 exec, s[74:75]")
    E("s_cmp_eq_u32 s62, 1")
    E("s_cbranch_scc1 K_bwave")
    E("s_mov_b32 s62, 1")
    for i in range(4):
        E(f"v_mov_b32 v{56+i}, v{152+i}")
    E("s_branch K_gloop")
    L("K_kgen")
    E(f"s_setprio {APRIO}")
    STAMP(2)
    E("v_and_b32 v20, 15, v1")
    E("v_lshrrev_b32 v21, 4, v1")
    E("s_mov_b32 s74, 0x00040000")
    E("s_mov_b32 s75, 0x02000100")
    E("s_mov_b32 s76, 0x00010001")
    E("s_mov_b32 s77, 0x00040002")
    E("s_mov_b32 s78, 0x00020002")
    E("s_mov_b32 s79, 0x01000004")
    E("v_lshrrev_b32 v22, 2, v20")
    E("v_lshlrev_b32 v22, 4, v22")
    E("v_lshrrev_b64 v[32:33], v22, s[74:75]")
    E("v_and_b32 v32, 0xffff, v32")
    E("v_lshrrev_b64 v[34:35], v22, s[76:77]")
    E("v_and_b32 v34, 0xffff, v34")
    E("v_and_b32 v23, 1, v20")
    E("v_mad_u32_u24 v32, v23, v34, v32")
    E("v_lshrrev_b64 v[34:35], v22, s[78:79]")
    E("v_and_b32 v34, 0xffff, v34")
    E("v_bfe_u32 v23, v20, 1, 1")
    E("v_mad_u32_u24 v32, v23, v34, v32")
    E("v_cvt_f32_u32 v24, v32")
    E("v_lshrrev_b32 v33, 7, v32")
    E("v_and_b32 v32, 127, v32")
    E("v_cvt_f32_u32 v16, v33")
    E("v_cvt_f32_u32 v17, v32")
    E("v_add_u32 v32, 8, v20")
    E("v_cvt_f32_u32 v18, v32")
    E("v_mul_f32 v26, 0x43000000, v18")
    E("v_lshlrev_b32 v22, 3, v20")
    E("v_cvt_f32_u32 v27, v22")
    if DRY > 1:
        E("s_mov_b32 s5, 1")
        E("s_mov_b64 exec, 0")
        E("s_branch K_dA")
        L("K_areal")
        E("s_mov_b32 s5, 0")
        E("s_mov_b64 exec, -1")
    E("s_waitcnt lgkmcnt(0)")
    E("s_lshl_b32 s70, s22, 16")
    E("s_and_b32 s22, s22, s43")
    E("s_cmp_eq_u32 s69, 0")
    E("s_cselect_b32 s22, s70, s22")
    E("v_mov_b32 v40, 0x3fb8aa3b")
    E("v_mul_f32 v41, s22, v40")
    E("v_exp_f32 v41, v41")
    E("s_nop 0")
    E("v_cvt_pk_bf16_f32 v41, v41, v41")
    E("v_lshlrev_b32 v41, 16, v41")
    E(f"s_waitcnt vmcnt({2 if TOUCH else 0})")
    L("K_dA")
    for i in range(6):
        E(f"v_lshlrev_b32 v{84+i}, 16, v{84+i}")
    E("v_mul_f32 v84, v41, v84")
    E("v_mul_f32 v85, v41, v85")
    E("v_mul_f32 v86, v41, v86")
    E("v_mul_f32 v87, v41, v87")
    E("v_mul_f32 v44, v40, v84")
    E("v_mul_f32 v45, 0.15915494, v85")
    E("v_rndne_f32 v46, v45")
    E("v_sub_f32 v45, v45, v46")
    E("v_mul_f32 v46, 0x43000000, v45")
    E("v_rndne_f32 v47, v46")
    E("v_sub_f32 v46, v46, v47")
    E("v_mul_f32 v84, 0x43000000, v44")
    E("v_exp_f32 v84, v84")
    E("v_cos_f32 v47, v46")
    E("v_sin_f32 v85, v46")
    E("v_mul_f32 v80, v88, v86")
    E("v_fma_f32 v80, -v89, v87, v80")
    E("v_mul_f32 v81, v88, v87")
    E("v_fma_f32 v81, v89, v86, v81")
    E("v_mul_f32 v47, v84, v47")
    E("v_mul_f32 v82, v84, v85")
    E("s_lshl_b32 s70, s3, 11")
    E(f"s_add_u32 s70, s70, {S_P}")
    E("v_lshl_add_u32 v42, v1, 5, s70")
    E("ds_write_b128 v42, v[44:47]")
    E("ds_write_b128 v42, v[80:83] offset:16")
    E("v_lshl_add_u32 v43, v21, 6, s70")
    for r in range(48, 60):
        E(f"v_mov_b32 v{r}, 0")
    E("s_waitcnt lgkmcnt(0)")
    for k in range(4):
        E(f"ds_read_b128 {R4(60+4*k)}, v43 offset:{16*k}")
    E("s_mov_b32 s62, 0")
    E(f"s_mov_b32 s63, {NA}")
    if DRY > 1:
        E("s_cmp_lg_u32 s5, 0")
        E("s_cselect_b32 s63, 1, s63")
    L("K_loop")
    E("s_waitcnt lgkmcnt(0)")
    TT = [[96, 100, 104, 108], [136, 140, 144, 148]]
    for nn in range(2):
        zr, zi, w128 = 60 + 8 * nn, 61 + 8 * nn, 62 + 8 * nn
        T = TT[nn]
        E(f"v_mul_f32 v{T[3]}, v{zr}, v27")
        E(f"v_mul_f32 v{T[3]+1}, v{zi}, v27")
        E(f"v_mul_f32 v{T[0]}, v{zr}, v24")
        E(f"v_mul_f32 v{T[0]+1}, v{zi}, v17")
        E(f"v_mul_f32 v{T[2]}, v{zr}, v26")
        E(f"v_mul_f32 v{T[2]+1}, v{w128}, v18")
        E(f"v_fma_f32 v{T[0]+1}, v{w128}, v16, v{T[0]+1}")
        for k in range(4):
            E(f"v_mov_b32 v{76+4*nn+k}, v{63+8*nn+k}")
    E("v_add_u32 v43, 256, v43")
    for k in range(4):
        E(f"ds_read_b128 {R4(60+4*k)}, v43 offset:{16*k}")
    for nn in range(2):
        er, cbr, cbi, ei = 76 + 4 * nn, 77 + 4 * nn, 78 + 4 * nn, 79 + 4 * nn
        T = TT[nn]
        for t in [T[3], T[0], T[2]]:
            E(f"v_exp_f32 v{t}, v{t}")
            E(f"v_cos_f32 v{t+2}, v{t+1}")
            E(f"v_sin_f32 v{t+3}, v{t+1}")
        t = T[3]
        E(f"v_mul_f32 v{t+2}, v{t}, v{t+2}")
        E(f"v_mul_f32 v{t+3}, v{t}, v{t+3}")
        E(f"v_mul_f32 v{t}, v{cbr}, v{t+2}")
        E(f"v_mul_f32 v{t+1}, v{cbr}, v{t+3}")
        E(f"v_fma_f32 v{t}, -v{cbi}, v{t+3}, v{t}")
        E(f"v_fma_f32 v{t+3}, -v{cbi}, v{t+2}, -v{t+1}")
        E(f"v_mov_b32 v{t+2}, v{t}")
        for t in [T[0], T[2]]:
            E(f"v_mul_f32 v{t+2}, v{t}, v{t+2}")
            E(f"v_mul_f32 v{t+3}, v{t}, v{t+3}")
        p, q = T[0], T[1]
        E(f"v_mul_f32 v{q+2}, v{p+2}, v{er}")
        E(f"v_mul_f32 v{q+3}, v{p+2}, v{ei}")
        E(f"v_fma_f32 v{q+2}, -v{p+3}, v{ei}, v{q+2}")
        E(f"v_fma_f32 v{q+3}, v{p+3}, v{er}, v{q+3}")
        for k in range(4):
            t = T[k]
            hi = (112 + 2 * k + nn) if k < 3 else (124 + nn)
            lo = (118 + 2 * k + nn) if k < 3 else (126 + nn)
            E(f"v_cvt_pk_bf16_f32 v{hi}, v{t+2}, v{t+3}")
            E(f"v_lshlrev_b32 v{t}, 16, v{hi}")
            E(f"v_and_b32 v{t+1}, s43, v{hi}")
            E(f"v_sub_f32 v{t}, v{t+2}, v{t}")
            E(f"v_sub_f32 v{t+1}, v{t+3}, v{t+1}")
            E(f"v_cvt_pk_bf16_f32 v{lo}, v{t}, v{t+1}")
    E("s_add_u32 s62, s62, 1")
    E(f"s_cmp_eq_u32 s62, {LATE}")
    for k in range(3):
        a_ = 48 + 4 * k
        E(f"v_mfma_f32_16x16x16_bf16 {R4(a_)}, v[{112+2*k}:{113+2*k}], v[124:125], {R4(a_)}")
        E(f"v_mfma_f32_16x16x16_bf16 {R4(a_)}, v[{112+2*k}:{113+2*k}], v[126:127], {R4(a_)}")
        E(f"v_mfma_f32_16x16x16_bf16 {R4(a_)}, v[{118+2*k}:{119+2*k}], v[124:125], {R4(a_)}")
    E("s_cbranch_scc0 K_nost")
    E("s_lshl_b32 s70, s64, 13")
    E("s_lshl_b32 s71, s3, 11")
    E("s_add_u32 s70, s70, s71")
    E(f"s_mul_i32 s71, s69, {XROW}")
    E("s_lshl_b32 s72, s61, 11")
    E("s_add_u32 s71, s71, s72")
    E(f"s_add_u32 s71, s71, {XBASE + 4*XROW + 32}")
    E("s_mov_b32 m0, s71")
    E("s_nop 0")
    E(f"buffer_load_dwordx4 v9, s[{SRD_A}:{SRD_A+3}], s70 offen lds")
    E(f"buffer_load_dwordx4 v9, s[{SRD_A}:{SRD_A+3}], s70 offen offset:1024 lds")
    L("K_nost")
    E("s_cmp_lg_u32 s3, 0")
    E("s_cbranch_scc1 K_non")
    E("s_cmp_eq_u32 s62, 1")
    E("s_cbranch_scc0 K_non1")
    E(f"buffer_load_dwordx2 v[92:93], v95, s[{SRD_DBGB}:{SRD_DBGB+3}], 0 offen sc1")
    L("K_non1")
    E("s_cmp_eq_u32 s62, 2")
    E("s_cbranch_scc0 K_non")
    E("s_mov_b32 s70, 0")
    L("K_npoll")
    E("s_waitcnt vmcnt(0)")
    E("v_readfirstlane_b32 s71, v92")
    E("s_add_u32 s70, s70, 1")
    E("s_cmp_lg_u32 s71, 0")
    E("s_cbranch_scc1 K_ngot")
    E("s_sleep 4")
    E(f"buffer_load_dwordx2 v[92:93], v95, s[{SRD_DBGB}:{SRD_DBGB+3}], 0 offen sc1")
    E("s_cmp_lt_u32 s70, 0x40000")
    E("s_cbranch_scc1 K_npoll")
    E("s_waitcnt vmcnt(0)")
    E("v_mov_b32 v92, 1")
    L("K_ngot")
    E("ds_write_b64 v30, v[92:93] offset:272")
    L("K_non")
    E(f"s_cmp_eq_u32 s62, {LATE+3}")
    E("s_cbranch_scc0 K_nost2")
    E("s_waitcnt vmcnt(0)")
    post(0)
    L("K_nost2")
    E("s_cmp_lt_u32 s62, s63")
    E("s_cbranch_scc1 K_loop")
    E("s_waitcnt lgkmcnt(0)")
    STAMP(3)
    E("s_mul_i32 s70, s3, 3072")
    E(f"s_add_u32 s70, s70, {S_TR}")
    E("v_lshl_add_u32 v39, v1, 4, s70")
    E("v_and_b32 v4, 15, v1")
    E("v_lshrrev_b32 v5, 4, v1")
    E("v_lshlrev_b32 v6, 2, v4")
    E("v_add_u32 v6, v6, v5")
    E("s_nop 1")
    for k in range(3):
        E(f"ds_write_b128 v39, {R4(48+4*k)} offset:{1024*k}")
    post(1)
    E("s_mul_i32 s70, s69, 12288")
    E(f"s_add_u32 s70, s70, {S_KT}")
    E("v_lshlrev_b32 v32, 5, v20")
    E("v_add_u32 v32, s70, v32")
    E("v_lshl_add_u32 v44, v21, 11, v32")
    E("v_add_u32 v44, 4096, v44")
    E("v_add_u32 v45, 512, v44")
    E("v_add_u32 v46, 1024, v44")
    E("v_add_u32 v47, 1536, v44")
    E("v_lshlrev_b32 v22, 4, v21")
    E("v_lshrrev_b64 v[60:61], v22, s[74:75]")
    E("v_and_b32 v60, 0xffff, v60")
    E("v_lshl_add_u32 v35, v60, 2, v32")
    E("s_lshl_b32 s71, s61, 9")
    E("v_add_u32 v35, s71, v35")
    E("v_lshrrev_b64 v[60:61], v22, s[76:77]")
    E("v_and_b32 v60, 0xffff, v60")
    E("v_lshl_add_u32 v36, v60, 2, v35")
    E("v_lshrrev_b64 v[62:63], v22, s[78:79]")
    E("v_and_b32 v62, 0xffff, v62")
    E("v_lshl_add_u32 v37, v62, 2, v35")
    E("v_lshl_add_u32 v38, v62, 2, v36")
    E("s_mul_i32 s70, s69, 6144")
    E(f"s_add_u32 s70, s70, {S_TR}")
    E("v_lshl_add_u32 v39, v1, 4, s70")
    E("s_lshl_b32 s71, s61, 10")
    E("v_add_u32 v40, s71, v39")
    E("s_lshl_b32 s71, s61, 9")
    E("v_lshl_add_u32 v60, v1, 3, s71")
    E("s_mul_i32 s70, s69, 12288")
    E(f"s_add_u32 s70, s70, {S_KT}")
    for rr in range(2):
        for e in range(0, 8, 2):
            E(f"v_add_u32 v62, {e + 1024*rr}, v60")
            E(f"v_add_u32 v63, {e + 1 + 1024*rr}, v60")
            E("v_cvt_f32_u32 v62, v62")
            E("v_cvt_f32_u32 v63, v63")
            E("v_cvt_pk_bf16_f32 v62, v62, v63")
            E("v_and_b32 v63, s43, v62")
            E("v_lshlrev_b32 v62, 16, v62")
            E("v_cvt_u32_f32 v62, v62")
            E("v_cvt_u32_f32 v63, v63")
            E(f"v_lshl_add_u32 v{64+8*rr+e}, v62, 2, s70")
            E(f"v_lshl_add_u32 v{65+8*rr+e}, v63, 2, s70")
    E(f"s_mul_i32 s70, s69, {XROW}")
    E(f"s_add_u32 s70, s70, {XBASE + 32}")
    E("v_lshl_add_u32 v61, v60, 1, s70")
    RSTAMP(1)
    waitf(1, 0, 4, 96)
    RSTAMP(2)
    srcoff = [0, 3072]
    for k in range(2):
        E(f"ds_read_b128 {R4(96+4*k)}, v40 offset:{srcoff[k]}")
    for k in range(2):
        E(f"ds_read_b128 {R4(112+4*k)}, v39 offset:{srcoff[k] + 2048}")
    for (b, dst, w) in [(96, 35, 2), (112, 44, 0)]:
        E(f"s_waitcnt lgkmcnt({w})")
        for e in range(4):
            E(f"v_add_f32 v{b+e}, v{b+e}, v{b+4+e}")
    for (b, dst) in [(96, 35), (112, 44)]:
        for e in range(4):
            E(f"ds_write_b32 v{dst+e}, v{b+e}")
    post(2)
    RSTAMP(4)
    waitf(2, 0, 4, 96)
    RSTAMP(6)
    for e in range(16):
        E(f"ds_read_b32 v{96+e}, v{64+e}")
    for rr in range(2):
        for e in range(0, 8, 2):
            src = 96 + 8 * rr + e
            E(f"s_waitcnt lgkmcnt({14 - 8*rr - e})")
            E(f"v_cvt_pk_bf16_f32 v{112+8*rr+e//2}, v{src}, v{src+1}")
            E(f"v_lshlrev_b32 v62, 16, v{112+8*rr+e//2}")
            E(f"v_and_b32 v63, s43, v{112+8*rr+e//2}")
            E(f"v_sub_f32 v62, v{src}, v62")
            E(f"v_sub_f32 v63, v{src+1}, v63")
            E(f"v_cvt_pk_bf16_f32 v{116+8*rr+e//2}, v62, v63")
    for rr in range(2):
        E(f"ds_write_b128 v61, {R4(112+8*rr)} offset:{2048*rr}")
        E(f"ds_write_b128 v61, {R4(116+8*rr)} offset:{2*XROW + 2048*rr}")
    post(3)
    RSTAMP(7)
    STAMP(4)
    E("s_branch K_csetup")
    L("K_bwave")
    post(1)
    STAMP(3)
    E("s_sub_u32 s14, s6, 0x200000")
    E("s_sub_u32 s15, s13, 0x200000")
    E("s_add_u32 s12, s7, 8192")
    E("s_cmp_lg_u32 s3, 4")
    E("s_cbranch_scc1 K_b1")
    E(f"buffer_load_dwordx2 v[112:113], v226, s[{SRD_WS}:{SRD_WS+3}], s12 offen sc1")
    E("s_waitcnt vmcnt(1)")
    post(0)
    waitf(0, 4, 8, 144)
    E("s_mov_b64 exec, 1")
    E(f"buffer_store_dwordx2 v[92:93], v227, s[{SRD_WS}:{SRD_WS+3}], s9 offen sc1")
    E("s_mov_b64 exec, -1")
    STAMP(9)
    E("s_mov_b32 s70, 0")
    E("s_waitcnt vmcnt(1)")
    E("s_branch K_upoll1")
    L("K_b1")
    E("s_cmp_lg_u32 s3, 6")
    E("s_cbranch_scc1 K_b2")
    E("s_waitcnt vmcnt(1)")
    E("s_branch K_b3")
    L("K_b2")
    E("s_waitcnt vmcnt(0)")
    L("K_b3")
    post(0)
    E("s_cmp_lg_u32 s3, 5")
    E("s_cbranch_scc1 K_uwait")
    waitf(1, 4, 8, 144)
    E(f"ds_read_b64 v[144:145], v225 offset:{SYN + 256}")
    E("v_mov_b32 v146, s56")
    E("v_mov_b32 v147, s57")
    E("s_waitcnt lgkmcnt(0)")
    E("s_mov_b64 exec, 3")
    E(f"buffer_store_dwordx4 v[144:147], v227, s[{SRD_WS}:{SRD_WS+3}], s8 offen sc1")
    E("s_mov_b64 exec, -1")
    E("s_branch K_uwait")
    L("K_upoll")
    E(f"buffer_load_dwordx2 v[112:113], v226, s[{SRD_WS}:{SRD_WS+3}], s12 offen sc1")
    E("s_waitcnt vmcnt(0)")
    L("K_upoll1")
    E("v_xor_b32 v112, s56, v112")
    E("v_xor_b32 v113, s57, v113")
    E("v_or_b32 v112, v112, v113")
    E("v_cmp_ne_u32 vcc, 0, v112")
    E("s_add_u32 s70, s70, 1")
    E("s_cmp_eq_u64 vcc, 0")
    E("s_cbranch_scc1 K_uok")
    E(f"s_sleep {PSLEEP}")
    E("s_cmp_lt_u32 s70, 0x40000")
    E("s_cbranch_scc1 K_upoll")
    L("K_uok")
    post(3)
    E("s_branch K_udone")
    L("K_uwait")
    E(f"ds_read_b32 v93, v30 offset:{32*3 + 16}")
    E("s_waitcnt lgkmcnt(0)")
    E("v_readfirstlane_b32 s70, v93")
    E("s_cmp_eq_u32 s70, 1")
    E("s_cbranch_scc1 K_udone")
    E("s_sleep 1")
    E("s_branch K_uwait")
    L("K_udone")
    E(f"buffer_load_dwordx4 v[192:195], v233, s[{SRD_WS}:{SRD_WS+3}], s14 offen sc1")
    E(f"buffer_load_dwordx4 v[196:199], v233, s[{SRD_WS}:{SRD_WS+3}], s15 offen sc1")
    E(f"v_subrev_u32 v234, {8*ZROW}, v224")
    E("s_cmp_lg_u32 s3, 4")
    E("s_cbranch_scc1 K_unp")
    E(f"buffer_load_dwordx2 v[112:113], v226, s[{SRD_WS}:{SRD_WS+3}], s7 offen sc1")
    E("s_waitcnt vmcnt(1)")
    E("s_branch K_uw")
    L("K_unp")
    E("s_waitcnt vmcnt(0)")
    L("K_uw")
    E("ds_write_b128 v234, v[192:195]")
    E("ds_write_b128 v234, v[196:199] offset:128")
    E("ds_write_b32 v28, v29 offset:112")
    E("s_cmp_lg_u32 s3, 4")
    E("s_cbranch_scc1 K_pwait")
    E("s_mov_b32 s70, 0")
    E("s_branch K_poll1")
    L("K_poll")
    E(f"buffer_load_dwordx2 v[112:113], v226, s[{SRD_WS}:{SRD_WS+3}], s7 offen sc1")
    L("K_poll1")
    E("s_waitcnt vmcnt(0)")
    E("v_xor_b32 v112, s56, v112")
    E("v_xor_b32 v113, s57, v113")
    E("v_or_b32 v112, v112, v113")
    E("v_cmp_ne_u32 vcc, 0, v112")
    E("s_add_u32 s70, s70, 1")
    E("s_cmp_eq_u64 vcc, 0")
    E("s_cbranch_scc1 K_pok")
    E(f"s_sleep {PSLEEP}")
    E("s_cmp_lt_u32 s70, 0x40000")
    E("s_cbranch_scc1 K_poll")
    L("K_pok")
    post(5)
    E("s_branch K_pdone")
    L("K_pwait")
    E(f"ds_read_b32 v93, v30 offset:{32*5 + 16}")
    E("s_waitcnt lgkmcnt(0)")
    E("v_readfirstlane_b32 s70, v93")
    E("s_cmp_eq_u32 s70, 1")
    E("s_cbranch_scc1 K_pdone")
    E("s_sleep 1")
    E("s_branch K_pwait")
    L("K_pdone")
    STAMP(4)
    E(f"buffer_load_dwordx4 v[192:195], v233, s[{SRD_WS}:{SRD_WS+3}], s6 offen sc1")
    E(f"buffer_load_dwordx4 v[196:199], v233, s[{SRD_WS}:{SRD_WS+3}], s13 offen sc1")
    for k in range(5):
        E(f"v_mov_b32 v{16+k}, v{228+k}")
    finsetup(0)
    waitf(0, 0, 4, 24)
    preloadA(1)
    E("s_waitcnt vmcnt(1)")
    E("ds_write_b128 v224, v[192:195]")
    E("s_waitcnt vmcnt(0)")
    E("ds_write_b128 v224, v[196:199] offset:128")
    post(4)
    E(f"s_setprio {CBPRIO}")
    E("s_branch K_convB")
    L("K_csetup")
    vB, vA, vPM, vPC, vF = 16, 17, 18, 19, 20
    E("s_lshl_b32 s70, s3, 1")
    E(f"s_mul_i32 s70, s70, {ZROW}")
    E(f"s_add_u32 s70, s70, {ZBASE + 8}")
    E(f"v_lshlrev_b32 v{vB}, 3, v4")
    E(f"v_lshl_add_u32 v{vB}, v5, 4, v{vB}")
    E(f"v_add_u32 v{vB}, s70, v{vB}")
    E("v_and_b32 v22, 3, v1")
    E("v_bfe_u32 v23, v1, 2, 2")
    E("v_sub_u32 v22, v22, v23")
    E("v_lshlrev_b32 v22, 3, v22")
    E("v_lshlrev_b32 v23, 6, v5")
    E("v_sub_u32 v22, v22, v23")
    E("s_lshl_b32 s70, s68, 2")
    E("s_add_u32 s70, s70, s69")
    E(f"s_mul_i32 s70, s70, {XROW}")
    E(f"s_add_u32 s70, s70, {XBASE + 224}")
    E(f"v_add_u32 v{vA}, s70, v22")
    E("s_cmp_eq_u32 s68, 0")
    E(f"s_mov_b32 s71, {PB}")
    E(f"s_cselect_b32 s71, {PA}, s71")
    E(f"s_mul_i32 s70, s67, {PMS}")
    E("s_add_u32 s70, s70, s71")
    E("s_add_u32 s72, s70, 16")
    E(f"v_lshl_add_u32 v{vPM}, v1, 4, s72")
    E(f"s_mul_i32 s72, s67, {PCS}")
    E("s_add_u32 s72, s72, s71")
    E(f"s_add_u32 s72, s72, {4*PMS}")
    E("s_add_u32 s73, s72, 16")
    E(f"v_lshl_add_u32 v{vPC}, v1, 2, s73")
    E("s_lshl_b32 s73, s3, 2")
    E(f"s_add_u32 s73, s73, {FLG}")
    E(f"v_mov_b32 v{vF}, s73")
    E("v_mov_b32 v22, s70")
    E("v_mov_b32 v23, s72")
    if DRY > 1:
        E("s_cmp_lg_u32 s5, 0")
        E("s_cbranch_scc1 K_areal")
    RSTAMP(8)
    waitf(3, 0, 4, 24)
    RSTAMP(9)
    E("v_mov_b32 v24, 0")
    E("v_mov_b32 v25, 0")
    E("v_mov_b32 v26, 0")
    E("v_mov_b32 v27, 0")
    E("ds_write_b128 v22, v[24:27]")
    E("ds_write_b128 v23, v[24:27]")
    finsetup(7)
    waitf(7, 4, 8, 24)
    preloadA(2)
    waitf(4, 0, 4, 24)
    E("s_setprio 0")
    STAMP(5)

    def acc(pp, q):
        return 192 + 32 * pp + 4 * q
    def Bf(pp, jj):
        return 32 + 4 * ((jj % 4) * 2 + pp)
    def conv(nx):
        def Af(n, x):
            return 64 + 4 * (n * nx + x)
        queue = []
        def rdB(jj):
            for pp in range(2):
                b = Bf(pp, jj)
                E(f"ds_read_b64 v[{b}:{b+1}], v{vB} offset:{pp*ZROW + 64*jj}")
                E(f"ds_read_b64 v[{b+2}:{b+3}], v{vB} offset:{pp*ZROW + 64*jj + 8}")
                queue.extend([("B", jj, pp), ("B", jj, pp)])
        def need(keys):
            last = -1
            for idx, k in enumerate(queue):
                if k in keys:
                    last = idx
            if last >= 0:
                n_after = min(len(queue) - 1 - last, 15)
                E(f"s_waitcnt lgkmcnt({n_after})")
                del queue[:len(queue) - n_after]
        def mf(pp, q, jj, x, first=False):
            n = 2 * q - jj + 1
            c = "0" if first else R4(acc(pp, q))
            E(f"v_mfma_f32_16x16x32_bf16 {R4(acc(pp,q))}, {R4(Af(n,x))}, {R4(Bf(pp,jj))}, {c}")
        def writeout(q):
            a0, a1 = acc(0, q), acc(1, q)
            E(f"v_add_f32 v{a0+1}, v{a0+1}, v{a1}")
            E(f"v_add_f32 v{a0+2}, v{a0+2}, v{a1+1}")
            E(f"v_add_f32 v{a0+3}, v{a0+3}, v{a1+2}")
            E(f"ds_write_b32 v{vPC}, v{a1+3} offset:{256*q}")
            E(f"ds_write_b128 v{vPM}, {R4(a0)} offset:{1024*q}")
            E(f"ds_write_b32 v{vF}, v29 offset:{32*q}")
            queue.extend([("W",), ("W",), ("W",)])
        rdB(0); rdB(1); rdB(2)
        for jj in range(16):
            q0 = jj >> 1
            k = 0
            for q in range(q0, 8):
                for pp in range(2):
                    if q == q0:
                        need({("B", jj, pp)})
                    for x in range(nx):
                        mf(pp, q, jj, x, first=(jj == 0 and x == 0))
                k += 1
                if k == 1 and jj + 3 < 16:
                    rdB(jj + 3)
                if jj % 2 == 0 and jj >= 2 and q == min(q0 + 1, 7):
                    if jj == 14:
                        E("s_nop 3")
                    writeout(q0 - 1)
        E("s_nop 7")
        writeout(7)
    conv(2)
    STAMP(6)
    E("s_branch K_fin")
    L("K_convB")
    waitf(4, 4, 8, 24)
    E(f"buffer_load_dwordx4 v[12:15], v9, s[{SRD_WS}:{SRD_WS+3}], s60 offen sc1")
    E(f"buffer_load_dwordx4 v[24:27], v9, s[{SRD_WS}:{SRD_WS+3}], s60 offen offset:1024 sc1")
    STAMP(5)
    conv(1)
    STAMP(6)
    E("s_mov_b32 s70, 0")
    L("K_gpoll")
    E("s_waitcnt vmcnt(0)")
    E("v_xor_b32 v14, s56, v14")
    E("v_xor_b32 v15, s57, v15")
    E("v_xor_b32 v26, s56, v26")
    E("v_xor_b32 v27, s57, v27")
    E("v_or_b32 v14, v14, v15")
    E("v_or_b32 v26, v26, v27")
    E("v_or_b32 v14, v14, v26")
    E("v_cmp_ne_u32 vcc, 0, v14")
    E("s_add_u32 s70, s70, 1")
    E("s_cmp_eq_u64 vcc, 0")
    E("s_cbranch_scc1 K_gok")
    E("s_cmp_ge_u32 s70, 0x40000")
    E("s_cbranch_scc1 K_gok")
    E("s_sleep 8")
    E(f"buffer_load_dwordx4 v[12:15], v9, s[{SRD_WS}:{SRD_WS+3}], s60 offen sc1")
    E(f"buffer_load_dwordx4 v[24:27], v9, s[{SRD_WS}:{SRD_WS+3}], s60 offen offset:1024 sc1")
    E("s_branch K_gpoll")
    L("K_gok")
    for (src, dst) in [(12, 32), (24, 36)]:
        for hh in range(2):
            E(f"v_lshlrev_b32 v{dst+2*hh}, 16, v{src+hh}")
            E(f"v_and_b32 v{dst+2*hh+1}, s43, v{src+hh}")
        for e in range(4):
            E(f"v_sub_f32 v40, 1.0, v{dst+e}")
            E(f"v_cvt_pk_bf16_f32 v{dst+e}, v{dst+e}, v40")
    E("ds_write_b128 v10, v[32:35]")
    E("ds_write_b128 v10, v[36:39] offset:1024")
    post(6)
    if FINPRIO:
        E(f"s_setprio {FINPRIO}")
    L("K_fin")
    waitf(6, 4, 8, 32)
    L("K_hloop")
    for r in range(48, 52):
        E(f"v_mov_b32 v{r}, 0")
    for k in range(4):
        E(f"ds_read_u16_d16_hi v{48+k}, v21 offset:{ZBASE + 4*k*ZROW + 128}")
    E("ds_read_b32 v8, v7")
    L("K_hpoll")
    E("ds_read_b128 v[32:35], v23")
    E("ds_read_b128 v[36:39], v23 offset:16")
    E("s_waitcnt lgkmcnt(0)")
    for k in range(0, 8, 2):
        E(f"v_and_b32 v{32+k}, v{32+k}, v{33+k}")
    E("v_and_b32 v32, v32, v34")
    E("v_and_b32 v36, v36, v38")
    E("v_and_b32 v32, v32, v36")
    E("s_nop 0")
    E("v_readfirstlane_b32 s70, v32")
    E("s_cmp_eq_u32 s70, 1")
    E("s_cbranch_scc1 K_go")
    E("s_sleep 3")
    E("s_branch K_hpoll")
    L("K_go")
    for k in range(4):
        X, c = k >> 1, k & 1
        base = PSTRIDE if X == 0 else 0
        E(f"ds_read_b32 v{32+k}, v2 offset:{base + 2*c*PMS}")
        E(f"ds_read_b32 v{36+k}, v3 offset:{base + 2*c*PMS}")
        E(f"ds_read_b32 v{40+k}, v11 offset:{base + 2*c*PCS}")
    def rnd(a, b):
        E(f"v_cvt_pk_bf16_f32 v{a}, v{a}, v{b}")
        E(f"v_and_b32 v{b}, s43, v{a}")
        E(f"v_lshlrev_b32 v{a}, 16, v{a}")
    yA0, yA1, yB0, yB1 = 32, 33, 34, 35
    u0, u1, k0, k1 = 48, 49, 50, 51
    t = 52
    E(f"v_mul_f32 v{t}, s76, v{u0}")
    E(f"v_mul_f32 v{t+1}, s77, v{u1}")
    E(f"v_mul_f32 v{t+2}, s78, v{k0}")
    E(f"v_mul_f32 v{t+3}, s79, v{k1}")
    rnd(t, t + 1)
    rnd(t + 2, t + 3)
    E(f"v_lshlrev_b32 v{t+4}, 16, v8")
    E(f"v_and_b32 v{t+5}, s43, v8")
    E("v_add_u32 v2, 1024, v2")
    E("v_add_u32 v3, 1024, v3")
    E("v_add_u32 v11, s75, v11")
    E("v_add_u32 v21, 128, v21")
    E("v_add_u32 v23, 32, v23")
    E("v_add_u32 v7, 1024, v7")
    for k in range(4):
        E(f"s_waitcnt lgkmcnt({9-3*k})")
        E(f"v_add_f32 v{32+k}, v{32+k}, v{36+k}")
        E(f"v_add_f32 v{32+k}, v{32+k}, v{40+k}")
    rnd(yA0, yA1)
    rnd(yB0, yB1)
    E(f"v_add_f32 v{yA0}, v{yA0}, v{t}")
    E(f"v_add_f32 v{yA1}, v{yA1}, v{t+1}")
    E(f"v_add_f32 v{yB0}, v{yB0}, v{t+2}")
    E(f"v_add_f32 v{yB1}, v{yB1}, v{t+3}")
    rnd(yA0, yA1)
    rnd(yB0, yB1)
    E(f"v_mul_f32 v{yB0}, v{u0}, v{yB0}")
    E(f"v_mul_f32 v{yB1}, v{u1}, v{yB1}")
    rnd(yB0, yB1)
    E(f"v_mul_f32 v{yA0}, v{t+4}, v{yA0}")
    E(f"v_mul_f32 v{yA1}, v{t+4}, v{yA1}")
    E(f"v_mul_f32 v{yB0}, v{t+5}, v{yB0}")
    E(f"v_mul_f32 v{yB1}, v{t+5}, v{yB1}")
    rnd(yA0, yA1)
    rnd(yB0, yB1)
    E(f"v_add_f32 v{yA0}, v{yA0}, v{yB0}")
    E(f"v_add_f32 v{yA1}, v{yA1}, v{yB1}")
    E(f"v_cvt_pk_bf16_f32 v{yA0}, v{yA0}, v{yA1}")
    E(f"buffer_store_dword v{yA0}, v22, s[{SRD_OUT}:{SRD_OUT+3}], s72 offen")
    E("v_add_u32 v22, 0x40000, v22")
    E("s_add_u32 s73, s73, 1")
    E("s_cmp_lt_u32 s73, s74")
    E("s_cbranch_scc1 K_hloop")
    STAMP(7)
    if DBG: E("s_waitcnt vmcnt(0)")
    STAMP(8)
    if "--pro" in sys.argv:
        E("s_waitcnt lgkmcnt(0)")
        for i in range(3, 8): E(f"s_mov_b32 s{80+2*i}, s{1+i}")
    DUMP(10, SRD_WS)
    L("K_end")
    E("s_endpgm")
    sg = 102 if DBG else 80
    return f""".amdhsa_kernel {name}
  .amdhsa_next_free_vgpr 256
  .amdhsa_next_free_sgpr {sg}
  .amdhsa_accum_offset 256
  .amdhsa_group_segment_fixed_size 0
  .amdhsa_kernarg_size 152
  .amdhsa_user_sgpr_count 2
  .amdhsa_user_sgpr_kernarg_segment_ptr 1
  .amdhsa_system_sgpr_workgroup_id_x 1
  .amdhsa_float_denorm_mode_32 3
.end_amdhsa_kernel"""

def main():
    hdr = HEADER.rstrip("\n")
    pre = [hdr,
           f"; @launch grid=(256,1,1) block=(512,1,1) lds={LDS_SIZE}",
           '.amdgcn_target "amdgcn-amd-amdhsa--gfx950"',
           ".text"]
    k = gen()
    txt = "\n".join(pre + out) + '\n.section .rodata,"a"\n.p2align 6\n' + k + "\n"
    args = [a for a in sys.argv[1:] if not a.startswith("--")]
    path = args[0] if args else "cdna_kernels/%s.s" % NAME
    open(path, "w").write(txt)

main()
```

```python
import sys

NAME = "gated_mix__ssm_conv_s4__ssm_conv_h3__prompt"
HEADER = open("cdna_kernels/%s.s.ref" % NAME).read().split("; Override launch")[0]
DBG = "--dbg" in sys.argv
def opt(name, default):
    for a in sys.argv:
        if a.startswith("--" + name + "="):
            return int(a.split("=")[1])
    return default
NA = 8
NB = 8 - NA
FINPRIO = opt("finprio", 2)
PSLEEP = opt("psleep", 8)
TOUCH = opt("touch", 0)
LATE = opt("late", 3)
DRY = opt("dry", 0)
KLDS = opt("klds", 1)
TSH = opt("tsh", 16)
ZSC = ["sc1", "sc0 sc1", "sc1 nt"][opt("zsc", 0)]
ALLPOLL = opt("allpoll", 0)
CBPRIO = opt("cbprio", 2)
APRIO = opt("aprio", 2)
POLLSC = ["sc1", "sc0 sc1", "sc1 nt"][opt("pollsc", 1)]

out = []
def E(s=""):
    out.append("    " + s)
def L(s):
    out.append(s + ":")

WS_Z = 0
WS_G = 4 << 20
WS_F = WS_G + 8192
WS_F2 = WS_F + 8192
WS_SIZE = (4 << 20) + 24576
WS_DBG = 16 << 20
if DBG:
    WS_SIZE = 32 << 20

ZROW = 1152
ZBASE = 0
XBASE = 16 * ZROW
XROW = 4128
GB = XBASE + 6 * XROW
FLG = GB + 8192
SYN = FLG + 256
PMS = 8192 + 16
PCS = 2048 + 16
PB = SYN + 288
PA = PB + 4 * PMS + 4 * PCS
PSTRIDE = PA - PB
S_KT = PA
S_P = S_KT + 24576
S_K = S_P + 8192
S_TR = S_K + 9216
LDS_SIZE = S_TR + 8 * 3072
assert LDS_SIZE <= 163840 and PA + PSTRIDE <= LDS_SIZE
def PMa(X, w4):
    return (PA if X == 0 else PB) + w4 * PMS
def PCa(X, w4):
    return (PA if X == 0 else PB) + 4 * PMS + w4 * PCS

TD = "--tiledbg" in sys.argv
RD = "--reddbg" in sys.argv
def RSTAMP(i):
    if DBG and RD:
        E(f"s_memtime s[{80+2*i}:{81+2*i}]")
def TSTAMP(i):
    if DBG and TD:
        E(f"s_memtime s[{80+2*i}:{81+2*i}]")
def STAMP(i):
    if TD and i in (3, 4, 5, 6, 7): return
    if RD and i in (1, 2, 4, 6, 7, 8, 9): return
    if DBG:
        E(f"s_memtime s[{80+2*i}:{81+2*i}]")
def DUMP(n, srdreg):
    if DBG:
        E("s_waitcnt lgkmcnt(0)")
        E("s_mov_b64 exec, 1")
        E("s_lshl_b32 s100, s2, 4")
        E("s_add_u32 s100, s100, s3")
        E("s_lshl_b32 s100, s100, 6")
        E(f"s_add_u32 s100, s100, {WS_DBG}")
        for i in range(n):
            E(f"v_mov_b32 v2, s{80+2*i}")
            E(f"v_mov_b32 v3, {4*i}")
            E(f"buffer_store_dword v2, v3, s[{srdreg}:{srdreg+3}], s100 offen")
            E("s_nop 1")

def srd(sd, sp, nbytes):
    E(f"s_mov_b32 s{sd}, s{sp}")
    E(f"s_and_b32 s{sd+1}, s{sp+1}, 0xffff")
    E(f"s_mov_b32 s{sd+2}, {hex(nbytes)}")
    E(f"s_mov_b32 s{sd+3}, 0x00020000")
def R4(r):
    return f"v[{r}:{r+3}]"
SRD_WS, SRD_OUT, SRD_DBGB, SRD_A, SRD_B = 44, 48, 52, 56, 60

lblc = [0]
def post(kind):
    E(f"ds_write_b32 v28, v29 offset:{32*kind}")
def waitf(kind, lo, hi, t0=24):
    lblc[0] += 1
    n = lblc[0]
    if DRY > 1:
        E("s_cmp_lg_u32 s5, 0")
        E(f"s_cbranch_scc1 W{n}_d")
    L(f"W{n}_p")
    if hi - lo == 4:
        E(f"ds_read_b128 v[{t0}:{t0+3}], v30 offset:{32*kind + 4*lo}")
        E("s_waitcnt lgkmcnt(0)")
        E(f"v_and_b32 v{t0}, v{t0}, v{t0+1}")
        E(f"v_and_b32 v{t0+2}, v{t0+2}, v{t0+3}")
        E(f"v_and_b32 v{t0}, v{t0}, v{t0+2}")
    else:
        E(f"ds_read_b128 v[{t0}:{t0+3}], v30 offset:{32*kind}")
        E(f"ds_read_b128 v[{t0+4}:{t0+7}], v30 offset:{32*kind + 16}")
        E("s_waitcnt lgkmcnt(0)")
        for k in range(0, 8, 2):
            E(f"v_and_b32 v{t0+k}, v{t0+k}, v{t0+k+1}")
        E(f"v_and_b32 v{t0}, v{t0}, v{t0+2}")
        E(f"v_and_b32 v{t0+4}, v{t0+4}, v{t0+6}")
        E(f"v_and_b32 v{t0}, v{t0}, v{t0+4}")
    E("s_nop 0")
    E(f"v_readfirstlane_b32 s4, v{t0}")
    E("s_cmp_eq_u32 s4, 1")
    E(f"s_cbranch_scc1 W{n}_d")
    E("s_sleep 1")
    E(f"s_branch W{n}_p")
    L(f"W{n}_d")

def preloadA(nx):
    for n in range(16):
        for x in range(nx):
            a = 64 + 4 * (n * nx + x)
            off = 256 * n + x * 2 * XROW
            E(f"ds_read_b64_tr_b16 v[{a}:{a+1}], v17 offset:{off+32}")
            E(f"ds_read_b64_tr_b16 v[{a+2}:{a+3}], v17 offset:{off}")

def finsetup(q0):
    E(f"s_mov_b32 s73, {q0}")
    E("v_subrev_u32 v24, 16, v1")
    E("v_add_u32 v25, 47, v1")
    E("v_cmp_eq_u32 vcc, 0, v1")
    E("s_nop 1")
    E("v_cndmask_b32 v25, v25, -1, vcc")
    E("v_cmp_gt_u32 vcc, 16, v1")
    E("s_lshl_b32 s74, s73, 6")
    E("s_nop 0")
    E("v_cndmask_b32 v24, v24, v25, vcc")
    E("v_add_u32 v24, s74, v24")
    E("v_add_u32 v26, s74, v1")
    E("v_add_u32 v6, s74, v6")
    E("s_lshl_b32 s70, s67, 2")
    E(f"s_add_u32 s70, s70, {PB + 16}")
    E("v_lshl_add_u32 v2, v26, 4, s70")
    E("s_add_u32 s70, s67, 2")
    E("s_and_b32 s70, s70, 3")
    E("s_lshl_b32 s70, s70, 2")
    E(f"s_add_u32 s70, s70, {PB + 16 + PMS}")
    E("s_cmp_lt_u32 s67, 2")
    E("s_cselect_b64 vcc, -1, 0")
    E("v_cndmask_b32 v25, v26, v24, vcc")
    E("v_lshl_add_u32 v3, v25, 4, s70")
    E("s_lshr_b32 s70, s67, 1")
    E(f"s_mul_i32 s70, s70, {PCS}")
    E(f"s_add_u32 s70, s70, {PB + 4*PMS + 16}")
    E("v_lshl_add_u32 v11, v24, 2, s70")
    E("s_and_b32 s70, s67, 1")
    E("s_cmp_eq_u32 s70, 0")
    E("s_cselect_b64 vcc, -1, 0")
    E("s_cselect_b32 s75, 256, 0")
    E(f"v_mov_b32 v25, {PB + 4*PMS}")
    E("v_cndmask_b32 v11, v25, v11, vcc")
    E(f"s_mul_i32 s70, s67, {ZROW}")
    E("v_lshl_add_u32 v21, v6, 1, s70")
    E("s_lshl_b32 s70, s67, 10")
    E("v_lshl_add_u32 v22, v6, 12, s70")
    E("s_lshl_b32 s70, s67, 2")
    E(f"s_add_u32 s70, s70, {GB}")
    E("v_lshl_add_u32 v7, v6, 4, s70")
    E("s_lshl_b32 s70, s73, 5")
    E(f"s_add_u32 s70, s70, {FLG}")
    E("v_mov_b32 v23, s70")
    E("s_lshl_b32 s72, s64, 2")
    E("s_lshl_b32 s76, s23, 16")
    E("s_and_b32 s77, s23, s43")
    E("s_lshl_b32 s78, s42, 16")
    E("s_and_b32 s79, s42, s43")
    E("s_sub_u32 s74, 8, s68")

def zaddr(arr, vl, vg):
    E(f"v_and_b32 v{vl}, 1, v1")
    E("v_bfe_u32 v225, v1, 2, 2")
    E(f"v_lshl_add_u32 v{vl}, v{vl}, 2, v225")
    E(f"v_mul_u32_u24 v{vl}, {ZROW}, v{vl}")
    E("v_bfe_u32 v225, v1, 1, 1")
    E(f"v_lshl_add_u32 v{vl}, v225, 4, v{vl}")
    E("v_lshrrev_b32 v225, 4, v1")
    E(f"v_lshl_add_u32 v{vl}, v225, 5, v{vl}")
    E("s_lshl_b32 s74, s67, 8")
    E(f"s_add_u32 s74, s74, {ZBASE + 128 + arr*8*ZROW}")
    E(f"v_add_u32 v{vl}, s74, v{vl}")
    E(f"v_lshrrev_b32 v{vg}, 1, v1")
    E(f"v_lshlrev_b32 v{vg}, 7, v{vg}")
    E("v_and_b32 v225, 1, v1")
    E(f"v_lshl_add_u32 v{vg}, v225, 4, v{vg}")
    E("s_lshr_b32 s6, s64, 2")
    E("s_lshl_b32 s6, s6, 15")
    E("s_lshl_b32 s74, s67, 13")
    E("s_add_u32 s6, s6, s74")
    E("s_and_b32 s74, s64, 3")
    E("s_lshl_b32 s74, s74, 5")
    E("s_add_u32 s6, s6, s74")
    if arr: E("s_add_u32 s6, s6, 0x200000")
    E("s_add_u32 s13, s6, 4096")

def gen():
    name = NAME + "_kernel"
    out.append(f".globl {name}\n.p2align 8\n.type {name},@function")
    L(name)
    E("s_cmp_ge_u32 s2, 256")
    E("s_cbranch_scc1 K_end")
    STAMP(0)
    E("s_setprio 3")
    E("s_load_dwordx16 s[4:19], s[0:1], 0")
    E("s_load_dwordx2 s[20:21], s[0:1], 64")
    E("s_load_dwordx8 s[24:31], s[0:1], 80")
    E("s_load_dwordx8 s[32:39], s[0:1], 112")
    E("s_load_dwordx2 s[40:41], s[0:1], 144")
    E("v_lshrrev_b32 v1, 6, v0")
    E("s_nop 0")
    E("v_readfirstlane_b32 s3, v1")
    E("v_and_b32 v1, 63, v0")
    E("s_and_b32 s64, s2, 7")
    E("s_lshl_b32 s65, s64, 2")
    E("s_lshl_b32 s64, s64, 5")
    E("s_lshr_b32 s66, s2, 3")
    E("s_add_u32 s64, s64, s66")
    E("s_and_b32 s66, s66, 3")
    E("s_add_u32 s65, s65, s66")
    E("s_lshr_b32 s66, s2, 5")
    E("s_and_b32 s67, s3, 3")
    E("s_lshr_b32 s68, s3, 2")
    E("s_bfe_u32 s69, s3, 0x10001")
    E("v_mov_b32 v12, 0")
    E("v_mov_b32 v13, 0")
    E("v_mov_b32 v14, 0")
    E("v_mov_b32 v15, 0")
    E("v_and_b32 v2, 31, v1")
    E("v_lshlrev_b32 v2, 4, v2")
    E(f"ds_write_b128 v2, v[12:15] offset:{FLG}")
    E(f"ds_write_b128 v2, v[12:15] offset:{FLG + 32}")
    E("s_lshl_b32 s70, s3, 2")
    E(f"s_add_u32 s70, s70, {SYN}")
    E("v_mov_b32 v28, s70")
    E("v_mov_b32 v29, 1")
    E("v_mov_b32 v95, 0")
    E(f"v_mov_b32 v30, {SYN}")
    E("s_lshl_b32 s70, s65, 6")
    E("s_add_u32 s70, s70, s67")
    E("s_lshl_b32 s70, s70, 10")
    E("s_lshl_b32 s71, s66, 7")
    E("s_add_u32 s70, s70, s71")
    E("v_lshrrev_b32 v2, 3, v1")
    E("v_and_b32 v3, 7, v1")
    E("v_lshlrev_b32 v4, 12, v2")
    E("v_lshl_add_u32 v4, v3, 4, v4")
    E("v_add_u32 v4, s70, v4")
    E("v_subrev_u32 v5, 1024, v4")
    E("v_subrev_u32 v6, 2048, v4")
    E("v_subrev_u32 v7, 3072, v4")
    E("s_lshl_b32 s71, s66, 9")
    E("v_lshl_add_u32 v8, v3, 6, s71")
    E("s_lshl_b32 s72, s65, 6")
    E("s_lshl_b32 s71, s66, 3")
    E("s_add_u32 s72, s72, s71")
    E("s_lshl_b32 s71, s67, 1")
    E("s_add_u32 s72, s72, s71")
    E("s_lshl_b32 s73, s72, 10")
    E("v_lshlrev_b32 v9, 4, v1")
    E("s_and_b32 s74, s3, 1")
    E(f"s_mul_i32 s75, s74, {8*NA}")
    E(f"s_mul_i32 s76, s74, {8*NB}")
    E(f"s_add_u32 s76, s76, {16*NA}")
    E("s_cmp_eq_u32 s68, 0")
    E("s_cselect_b32 s75, s75, s76")
    E("s_lshl_b32 s70, s64, 1")
    E("s_add_u32 s70, s70, s69")
    E("s_lshl_b32 s70, s70, 7")
    E("s_add_u32 s70, s70, s75")
    E("s_lshl_b32 s70, s70, 1")
    E("v_lshl_add_u32 v11, v1, 1, s70")
    if "--pro" in sys.argv: STAMP(3)
    E("s_waitcnt lgkmcnt(0)")
    if "--pro" in sys.argv: STAMP(4)
    E("s_add_u32 s70, s2, s3")
    E("s_cmp_lg_u32 s70, 0")
    E("s_cbranch_scc1 K_nononce")
    E("s_memrealtime s[70:71]")
    srd(SRD_DBGB, 38, 256)
    E("s_waitcnt lgkmcnt(0)")
    E("s_or_b32 s70, s70, 1")
    E("v_mov_b32 v100, s70")
    E("v_mov_b32 v101, s71")
    E("s_mov_b64 exec, 1")
    E(f"buffer_store_dwordx2 v[100:101], v95, s[{SRD_DBGB}:{SRD_DBGB+3}], 0 offen sc1")
    E("s_mov_b64 exec, -1")
    L("K_nononce")
    E("s_barrier")
    E("s_cmp_eq_u32 s68, 0")
    E("s_cbranch_scc1 K_noTL")
    srd(SRD_OUT, 4, 2 << 20)
    E("s_mov_b32 s70, 0x8000")
    E(f"buffer_load_dwordx4 v[32:35], v4, s[{SRD_OUT}:{SRD_OUT+3}], 0 offen")
    E(f"buffer_load_dwordx4 v[148:151], v4, s[{SRD_OUT}:{SRD_OUT+3}], s70 offen")
    srd(SRD_A, 24, 2 << 20)
    srd(SRD_B, 26, 2 << 20)
    E("v_lshlrev_b32 v5, 10, v2")
    E("v_lshl_add_u32 v5, v3, 4, v5")
    E("s_lshl_b32 s71, s65, 6")
    E("s_lshl_b32 s74, s67, 3")
    E("s_add_u32 s71, s71, s74")
    E("s_sub_u32 s71, s71, 8")
    E("s_lshl_b32 s71, s71, 10")
    E("s_lshl_b32 s74, s66, 7")
    E("s_add_u32 s71, s71, s74")
    E("v_add_u32 v5, s71, v5")
    E("v_add_u32 v6, s70, v5")
    E("v_add_u32 v7, s70, v6")
    E("s_lshl_b32 s74, s67, 10")
    E(f"s_add_u32 s74, s74, {S_K}")
    E("s_mov_b32 m0, s74")
    E("s_add_u32 s74, s74, 4096")
    E(f"buffer_load_dwordx4 v5, s[{SRD_A}:{SRD_A+3}], 0 offen lds")
    E("s_mov_b32 m0, s74")
    E("s_add_u32 s74, s74, 4096")
    E(f"buffer_load_dwordx4 v6, s[{SRD_A}:{SRD_A+3}], 0 offen lds")
    E("s_cmp_lg_u32 s67, 0")
    E("s_cbranch_scc1 K_nok3")
    E("s_mov_b32 m0, s74")
    E("s_nop 0")
    E(f"buffer_load_dwordx4 v7, s[{SRD_A}:{SRD_A+3}], 0 offen lds")
    L("K_nok3")
    E(f"buffer_load_dwordx4 v[96:99], v4, s[{SRD_B}:{SRD_B+3}], 0 offen")
    srd(SRD_WS, 28, 4096)
    for i in range(4):
        E(f"buffer_load_dwordx4 v[{40+4*i}:{43+4*i}], v8, s[{SRD_WS}:{SRD_WS+3}], 0 offen offset:{16*i}")
    E(f"buffer_load_dwordx4 v[144:147], v4, s[{SRD_B}:{SRD_B+3}], s70 offen")
    E(f"buffer_load_dwordx4 v[56:59], v9, s[{SRD_OUT}:{SRD_OUT+3}], s73 offen")
    E(f"buffer_load_dwordx4 v[152:155], v9, s[{SRD_OUT}:{SRD_OUT+3}], s73 offen offset:1024")
    srd(SRD_A, 34, 1024)
    E(f"buffer_load_dwordx4 v[60:63], v9, s[{SRD_A}:{SRD_A+3}], 0 offen")
    E("s_branch K_noPL")
    L("K_noTL")
    for i, sp in enumerate([6, 8, 10, 12, 14, 16]):
        sd = SRD_A if i % 2 == 0 else SRD_B
        srd(sd, sp, 131072)
        E(f"buffer_load_ushort v{84+i}, v11, s[{sd}:{sd+3}], 0 offen")
    if TOUCH:
        E(f"v_lshlrev_b32 v200, {TSH}, v1")
        E("s_cmp_eq_u32 s3, 0")
        E("s_cbranch_scc0 K_tc1")
        srd(SRD_A, 40, WS_SIZE)
        E(f"buffer_load_dword v201, v200, s[{SRD_A}:{SRD_A+3}], 0 offen")
        E(f"s_mov_b32 s70, {WS_G}")
        E(f"buffer_load_dword v202, v95, s[{SRD_A}:{SRD_A+3}], s70 offen")
        E("s_branch K_tc4")
        L("K_tc1")
        E("s_cmp_eq_u32 s3, 1")
        E("s_cbranch_scc0 K_tc2")
        srd(SRD_A, 36, 2 << 20)
        E(f"buffer_load_dword v201, v200, s[{SRD_A}:{SRD_A+3}], 0 offen")
        srd(SRD_B, 38, 256)
        E(f"buffer_load_dword v202, v95, s[{SRD_B}:{SRD_B+3}], 0 offen")
        E("s_branch K_tc4")
        L("K_tc2")
        E("s_cmp_eq_u32 s3, 2")
        E("s_cbranch_scc0 K_tc3")
        srd(SRD_A, 4, 2 << 20)
        E(f"buffer_load_dword v201, v200, s[{SRD_A}:{SRD_A+3}], 0 offen")
        srd(SRD_B, 24, 2 << 20)
        E(f"buffer_load_dword v202, v200, s[{SRD_B}:{SRD_B+3}], 0 offen")
        E("s_branch K_tc4")
        L("K_tc3")
        srd(SRD_A, 26, 2 << 20)
        E(f"buffer_load_dword v201, v200, s[{SRD_A}:{SRD_A+3}], 0 offen")
        srd(SRD_B, 34, 1024)
        E(f"buffer_load_dword v202, v95, s[{SRD_B}:{SRD_B+3}], 0 offen")
        L("K_tc4")
    L("K_noPL")
    srd(SRD_A, 30, 2 << 20)
    E("s_lshl_b32 s74, s64, 2")
    if "--pro" in sys.argv: STAMP(6)
    E("s_load_dword s22, s[18:19], s74")
    E("s_load_dword s23, s[20:21], s74")
    E("s_load_dword s42, s[32:33], s74")
    srd(SRD_WS, 40, WS_SIZE)
    srd(SRD_OUT, 36, 2 << 20)
    srd(SRD_DBGB, 38, 256)
    E("s_mov_b32 s43, 0xffff0000")
    E("s_mov_b32 s5, 0")
    E("s_and_b32 s61, s3, 1")
    if "--pro" in sys.argv:
        STAMP(7)
        E("s_waitcnt lgkmcnt(0)")
        for i in range(3, 8): E(f"s_mov_b32 s{1+i}, s{80+2*i}")
    E("s_cmp_eq_u32 s68, 0")
    E("s_cbranch_scc1 K_kgen")
    E("s_mul_i32 s70, s3, 3072")
    E(f"s_add_u32 s70, s70, {S_TR}")
    E("v_mul_u32_u24 v64, 144, v2")
    E("v_lshl_add_u32 v64, v3, 4, v64")
    E("v_add_u32 v64, s70, v64")
    E("v_lshrrev_b32 v66, 4, v1")
    E("v_bfe_u32 v68, v1, 2, 2")
    E("v_and_b32 v69, 3, v1")
    E("v_mul_u32_u24 v65, 144, v68")
    E("v_lshl_add_u32 v65, v66, 5, v65")
    E("v_lshl_add_u32 v65, v69, 3, v65")
    E("v_add_u32 v65, s70, v65")
    E("v_lshrrev_b32 v69, 3, v1")
    E("v_lshlrev_b32 v69, 15, v69")
    E("v_and_b32 v68, 7, v1")
    E("v_lshl_add_u32 v69, v68, 4, v69")
    E("s_lshl_b32 s70, s66, 18")
    E("s_lshl_b32 s71, s65, 10")
    E("s_add_u32 s70, s70, s71")
    E("s_lshl_b32 s71, s67, 8")
    E("s_add_u32 s70, s70, s71")
    E("s_add_u32 s71, s70, 0x200000")
    E("s_mov_b32 s62, 0")
    E("s_mov_b32 s76, 0x00003f80")
    E("s_mov_b32 s77, 0x3f800000")
    E("s_mov_b32 s78, 0x0000ffff")
    E("s_mov_b32 s79, 0x3f803f80")
    if DRY:
        E("s_mov_b32 s5, 1")
        E("s_mov_b64 exec, 0")
        E("s_branch K_tmask")
        L("K_breal")
        E("s_mov_b32 s5, 0")
        E("s_mov_b64 exec, -1")
        E("s_mov_b32 s62, 0")
    zaddr(1, 224, 233)
    E("s_lshl_b32 s74, s67, 11")
    E(f"v_add_u32 v10, {GB}, v9")
    E("v_add_u32 v10, s74, v10")
    E(f"s_add_u32 s60, s74, {WS_G}")
    E("v_and_b32 v226, 31, v1")
    E("v_lshlrev_b32 v226, 5, v226")
    E("s_and_b32 s7, s2, 7")
    E("s_lshl_b32 s7, s7, 10")
    E(f"s_add_u32 s7, s7, {WS_F}")
    E("v_and_b32 v227, 1, v1")
    E("v_lshlrev_b32 v225, 3, v227")
    E("v_lshlrev_b32 v227, 4, v227")
    E("s_lshl_b32 s8, s65, 3")
    E("s_add_u32 s8, s8, s66")
    E("s_lshl_b32 s8, s8, 5")
    E(f"s_add_u32 s8, s8, {WS_G}")
    E("s_lshl_b32 s9, s66, 5")
    E("s_add_u32 s9, s9, s65")
    E("s_lshl_b32 s9, s9, 5")
    E(f"s_add_u32 s9, s9, {WS_F}")
    E("v_mov_b32 v100, 0")
    E("v_mov_b32 v101, 0")
    E("v_mov_b32 v102, 0")
    E("v_mov_b32 v103, 0")
    E("v_bfe_u32 v104, v1, 3, 2")
    E(f"v_mul_u32_u24 v104, {ZROW}, v104")
    E("v_and_b32 v105, 7, v1")
    E("v_lshl_add_u32 v104, v105, 4, v104")
    E(f"s_mul_i32 s74, s67, {4*ZROW}")
    E("v_add_u32 v104, s74, v104")
    E("ds_write_b128 v104, v[100:103]")
    E("v_min_u32 v104, 11, v1")
    E("v_lshrrev_b32 v105, 1, v104")
    E(f"v_mul_u32_u24 v105, {XROW}, v105")
    E("v_and_b32 v104, 1, v104")
    E("v_lshl_add_u32 v104, v104, 4, v105")
    E(f"ds_write_b128 v104, v[100:103] offset:{XBASE}")
    E(f"s_mul_i32 s74, s67, {PMS}")
    E(f"s_add_u32 s74, s74, {PB}")
    E("v_mov_b32 v104, s74")
    E("ds_write_b128 v104, v[100:103]")
    E("s_add_u32 s74, s74, 16")
    E("v_lshl_add_u32 v230, v1, 4, s74")
    E(f"s_mul_i32 s74, s67, {PCS}")
    E(f"s_add_u32 s74, s74, {PB + 4*PMS}")
    E("v_mov_b32 v105, s74")
    E("ds_write_b128 v105, v[100:103]")
    E("s_add_u32 s74, s74, 16")
    E("v_lshl_add_u32 v231, v1, 2, s74")
    E("v_and_b32 v4, 15, v1")
    E("v_lshrrev_b32 v5, 4, v1")
    E("v_lshlrev_b32 v6, 2, v4")
    E("v_add_u32 v6, v6, v5")
    E("s_lshl_b32 s74, s3, 1")
    E(f"s_mul_i32 s74, s74, {ZROW}")
    E(f"s_add_u32 s74, s74, {ZBASE + 8}")
    E("v_lshlrev_b32 v228, 3, v4")
    E("v_lshl_add_u32 v228, v5, 4, v228")
    E("v_add_u32 v228, s74, v228")
    E("v_and_b32 v104, 3, v1")
    E("v_bfe_u32 v105, v1, 2, 2")
    E("v_sub_u32 v104, v104, v105")
    E("v_lshlrev_b32 v104, 3, v104")
    E("v_lshlrev_b32 v105, 6, v5")
    E("v_sub_u32 v104, v104, v105")
    E("s_add_u32 s74, s69, 4")
    E(f"s_mul_i32 s74, s74, {XROW}")
    E(f"s_add_u32 s74, s74, {XBASE + 224}")
    E("v_add_u32 v229, s74, v104")
    E("s_lshl_b32 s74, s3, 2")
    E(f"s_add_u32 s74, s74, {FLG}")
    E("v_mov_b32 v232, s74")
    E("v_lshlrev_b32 v70, 9, v2")
    E("v_lshl_add_u32 v70, v3, 4, v70")
    E("s_lshl_b32 s74, s67, 7")
    E(f"s_add_u32 s74, s74, {S_K + 1024 - 384}")
    E("v_add_u32 v70, s74, v70")
    E("s_waitcnt vmcnt(11)")
    E("ds_write_b128 v64, v[32:35]")
    E("ds_write_b128 v64, v[148:151] offset:1152")
    E("s_waitcnt lgkmcnt(0)")
    E("ds_read_b64_tr_b16 v[76:77], v65")
    E("ds_read_b64_tr_b16 v[78:79], v65 offset:576")
    E("ds_read_b64_tr_b16 v[80:81], v65 offset:1152")
    E("ds_read_b64_tr_b16 v[82:83], v65 offset:1728")
    E("s_waitcnt lgkmcnt(2)")
    E(f"buffer_store_dwordx4 v[76:79], v69, s[{SRD_WS}:{SRD_WS+3}], s70 offen sc1")
    E("s_waitcnt lgkmcnt(0)")
    E(f"buffer_store_dwordx4 v[80:83], v69, s[{SRD_WS}:{SRD_WS+3}], s70 offen offset:128 sc1")
    E("s_waitcnt vmcnt(11)")
    post(7)
    E("s_waitcnt vmcnt(6)")
    STAMP(1)
    L("K_tmask")
    for t in range(4):
        for i in range(4):
            r0 = 40 + 4 * i + (t >> 1)
            r1 = 40 + 4 * i + 2 + (t >> 1)
            d = 160 + (t * 4 + i) * 2
            if t & 1:
                E(f"v_lshrrev_b32 v{d}, 16, v{r0}")
                E(f"v_and_b32 v{d+1}, s43, v{r1}")
            else:
                E(f"v_and_b32 v{d}, s78, v{r0}")
                E(f"v_lshlrev_b32 v{d+1}, 16, v{r1}")
    waitf(7, 4, 8, 72)
    TSTAMP(3)
    L("K_tloop")
    for t in range(4):
        E(f"ds_read_b128 {R4(12+4*t)}, v70 offset:{384 - 128*t}")
    E("v_add_u32 v70, 4096, v70")
    E("s_waitcnt lgkmcnt(0)")
    for t in range(4):
        for i in range(4):
            kr = 12 + 4 * t + i
            d = 160 + (t * 4 + i) * 2
            E(f"v_dot2_f32_bf16 v{208+2*i}, v{kr}, v{d}, 0")
            E(f"v_dot2_f32_bf16 v{209+2*i}, v{kr}, v{d+1}, 0")
        E("s_nop 0")
        for i in range(4):
            E(f"v_cvt_pk_bf16_f32 v{192+4*t+i}, v{208+2*i}, v{209+2*i}")
    cur = 192 + 12
    for t in (2, 1, 0):
        for i in range(4):
            E(f"v_lshlrev_b32 v{208+2*i}, 16, v{cur+i}")
            E(f"v_and_b32 v{209+2*i}, s43, v{cur+i}")
        for i in range(4):
            E(f"v_dot2_f32_bf16 v{208+2*i}, v{192+4*t+i}, s76, v{208+2*i}")
            E(f"v_dot2_f32_bf16 v{209+2*i}, v{192+4*t+i}, s77, v{209+2*i}")
        E("s_nop 0")
        for i in range(4):
            E(f"v_cvt_pk_bf16_f32 v{cur+i}, v{208+2*i}, v{209+2*i}")
    for i in range(4):
        E(f"v_and_b32 v{216+2*i}, s78, v{96+i}")
        E(f"v_and_b32 v{217+2*i}, s43, v{96+i}")
    for i in range(4):
        E(f"v_dot2_f32_bf16 v{208+2*i}, v{cur+i}, v{216+2*i}, 0")
        E(f"v_dot2_f32_bf16 v{209+2*i}, v{cur+i}, v{217+2*i}, 0")
    E("s_nop 0")
    for i in range(4):
        E(f"v_cvt_pk_bf16_f32 v{36+i}, v{208+2*i}, v{209+2*i}")
    if DRY:
        E("s_cmp_lg_u32 s5, 0")
        E("s_cbranch_scc1 K_gmask")
    E("ds_write_b128 v64, v[36:39]")
    E("s_waitcnt lgkmcnt(0)")
    E("ds_read_b64_tr_b16 v[76:77], v65")
    E("ds_read_b64_tr_b16 v[78:79], v65 offset:576")
    E("s_waitcnt lgkmcnt(0)")
    E(f"buffer_store_dwordx4 v[76:79], v69, s[{SRD_WS}:{SRD_WS+3}], s71 offen sc1")
    E("s_cmp_eq_u32 s62, 1")
    E("s_cbranch_scc1 K_tdone")
    E("s_mov_b32 s62, 1")
    E("s_add_u32 s71, s71, 128")
    E("s_waitcnt vmcnt(6)")
    for i in range(4):
        E(f"v_mov_b32 v{96+i}, v{144+i}")
    E("s_branch K_tloop")
    L("K_tdone")
    STAMP(2)
    E("s_waitcnt vmcnt(2)")
    post(2)
    L("K_nwait")
    E(f"ds_read_b64 v[92:93], v30 offset:272")
    E("s_waitcnt lgkmcnt(0)")
    E("v_readfirstlane_b32 s56, v92")
    E("v_readfirstlane_b32 s57, v93")
    E("s_cmp_lg_u32 s56, 0")
    E("s_cbranch_scc1 K_nok")
    E("s_sleep 1")
    E("s_branch K_nwait")
    L("K_nok")
    E("s_cmp_lg_u32 s3, 6")
    E("s_cbranch_scc1 K_nopubU")
    waitf(2, 4, 8, 144)
    E("s_add_u32 s70, s9, 8192")
    E("s_mov_b64 exec, 1")
    E(f"buffer_store_dwordx2 v[92:93], v227, s[{SRD_WS}:{SRD_WS+3}], s70 offen sc1")
    E("s_mov_b64 exec, -1")
    L("K_nopubU")
    E("s_mov_b32 s62, 0")
    L("K_gmask")
    for i in range(4):
        E(f"v_and_b32 v{216+2*i}, s78, v{60+i}")
        E(f"v_and_b32 v{217+2*i}, s43, v{60+i}")
    L("K_gloop")
    for i in range(4):
        E(f"v_dot2_f32_bf16 v{208+2*i}, v{56+i}, v{216+2*i}, 0")
        E(f"v_dot2_f32_bf16 v{209+2*i}, v{56+i}, v{217+2*i}, 0")
    E("s_nop 0")
    for i in range(4):
        E(f"v_cvt_pk_bf16_f32 v{192+i}, v{208+2*i}, v{209+2*i}")
    for i in range(4):
        E(f"v_dot2_f32_bf16 v{208+i}, v{192+i}, s79, 0")
    E("s_nop 2")
    E("v_add_f32 v208, v208, v209")
    E("v_add_f32 v210, v210, v211")
    E("v_add_f32 v74, v208, v210")
    for dpp in ["row_shr:1", "row_shr:2", "row_shr:4", "row_shr:8"]:
        E("s_nop 1")
        E(f"v_add_f32_dpp v74, v74, v74 {dpp} row_mask:0xf bank_mask:0xf bound_ctrl:0")
    E("s_nop 1")
    E("v_add_f32_dpp v74, v74, v74 row_bcast:15 row_mask:0xa bank_mask:0xf")
    E("s_nop 1")
    E("v_add_f32_dpp v74, v74, v74 row_bcast:31 row_mask:0xc bank_mask:0xf")
    E("s_nop 1")
    E("v_cvt_pk_bf16_f32 v74, v74, v74")
    E("v_lshlrev_b32 v74, 16, v74")
    E("v_mul_f32 v74, 0xbfb8aa3b, v74")
    E("v_exp_f32 v74, v74")
    E("s_nop 0")
    E("v_add_f32 v74, 1.0, v74")
    E("v_rcp_f32 v74, v74")
    E("s_nop 0")
    E("v_cvt_pk_bf16_f32 v74, v74, v74")
    E("s_lshl_b32 s72, s67, 1")
    E("s_add_u32 s72, s72, s62")
    E("s_lshl_b32 s72, s72, 1")
    E(f"s_add_u32 s72, s72, {SYN + 256}")
    E("v_mov_b32 v75, s72")
    if DRY:
        E("s_cmp_lg_u32 s5, 0")
        E("s_cbranch_scc1 K_breal")
    E("v_cmp_eq_u32 vcc, 63, v1")
    E("s_and_saveexec_b64 s[74:75], vcc")
    E("ds_write_b16 v75, v74")
    E("s_mov_b64 exec, s[74:75]")
    E("s_cmp_eq_u32 s62, 1")
    E("s_cbranch_scc1 K_bwave")
    E("s_mov_b32 s62, 1")
    for i in range(4):
        E(f"v_mov_b32 v{56+i}, v{152+i}")
    E("s_branch K_gloop")
    L("K_kgen")
    E(f"s_setprio {APRIO}")
    STAMP(2)
    E("v_and_b32 v20, 15, v1")
    E("v_lshrrev_b32 v21, 4, v1")
    E("s_mov_b32 s74, 0x00040000")
    E("s_mov_b32 s75, 0x02000100")
    E("s_mov_b32 s76, 0x00010001")
    E("s_mov_b32 s77, 0x00040002")
    E("s_mov_b32 s78, 0x00020002")
    E("s_mov_b32 s79, 0x01000004")
    E("v_lshrrev_b32 v22, 2, v20")
    E("v_lshlrev_b32 v22, 4, v22")
    E("v_lshrrev_b64 v[32:33], v22, s[74:75]")
    E("v_and_b32 v32, 0xffff, v32")
    E("v_lshrrev_b64 v[34:35], v22, s[76:77]")
    E("v_and_b32 v34, 0xffff, v34")
    E("v_and_b32 v23, 1, v20")
    E("v_mad_u32_u24 v32, v23, v34, v32")
    E("v_lshrrev_b64 v[34:35], v22, s[78:79]")
    E("v_and_b32 v34, 0xffff, v34")
    E("v_bfe_u32 v23, v20, 1, 1")
    E("v_mad_u32_u24 v32, v23, v34, v32")
    E("v_cvt_f32_u32 v24, v32")
    E("v_lshrrev_b32 v33, 7, v32")
    E("v_and_b32 v32, 127, v32")
    E("v_cvt_f32_u32 v16, v33")
    E("v_cvt_f32_u32 v17, v32")
    E("v_add_u32 v32, 8, v20")
    E("v_cvt_f32_u32 v18, v32")
    E("v_mul_f32 v26, 0x43000000, v18")
    E("v_lshlrev_b32 v22, 3, v20")
    E("v_cvt_f32_u32 v27, v22")
    if DRY > 1:
        E("s_mov_b32 s5, 1")
        E("s_mov_b64 exec, 0")
        E("s_branch K_dA")
        L("K_areal")
        E("s_mov_b32 s5, 0")
        E("s_mov_b64 exec, -1")
    E("s_waitcnt lgkmcnt(0)")
    E("s_lshl_b32 s70, s22, 16")
    E("s_and_b32 s22, s22, s43")
    E("s_cmp_eq_u32 s69, 0")
    E("s_cselect_b32 s22, s70, s22")
    E("v_mov_b32 v40, 0x3fb8aa3b")
    E("v_mul_f32 v41, s22, v40")
    E("v_exp_f32 v41, v41")
    E("s_nop 0")
    E("v_cvt_pk_bf16_f32 v41, v41, v41")
    E("v_lshlrev_b32 v41, 16, v41")
    E(f"s_waitcnt vmcnt({2 if TOUCH else 0})")
    L("K_dA")
    for i in range(6):
        E(f"v_lshlrev_b32 v{84+i}, 16, v{84+i}")
    E("v_mul_f32 v84, v41, v84")
    E("v_mul_f32 v85, v41, v85")
    E("v_mul_f32 v86, v41, v86")
    E("v_mul_f32 v87, v41, v87")
    E("v_mul_f32 v44, v40, v84")
    E("v_mul_f32 v45, 0.15915494, v85")
    E("v_rndne_f32 v46, v45")
    E("v_sub_f32 v45, v45, v46")
    E("v_mul_f32 v46, 0x43000000, v45")
    E("v_rndne_f32 v47, v46")
    E("v_sub_f32 v46, v46, v47")
    E("v_mul_f32 v84, 0x43000000, v44")
    E("v_exp_f32 v84, v84")
    E("v_cos_f32 v47, v46")
    E("v_sin_f32 v85, v46")
    E("v_mul_f32 v80, v88, v86")
    E("v_fma_f32 v80, -v89, v87, v80")
    E("v_mul_f32 v81, v88, v87")
    E("v_fma_f32 v81, v89, v86, v81")
    E("v_mul_f32 v47, v84, v47")
    E("v_mul_f32 v82, v84, v85")
    E("s_lshl_b32 s70, s3, 11")
    E(f"s_add_u32 s70, s70, {S_P}")
    E("v_lshl_add_u32 v42, v1, 5, s70")
    E("ds_write_b128 v42, v[44:47]")
    E("ds_write_b128 v42, v[80:83] offset:16")
    E("v_lshl_add_u32 v43, v21, 6, s70")
    for r in range(48, 60):
        E(f"v_mov_b32 v{r}, 0")
    E("s_waitcnt lgkmcnt(0)")
    for k in range(4):
        E(f"ds_read_b128 {R4(60+4*k)}, v43 offset:{16*k}")
    E("s_mov_b32 s62, 0")
    E(f"s_mov_b32 s63, {NA}")
    if DRY > 1:
        E("s_cmp_lg_u32 s5, 0")
        E("s_cselect_b32 s63, 1, s63")
    L("K_loop")
    E("s_waitcnt lgkmcnt(0)")
    TT = [[96, 100, 104, 108], [136, 140, 144, 148]]
    for nn in range(2):
        zr, zi, w128 = 60 + 8 * nn, 61 + 8 * nn, 62 + 8 * nn
        T = TT[nn]
        E(f"v_mul_f32 v{T[3]}, v{zr}, v27")
        E(f"v_mul_f32 v{T[3]+1}, v{zi}, v27")
        E(f"v_mul_f32 v{T[0]}, v{zr}, v24")
        E(f"v_mul_f32 v{T[0]+1}, v{zi}, v17")
        E(f"v_mul_f32 v{T[2]}, v{zr}, v26")
        E(f"v_mul_f32 v{T[2]+1}, v{w128}, v18")
        E(f"v_fma_f32 v{T[0]+1}, v{w128}, v16, v{T[0]+1}")
        for k in range(4):
            E(f"v_mov_b32 v{76+4*nn+k}, v{63+8*nn+k}")
    E("v_add_u32 v43, 256, v43")
    for k in range(4):
        E(f"ds_read_b128 {R4(60+4*k)}, v43 offset:{16*k}")
    for nn in range(2):
        er, cbr, cbi, ei = 76 + 4 * nn, 77 + 4 * nn, 78 + 4 * nn, 79 + 4 * nn
        T = TT[nn]
        for t in [T[3], T[0], T[2]]:
            E(f"v_exp_f32 v{t}, v{t}")
            E(f"v_cos_f32 v{t+2}, v{t+1}")
            E(f"v_sin_f32 v{t+3}, v{t+1}")
        t = T[3]
        E(f"v_mul_f32 v{t+2}, v{t}, v{t+2}")
        E(f"v_mul_f32 v{t+3}, v{t}, v{t+3}")
        E(f"v_mul_f32 v{t}, v{cbr}, v{t+2}")
        E(f"v_mul_f32 v{t+1}, v{cbr}, v{t+3}")
        E(f"v_fma_f32 v{t}, -v{cbi}, v{t+3}, v{t}")
        E(f"v_fma_f32 v{t+3}, -v{cbi}, v{t+2}, -v{t+1}")
        E(f"v_mov_b32 v{t+2}, v{t}")
        for t in [T[0], T[2]]:
            E(f"v_mul_f32 v{t+2}, v{t}, v{t+2}")
            E(f"v_mul_f32 v{t+3}, v{t}, v{t+3}")
        p, q = T[0], T[1]
        E(f"v_mul_f32 v{q+2}, v{p+2}, v{er}")
        E(f"v_mul_f32 v{q+3}, v{p+2}, v{ei}")
        E(f"v_fma_f32 v{q+2}, -v{p+3}, v{ei}, v{q+2}")
        E(f"v_fma_f32 v{q+3}, v{p+3}, v{er}, v{q+3}")
        for k in range(4):
            t = T[k]
            hi = (112 + 2 * k + nn) if k < 3 else (124 + nn)
            lo = (118 + 2 * k + nn) if k < 3 else (126 + nn)
            E(f"v_cvt_pk_bf16_f32 v{hi}, v{t+2}, v{t+3}")
            E(f"v_lshlrev_b32 v{t}, 16, v{hi}")
            E(f"v_and_b32 v{t+1}, s43, v{hi}")
            E(f"v_sub_f32 v{t}, v{t+2}, v{t}")
            E(f"v_sub_f32 v{t+1}, v{t+3}, v{t+1}")
            E(f"v_cvt_pk_bf16_f32 v{lo}, v{t}, v{t+1}")
    E("s_add_u32 s62, s62, 1")
    E(f"s_cmp_eq_u32 s62, {LATE}")
    for k in range(3):
        a_ = 48 + 4 * k
        E(f"v_mfma_f32_16x16x16_bf16 {R4(a_)}, v[{112+2*k}:{113+2*k}], v[124:125], {R4(a_)}")
        E(f"v_mfma_f32_16x16x16_bf16 {R4(a_)}, v[{112+2*k}:{113+2*k}], v[126:127], {R4(a_)}")
        E(f"v_mfma_f32_16x16x16_bf16 {R4(a_)}, v[{118+2*k}:{119+2*k}], v[124:125], {R4(a_)}")
    E("s_cbranch_scc0 K_nost")
    E("s_lshl_b32 s70, s64, 13")
    E("s_lshl_b32 s71, s3, 11")
    E("s_add_u32 s70, s70, s71")
    E(f"s_mul_i32 s71, s69, {XROW}")
    E("s_lshl_b32 s72, s61, 11")
    E("s_add_u32 s71, s71, s72")
    E(f"s_add_u32 s71, s71, {XBASE + 4*XROW + 32}")
    E("s_mov_b32 m0, s71")
    E("s_nop 0")
    E(f"buffer_load_dwordx4 v9, s[{SRD_A}:{SRD_A+3}], s70 offen lds")
    E(f"buffer_load_dwordx4 v9, s[{SRD_A}:{SRD_A+3}], s70 offen offset:1024 lds")
    L("K_nost")
    E("s_cmp_lg_u32 s3, 0")
    E("s_cbranch_scc1 K_non")
    E("s_cmp_eq_u32 s62, 1")
    E("s_cbranch_scc0 K_non1")
    E(f"buffer_load_dwordx2 v[92:93], v95, s[{SRD_DBGB}:{SRD_DBGB+3}], 0 offen sc1")
    L("K_non1")
    E("s_cmp_eq_u32 s62, 2")
    E("s_cbranch_scc0 K_non")
    E("s_mov_b32 s70, 0")
    L("K_npoll")
    E("s_waitcnt vmcnt(0)")
    E("v_readfirstlane_b32 s71, v92")
    E("s_add_u32 s70, s70, 1")
    E("s_cmp_lg_u32 s71, 0")
    E("s_cbranch_scc1 K_ngot")
    E("s_sleep 4")
    E(f"buffer_load_dwordx2 v[92:93], v95, s[{SRD_DBGB}:{SRD_DBGB+3}], 0 offen sc1")
    E("s_cmp_lt_u32 s70, 0x40000")
    E("s_cbranch_scc1 K_npoll")
    E("s_waitcnt vmcnt(0)")
    E("v_mov_b32 v92, 1")
    L("K_ngot")
    E("ds_write_b64 v30, v[92:93] offset:272")
    L("K_non")
    E(f"s_cmp_eq_u32 s62, {LATE+3}")
    E("s_cbranch_scc0 K_nost2")
    E("s_waitcnt vmcnt(0)")
    post(0)
    L("K_nost2")
    E("s_cmp_lt_u32 s62, s63")
    E("s_cbranch_scc1 K_loop")
    E("s_waitcnt lgkmcnt(0)")
    STAMP(3)
    E("s_mul_i32 s70, s3, 3072")
    E(f"s_add_u32 s70, s70, {S_TR}")
    E("v_lshl_add_u32 v39, v1, 4, s70")
    E("v_and_b32 v4, 15, v1")
    E("v_lshrrev_b32 v5, 4, v1")
    E("v_lshlrev_b32 v6, 2, v4")
    E("v_add_u32 v6, v6, v5")
    E("s_nop 1")
    for k in range(3):
        E(f"ds_write_b128 v39, {R4(48+4*k)} offset:{1024*k}")
    post(1)
    E("s_mul_i32 s70, s69, 12288")
    E(f"s_add_u32 s70, s70, {S_KT}")
    E("v_lshlrev_b32 v32, 5, v20")
    E("v_add_u32 v32, s70, v32")
    E("v_lshl_add_u32 v44, v21, 11, v32")
    E("v_add_u32 v44, 4096, v44")
    E("v_add_u32 v45, 512, v44")
    E("v_add_u32 v46, 1024, v44")
    E("v_add_u32 v47, 1536, v44")
    E("v_lshlrev_b32 v22, 4, v21")
    E("v_lshrrev_b64 v[60:61], v22, s[74:75]")
    E("v_and_b32 v60, 0xffff, v60")
    E("v_lshl_add_u32 v35, v60, 2, v32")
    E("s_lshl_b32 s71, s61, 9")
    E("v_add_u32 v35, s71, v35")
    E("v_lshrrev_b64 v[60:61], v22, s[76:77]")
    E("v_and_b32 v60, 0xffff, v60")
    E("v_lshl_add_u32 v36, v60, 2, v35")
    E("v_lshrrev_b64 v[62:63], v22, s[78:79]")
    E("v_and_b32 v62, 0xffff, v62")
    E("v_lshl_add_u32 v37, v62, 2, v35")
    E("v_lshl_add_u32 v38, v62, 2, v36")
    E("s_mul_i32 s70, s69, 6144")
    E(f"s_add_u32 s70, s70, {S_TR}")
    E("v_lshl_add_u32 v39, v1, 4, s70")
    E("s_lshl_b32 s71, s61, 10")
    E("v_add_u32 v40, s71, v39")
    E("s_lshl_b32 s71, s61, 9")
    E("v_lshl_add_u32 v60, v1, 3, s71")
    E("s_mul_i32 s70, s69, 12288")
    E(f"s_add_u32 s70, s70, {S_KT}")
    E("v_lshl_add_u32 v72, v60, 2, s70")
    E("v_and_b32 v73, 1, v1")
    E("v_mul_u32_u24 v73, 0x202, v73")
    E("v_add_u32 v73, 0x03020100, v73")
    for rr in range(1):
        for e in range(0, 8, 2):
            E(f"v_add_u32 v62, {e + 1024*rr}, v60")
            E(f"v_add_u32 v63, {e + 1 + 1024*rr}, v60")
            E("v_cvt_f32_u32 v62, v62")
            E("v_cvt_f32_u32 v63, v63")
            E("v_cvt_pk_bf16_f32 v62, v62, v63")
            E("v_and_b32 v63, s43, v62")
            E("v_lshlrev_b32 v62, 16, v62")
            E("v_cvt_u32_f32 v62, v62")
            E("v_cvt_u32_f32 v63, v63")
            E(f"v_lshl_add_u32 v{64+8*rr+e}, v62, 2, s70")
            E(f"v_lshl_add_u32 v{65+8*rr+e}, v63, 2, s70")
    E(f"s_mul_i32 s70, s69, {XROW}")
    E(f"s_add_u32 s70, s70, {XBASE + 32}")
    E("v_lshl_add_u32 v61, v60, 1, s70")
    RSTAMP(1)
    waitf(1, 0, 4, 96)
    RSTAMP(2)
    srcoff = [0, 3072]
    for k in range(2):
        E(f"ds_read_b128 {R4(96+4*k)}, v40 offset:{srcoff[k]}")
    for k in range(2):
        E(f"ds_read_b128 {R4(112+4*k)}, v39 offset:{srcoff[k] + 2048}")
    for (b, dst, w) in [(96, 35, 2), (112, 44, 0)]:
        E(f"s_waitcnt lgkmcnt({w})")
        for e in range(4):
            E(f"v_add_f32 v{b+e}, v{b+e}, v{b+4+e}")
    for (b, dst) in [(96, 35), (112, 44)]:
        for e in range(4):
            E(f"ds_write_b32 v{dst+e}, v{b+e}")
    post(2)
    RSTAMP(4)
    waitf(2, 0, 4, 96)
    RSTAMP(6)
    E("ds_read_b32 v104, v72 offset:4096")
    E("ds_read_b32 v105, v72 offset:4128")
    for e in range(8):
        E(f"ds_read_b32 v{96+e}, v{64+e}")
    E("s_mov_b32 s70, 0x01000100")
    E("s_mov_b32 s71, 0x03020302")
    E("s_waitcnt lgkmcnt(8)")
    E("v_cvt_pk_bf16_f32 v106, v104, v105")
    E("v_lshlrev_b32 v62, 16, v106")
    E("v_and_b32 v63, s43, v106")
    E("v_sub_f32 v62, v104, v62")
    E("v_sub_f32 v63, v105, v63")
    E("v_cvt_pk_bf16_f32 v107, v62, v63")
    for (src, d) in [(106, 120), (107, 124)]:
        E(f"v_perm_b32 v{d}, v{src}, v{src}, s70")
        E(f"v_perm_b32 v{d+2}, v{src}, v{src}, v73")
        E(f"v_perm_b32 v{d+3}, v{src}, v{src}, s71")
        E(f"v_mov_b32 v{d+1}, v{d}")
    for e in range(0, 8, 2):
        src = 96 + e
        E(f"s_waitcnt lgkmcnt({6 - e})")
        E(f"v_cvt_pk_bf16_f32 v{112+e//2}, v{src}, v{src+1}")
        E(f"v_lshlrev_b32 v62, 16, v{112+e//2}")
        E(f"v_and_b32 v63, s43, v{112+e//2}")
        E(f"v_sub_f32 v62, v{src}, v62")
        E(f"v_sub_f32 v63, v{src+1}, v63")
        E(f"v_cvt_pk_bf16_f32 v{116+e//2}, v62, v63")
    for rr in range(2):
        E(f"ds_write_b128 v61, {R4(112+8*rr)} offset:{2048*rr}")
        E(f"ds_write_b128 v61, {R4(116+8*rr)} offset:{2*XROW + 2048*rr}")
    post(3)
    RSTAMP(7)
    STAMP(4)
    E("s_branch K_csetup")
    L("K_bwave")
    post(1)
    STAMP(3)
    E("s_sub_u32 s14, s6, 0x200000")
    E("s_sub_u32 s15, s13, 0x200000")
    E("s_add_u32 s12, s7, 8192")
    E("s_cmp_lg_u32 s3, 4")
    E("s_cbranch_scc1 K_b1")
    E(f"buffer_load_dwordx2 v[112:113], v226, s[{SRD_WS}:{SRD_WS+3}], s12 offen sc1")
    E("s_waitcnt vmcnt(1)")
    post(0)
    waitf(0, 4, 8, 144)
    E("s_mov_b64 exec, 1")
    E(f"buffer_store_dwordx2 v[92:93], v227, s[{SRD_WS}:{SRD_WS+3}], s9 offen sc1")
    E("s_mov_b64 exec, -1")
    STAMP(9)
    E("s_mov_b32 s70, 0")
    E("s_waitcnt vmcnt(1)")
    E("s_branch K_upoll1")
    L("K_b1")
    E("s_cmp_lg_u32 s3, 6")
    E("s_cbranch_scc1 K_b2")
    E("s_waitcnt vmcnt(1)")
    E("s_branch K_b3")
    L("K_b2")
    E("s_waitcnt vmcnt(0)")
    L("K_b3")
    post(0)
    E("s_cmp_lg_u32 s3, 5")
    E("s_cbranch_scc1 K_uwait")
    waitf(1, 4, 8, 144)
    E(f"ds_read_b64 v[144:145], v225 offset:{SYN + 256}")
    E("v_mov_b32 v146, s56")
    E("v_mov_b32 v147, s57")
    E("s_waitcnt lgkmcnt(0)")
    E("s_mov_b64 exec, 3")
    E(f"buffer_store_dwordx4 v[144:147], v227, s[{SRD_WS}:{SRD_WS+3}], s8 offen sc1")
    E("s_mov_b64 exec, -1")
    E("s_branch K_uwait")
    L("K_upoll")
    E(f"buffer_load_dwordx2 v[112:113], v226, s[{SRD_WS}:{SRD_WS+3}], s12 offen sc1")
    E("s_waitcnt vmcnt(0)")
    L("K_upoll1")
    E("v_xor_b32 v112, s56, v112")
    E("v_xor_b32 v113, s57, v113")
    E("v_or_b32 v112, v112, v113")
    E("v_cmp_ne_u32 vcc, 0, v112")
    E("s_add_u32 s70, s70, 1")
    E("s_cmp_eq_u64 vcc, 0")
    E("s_cbranch_scc1 K_uok")
    E(f"s_sleep {PSLEEP}")
    E("s_cmp_lt_u32 s70, 0x40000")
    E("s_cbranch_scc1 K_upoll")
    L("K_uok")
    post(3)
    E("s_branch K_udone")
    L("K_uwait")
    E(f"ds_read_b32 v93, v30 offset:{32*3 + 16}")
    E("s_waitcnt lgkmcnt(0)")
    E("v_readfirstlane_b32 s70, v93")
    E("s_cmp_eq_u32 s70, 1")
    E("s_cbranch_scc1 K_udone")
    E("s_sleep 1")
    E("s_branch K_uwait")
    L("K_udone")
    E(f"buffer_load_dwordx4 v[192:195], v233, s[{SRD_WS}:{SRD_WS+3}], s14 offen sc1")
    E(f"buffer_load_dwordx4 v[196:199], v233, s[{SRD_WS}:{SRD_WS+3}], s15 offen sc1")
    E(f"v_subrev_u32 v234, {8*ZROW}, v224")
    E("s_cmp_lg_u32 s3, 4")
    E("s_cbranch_scc1 K_unp")
    E(f"buffer_load_dwordx2 v[112:113], v226, s[{SRD_WS}:{SRD_WS+3}], s7 offen sc1")
    E("s_waitcnt vmcnt(1)")
    E("s_branch K_uw")
    L("K_unp")
    E("s_waitcnt vmcnt(0)")
    L("K_uw")
    E("ds_write_b128 v234, v[192:195]")
    E("ds_write_b128 v234, v[196:199] offset:128")
    E("ds_write_b32 v28, v29 offset:112")
    E("s_cmp_lg_u32 s3, 4")
    E("s_cbranch_scc1 K_pwait")
    E("s_mov_b32 s70, 0")
    E("s_branch K_poll1")
    L("K_poll")
    E(f"buffer_load_dwordx2 v[112:113], v226, s[{SRD_WS}:{SRD_WS+3}], s7 offen sc1")
    L("K_poll1")
    E("s_waitcnt vmcnt(0)")
    E("v_xor_b32 v112, s56, v112")
    E("v_xor_b32 v113, s57, v113")
    E("v_or_b32 v112, v112, v113")
    E("v_cmp_ne_u32 vcc, 0, v112")
    E("s_add_u32 s70, s70, 1")
    E("s_cmp_eq_u64 vcc, 0")
    E("s_cbranch_scc1 K_pok")
    E(f"s_sleep {PSLEEP}")
    E("s_cmp_lt_u32 s70, 0x40000")
    E("s_cbranch_scc1 K_poll")
    L("K_pok")
    post(5)
    E("s_branch K_pdone")
    L("K_pwait")
    E(f"ds_read_b32 v93, v30 offset:{32*5 + 16}")
    E("s_waitcnt lgkmcnt(0)")
    E("v_readfirstlane_b32 s70, v93")
    E("s_cmp_eq_u32 s70, 1")
    E("s_cbranch_scc1 K_pdone")
    E("s_sleep 1")
    E("s_branch K_pwait")
    L("K_pdone")
    STAMP(4)
    E(f"buffer_load_dwordx4 v[192:195], v233, s[{SRD_WS}:{SRD_WS+3}], s6 offen sc1")
    E(f"buffer_load_dwordx4 v[196:199], v233, s[{SRD_WS}:{SRD_WS+3}], s13 offen sc1")
    for k in range(5):
        E(f"v_mov_b32 v{16+k}, v{228+k}")
    finsetup(0)
    waitf(0, 0, 4, 24)
    preloadA(1)
    E("s_waitcnt vmcnt(1)")
    E("ds_write_b128 v224, v[192:195]")
    E("s_waitcnt vmcnt(0)")
    E("ds_write_b128 v224, v[196:199] offset:128")
    post(4)
    E(f"s_setprio {CBPRIO}")
    E("s_branch K_convB")
    L("K_csetup")
    vB, vA, vPM, vPC, vF = 16, 17, 18, 19, 20
    E("s_lshl_b32 s70, s3, 1")
    E(f"s_mul_i32 s70, s70, {ZROW}")
    E(f"s_add_u32 s70, s70, {ZBASE + 8}")
    E(f"v_lshlrev_b32 v{vB}, 3, v4")
    E(f"v_lshl_add_u32 v{vB}, v5, 4, v{vB}")
    E(f"v_add_u32 v{vB}, s70, v{vB}")
    E("v_and_b32 v22, 3, v1")
    E("v_bfe_u32 v23, v1, 2, 2")
    E("v_sub_u32 v22, v22, v23")
    E("v_lshlrev_b32 v22, 3, v22")
    E("v_lshlrev_b32 v23, 6, v5")
    E("v_sub_u32 v22, v22, v23")
    E("s_lshl_b32 s70, s68, 2")
    E("s_add_u32 s70, s70, s69")
    E(f"s_mul_i32 s70, s70, {XROW}")
    E(f"s_add_u32 s70, s70, {XBASE + 224}")
    E(f"v_add_u32 v{vA}, s70, v22")
    E("s_cmp_eq_u32 s68, 0")
    E(f"s_mov_b32 s71, {PB}")
    E(f"s_cselect_b32 s71, {PA}, s71")
    E(f"s_mul_i32 s70, s67, {PMS}")
    E("s_add_u32 s70, s70, s71")
    E("s_add_u32 s72, s70, 16")
    E(f"v_lshl_add_u32 v{vPM}, v1, 4, s72")
    E(f"s_mul_i32 s72, s67, {PCS}")
    E("s_add_u32 s72, s72, s71")
    E(f"s_add_u32 s72, s72, {4*PMS}")
    E("s_add_u32 s73, s72, 16")
    E(f"v_lshl_add_u32 v{vPC}, v1, 2, s73")
    E("s_lshl_b32 s73, s3, 2")
    E(f"s_add_u32 s73, s73, {FLG}")
    E(f"v_mov_b32 v{vF}, s73")
    E("v_mov_b32 v22, s70")
    E("v_mov_b32 v23, s72")
    if DRY > 1:
        E("s_cmp_lg_u32 s5, 0")
        E("s_cbranch_scc1 K_areal")
    RSTAMP(8)
    waitf(3, 0, 4, 24)
    RSTAMP(9)
    finsetup(7)
    waitf(7, 4, 8, 24)
    preloadA(2)
    waitf(4, 0, 4, 24)
    E("v_mov_b32 v24, 0")
    E("v_mov_b32 v25, 0")
    E("v_mov_b32 v26, 0")
    E("v_mov_b32 v27, 0")
    E("v_subrev_u32 v31, 16, v18")
    E("v_subrev_u32 v8, 16, v19")
    E("s_mov_b64 exec, 1")
    E("ds_write_b128 v31, v[24:27]")
    E("ds_write_b128 v8, v[24:27]")
    E("s_mov_b64 exec, -1")
    E("s_setprio 0")
    STAMP(5)

    def acc(pp, q):
        return 192 + 32 * pp + 4 * q
    def Bf(pp, jj):
        return 32 + 4 * ((jj % 4) * 2 + pp)
    def conv(nx):
        def Af(n, x):
            return 64 + 4 * (n * nx + x)
        queue = []
        def rdB(jj):
            for pp in range(2):
                b = Bf(pp, jj)
                E(f"ds_read_b64 v[{b}:{b+1}], v{vB} offset:{pp*ZROW + 64*jj}")
                E(f"ds_read_b64 v[{b+2}:{b+3}], v{vB} offset:{pp*ZROW + 64*jj + 8}")
                queue.extend([("B", jj, pp), ("B", jj, pp)])
        def need(keys):
            last = -1
            for idx, k in enumerate(queue):
                if k in keys:
                    last = idx
            if last >= 0:
                n_after = min(len(queue) - 1 - last, 15)
                E(f"s_waitcnt lgkmcnt({n_after})")
                del queue[:len(queue) - n_after]
        def mf(pp, q, jj, x, first=False):
            n = 2 * q - jj + 1
            c = "0" if first else R4(acc(pp, q))
            E(f"v_mfma_f32_16x16x32_bf16 {R4(acc(pp,q))}, {R4(Af(n,x))}, {R4(Bf(pp,jj))}, {c}")
        def writeout(q):
            a0, a1 = acc(0, q), acc(1, q)
            E(f"v_add_f32 v{a0+1}, v{a0+1}, v{a1}")
            E(f"v_add_f32 v{a0+2}, v{a0+2}, v{a1+1}")
            E(f"v_add_f32 v{a0+3}, v{a0+3}, v{a1+2}")
            E(f"ds_write_b32 v{vPC}, v{a1+3} offset:{256*q}")
            E(f"ds_write_b128 v{vPM}, {R4(a0)} offset:{1024*q}")
            E(f"ds_write_b32 v{vF}, v29 offset:{32*q}")
            queue.extend([("W",), ("W",), ("W",)])
        rdB(0); rdB(1); rdB(2)
        for jj in range(16):
            q0 = jj >> 1
            k = 0
            for q in range(q0, 8):
                for pp in range(2):
                    if q == q0:
                        need({("B", jj, pp)})
                    for x in range(nx):
                        mf(pp, q, jj, x, first=(jj == 0 and x == 0))
                k += 1
                if k == 1 and jj + 3 < 16:
                    rdB(jj + 3)
                if jj % 2 == 0 and jj >= 2 and q == min(q0 + 1, 7):
                    if jj == 14:
                        E("s_nop 3")
                    writeout(q0 - 1)
        E("s_nop 7")
        writeout(7)
    conv(2)
    STAMP(6)
    E("s_branch K_fin")
    L("K_convB")
    waitf(4, 4, 8, 24)
    E(f"buffer_load_dwordx4 v[12:15], v9, s[{SRD_WS}:{SRD_WS+3}], s60 offen sc1")
    E(f"buffer_load_dwordx4 v[24:27], v9, s[{SRD_WS}:{SRD_WS+3}], s60 offen offset:1024 sc1")
    STAMP(5)
    conv(1)
    STAMP(6)
    E("s_mov_b32 s70, 0")
    L("K_gpoll")
    E("s_waitcnt vmcnt(0)")
    E("v_xor_b32 v14, s56, v14")
    E("v_xor_b32 v15, s57, v15")
    E("v_xor_b32 v26, s56, v26")
    E("v_xor_b32 v27, s57, v27")
    E("v_or_b32 v14, v14, v15")
    E("v_or_b32 v26, v26, v27")
    E("v_or_b32 v14, v14, v26")
    E("v_cmp_ne_u32 vcc, 0, v14")
    E("s_add_u32 s70, s70, 1")
    E("s_cmp_eq_u64 vcc, 0")
    E("s_cbranch_scc1 K_gok")
    E("s_cmp_ge_u32 s70, 0x40000")
    E("s_cbranch_scc1 K_gok")
    E("s_sleep 8")
    E(f"buffer_load_dwordx4 v[12:15], v9, s[{SRD_WS}:{SRD_WS+3}], s60 offen sc1")
    E(f"buffer_load_dwordx4 v[24:27], v9, s[{SRD_WS}:{SRD_WS+3}], s60 offen offset:1024 sc1")
    E("s_branch K_gpoll")
    L("K_gok")
    for (src, dst) in [(12, 32), (24, 36)]:
        for hh in range(2):
            E(f"v_lshlrev_b32 v{dst+2*hh}, 16, v{src+hh}")
            E(f"v_and_b32 v{dst+2*hh+1}, s43, v{src+hh}")
        for e in range(4):
            E(f"v_sub_f32 v40, 1.0, v{dst+e}")
            E(f"v_cvt_pk_bf16_f32 v{dst+e}, v{dst+e}, v40")
    E("ds_write_b128 v10, v[32:35]")
    E("ds_write_b128 v10, v[36:39] offset:1024")
    post(6)
    if FINPRIO:
        E(f"s_setprio {FINPRIO}")
    L("K_fin")
    waitf(6, 4, 8, 32)
    L("K_hloop")
    for r in range(48, 52):
        E(f"v_mov_b32 v{r}, 0")
    for k in range(4):
        E(f"ds_read_u16_d16_hi v{48+k}, v21 offset:{ZBASE + 4*k*ZROW + 128}")
    E("ds_read_b32 v8, v7")
    L("K_hpoll")
    E("ds_read_b128 v[32:35], v23")
    E("ds_read_b128 v[36:39], v23 offset:16")
    E("s_waitcnt lgkmcnt(0)")
    for k in range(0, 8, 2):
        E(f"v_and_b32 v{32+k}, v{32+k}, v{33+k}")
    E("v_and_b32 v32, v32, v34")
    E("v_and_b32 v36, v36, v38")
    E("v_and_b32 v32, v32, v36")
    E("s_nop 0")
    E("v_readfirstlane_b32 s70, v32")
    E("s_cmp_eq_u32 s70, 1")
    E("s_cbranch_scc1 K_go")
    E("s_sleep 3")
    E("s_branch K_hpoll")
    L("K_go")
    for k in range(4):
        X, c = k >> 1, k & 1
        base = PSTRIDE if X == 0 else 0
        E(f"ds_read_b32 v{32+k}, v2 offset:{base + 2*c*PMS}")
        E(f"ds_read_b32 v{36+k}, v3 offset:{base + 2*c*PMS}")
        E(f"ds_read_b32 v{40+k}, v11 offset:{base + 2*c*PCS}")
    def rnd(a, b):
        E(f"v_cvt_pk_bf16_f32 v{a}, v{a}, v{b}")
        E(f"v_and_b32 v{b}, s43, v{a}")
        E(f"v_lshlrev_b32 v{a}, 16, v{a}")
    yA0, yA1, yB0, yB1 = 32, 33, 34, 35
    u0, u1, k0, k1 = 48, 49, 50, 51
    t = 52
    E(f"v_mul_f32 v{t}, s76, v{u0}")
    E(f"v_mul_f32 v{t+1}, s77, v{u1}")
    E(f"v_mul_f32 v{t+2}, s78, v{k0}")
    E(f"v_mul_f32 v{t+3}, s79, v{k1}")
    rnd(t, t + 1)
    rnd(t + 2, t + 3)
    E(f"v_lshlrev_b32 v{t+4}, 16, v8")
    E(f"v_and_b32 v{t+5}, s43, v8")
    E("v_add_u32 v2, 1024, v2")
    E("v_add_u32 v3, 1024, v3")
    E("v_add_u32 v11, s75, v11")
    E("v_add_u32 v21, 128, v21")
    E("v_add_u32 v23, 32, v23")
    E("v_add_u32 v7, 1024, v7")
    for k in range(4):
        E(f"s_waitcnt lgkmcnt({9-3*k})")
        E(f"v_add_f32 v{32+k}, v{32+k}, v{36+k}")
        E(f"v_add_f32 v{32+k}, v{32+k}, v{40+k}")
    rnd(yA0, yA1)
    rnd(yB0, yB1)
    E(f"v_add_f32 v{yA0}, v{yA0}, v{t}")
    E(f"v_add_f32 v{yA1}, v{yA1}, v{t+1}")
    E(f"v_add_f32 v{yB0}, v{yB0}, v{t+2}")
    E(f"v_add_f32 v{yB1}, v{yB1}, v{t+3}")
    rnd(yA0, yA1)
    rnd(yB0, yB1)
    E(f"v_mul_f32 v{yB0}, v{u0}, v{yB0}")
    E(f"v_mul_f32 v{yB1}, v{u1}, v{yB1}")
    rnd(yB0, yB1)
    E(f"v_mul_f32 v{yA0}, v{t+4}, v{yA0}")
    E(f"v_mul_f32 v{yA1}, v{t+4}, v{yA1}")
    E(f"v_mul_f32 v{yB0}, v{t+5}, v{yB0}")
    E(f"v_mul_f32 v{yB1}, v{t+5}, v{yB1}")
    rnd(yA0, yA1)
    rnd(yB0, yB1)
    E(f"v_add_f32 v{yA0}, v{yA0}, v{yB0}")
    E(f"v_add_f32 v{yA1}, v{yA1}, v{yB1}")
    E(f"v_cvt_pk_bf16_f32 v{yA0}, v{yA0}, v{yA1}")
    E(f"buffer_store_dword v{yA0}, v22, s[{SRD_OUT}:{SRD_OUT+3}], s72 offen")
    E("v_add_u32 v22, 0x40000, v22")
    E("s_add_u32 s73, s73, 1")
    E("s_cmp_lt_u32 s73, s74")
    E("s_cbranch_scc1 K_hloop")
    STAMP(7)
    if DBG: E("s_waitcnt vmcnt(0)")
    STAMP(8)
    if "--pro" in sys.argv:
        E("s_waitcnt lgkmcnt(0)")
        for i in range(3, 8): E(f"s_mov_b32 s{80+2*i}, s{1+i}")
    DUMP(10, SRD_WS)
    L("K_end")
    E("s_endpgm")
    sg = 102 if DBG else 80
    return f""".amdhsa_kernel {name}
  .amdhsa_next_free_vgpr 256
  .amdhsa_next_free_sgpr {sg}
  .amdhsa_accum_offset 256
  .amdhsa_group_segment_fixed_size 0
  .amdhsa_kernarg_size 152
  .amdhsa_user_sgpr_count 2
  .amdhsa_user_sgpr_kernarg_segment_ptr 1
  .amdhsa_system_sgpr_workgroup_id_x 1
  .amdhsa_float_denorm_mode_32 3
.end_amdhsa_kernel"""

def main():
    hdr = HEADER.rstrip("\n")
    pre = [hdr,
           f"; @launch grid=(256,1,1) block=(512,1,1) lds={LDS_SIZE}",
           '.amdgcn_target "amdgcn-amd-amdhsa--gfx950"',
           ".text"]
    k = gen()
    txt = "\n".join(pre + out) + '\n.section .rodata,"a"\n.p2align 6\n' + k + "\n"
    args = [a for a in sys.argv[1:] if not a.startswith("--")]
    path = args[0] if args else "cdna_kernels/%s.s" % NAME
    open(path, "w").write(txt)

main()
```
